```python
import torch

def _softmax(x, axis=-1):
    return torch.softmax(x, dim=axis)

def _gelu(x):
    return torch.nn.functional.gelu(x, approximate='tanh')

def _silu(x):
    return torch.nn.functional.silu(x)

def _sigmoid(x):
    return torch.sigmoid(x)

def _layernorm(x, axis=-1, eps=1e-05):
    m = x.mean(dim=axis, keepdim=True)
    v = x.var(dim=axis, keepdim=True, unbiased=False)
    return (x - m) / torch.sqrt(v + eps)

def _scatter_add(tgt, idx, src, axis=0):
    return tgt.clone().index_add_(axis, idx, src)

def _segment_sum(src, seg, n):
    out = torch.zeros((n,) + src.shape[1:], dtype=src.dtype)
    return out.index_add_(0, seg, src)

def _pad(x, pw):
    flat = tuple((v for pair in reversed(pw) for v in pair))
    return torch.nn.functional.pad(x, flat)
kernel_name = 'standalone__detection_seg_detr_decoder__vision'

def setup_inputs():

    _w = lambda a: (lambda t: t.to(torch.bfloat16) if t.is_floating_point() else t)(torch.as_tensor(a))
    H = W = 384 // 2 * 2
    C = 384
    Nq = 32
    return {'q': _w((lambda *s: torch.randn(*s, dtype=torch.bfloat16) * 0.05)(1, Nq, C)), 'feat_hi': _w((lambda *s: torch.randn(*s, dtype=torch.bfloat16) * 0.1)(1, H, W, C)), 'feat_lo': _w((lambda *s: torch.randn(*s, dtype=torch.bfloat16) * 0.1)(1, H // 2, W // 2, C)), 'lat_hi': _w((lambda *s: torch.randn(*s, dtype=torch.bfloat16) * 0.1)(C, C)), 'lat_lo': _w((lambda *s: torch.randn(*s, dtype=torch.bfloat16) * 0.1)(C, C)), 'wq': _w((lambda *s: torch.randn(*s, dtype=torch.bfloat16) * 0.1)(C, C)), 'wkv': _w((lambda *s: torch.randn(*s, dtype=torch.bfloat16) * 0.1)(C, 2 * C)), 'wo': _w((lambda *s: torch.randn(*s, dtype=torch.bfloat16) * 0.05)(C, C)), 'w1': _w((lambda *s: torch.randn(*s, dtype=torch.bfloat16) * 0.05)(C, 4 * C)), 'w2': _w((lambda *s: torch.randn(*s, dtype=torch.bfloat16) * 0.05)(4 * C, C))}

def reference(q, feat_hi, feat_lo, lat_hi, lat_lo, wq, wkv, wo, w1, w2):
    B, Nq, C = q.shape
    _, H, W, _ = feat_hi.shape
    lo = feat_lo @ lat_lo
    up = (lambda x, n, axis: torch.repeat_interleave(x, n, dim=axis))((lambda x, n, axis: torch.repeat_interleave(x, n, dim=axis))(lo, 2, axis=1), 2, axis=2)
    fused = feat_hi @ lat_hi + up
    mem = fused.reshape(B, H * W, C)
    qn = _layernorm(q, axis=-1)
    Q = qn @ wq
    KV = mem @ wkv
    K, V = (KV[..., :C].clone(), KV[..., C:].clone())
    scale = C ** (-0.5)
    logits = torch.einsum('bqc,bkc->bqk', Q, K) * scale
    P = _softmax(logits, axis=-1)
    O = torch.einsum('bqk,bkc->bqc', P, V)
    h = q + O @ wo
    hn = _layernorm(h, axis=-1)
    return h + _gelu(hn @ w1) @ w2
```

```python
KA = dict(q=0, feat_hi=8, feat_lo=16, lat_hi=24, lat_lo=32, wq=40, wkv=48, wo=56, w1=64, w2=72, out=80, dbg=88, ws=96)
SZ = dict(q=24576, feat_hi=113246208, feat_lo=28311552, lat_hi=294912, lat_lo=294912, wq=294912, wkv=589824,
          wo=294912, w1=1179648, w2=1179648, out=24576, dbg=256, ws=452984832)
import struct
def f2u(x): return struct.unpack('<I', struct.pack('<f', x))[0]
def fx(x): return '0x%08x' % f2u(x)

class E:
    def __init__(s):
        s.l = []; s.ds = []; s.uid = 0; s.deferred = []
    def __call__(s, t):
        for x in t.split('\n'):
            x = x.strip()
            if x: s.l.append(x if x.endswith(':') or x.startswith('.') else '    ' + x)
    def c(s, t): s.l.append('    ; ' + t)
    def label(s, p='L'):
        s.uid += 1; return f'{p}_{s.uid}'
    def dsop(s, t, tag=None):
        s(t); s.ds.append(tag)
    def dswait(s, tag):
        idx = max(i for i, t in enumerate(s.ds) if t == tag)
        n = len(s.ds) - 1 - idx
        assert n <= 15, n
        s(f's_waitcnt lgkmcnt({n})'); s.ds = s.ds[idx + 1:]
    def dsall(s):
        s('s_waitcnt lgkmcnt(0)'); s.ds = []
    def text(s): return '\n'.join(s.l) + '\n'

def vr(b, n=4, k='v'): return f'{k}[{b}:{b+n-1}]' if n > 1 else f'{k}{b}'
def ar(b, n=4): return vr(b, n, 'a')
def sr(b, n=4): return vr(b, n, 's')

def load_srds(e, items):
    for b, nm in items:
        e(f's_load_dwordx2 s[{b}:{b+1}], s[0:1], {KA[nm]}')
    for b, nm in items:
        e(f's_mov_b32 s{b+2}, {SZ[nm]}\ns_mov_b32 s{b+3}, 0x20000')

def kstart(e, name):
    e(f'.globl {name}\n.p2align 8\n.type {name},@function\n{name}:')
def kdesc(name, vgpr, sgpr, accum):
    return f'''.p2align 6
.amdhsa_kernel {name}
  .amdhsa_next_free_vgpr {vgpr}
  .amdhsa_next_free_sgpr {sgpr}
  .amdhsa_accum_offset {accum}
  .amdhsa_group_segment_fixed_size 0
  .amdhsa_kernarg_size 104
  .amdhsa_user_sgpr_count 2
  .amdhsa_user_sgpr_kernarg_segment_ptr 1
  .amdhsa_system_sgpr_workgroup_id_x 1
.end_amdhsa_kernel
'''
def xsum16_32(e, x, t, op='v_add_f32'):
    e(f'v_mov_b32 v{t}, v{x}\ns_nop 1\nv_permlane16_swap_b32 v{x}, v{t}\n{op} v{x}, v{x}, v{t}')
    e(f'v_mov_b32 v{t}, v{x}\ns_nop 1\nv_permlane32_swap_b32 v{x}, v{t}\n{op} v{x}, v{x}, v{t}')
```

```python
import re, sys
REG = re.compile(r'(?<![\w.])(-?\|?)([vas])(?:(\d+)|\[(\d+):(\d+)\])')
def regs(tok):
    out = set()
    for m in REG.finditer(tok):
        k = m.group(2)
        if m.group(3) is not None: out.add((k, int(m.group(3))))
        else:
            for i in range(int(m.group(4)), int(m.group(5)) + 1): out.add((k, i))
    t = tok.strip()
    if re.search(r'\bvcc\b', t): out |= {('s', 'vcc_lo'), ('s', 'vcc_hi')}
    if re.search(r'\bvcc_lo\b', t): out.add(('s', 'vcc_lo'))
    if re.search(r'\bvcc_hi\b', t): out.add(('s', 'vcc_hi'))
    if re.search(r'\bm0\b', t): out.add(('s', 'm0'))
    if re.search(r'\bexec\b', t): out |= {('s', 'exec')}
    return out
TRANS = ('v_exp_f32', 'v_log_f32', 'v_rcp_f32', 'v_rsq_f32', 'v_sqrt_f32', 'v_sin_f32', 'v_cos_f32', 'v_rcp_iflag_f32')
class I:
    def __init__(s, text, ln):
        s.text = text; s.ln = ln
        p = text.split(None, 1); s.op = p[0]
        rest = p[1] if len(p) > 1 else ''
        ops = [x.strip() for x in re.split(r',(?![^\[]*\])', rest)] if rest else []
        s.ops = ops
        op = s.op
        s.mfma = op.startswith('v_mfma')
        s.valu = op.startswith('v_') and not s.mfma
        s.salu = op.startswith('s_')
        s.vmem = op.startswith(('buffer_', 'global_'))
        s.ds = op.startswith('ds_')
        s.dot = op.startswith('v_dot')
        s.trans = op.startswith(TRANS)
        s.dpp = '_dpp' in op or 'row_' in rest or 'quad_perm' in rest
        s.lds_dma = s.vmem and (rest.rstrip().endswith('lds') or '_lds_' in op)
        s.w = set(); s.r = set(); s.data = set()
        if s.mfma:
            s.w = regs(ops[0]); s.a = regs(ops[1]); s.b = regs(ops[2]); s.c = regs(ops[3]); s.r = s.a | s.b | s.c
            s.passes = 8 if '32x32' in op else 4
        elif s.valu:
            if op.startswith('v_nop'): pass
            elif 'swap' in op:
                s.w = regs(ops[0]) | regs(ops[1]); s.r = set(s.w)
            else:
                s.w = regs(ops[0]); k = 1
                if '_co_' in op or op.startswith(('v_div_scale', 'v_mad_u64')):
                    s.w |= regs(ops[1]); k = 2
                for o in ops[k:]: s.r |= regs(o)
                if op.startswith(('v_fmac', 'v_dot2c', 'v_pk_fmac', 'v_writelane')) or s.dpp: s.r |= regs(ops[0])
                if op.startswith('v_cmpx'): s.w.add(('s', 'exec'))
        elif s.ds:
            if op.startswith(('ds_read', 'ds_bpermute', 'ds_permute', 'ds_swizzle')) or '_rtn' in op:
                s.w = regs(ops[0])
                for o in ops[1:]: s.r |= regs(o)
            else:
                for o in ops: s.r |= regs(o)
        elif s.vmem:
            if s.lds_dma:
                for o in ops: s.r |= regs(o)
                s.r.add(('s', 'm0'))
            elif '_load' in op:
                s.w = regs(ops[0])
                for o in ops[1:]: s.r |= regs(o)
            elif op.startswith(('buffer_wbl2', 'buffer_inv')): pass
            else:
                for o in ops: s.r |= regs(o)
                s.data = regs(ops[0]) if op.startswith('buffer_') else regs(ops[1])
                if 'atomic' in op and 'sc0' in rest: s.w = regs(ops[0])
        elif s.salu:
            if op.startswith(('s_cmp', 's_cbranch', 's_branch', 's_waitcnt', 's_nop', 's_barrier', 's_endpgm', 's_sleep', 's_setprio', 's_bitcmp')):
                for o in ops: s.r |= regs(o)
            else:
                s.w = regs(ops[0]) if ops else set()
                for o in ops[1:]: s.r |= regs(o)
                if 'saveexec' in op: s.w.add(('s', 'exec'))
        s.states = int(ops[0], 0) + 1 if op == 's_nop' else 1
def need(p, c):
    n = 0; why = ''
    def up(k, w):
        nonlocal n, why
        if k > n: n, why = k, w
    vw = {x for x in p.w if x[0] in 'va'}; sw = {x for x in p.w if x[0] == 's'}
    if p.valu:
        if c.mfma and vw & c.r: up(3 if p.dot else 2, 'valu->mfma')
        if p.trans and c.valu and not c.trans and vw & c.r: up(1, 'trans')
        if p.trans and (c.vmem or c.ds) and vw & c.r: up(1, 'trans->mem')
        if c.op.startswith(('v_readlane', 'v_readfirstlane')) and vw & c.r: up(1, 'valu->readlane')
        if 'permlane' in c.op and vw & c.r: up(2, 'valu->permlane')
        if c.dpp and vw & c.r: up(2, 'valu->dpp')
        if c.valu and sw & c.r: up(4 if c.op.startswith(('v_readlane', 'v_writelane', 'v_div_fmas')) else 2, 'valu sgpr->valu')
        if c.mfma and ('s', 'exec') in sw: up(4, 'exec->mfma')
        if c.vmem and sw & c.r: up(5, 'valu sgpr->vmem')
        if ('sdwa' in p.op or ('op_sel' in p.text and not p.op.startswith('v_pk'))) and c.valu and vw & (c.r | c.w): up(1, 'sdwa')
        if p.dot and vw & (c.r | c.w) and (c.valu or c.vmem or c.ds):
            if c.op == p.op and c.dot:
                srcab = regs(c.ops[1]) | regs(c.ops[2])
                if vw & srcab: up(3, 'dot->dot ab')
            else: up(3, 'dot->other')
    if p.mfma:
        big = p.passes == 8
        if c.mfma:
            if p.w & c.c and not (p.w == c.c and p.passes == c.passes): up(10 if big else 6, 'mfma->mfma C overlap')
            if p.w & (c.a | c.b): up(12 if big else 8, 'mfma->mfma AB')
            if p.w & c.w and not (p.w & c.c): up(10 if big else 6, 'mfma WAW')
        elif c.valu or c.vmem or c.ds:
            if p.w & (c.r | c.w): up(12 if big else 8, 'mfma D->use')
            if c.valu and p.c & c.w: up(7 if big else 3, 'mfma C WAR')
    if p.salu and ('s', 'm0') in p.w and c.lds_dma: up(1, 'm0->dma')
    if p.vmem and p.data and ('x4' in p.op or 'x3' in p.op) and p.data & c.w: up(2 if c.valu else 1, 'store data WAR')
    return n, why
def check(text, verbose=True):
    ins = []; labels = {}
    for ln, line in enumerate(text.split('\n'), 1):
        l = line.split(';')[0].split('//')[0].strip()
        if not l: continue
        m = re.match(r'^([\w.$]+):\s*(.*)$', l)
        if m:
            labels[m.group(1)] = len(ins); l = m.group(2).strip()
            if not l: continue
        if l.startswith('.'): continue
        ins.append(I(l, ln))
    def succ(i):
        x = ins[i]
        if x.op == 's_endpgm': return []
        if x.op == 's_branch': return [labels[x.ops[0]]]
        out = [i + 1] if i + 1 < len(ins) else []
        if x.op.startswith('s_cbranch') and x.op != 's_cbranch_execz': out.append(labels[x.ops[0]])
        return out
    bad = set()
    for i, p in enumerate(ins):
        if not (p.valu or p.mfma or (p.salu and ('s', 'm0') in p.w) or (p.vmem and p.data)): continue
        lim = 12 if p.mfma else 5
        st = [(j, 0) for j in succ(i)]; seen = {}
        while st:
            j, d = st.pop()
            if j >= len(ins) or d >= lim or seen.get(j, 99) <= d: continue
            seen[j] = d
            n, why = need(p, ins[j])
            if n > d: bad.add((p.ln, ins[j].ln, why, n, d, p.text, ins[j].text))
            for k in succ(j): st.append((k, d + ins[j].states))
    if verbose:
        for b in sorted(bad): print('HAZARD line %d -> %d [%s] need %d have %d\n    %s\n    %s' % b)
    return len(bad)
if __name__ == '__main__':
    n = check(open(sys.argv[1]).read()); print(n, 'hazards')
```

```python
import sys, math
from common import *
import hazard
QF, TF, AF, UF, HF, GF, ML, WCF, PART = 0x0, 0x8000, 0x10000, 0x20000, 0x30000, 0x40000, 0x60000, 0x80000, 0x200000
LOG2E = 1.4426950408889634
M4 = [0, 2, 3, 1]

def preamble(e, nwg, lend):
    e(f's_cmp_ge_u32 s2, {nwg}\ns_cbranch_scc1 {lend}')
def lane_wave(e):
    e('v_lshrrev_b32 v1, 6, v0\nv_and_b32 v0, 63, v0\nv_readfirstlane_b32 s3, v1')

def k_lngemm(e, name, nj, xsrc, wname, wstride, gelu, obase, ostride):
    kstart(e, name); L = name + '_end'
    preamble(e, nj * 2, L)
    load_srds(e, [(8, wname), (12, 'ws'), (16, 'q')])
    lane_wave(e)
    e('s_and_b32 s4, s2, 1\ns_lshr_b32 s5, s2, 1')
    XF = 16
    e('v_and_b32 v2, 15, v0\nv_lshrrev_b32 v3, 4, v0')
    if xsrc == 'q':
        e('v_mul_u32_u24 v4, 768, v2\nv_lshl_add_u32 v4, v3, 4, v4\ns_mul_i32 s6, s4, 12288')
        e('s_waitcnt lgkmcnt(0)')
        for ks in range(12): e(f'buffer_load_dwordx4 {vr(XF+4*ks)}, v4, s[16:19], s6 offen offset:{64*ks}')
    else:
        e(f'v_lshlrev_b32 v4, 4, v0\ns_mul_i32 s6, s4, 12288\ns_add_u32 s6, s6, {HF}')
        e('s_waitcnt lgkmcnt(0)')
        for ks in range(12):
            e(f'buffer_load_dwordx4 {vr(XF+4*ks)}, v4, s[12:15], s6 offen offset:{1024*(ks%4)}')
            if ks % 4 == 3: e('s_add_u32 s6, s6, 4096')
    e(f'v_lshrrev_b32 v5, 3, v0\nv_mul_u32_u24 v5, {wstride}, v5')
    e('v_bfe_u32 v6, v0, 4, 1\ns_and_b32 s7, s3, 1\ns_lshl_b32 s7, s7, 1\nv_or_b32 v6, s7, v6\nv_lshlrev_b32 v6, 1, v6')
    e('v_and_b32 v7, 7, v0\nv_xor_b32 v6, v6, v7\nv_lshl_add_u32 v5, v6, 4, v5')
    e(f's_lshl_b32 s20, s5, 7\ns_mul_i32 s21, s3, {8*wstride}\ns_add_u32 s20, s20, s21\ns_lshl_b32 s21, s3, 10\ns_mov_b32 m0, s21')
    for n in range(12):
        e('s_nop 0\nbuffer_load_dwordx4 v5, s[8:11], s20 offen lds')
        e(f's_add_u32 s20, s20, {32*wstride}\ns_add_u32 m0, m0, 4096')
    e('s_mov_b32 s22, 0x3f803f80\nv_mov_b32 v8, 0\nv_mov_b32 v9, 0')
    for i in range(4): e(f'v_mov_b32 v{12+i}, s22')
    e('s_waitcnt vmcnt(12)')
    for i in range(48):
        e(f'v_dot2_f32_bf16 v8, v{XF+i}, v12, v8\nv_dot2_f32_bf16 v9, v{XF+i}, v{XF+i}, v9')
    e('s_nop 2')
    xsum16_32(e, 8, 10); xsum16_32(e, 9, 10)
    e(f'v_mul_f32 v8, {fx(1/384)}, v8\nv_mul_f32 v9, {fx(1/384)}, v9\nv_fma_f32 v9, -v8, v8, v9\nv_max_f32 v9, 0, v9\nv_add_f32 v9, {fx(1e-5)}, v9\nv_rsq_f32 v9, v9')
    e('v_bfe_u32 v5, v0, 2, 2\nv_lshlrev_b32 v6, 10, v3\nv_lshl_add_u32 v6, v5, 7, v6')
    e('v_lshrrev_b32 v5, 1, v5\nv_and_b32 v7, 1, v3\nv_lshl_or_b32 v5, v7, 1, v5\nv_xor_b32 v5, s3, v5\nv_lshl_add_u32 v6, v5, 5, v6')
    e('v_and_b32 v5, 3, v0\nv_lshl_add_u32 v6, v5, 3, v6')
    e('s_waitcnt vmcnt(0)\ns_barrier')
    WF = 64; D = 112; CS = 116
    for ks in range(12):
        for u in range(2):
            e.dsop(f'ds_read_b64_tr_b16 {vr(WF+4*ks+2*u,2)}, v6 offset:{4096*ks+512*u}', ('w', ks))
        if ks >= 5:
            k = ks - 5
            e.dswait(('w', k))
            e(f'v_mfma_f32_16x16x32_bf16 {vr(D)}, {vr(WF+4*k)}, {vr(XF+4*k)}, {vr(D) if k else 0}')
            e(f'v_mfma_f32_16x16x32_bf16 {vr(CS)}, {vr(WF+4*k)}, v[12:15], {vr(CS) if k else 0}')
    for k in range(7, 12):
        e.dswait(('w', k))
        e(f'v_mfma_f32_16x16x32_bf16 {vr(D)}, {vr(WF+4*k)}, {vr(XF+4*k)}, {vr(D)}')
        e(f'v_mfma_f32_16x16x32_bf16 {vr(CS)}, {vr(WF+4*k)}, v[12:15], {vr(CS)}')
    e('v_lshrrev_b32 v5, 1, v3\nv_lshlrev_b32 v5, 8, v5\nv_lshl_add_u32 v5, v2, 4, v5\nv_and_b32 v7, 1, v3\nv_lshl_add_u32 v5, v7, 3, v5')
    e(f's_lshl_b32 s20, s5, 2\ns_add_u32 s20, s20, s3\ns_lshl_b32 s20, s20, 9\ns_mul_i32 s21, s4, {ostride}\ns_add_u32 s20, s20, s21\ns_add_u32 s20, s20, {obase}')
    for i in range(4): e(f'v_fma_f32 v{D+i}, -v8, v{CS+i}, v{D+i}')
    for i in range(4): e(f'v_mul_f32 v{D+i}, v9, v{D+i}')
    if gelu:
        c1 = -2 * math.sqrt(2 / math.pi) * LOG2E; c3 = c1 * 0.044715
        e(f's_mov_b32 s22, {fx(c3)}\nv_mov_b32 v10, {fx(c1)}')
        for i in range(4): e(f'v_mul_f32 v{CS+i}, v{D+i}, v{D+i}')
        for i in range(4): e(f'v_fma_f32 v{CS+i}, v{CS+i}, s22, v10')
        for i in range(4): e(f'v_mul_f32 v{CS+i}, v{CS+i}, v{D+i}')
        for i in range(4): e(f'v_exp_f32 v{CS+i}, v{CS+i}')
        for i in range(4): e(f'v_add_f32 v{CS+i}, 1.0, v{CS+i}')
        for i in range(4): e(f'v_rcp_f32 v{CS+i}, v{CS+i}')
        for i in range(4): e(f'v_mul_f32 v{D+i}, v{D+i}, v{CS+i}')
    e(f'v_cvt_pk_bf16_f32 v10, v{D}, v{D+1}\nv_cvt_pk_bf16_f32 v11, v{D+2}, v{D+3}')
    e('buffer_store_dwordx2 v[10:11], v5, s[12:15], s20 offen')
    e(f'{L}:\ns_endpgm')
    return kdesc(name, 128, 32, 128)

def k_nt(e, name, nct, stage):
    kstart(e, name); L = name + '_end'
    preamble(e, nct * 2, L)
    e('s_and_b32 s4, s2, 1\ns_lshr_b32 s5, s2, 1')
    if stage == 't':
        load_srds(e, [(8, 'wkv'), (12, 'ws')]); stride = 1536; src, dst, ostride = QF, TF, 12288
        e('s_mov_b32 s6, s5')
    else:
        load_srds(e, [(8, 'lat_hi'), (12, 'ws'), (16, 'lat_lo')]); stride = 768; src, dst, ostride = TF, AF, 24576
        e('s_waitcnt lgkmcnt(0)\ns_sub_u32 s6, s5, 24\ns_cmp_ge_u32 s5, 24\ns_cselect_b32 s6, s6, s5\ns_cselect_b32 s8, s16, s8\ns_cselect_b32 s9, s17, s9')
    e('v_and_b32 v2, 15, v0\nv_lshrrev_b32 v3, 4, v0')
    e(f'v_mul_u32_u24 v4, {stride}, v2\nv_lshl_add_u32 v4, v3, 4, v4\ns_mul_i32 s6, s6, {16*stride}')
    e(f'v_lshlrev_b32 v5, 4, v0\ns_mul_i32 s7, s4, 12288\ns_add_u32 s7, s7, {src}')
    e('s_waitcnt lgkmcnt(0)')
    WF, XF, D = 16, 64, 112
    for ks in range(12):
        e(f'buffer_load_dwordx4 {vr(WF+4*ks)}, v4, s[8:11], s6 offen offset:{64*ks}')
        e(f'buffer_load_dwordx4 {vr(XF+4*ks)}, v5, s[12:15], s7 offen offset:{1024*(ks%4)}')
        if ks % 4 == 3: e('s_add_u32 s7, s7, 4096')
    for ks in range(12):
        e(f's_waitcnt vmcnt({22-2*ks})')
        e(f'v_mfma_f32_16x16x32_bf16 {vr(D)}, {vr(WF+4*ks)}, {vr(XF+4*ks)}, {vr(D) if ks else 0}')
    e('v_lshrrev_b32 v5, 1, v3\nv_lshlrev_b32 v5, 8, v5\nv_lshl_add_u32 v5, v2, 4, v5\nv_and_b32 v7, 1, v3\nv_lshl_add_u32 v5, v7, 3, v5')
    e(f's_lshl_b32 s20, s5, 9\ns_mul_i32 s21, s4, {ostride}\ns_add_u32 s20, s20, s21\ns_add_u32 s20, s20, {dst}')
    if stage == 'a':
        for i in range(4): e(f'v_mul_f32 v{D+i}, {fx(384**-0.5*LOG2E)}, v{D+i}')
    e(f'v_cvt_pk_bf16_f32 v10, v{D}, v{D+1}\nv_cvt_pk_bf16_f32 v11, v{D+2}, v{D+3}')
    e('buffer_store_dwordx2 v[10:11], v5, s[12:15], s20 offen')
    e(f'{L}:\ns_endpgm')
    return kdesc(name, 128, 32, 128)

def slab32_src(e, vout, t, stride):
    e(f'v_lshrrev_b32 v{vout}, 1, v0\nv_bfe_u32 v{t}, v0, 4, 1\nv_lshlrev_b32 v{t}, 2, v{t}\nv_xor_b32 v{vout}, v{vout}, v{t}')
    e(f'v_mul_u32_u24 v{vout}, {stride}, v{vout}\nv_and_b32 v{t}, 1, v0\nv_lshl_add_u32 v{vout}, v{t}, 4, v{vout}')
def slab32_rd(e, v0_, v1_, t):
    e(f'v_lshrrev_b32 v{t}, 4, v0\nv_lshlrev_b32 v{v0_}, 8, v{t}\nv_and_b32 v{t}, 1, v{t}\nv_lshl_add_u32 v{v0_}, v{t}, 7, v{v0_}')
    e(f'v_and_b32 v{t}, 15, v0\nv_lshl_add_u32 v{v0_}, v{t}, 3, v{v0_}\nv_xor_b32 v{v1_}, 128, v{v0_}')

def k_wc(e, name):
    kstart(e, name); L = name + '_end'
    preamble(e, 24, L)
    load_srds(e, [(8, 'wo'), (12, 'ws'), (16, 'wkv'), (20, 'lat_hi'), (24, 'lat_lo')])
    lane_wave(e)
    slab32_src(e, 4, 5, 768)
    e('s_lshl_b32 s4, s2, 5\ns_mul_i32 s5, s3, 73728\ns_add_u32 s4, s4, s5\ns_mul_i32 s5, s3, 3072\ns_mov_b32 m0, s5')
    e('s_waitcnt lgkmcnt(0)')
    for n in range(3):
        e('buffer_load_dwordx4 v4, s[8:11], s4 offen lds\ns_add_u32 m0, m0, 1024\ns_add_u32 s4, s4, 24576')
    slab32_rd(e, 6, 7, 5)
    e('v_and_b32 v2, 15, v0\nv_lshrrev_b32 v3, 4, v0\nv_lshrrev_b32 v5, 2, v2\nv_and_b32 v8, 3, v2\nv_lshl_add_u32 v5, v5, 3, v8')
    e('v_mul_u32_u24 v8, 1536, v5\nv_lshl_add_u32 v8, v3, 4, v8')
    e('v_mul_u32_u24 v9, 768, v5\nv_lshl_add_u32 v9, v3, 4, v9')
    e('v_lshlrev_b32 v10, 4, v0')
    e('s_waitcnt vmcnt(0)\ns_barrier')
    BF, AFR, D, PK = 16, 64, 160, 168
    for ks in range(12):
        e(f'ds_read_b64_tr_b16 {vr(BF+4*ks,2)}, v6 offset:{1024*ks}\nds_read_b64_tr_b16 {vr(BF+4*ks+2,2)}, v7 offset:{1024*ks}')
        if ks % 6 == 5: e('s_waitcnt lgkmcnt(0)')
    e('s_barrier')
    def pair(voff, srd, soff, rowstride):
        for u in range(2):
            for ks in range(12):
                e(f'buffer_load_dwordx4 {vr(AFR+48*u+4*ks)}, v{voff}, {srd}, s{soff} offen offset:{64*ks}')
            e(f's_add_u32 s{soff}, s{soff}, {4*rowstride if u == 0 else 28*rowstride}')
        for u in range(2):
            e(f's_waitcnt vmcnt({12 if u == 0 else 0})')
            for ks in range(12):
                e(f'v_mfma_f32_16x16x32_bf16 {vr(D+4*u)}, {vr(AFR+48*u+4*ks)}, {vr(BF+4*ks)}, {vr(D+4*u) if ks else 0}')
        e('s_nop 7')
        for i in range(4): e(f'v_cvt_pk_bf16_f32 v{PK+i}, v{D+2*i}, v{D+2*i+1}')
    e(f's_mul_i32 s4, s3, {96*1536}\ns_add_u32 s4, s4, 768')
    e('s_mul_i32 s5, s3, 3072\nv_add_u32 v11, s5, v10')
    for s in range(3):
        pair(8, 's[16:19]', 4, 1536)
        e(f'ds_write_b128 v11, {vr(PK)} offset:{1024*s}')
    e('s_waitcnt lgkmcnt(0)\ns_barrier')
    for ks in range(12): e(f'ds_read_b128 {vr(BF+4*ks)}, v10 offset:{1024*ks}')
    e('s_cmp_ge_u32 s3, 2\ns_cselect_b32 s20, s24, s20\ns_cselect_b32 s21, s25, s21')
    e(f's_and_b32 s4, s3, 1\ns_mul_i32 s4, s4, {192*768}')
    e(f's_mul_i32 s5, s2, 24576\ns_mul_i32 s6, s3, 6144\ns_add_u32 s5, s5, s6\ns_add_u32 s5, s5, {WCF}')
    e('s_waitcnt lgkmcnt(0)')
    lp = e.label()
    e(f's_mov_b32 s7, 6\n{lp}:')
    pair(9, 's[20:23]', 4, 768)
    e(f'buffer_store_dwordx4 {vr(PK)}, v10, s[12:15], s5 offen\ns_add_u32 s5, s5, 1024')
    e(f's_sub_u32 s7, s7, 1\ns_cmp_lg_u32 s7, 0\ns_waitcnt vmcnt(0)\ns_cbranch_scc1 {lp}')
    e(f'{L}:\ns_endpgm')
    return kdesc(name, 176, 32, 176)

TILE = 30720; NSLOT = 5; PB = TILE * NSLOT
def k_main(e, name, NS, nt=' nt'):
    ntile = 4608 // NS
    kstart(e, name); L = name + '_end'
    preamble(e, NS, L)
    load_srds(e, [(8, 'feat_hi'), (12, 'feat_lo'), (16, 'ws')])
    lane_wave(e)
    e('s_and_b32 s4, s3, 1\ns_lshr_b32 s5, s3, 1')
    DO = 2
    T0, T1, T2 = 10, 11, 12
    for b in range(3):
        e(f'v_add_u32 v{T0}, {64*b}, v0\nv_mul_u32_u24 v{T1}, 1366, v{T0}\nv_lshrrev_b32 v{T1}, 16, v{T1}')
        e(f'v_mul_u32_u24 v{T2}, 48, v{T1}\nv_sub_u32 v{T0}, v{T0}, v{T2}')
        if b < 2:
            e(f's_lshl_b32 s30, s4, 1\nv_add_u32 v{T2}, s30, v{T1}\nv_lshlrev_b32 v{T2}, 2, v{T2}\nv_xor_b32 v{T2}, v{T2}, v{T0}\nv_lshlrev_b32 v{T2}, 4, v{T2}')
            e(f's_mul_i32 s30, s3, 1536\nv_mul_u32_u24 v{DO+6+b}, 768, v{T1}\nv_add3_u32 v{DO+6+b}, v{DO+6+b}, v{T2}, s30')
        e(f'v_lshlrev_b32 v{T2}, 2, v{T1}\nv_xor_b32 v{T0}, v{T0}, v{T2}\nv_lshlrev_b32 v{T0}, 4, v{T0}')
        e(f'v_lshrrev_b32 v{T2}, 1, v{T1}\nv_mul_u32_u24 v{T2}, 294912, v{T2}\nv_and_b32 v{T1}, 1, v{T1}\nv_mul_u32_u24 v{T1}, 768, v{T1}\nv_add3_u32 v{T0}, v{T0}, v{T1}, v{T2}')
        for a in range(2):
            e(f's_lshl_b32 s30, s4, 2\ns_add_u32 s30, s30, {2*a}\ns_lshr_b32 s30, 0x78, s30\ns_and_b32 s30, s30, 3\ns_lshl_b32 s30, s30, 4')
            e(f'v_xor_b32 v{T1}, s30, v{T0}\ns_mul_i32 s30, s3, 3072\ns_add_u32 s30, s30, {1536*a}\nv_add_u32 v{DO+3*a+b}, s30, v{T1}')
    e(f's_mul_i32 s25, s2, {ntile}\ns_mul_hi_u32 s30, s25, {-(-(1<<32)//24)}')
    e('s_mul_i32 s22, s30, 24\ns_sub_u32 s22, s25, s22\ns_mul_i32 s21, s25, 6144\ns_mul_i32 s20, s25, 12288\ns_mul_i32 s30, s30, 294912\ns_add_u32 s20, s20, s30')
    e(f's_mov_b32 s23, {ntile}\ns_mul_i32 s24, s3, 6144\ns_mul_i32 s29, s3, -4608\ns_add_u32 s29, s29, {24576-5120}\ns_add_u32 s31, s24, {PB}')
    def dma_items():
        it = []
        for j in range(6):
            it.append((f's_mov_b32 m0, s24' if j == 0 else 's_add_u32 m0, m0, 1024', f'buffer_load_dwordx4 v{DO+j}, s[8:11], s20 offen{nt} lds'))
        it.append(('s_add_u32 m0, m0, s29', f'buffer_load_dwordx4 v{DO+6}, s[12:15], s21 offen{nt} lds'))
        it.append(('s_add_u32 m0, m0, 1024\ns_mov_b32 exec_hi, 0', f'buffer_load_dwordx4 v{DO+7}, s[12:15], s21 offen{nt} lds\ns_mov_b32 exec_hi, -1'))
        return it
    def dma_adv():
        e('s_add_u32 s20, s20, 12288\ns_add_u32 s21, s21, 6144\ns_add_u32 s22, s22, 1\ns_cmp_eq_u32 s22, 24\ns_cselect_b32 s22, 0, s22\ns_cselect_b32 s30, 294912, 0\ns_add_u32 s20, s20, s30')
        e(f's_add_u32 s24, s24, {TILE}\ns_cmp_ge_u32 s24, s31\ns_cselect_b32 s30, {PB}, 0\ns_sub_u32 s24, s24, s30')
        e('s_sub_u32 s23, s23, 1\ns_cmp_gt_i32 s23, 0\ns_cselect_b32 s20, s20, 0\ns_cselect_b32 s21, s21, 0\ns_cselect_b32 s10, s10, 0\ns_cselect_b32 s14, s14, 0')
    e('s_waitcnt lgkmcnt(0)')
    lp = e.label()
    e(f's_mov_b32 s26, {NSLOT}\n{lp}:')
    for a, b in dma_items(): e(a + '\ns_nop 0\n' + b)
    dma_adv()
    e(f's_sub_u32 s26, s26, 1\ns_cmp_lg_u32 s26, 0\ns_cbranch_scc1 {lp}')
    SH, SL, PH, PL = 14, 18, 22, 28
    PW, PW2, PR, PR2, MXW, MXS, MXP = 31, 32, 33, 34, 35, 36, 37
    NEGM, LSUM, S, POOL, PK = 40, 38, 44, 39, 48
    PF, PFL = 52, 60
    TMP = 62
    FB = 68; NB = 8
    VA = 100; VL = 124
    ACC = 132
    e(f'v_and_b32 v{T0}, 15, v0\nv_lshrrev_b32 v{T1}, 4, v0')
    e(f'v_lshrrev_b32 v{T2}, 2, v{T0}\nv_lshlrev_b32 v13, 1, v{T2}\ns_mov_b32 s30, 0x78\nv_lshrrev_b32 v13, v13, s30\nv_and_b32 v13, 3, v13')
    e(f'v_and_b32 v{TMP}, 3, v{T0}\nv_lshl_or_b32 v13, v{TMP}, 2, v13\nv_xor_b32 v13, v13, v{T1}\nv_lshlrev_b32 v13, 4, v13')
    e(f's_mul_i32 s30, s4, 12288\nv_mul_u32_u24 v{TMP}, 768, v{T0}\nv_add3_u32 v{SH}, v13, v{TMP}, s30')
    e(f'v_lshl_or_b32 v13, v{T2}, 2, v{T1}\nv_lshlrev_b32 v13, 4, v13\ns_mul_i32 s30, s4, 3072\ns_add_u32 s30, s30, 24576\nv_mul_u32_u24 v{TMP}, 768, v{T2}\nv_add3_u32 v{SL}, v13, v{TMP}, s30')
    for b in range(1, 4): e(f'v_xor_b32 v{SH+b}, {64*b}, v{SH}\nv_xor_b32 v{SL+b}, {64*b}, v{SL}')
    e(f's_lshl_b32 s30, s5, 4\nv_add_u32 v13, s30, v{T0}')
    e(f'v_lshrrev_b32 v{TMP}, 1, v{T1}\nv_lshlrev_b32 v{TMP}, 9, v{TMP}\nv_lshl_add_u32 v{TMP}, v13, 4, v{TMP}\nv_and_b32 v{TMP+1}, 1, v{T1}\nv_lshl_add_u32 v{TMP}, v{TMP+1}, 3, v{TMP}')
    e(f's_lshl_b32 s30, s4, 10\ns_add_u32 s30, s30, {PB}\nv_add_u32 v{PW}, s30, v{TMP}')
    e(f'v_lshlrev_b32 v{TMP}, 3, v13\nv_lshl_add_u32 v{TMP}, v{T1}, 1, v{TMP}\ns_lshl_b32 s30, s4, 8\ns_add_u32 s30, s30, {PB+2048}\nv_add_u32 v{PW2}, s30, v{TMP}')
    e(f'v_lshlrev_b32 v{TMP}, 4, v0\nv_add_u32 v{PR}, {PB}, v{TMP}\nv_lshlrev_b32 v{TMP}, 3, v0\nv_add_u32 v{PR2}, {PB+2048}, v{TMP}')
    e(f'v_lshlrev_b32 v{TMP}, 2, v13\nv_add_u32 v{MXS}, {PB+2560}, v{TMP}\ns_lshl_b32 s30, s4, 7\nv_add_u32 v{MXW}, s30, v{MXS}')
    e(f'v_and_b32 v{TMP}, 31, v0\nv_lshlrev_b32 v{TMP}, 2, v{TMP}\nv_add_u32 v{MXP}, {PB+2560}, v{TMP}')
    e(f'v_lshrrev_b32 v{T0}, 5, v0\nv_bfe_u32 v{T1}, v0, 2, 2')
    e(f'v_bfe_u32 v{T2}, v0, 4, 1\nv_and_b32 v13, 1, v0\nv_lshl_or_b32 v{T2}, v{T2}, 1, v13\nv_lshl_or_b32 v{T2}, v{T1}, 2, v{T2}')
    e(f'v_bfe_u32 v13, v0, 1, 1\nv_lshlrev_b32 v13, 3, v13')
    for t in range(3):
        e(f's_mul_i32 s30, s3, 12\ns_add_u32 s30, s30, {4*t}\nv_xor_b32 v{TMP}, s30, v{T2}')
        e(f'v_lshl_add_u32 v{TMP+1}, v{T0}, 2, v{T1}\nv_mul_u32_u24 v{TMP+1}, 768, v{TMP+1}\nv_lshl_add_u32 v{TMP+1}, v{TMP}, 4, v{TMP+1}\nv_add_u32 v{TMP+1}, v{TMP+1}, v13\nv_add_u32 v{PL+t}, 24576, v{TMP+1}')
        for u in range(2):
            e(f'v_lshlrev_b32 v{TMP+1}, 2, v{T0}\nv_add_u32 v{TMP+1}, {2*u}, v{TMP+1}\ns_mov_b32 s30, 0x78\nv_lshrrev_b32 v{TMP+1}, v{TMP+1}, s30\nv_and_b32 v{TMP+1}, 3, v{TMP+1}\nv_xor_b32 v{TMP+1}, v{TMP+1}, v{TMP}')
            e(f'v_lshl_add_u32 v{TMP+2}, v{T0}, 3, v{T1}\nv_add_u32 v{TMP+2}, {4*u}, v{TMP+2}\nv_mul_u32_u24 v{TMP+2}, 768, v{TMP+2}\nv_lshl_add_u32 v{TMP+2}, v{TMP+1}, 4, v{TMP+2}\nv_add_u32 v{PH+2*t+u}, v{TMP+2}, v13')
    for i in range(96): e(f'v_mov_b32 v{ACC+i}, 0')
    for i in range(4): e(f'v_mov_b32 v{NEGM+i}, 0')
    e(f'v_mov_b32 v{LSUM}, 0\ns_mov_b32 s28, 1\ns_mov_b32 s26, 0\ns_mov_b32 s25, {ntile}\ns_mov_b32 s33, {TILE}')
    e(f'v_lshlrev_b32 v{T0}, 4, v0\ns_mul_i32 s30, s5, 24576\ns_add_u32 s30, s30, {AF}')
    e('s_waitcnt vmcnt(32)')
    for ks in range(24):
        e(f'buffer_load_dwordx4 {ar(4*ks)}, v{T0}, s[16:19], s30 offen offset:{1024*(ks%4)}')
        if ks % 4 == 3: e('s_add_u32 s30, s30, 4096')
    e('s_waitcnt vmcnt(0)')
    loop = e.label('L_tile'); slow = e.label('L_slow'); back = e.label('L_back')
    e(f'{loop}:\ns_waitcnt vmcnt(32)\ns_barrier')
    def sread(k):
        base = (SH if k < 12 else SL); ks = k % 12
        e.dsop(f'ds_read_b128 {vr(FB+4*(k%NB))}, v{base+(ks&3)} offset:{256*(ks>>2)}', ('s', k))
    trs = []
    for pg in range(2):
        for t in range(3):
            for u in range(2): trs.append(f'ds_read_b64_tr_b16 {vr(VA+8*t+4*pg+2*u,2)}, v{PH+2*t+u} offset:{12288*pg}')
    for t in range(3): trs.append(f'ds_read_b64_tr_b16 {vr(VL+2*t,2)}, v{PL+t}')
    for k in range(NB): sread(k)
    for k in range(24):
        e.dswait(('s', k))
        e(f'v_mfma_f32_16x16x32_bf16 {vr(S)}, {vr(FB+4*(k%NB))}, {ar(4*k)}, {vr(S) if k else vr(NEGM)}')
        if k + NB < 24: sread(k + NB)
        elif trs: e.dsop(trs.pop(0), 'tr')
    while trs: e.dsop(trs.pop(0), 'tr')
    e('s_nop 0')
    def expwrite():
        for i in range(4): e(f'v_exp_f32 v{TMP+i}, v{S+i}')
        e(f'v_add_f32 v{TMP+4}, v{TMP}, v{TMP+1}\nv_add_f32 v{TMP+5}, v{TMP+2}, v{TMP+3}\nv_cvt_pk_bf16_f32 v{PK}, v{TMP}, v{TMP+1}\nv_cvt_pk_bf16_f32 v{PK+1}, v{TMP+2}, v{TMP+3}')
        e(f'v_add_f32 v{POOL}, v{TMP+4}, v{TMP+5}\nds_write_b64 v{PW}, {vr(PK,2)}\nv_cvt_pk_bf16_f32 v{PK+2}, v{POOL}, v{POOL}\nds_write_b16 v{PW2}, v{PK+2}')
        e.dsall(); e('s_barrier')
        e(f'ds_read_b64 {vr(PFL,2)}, v{PR2}\nds_read_b128 {vr(PF)}, v{PR}\nds_read_b128 {vr(PF+4)}, v{PR} offset:1024')
    expwrite()
    e(f's_add_u32 s26, s26, 1\ns_cmp_eq_u32 s26, {NSLOT}\ns_cselect_b32 s27, {-(NSLOT-1)*TILE}, s33\ns_cselect_b32 s26, 0, s26')
    e(f's_waitcnt lgkmcnt(2)\nv_or_b32 v{TMP}, v{PFL}, v{PFL+1}\nv_and_b32 v{TMP}, 0x40004000, v{TMP}\nv_cmp_ne_u32 vcc, 0, v{TMP}')
    e(f's_cmp_lg_u32 s28, 0\ns_cbranch_scc1 {slow}\ns_cbranch_vccnz {slow}')
    e(f'{back}:')
    e(f'v_add_f32 v{LSUM}, v{LSUM}, v{POOL}')
    dm = dma_items(); adds = [f'v_add_u32 v{r}, s27, v{r}' for r in range(SH, PL + 3)]
    mf = [f'v_mfma_f32_32x32x8_bf16 {vr(ACC+48+16*t,16)}, {vr(VL+2*t,2)}, {vr(PFL,2)}, {vr(ACC+48+16*t,16)}' for t in range(3)]
    for pg in range(2):
        for t in range(3): mf.append(f'v_mfma_f32_32x32x16_bf16 {vr(ACC+16*t,16)}, {vr(VA+8*t+4*pg)}, {vr(PF+4*pg)}, {vr(ACC+16*t,16)}')
    for i, m in enumerate(mf):
        if i == 3: e('s_waitcnt lgkmcnt(0)')
        e(m)
        if dm:
            a, b = dm.pop(0)
            if 'exec' in a: e(adds.pop(0)); e(adds.pop(0)); e(a); e(b)
            else: e(a); e(adds.pop(0)); e(adds.pop(0)); e(b)
    while adds: e(adds.pop(0))
    dma_adv()
    e(f's_sub_u32 s25, s25, 1\ns_cmp_lg_u32 s25, 0\ns_cbranch_scc1 {loop}')
    xsum16_32(e, LSUM, TMP)
    e(f's_barrier\nds_write_b32 v{MXW}, v{LSUM}\ns_waitcnt lgkmcnt(0)\ns_barrier\nds_read2_b32 {vr(TMP,2)}, v{MXS} offset0:0 offset1:32')
    e(f'v_lshlrev_b32 v{T0}, 4, v0\ns_mul_i32 s30, s2, 49152\ns_mul_i32 s20, s3, 6144\ns_add_u32 s30, s30, s20\ns_add_u32 s30, s30, {PART}')
    for s in range(12):
        b = FB + 4 * (s % 8)
        for i in range(4): e(f'v_cvt_pk_bf16_f32 v{b+i}, v{ACC+8*s+2*i}, v{ACC+8*s+2*i+1}')
        e(f'buffer_store_dwordx4 {vr(b)}, v{T0}, s[16:19], s30 offen offset:{1024*(s%2)}')
        if s % 2 == 1: e(f's_add_u32 s30, s30, {2048 if s != 5 else 2048 + 24576 - 6144}')
    e(f's_waitcnt lgkmcnt(0)\nv_add_f32 v{TMP+1}, v{TMP}, v{TMP+1}\nv_sub_f32 v{TMP}, 0, v{NEGM}')
    e(f's_cmp_lg_u32 s4, 0\ns_cbranch_scc1 {L}')
    e(f'v_lshlrev_b32 v{T0}, 3, v0\ns_lshl_b32 s30, s5, 15\ns_lshl_b32 s20, s2, 7\ns_add_u32 s30, s30, s20\ns_add_u32 s30, s30, {ML}')
    e(f's_mov_b64 exec, 0xffff\nbuffer_store_dwordx2 {vr(TMP,2)}, v{T0}, s[16:19], s30 offen')
    e(f'{L}:\ns_endpgm')
    e(f'{slow}:')
    e(f'v_max3_f32 v{TMP}, v{S}, v{S+1}, v{S+2}\nv_max_f32 v{TMP}, v{TMP}, v{S+3}')
    xsum16_32(e, TMP, TMP + 1, 'v_max_f32')
    e(f'ds_write_b32 v{MXW}, v{TMP}\ns_waitcnt lgkmcnt(0)\ns_barrier')
    e(f'ds_read2_b32 {vr(TMP,2)}, v{MXS} offset0:0 offset1:32\nds_read2_b32 {vr(TMP+2,2)}, v{MXP} offset0:0 offset1:32\ns_waitcnt lgkmcnt(0)')
    e(f'v_max_f32 v{TMP}, v{TMP}, v{TMP+1}\nv_max_f32 v{TMP+2}, v{TMP+2}, v{TMP+3}')
    e(f'v_add_f32 v{TMP}, {fx(9.0)}, v{TMP}\nv_add_f32 v{TMP+2}, {fx(9.0)}, v{TMP+2}')
    nf = e.label()
    e(f's_cmp_lg_u32 s28, 0\ns_cbranch_scc1 {nf}')
    e(f'v_max_f32 v{TMP}, 0, v{TMP}\nv_max_f32 v{TMP+2}, 0, v{TMP+2}')
    e(f'v_exp_f32 v{TMP+1}, -v{TMP}\nv_exp_f32 v{TMP+3}, -v{TMP+2}\ns_nop 0\nv_mul_f32 v{LSUM}, v{LSUM}, v{TMP+1}')
    for i in range(96): e(f'v_mul_f32 v{ACC+i}, v{ACC+i}, v{TMP+3}')
    e(f'{nf}:\ns_mov_b32 s28, 0')
    for i in range(4): e(f'v_sub_f32 v{NEGM+i}, v{NEGM+i}, v{TMP}\nv_sub_f32 v{S+i}, v{S+i}, v{TMP}')
    expwrite()
    e(f's_waitcnt lgkmcnt(0)\ns_branch {back}')
    return kdesc(name, 256 + 96, 40, 256)

def k_red(e, name, NP):
    kstart(e, name); L = name + '_end'
    preamble(e, 192, L)
    load_srds(e, [(12, 'ws')])
    lane_wave(e)
    ni = NP // 16
    e('s_and_b32 s4, s2, 1\ns_lshr_b32 s5, s2, 1')
    e(f'v_lshlrev_b32 v2, 3, v0\ns_lshl_b32 s6, s4, 15\ns_lshl_b32 s7, s3, 9\ns_add_u32 s6, s6, s7\ns_add_u32 s6, s6, {ML}')
    e(f'v_lshrrev_b32 v3, 4, v0\nv_mul_u32_u24 v3, 49152, v3\nv_and_b32 v4, 15, v0\nv_lshl_add_u32 v3, v4, 4, v3')
    e(f's_lshl_b32 s7, s2, 8\ns_mul_i32 s8, s3, {4*49152}\ns_add_u32 s7, s7, s8\ns_add_u32 s7, s7, {PART}')
    e('s_waitcnt lgkmcnt(0)')
    MLR, X, A, T = 16, 48, 112, 120
    for i in range(ni):
        e(f'buffer_load_dwordx2 {vr(MLR+2*i,2)}, v2, s[12:15], s6 offen\ns_add_u32 s6, s6, 2048')
    for i in range(ni):
        e(f'buffer_load_dwordx4 {vr(X+4*i)}, v3, s[12:15], s7 offen\ns_add_u32 s7, s7, {16*49152}')
    e(f's_waitcnt vmcnt({ni})')
    e(f'v_mov_b32 v6, v{MLR}')
    for i in range(1, ni): e(f'v_max_f32 v6, v6, v{MLR+2*i}')
    xsum16_32(e, 6, 5, 'v_max_f32')
    for i in range(ni): e(f'v_sub_f32 v{MLR+2*i}, v{MLR+2*i}, v6')
    for i in range(ni): e(f'v_exp_f32 v{MLR+2*i}, v{MLR+2*i}')
    e(f'v_mul_f32 v7, v{MLR}, v{MLR+1}')
    for i in range(1, ni): e(f'v_fmac_f32 v7, v{MLR+2*i}, v{MLR+2*i+1}')
    xsum16_32(e, 7, 5)
    for k in range(8): e(f'v_mov_b32 v{A+k}, 0')
    for i in range(ni):
        e(f's_waitcnt vmcnt({ni-1-i})')
        for d in range(4):
            e(f'v_lshlrev_b32 v{T+2*d}, 16, v{X+4*i+d}\nv_and_b32 v{T+2*d+1}, 0xffff0000, v{X+4*i+d}')
        for d in range(4):
            e(f'v_pk_fma_f32 {vr(A+2*d,2)}, {vr(T+2*d,2)}, {vr(MLR+2*i,2)}, {vr(A+2*d,2)} op_sel_hi:[1,0,1]')
    e('s_nop 1')
    for k in range(4): e(f'v_permlane32_swap_b32 v{A+k}, v{A+k+4}')
    for k in range(4): e(f'v_add_f32 v{A+k}, v{A+k}, v{A+k+4}')
    e('s_nop 1')
    for k in range(2): e(f'v_permlane16_swap_b32 v{A+k}, v{A+k+2}')
    e(f'v_add_f32 v4, v{A}, v{A+2}\nv_add_f32 v5, v{A+1}, v{A+3}')
    e('v_lshlrev_b32 v8, 4, v0\ns_lshl_b32 s6, s3, 10\nv_add_u32 v9, s6, v8\nds_write_b128 v9, v[4:7]\ns_waitcnt lgkmcnt(0)\ns_barrier')
    e(f's_cmp_lg_u32 s3, 0\ns_cbranch_scc1 {L}')
    for w in range(4): e(f'ds_read_b128 {vr(16+4*w)}, v8 offset:{1024*w}')
    e('s_waitcnt lgkmcnt(0)\nv_max3_f32 v6, v18, v22, v26\nv_max_f32 v6, v6, v30')
    for w in range(4): e(f'v_sub_f32 v{18+4*w}, v{18+4*w}, v6')
    for w in range(4): e(f'v_exp_f32 v{18+4*w}, v{18+4*w}')
    e('v_mul_f32 v4, v16, v18\nv_mul_f32 v5, v17, v18\nv_mul_f32 v7, v19, v18')
    for w in range(1, 4): e(f'v_fmac_f32 v4, v{16+4*w}, v{18+4*w}\nv_fmac_f32 v5, v{17+4*w}, v{18+4*w}\nv_fmac_f32 v7, v{19+4*w}, v{18+4*w}')
    e('v_rcp_f32 v7, v7\nv_and_b32 v8, 15, v0\nv_lshrrev_b32 v9, 4, v0\nv_lshlrev_b32 v8, 4, v8\nv_lshl_add_u32 v8, v9, 2, v8')
    e('v_mul_f32 v4, v4, v7\nv_mul_f32 v5, v5, v7\nv_cvt_pk_bf16_f32 v4, v4, v5')
    e(f's_mul_i32 s6, s4, 24576\ns_lshl_b32 s7, s5, 8\ns_add_u32 s6, s6, s7\ns_add_u32 s6, s6, {UF}')
    e('buffer_store_dword v4, v8, s[12:15], s6 offen')
    e(f'{L}:\ns_endpgm')
    return kdesc(name, 128, 32, 128)

def k_ho(e, name, stage):
    kstart(e, name); L = name + '_end'
    preamble(e, 48, L)
    load_srds(e, [(8, 'w2'), (12, 'ws'), (16, 'q'), (20, 'out')])
    lane_wave(e)
    e('s_and_b32 s4, s2, 1\ns_lshr_b32 s5, s2, 1')
    nk = 6 if stage == 'h' else 12
    WF, XF, D = 16, 64, 112
    e('v_lshlrev_b32 v10, 4, v0\nv_and_b32 v2, 15, v0\nv_lshrrev_b32 v3, 4, v0')
    e('v_lshrrev_b32 v5, 1, v3\nv_lshlrev_b32 v5, 8, v5\nv_lshl_add_u32 v5, v2, 4, v5\nv_and_b32 v7, 1, v3\nv_lshl_add_u32 v11, v7, 3, v5')
    e('v_mul_u32_u24 v12, 768, v2\nv_lshl_add_u32 v12, v3, 3, v12')
    e(f's_mul_i32 s24, s4, 12288\ns_lshl_b32 s25, s5, 9\ns_add_u32 s25, s25, s24\ns_add_u32 s25, s25, {HF}\ns_lshl_b32 s26, s5, 5\ns_add_u32 s24, s24, s26')
    if stage == 'h':
        e(f's_mul_i32 s6, s5, 24576\ns_mul_i32 s7, s3, 6144\ns_add_u32 s6, s6, s7\ns_add_u32 s6, s6, {WCF}')
        e(f's_mul_i32 s26, s4, 24576\ns_add_u32 s7, s7, s26\ns_add_u32 s7, s7, {UF}')
        e('s_waitcnt lgkmcnt(0)')
        e('buffer_load_dwordx2 v[14:15], v12, s[16:19], s24 offen')
        for k in range(6):
            e(f'buffer_load_dwordx4 {vr(WF+4*k)}, v10, s[12:15], s6 offen\nbuffer_load_dwordx4 {vr(XF+4*k)}, v10, s[12:15], s7 offen')
            e('s_add_u32 s6, s6, 1024\ns_add_u32 s7, s7, 1024')
        e('s_waitcnt vmcnt(0)')
    else:
        slab32_src(e, 4, 5, 768)
        e(f's_lshl_b32 s6, s5, 5\ns_mul_i32 s7, s3, {384*768}\ns_add_u32 s6, s6, s7\ns_mul_i32 s7, s3, 12288\ns_mov_b32 m0, s7')
        e(f's_mul_i32 s26, s4, 49152\ns_add_u32 s26, s26, s7\ns_add_u32 s26, s26, {GF}')
        e('s_waitcnt lgkmcnt(0)')
        e('buffer_load_dwordx2 v[14:15], v11, s[12:15], s25 offen')
        for n in range(12):
            e('buffer_load_dwordx4 v4, s[8:11], s6 offen lds\ns_add_u32 m0, m0, 1024\ns_add_u32 s6, s6, 24576')
            e(f'buffer_load_dwordx4 {vr(XF+4*n)}, v10, s[12:15], s26 offen\ns_add_u32 s26, s26, 1024')
        slab32_rd(e, 6, 7, 5)
        e('v_add_u32 v6, s7, v6\nv_add_u32 v7, s7, v7\ns_waitcnt vmcnt(0)')
        for ks in range(12):
            e(f'ds_read_b64_tr_b16 {vr(WF+4*ks,2)}, v6 offset:{1024*ks}\nds_read_b64_tr_b16 {vr(WF+4*ks+2,2)}, v7 offset:{1024*ks}')
            if ks % 6 == 5: e('s_waitcnt lgkmcnt(0)')
    for k in range(nk):
        e(f'v_mfma_f32_16x16x32_bf16 {vr(D)}, {vr(WF+4*k)}, {vr(XF+4*k)}, {vr(D) if k else 0}')
    e('s_lshl_b32 s6, s3, 10\ns_add_u32 s6, s6, 49152\nv_add_u32 v9, s6, v10\ns_nop 5')
    e(f'ds_write_b128 v9, {vr(D)}\ns_waitcnt lgkmcnt(0)\ns_barrier')
    e(f's_cmp_lg_u32 s3, 0\ns_cbranch_scc1 {L}')
    for w in range(1, 4): e(f'ds_read_b128 {vr(16+4*w)}, v10 offset:{49152+1024*w}')
    e('v_lshlrev_b32 v16, 16, v14\nv_and_b32 v17, 0xffff0000, v14\nv_lshlrev_b32 v18, 16, v15\nv_and_b32 v19, 0xffff0000, v15')
    e('s_waitcnt lgkmcnt(0)')
    for w in (1, 2, 3, 0):
        for i in range(4): e(f'v_add_f32 v{D+i}, v{D+i}, v{16+4*w+i}')
    e(f'v_cvt_pk_bf16_f32 v4, v{D}, v{D+1}\nv_cvt_pk_bf16_f32 v5, v{D+2}, v{D+3}')
    if stage == 'h': e('buffer_store_dwordx2 v[4:5], v11, s[12:15], s25 offen')
    else: e('buffer_store_dwordx2 v[4:5], v12, s[20:23], s24 offen')
    e(f'{L}:\ns_endpgm')
    return kdesc(name, 128, 32, 128)

def gen(NS=256, nt=' nt'):
    e = E()
    launches = [('q_kernel', 12, 256, 49152), ('t_kernel', 48, 64, 0), ('a_kernel', 96, 64, 0), ('wc_kernel', 24, 256, 12288),
                ('main_kernel', NS, 256, PB + 3072), ('red_kernel', 192, 256, 4096), ('h_kernel', 48, 256, 53248),
                ('g_kernel', 48, 256, 49152), ('o_kernel', 48, 256, 53248)]
    head = ''.join(f'; @launch kernel={k} grid=({g},1,1) block=({b},1,1) lds={l}\n' for k, g, b, l in launches)
    head += '.amdgcn_target "amdgcn-amd-amdhsa--gfx950"\n.text\n'
    d = [k_lngemm(e, 'q_kernel', 6, 'q', 'wq', 768, False, QF, 12288), k_nt(e, 't_kernel', 24, 't'), k_nt(e, 'a_kernel', 48, 'a'),
         k_wc(e, 'wc_kernel'), k_main(e, 'main_kernel', NS, nt), k_red(e, 'red_kernel', NS), k_ho(e, 'h_kernel', 'h'),
         k_lngemm(e, 'g_kernel', 24, 'h', 'w1', 3072, True, GF, 49152), k_ho(e, 'o_kernel', 'o')]
    body = e.text()
    return head + body + '.section .rodata,"a"\n' + ''.join(d)

if __name__ == '__main__':
    NS = int(sys.argv[2]) if len(sys.argv) > 2 else 256
    t = gen(NS, '' if len(sys.argv) > 3 else ' nt')
    open(sys.argv[1], 'w').write(t)
    print(hazard.check(t), 'hazards')
```

```python
import sys, math
from common import *
import hazard
KNAME = 'standalone__detection_seg_detr_decoder__vision_kernel'
QF, TF, AF = 0x0, 0x6000, 0xC000
UF, HF, ST, GF, ML = 0x18000, 0x24000, 0x2A000, 0x2C000, 0x44000
WCF, YF, DG, PART = 0x80000, 0x110000, 0x180000, 0x200000
CP, CP2, CY, GOA, CW = 0, 32, 64, 128, 192
LOG2E = 1.4426950408889634
TILE = 30720; NSLOT = 5; PB = TILE * NSLOT
LDS_BYTES = PB + 3072
NH = 64

class Cfg:
    NS = 192; npre = 4; skips = (8, 14); diag = False; chunk = 1; K = 0; rrounds = (); touch = True; pollsleep = 2
    code_bytes = 0x6000

def stamp(e, c, k):
    if c.diag: e(f's_memrealtime s[{64+2*k}:{65+2*k}]')
def dump(e, c):
    if not c.diag: return
    e('s_waitcnt lgkmcnt(0)\ns_mov_b64 exec, 1')
    e(f's_lshl_b32 s60, s2, 2\ns_add_u32 s60, s60, s3\ns_lshl_b32 s60, s60, 6\ns_add_u32 s60, s60, {DG}\nv_mov_b32 v1, 0')
    for k in range(16): e(f'v_mov_b32 v2, s{64+2*k}\nbuffer_store_dword v2, v1, s[16:19], s60 offen offset:{4*k}')

def spoll(e, off, val, sleep=2):
    lp = e.label('L_sp'); dn = e.label('L_spd')
    e(f'{lp}:\nbuffer_load_dword v1, off, s[20:23], 0 offset:{off} sc1\ns_waitcnt vmcnt(0)\nv_readfirstlane_b32 s30, v1\ns_cmp_ge_u32 s30, {val}\ns_cbranch_scc1 {dn}\ns_sleep {sleep}\ns_sub_u32 s61, s61, 1\ns_cmp_gt_i32 s61, 0\ns_cbranch_scc1 {lp}\n{dn}:')
def spoll0(e, off, val, sleep=2):
    sk = e.label('L_sk')
    e(f's_cmp_lg_u32 s3, 0\ns_cbranch_scc1 {sk}'); spoll(e, off, val, sleep); e(f'{sk}:\ns_barrier')
def arrive(e, off, t0, t1):
    e(f'v_mov_b32 v{t0}, 1\nv_mov_b32 v{t1}, {off}\ns_mov_b64 exec, 1\nbuffer_atomic_add v{t0}, v{t1}, s[20:23], 0 offen\ns_mov_b64 exec, -1')

def gather(e, loads, t):
    lp = e.label('L_g')
    e(f'{lp}:')
    for x, _, _ in loads: e(x)
    e('s_sub_u32 s61, s61, 1\ns_cmp_gt_i32 s61, 0\ns_cselect_b64 s[62:63], -1, 0')
    first = True
    for i, (_, r, n) in enumerate(loads):
        e(f's_waitcnt vmcnt({len(loads)-1-i})')
        rs = list(range(r, r + n))
        if first:
            e(f'v_max_u32 v{t}, v{rs[0]}, v{rs[1]}'); rs = rs[2:]; first = False
        while rs:
            e(f'v_max3_u32 v{t}, v{t}, v{rs[0]}, v{rs[1]}'); rs = rs[2:]
    e(f'v_cmp_eq_u32 vcc, -1, v{t}\ns_and_b64 vcc, vcc, s[62:63]\ns_cbranch_scc1 {lp}')
def frag_loads(dst, n, voff, sreg0, flags=' sc1'):
    return [(f'buffer_load_dwordx4 {vr(dst+4*k)}, v{voff}, s[16:19], s{sreg0+k//4} offen offset:{1024*(k%4)}{flags}', dst + 4 * k, 4) for k in range(n)]
def soffs(e, s0, n):
    for k in range(1, n): e(f's_add_u32 s{s0+k}, s{s0}, {4096*k}')
def tile_off(e, vo, q, g, t):
    e(f'v_lshrrev_b32 v{vo}, 1, v{g}\nv_lshlrev_b32 v{vo}, 8, v{vo}\nv_lshl_add_u32 v{vo}, v{q}, 4, v{vo}\nv_and_b32 v{t}, 1, v{g}\nv_lshl_add_u32 v{vo}, v{t}, 3, v{vo}')
def pack_store(e, D, P, voff, soff):
    e(f'v_cvt_pk_bf16_f32 v{P}, v{D}, v{D+1}\nv_cvt_pk_bf16_f32 v{P+1}, v{D+2}, v{D+3}\nv_min_u32 v{P}, -2, v{P}\nv_min_u32 v{P+1}, -2, v{P+1}')
    e(f'buffer_store_dwordx2 {vr(P,2)}, v{voff}, s[16:19], s{soff} offen sc1')

def rows_src(e, vo, stride, t0, t1, t2):
    e('s_lshl_b32 s30, s3, 1\ns_lshr_b32 s30, 0x78, s30\ns_and_b32 s30, s30, 3')
    e(f's_mul_i32 s31, s3, {4*stride}')
    for b in range(3):
        e(f'v_add_u32 v{t0}, {64*b}, v0\nv_mul_u32_u24 v{t1}, 1366, v{t0}\nv_lshrrev_b32 v{t1}, 16, v{t1}')
        e(f'v_mul_u32_u24 v{t2}, 48, v{t1}\nv_sub_u32 v{t0}, v{t0}, v{t2}\nv_lshl_or_b32 v{t2}, v{t1}, 2, s30\nv_xor_b32 v{t0}, v{t0}, v{t2}')
        e(f'v_mul_u32_u24 v{t1}, {stride}, v{t1}\nv_lshl_add_u32 v{t0}, v{t0}, 4, v{t1}\nv_add_u32 v{vo+b}, s31, v{t0}')
def rows_dma(e, vo, srd, soff, ldsbase, ntile, stride):
    e(f's_mul_i32 s30, s3, 3072\ns_add_u32 m0, s30, {ldsbase}')
    lp = e.label('L_rd')
    if ntile > 1: e(f's_mov_b32 s31, {ntile}\n{lp}:')
    for b in range(3):
        e(f's_nop 0\nbuffer_load_dwordx4 v{vo+b}, {srd}, s{soff} offen lds\ns_add_u32 m0, m0, {1024 if b < 2 else 12288-2048}')
    if ntile > 1: e(f's_add_u32 s{soff}, s{soff}, {16*stride}\ns_sub_u32 s31, s31, 1\ns_cmp_lg_u32 s31, 0\ns_cbranch_scc1 {lp}')
def rows_rd(e, va, base, t0, t1, t2):
    e(f'v_and_b32 v{t0}, 15, v0\nv_lshrrev_b32 v{t1}, 2, v{t0}\nv_lshlrev_b32 v{t1}, 1, v{t1}\ns_mov_b32 s30, 0x78\nv_lshrrev_b32 v{t1}, v{t1}, s30\nv_and_b32 v{t1}, 3, v{t1}')
    e(f'v_and_b32 v{t2}, 3, v0\nv_lshl_or_b32 v{t1}, v{t2}, 2, v{t1}\nv_lshrrev_b32 v{t2}, 4, v0\nv_xor_b32 v{t1}, v{t1}, v{t2}')
    e(f'v_mul_u32_u24 v{t0}, 768, v{t0}\nv_lshl_add_u32 v{t0}, v{t1}, 4, v{t0}\nv_add_u32 v{va}, {base}, v{t0}')
    for b in range(1, 4): e(f'v_xor_b32 v{va+b}, {64*b}, v{va}')
def rowgemm(e, va, ntile, BF, AFR, D, P, voff, soff):
    lp = e.label('L_rg')
    e(f's_mov_b32 s31, {ntile}\n{lp}:')
    for ks in range(12): e(f'ds_read_b128 {vr(AFR+4*ks)}, v{va+(ks&3)} offset:{256*(ks>>2)}')
    for ks in range(12):
        e(f's_waitcnt lgkmcnt({11-ks})\nv_mfma_f32_16x16x32_bf16 {vr(D)}, {vr(AFR+4*ks)}, {vr(BF+4*ks)}, {vr(D) if ks else 0}')
    for b in range(4): e(f'v_add_u32 v{va+b}, 12288, v{va+b}')
    e('s_nop 3')
    pack_store(e, D, P, voff, soff)
    e(f's_add_u32 s{soff}, s{soff}, 512\ns_sub_u32 s31, s31, 1\ns_cmp_lg_u32 s31, 0\ns_cbranch_scc1 {lp}')
def slab128_src(e, vo, stride, t0, t1):
    e(f'v_lshrrev_b32 v{vo}, 3, v0\nv_mul_u32_u24 v{vo}, {stride}, v{vo}')
    e(f'v_bfe_u32 v{t0}, v0, 4, 1\ns_and_b32 s30, s3, 1\ns_lshl_b32 s30, s30, 1\nv_or_b32 v{t0}, s30, v{t0}\nv_lshlrev_b32 v{t0}, 1, v{t0}')
    e(f'v_and_b32 v{t1}, 7, v0\nv_xor_b32 v{t0}, v{t0}, v{t1}\nv_lshl_add_u32 v{vo}, v{t0}, 4, v{vo}')
def slab128_dma(e, vo, srd, sj, stride, ldsbase):
    e(f's_lshl_b32 s34, s{sj}, 7\ns_mul_i32 s30, s3, {8*stride}\ns_add_u32 s34, s34, s30\ns_lshl_b32 s30, s3, 10\ns_add_u32 m0, s30, {ldsbase}')
    lp = e.label('L_sl')
    e(f's_mov_b32 s31, 12\n{lp}:\nbuffer_load_dwordx4 v{vo}, {srd}, s34 offen lds')
    e(f's_add_u32 s34, s34, {32*stride}\ns_add_u32 m0, m0, 4096\ns_sub_u32 s31, s31, 1\ns_cmp_lg_u32 s31, 0\ns_cbranch_scc1 {lp}')
def slab128_rd(e, vo, t0, t1):
    e(f'v_bfe_u32 v{t0}, v0, 2, 2\nv_lshrrev_b32 v{t1}, 4, v0\nv_lshlrev_b32 v{vo}, 10, v{t1}\nv_lshl_add_u32 v{vo}, v{t0}, 7, v{vo}')
    e(f'v_lshrrev_b32 v{t0}, 1, v{t0}\nv_and_b32 v{t1}, 1, v{t1}\nv_lshl_or_b32 v{t0}, v{t1}, 1, v{t0}\nv_lshl_add_u32 v{vo}, v{t0}, 5, v{vo}')
    e(f'v_and_b32 v{t0}, 3, v0\nv_lshl_add_u32 v{vo}, v{t0}, 3, v{vo}')
def slab32_src(e, vout, t, stride):
    e(f'v_lshrrev_b32 v{vout}, 1, v0\nv_bfe_u32 v{t}, v0, 4, 1\nv_lshlrev_b32 v{t}, 2, v{t}\nv_xor_b32 v{vout}, v{vout}, v{t}')
    e(f'v_mul_u32_u24 v{vout}, {stride}, v{vout}\nv_and_b32 v{t}, 1, v0\nv_lshl_add_u32 v{vout}, v{t}, 4, v{vout}')
def slab32_rd(e, v0_, v1_, t):
    e(f'v_lshrrev_b32 v{t}, 4, v0\nv_lshlrev_b32 v{v0_}, 8, v{t}\nv_and_b32 v{t}, 1, v{t}\nv_lshl_add_u32 v{v0_}, v{t}, 7, v{v0_}')
    e(f'v_and_b32 v{t}, 15, v0\nv_lshl_add_u32 v{v0_}, v{t}, 3, v{v0_}\nv_xor_b32 v{v1_}, 128, v{v0_}')
def ln_finish(e, s1, s2):
    e(f'v_mul_f32 v{s1}, {fx(1/384)}, v{s1}\nv_mul_f32 v{s2}, {fx(1/384)}, v{s2}\nv_fma_f32 v{s2}, -v{s1}, v{s1}, v{s2}\nv_max_f32 v{s2}, 0, v{s2}\nv_add_f32 v{s2}, {fx(1e-5)}, v{s2}\nv_rsq_f32 v{s2}, v{s2}')

def streamer(e, c):
    NS = c.NS; ntile = 4608 // NS; nt = ' nt'
    e('s_sub_u32 s35, s2, 64')
    e('s_and_b32 s4, s3, 1\ns_lshr_b32 s5, s3, 1')
    DO = 2; T0, T1, T2 = 10, 11, 12
    e('s_lshl_b32 s30, s4, 2\ns_lshr_b32 s36, 0x780, s30\ns_and_b32 s37, s36, 0xc0\ns_lshr_b32 s37, s37, 2\ns_and_b32 s36, s36, 0x30')
    e('s_mul_i32 s38, s3, 3072\ns_add_u32 s39, s38, 1536\ns_lshr_b32 s40, s38, 1\ns_lshl_b32 s41, s4, 1')
    for b in range(3):
        e(f'v_add_u32 v{T0}, {64*b}, v0\nv_mul_u32_u24 v{T1}, 1366, v{T0}\nv_lshrrev_b32 v{T1}, 16, v{T1}')
        e(f'v_mul_u32_u24 v{T2}, 48, v{T1}\nv_sub_u32 v{T0}, v{T0}, v{T2}')
        if b < 2:
            e(f'v_add_lshl_u32 v{T2}, v{T1}, s41, 2\nv_xor_b32 v{T2}, v{T2}, v{T0}\nv_lshlrev_b32 v{T2}, 4, v{T2}')
            e(f'v_mul_u32_u24 v{DO+6+b}, 768, v{T1}\nv_add3_u32 v{DO+6+b}, v{DO+6+b}, v{T2}, s40')
        e(f'v_lshlrev_b32 v{T2}, 2, v{T1}\nv_xor_b32 v{T0}, v{T0}, v{T2}\nv_lshlrev_b32 v{T0}, 4, v{T0}')
        e(f'v_lshrrev_b32 v{T2}, 1, v{T1}\nv_mul_u32_u24 v{T2}, 294912, v{T2}\nv_and_b32 v{T1}, 1, v{T1}\nv_mul_u32_u24 v{T1}, 768, v{T1}\nv_add3_u32 v{T0}, v{T0}, v{T1}, v{T2}')
        e(f'v_xor_b32 v{T1}, s36, v{T0}\nv_add_u32 v{DO+b}, s38, v{T1}\nv_xor_b32 v{T1}, s37, v{T0}\nv_add_u32 v{DO+3+b}, s39, v{T1}')
    ch = c.chunk
    assert 24 % ch == 0 and (NS * ch) % 24 == 0 and ntile % ch == 0
    e(f's_mul_i32 s25, s35, {ch}\ns_mul_hi_u32 s30, s25, {-(-(1<<32)//24)}')
    e('s_mul_i32 s27, s25, 6144\ns_mul_i32 s26, s25, 12288\ns_mul_i32 s30, s30, 294912\ns_add_u32 s26, s26, s30')
    e(f's_mul_i32 s24, s3, 6144\ns_mul_i32 s29, s3, -4608\ns_add_u32 s29, s29, {24576-5120}\ns_add_u32 s31, s24, {PB}\ns_mov_b32 s42, 0')
    jump_hi = NS * ch * 12288 + (NS * ch // 24) * 294912 - ch * 12288; jump_lo = (NS - 1) * ch * 6144
    def dma_items():
        it = []
        for j in range(6):
            it.append(('s_mov_b32 m0, s24' if j == 0 else 's_add_u32 m0, m0, 1024', f'buffer_load_dwordx4 v{DO+j}, s[8:11], s26 offen{nt} lds'))
        it.append(('s_add_u32 m0, m0, s29', f'buffer_load_dwordx4 v{DO+6}, s[12:15], s27 offen{nt} lds'))
        it.append(('s_add_u32 m0, m0, 1024\ns_mov_b32 exec_hi, 0', f'buffer_load_dwordx4 v{DO+7}, s[12:15], s27 offen{nt} lds\ns_mov_b32 exec_hi, -1'))
        return it
    def src_adv():
        if ch == 1: e(f's_add_u32 s26, s26, {12288+jump_hi}\ns_add_u32 s27, s27, {6144+jump_lo}')
        else:
            e(f's_add_u32 s42, s42, 1\ns_cmp_eq_u32 s42, {ch}\ns_cselect_b32 s42, 0, s42\ns_cselect_b32 s30, {jump_hi}, 0\ns_cselect_b32 s43, {jump_lo}, 0')
            e('s_add_u32 s26, s26, 12288\ns_add_u32 s27, s27, 6144\ns_add_u32 s26, s26, s30\ns_add_u32 s27, s27, s43')
    def slot_adv(): e(f's_add_u32 s24, s24, {TILE}\ns_cmp_ge_u32 s24, s31\ns_cselect_b32 s30, {PB}, 0\ns_sub_u32 s24, s24, s30')
    def issue_tiles(n):
        lp = e.label('L_is')
        e(f's_mov_b32 s44, {n}\n{lp}:')
        for a, b in dma_items(): e(a + ('\ns_nop 0\n' if 'exec' not in a else '\n') + b)
        src_adv(); slot_adv()
        e(f's_sub_u32 s44, s44, 1\ns_cmp_lg_u32 s44, 0\ns_cbranch_scc1 {lp}')
    e('s_waitcnt lgkmcnt(0)')
    stamp(e, c, 1)
    issue_tiles(1)
    SH, SL, PH, PL = 14, 18, 22, 28
    PW, PW2, PR, PR2, MXW, MXS, MXP = 31, 32, 33, 34, 35, 36, 37
    NEGM, LSUM, S, POOL, PK = 40, 38, 44, 39, 48
    PF, PFL = 52, 60
    TMP = 62
    FB = 68; NB = 8
    VA = 100; VL = 124
    RW = 130
    ACC = 132
    STG = 96
    e(f'v_and_b32 v{T0}, 15, v0\nv_lshrrev_b32 v{T1}, 4, v0')
    e(f'v_lshrrev_b32 v{T2}, 2, v{T0}\nv_lshlrev_b32 v13, 1, v{T2}\ns_mov_b32 s30, 0x78\nv_lshrrev_b32 v13, v13, s30\nv_and_b32 v13, 3, v13')
    e(f'v_and_b32 v{TMP}, 3, v{T0}\nv_lshl_or_b32 v13, v{TMP}, 2, v13\nv_xor_b32 v13, v13, v{T1}\nv_lshlrev_b32 v13, 4, v13')
    e(f's_mul_i32 s30, s4, 12288\nv_mul_u32_u24 v{TMP}, 768, v{T0}\nv_add3_u32 v{SH}, v13, v{TMP}, s30')
    e(f'v_lshl_or_b32 v13, v{T2}, 2, v{T1}\nv_lshlrev_b32 v13, 4, v13\ns_mul_i32 s30, s4, 3072\ns_add_u32 s30, s30, 24576\nv_mul_u32_u24 v{TMP}, 768, v{T2}\nv_add3_u32 v{SL}, v13, v{TMP}, s30')
    for b in range(1, 4): e(f'v_xor_b32 v{SH+b}, {64*b}, v{SH}\nv_xor_b32 v{SL+b}, {64*b}, v{SL}')
    e(f's_lshl_b32 s30, s5, 4\nv_add_u32 v13, s30, v{T0}')
    e(f'v_lshrrev_b32 v{TMP}, 1, v{T1}\nv_lshlrev_b32 v{TMP}, 9, v{TMP}\nv_lshl_add_u32 v{TMP}, v13, 4, v{TMP}\nv_and_b32 v{TMP+1}, 1, v{T1}\nv_lshl_add_u32 v{TMP}, v{TMP+1}, 3, v{TMP}')
    e(f's_lshl_b32 s30, s4, 10\ns_add_u32 s30, s30, {PB}\nv_add_u32 v{PW}, s30, v{TMP}')
    e(f'v_lshlrev_b32 v{TMP}, 3, v13\nv_lshl_add_u32 v{TMP}, v{T1}, 1, v{TMP}\ns_lshl_b32 s30, s4, 8\ns_add_u32 s30, s30, {PB+2048}\nv_add_u32 v{PW2}, s30, v{TMP}')
    e(f'v_lshlrev_b32 v{TMP}, 4, v0\nv_add_u32 v{PR}, {PB}, v{TMP}\nv_lshlrev_b32 v{TMP}, 3, v0\nv_add_u32 v{PR2}, {PB+2048}, v{TMP}')
    e(f'v_lshlrev_b32 v{TMP}, 2, v13\nv_add_u32 v{MXS}, {PB+2560}, v{TMP}\ns_lshl_b32 s30, s4, 7\nv_add_u32 v{MXW}, s30, v{MXS}')
    e(f'v_and_b32 v{TMP}, 31, v0\nv_lshlrev_b32 v{TMP}, 2, v{TMP}\nv_add_u32 v{MXP}, {PB+2560}, v{TMP}')
    issue_tiles(c.npre - 1)
    e(f'v_lshrrev_b32 v{T0}, 5, v0\nv_bfe_u32 v{T1}, v0, 2, 2')
    e(f'v_bfe_u32 v{T2}, v0, 4, 1\nv_and_b32 v13, 1, v0\nv_lshl_or_b32 v{T2}, v{T2}, 1, v13\nv_lshl_or_b32 v{T2}, v{T1}, 2, v{T2}')
    e(f'v_bfe_u32 v13, v0, 1, 1\nv_lshlrev_b32 v13, 3, v13')
    for t in range(3):
        e(f's_mul_i32 s30, s3, 12\ns_add_u32 s30, s30, {4*t}\nv_xor_b32 v{TMP}, s30, v{T2}')
        e(f'v_lshl_add_u32 v{TMP+1}, v{T0}, 2, v{T1}\nv_mul_u32_u24 v{TMP+1}, 768, v{TMP+1}\nv_lshl_add_u32 v{TMP+1}, v{TMP}, 4, v{TMP+1}\nv_add_u32 v{TMP+1}, v{TMP+1}, v13\nv_add_u32 v{PL+t}, 24576, v{TMP+1}')
        for u in range(2):
            e(f'v_lshlrev_b32 v{TMP+1}, 2, v{T0}\nv_add_u32 v{TMP+1}, {2*u}, v{TMP+1}\ns_mov_b32 s30, 0x78\nv_lshrrev_b32 v{TMP+1}, v{TMP+1}, s30\nv_and_b32 v{TMP+1}, 3, v{TMP+1}\nv_xor_b32 v{TMP+1}, v{TMP+1}, v{TMP}')
            e(f'v_lshl_add_u32 v{TMP+2}, v{T0}, 3, v{T1}\nv_add_u32 v{TMP+2}, {4*u}, v{TMP+2}\nv_mul_u32_u24 v{TMP+2}, 768, v{TMP+2}\nv_lshl_add_u32 v{TMP+2}, v{TMP+1}, 4, v{TMP+2}\nv_add_u32 v{PH+2*t+u}, v{TMP+2}, v13')
    for i in range(0, 96, 2): e(f'v_mov_b64 {vr(ACC+i,2)}, 0')
    e(f'v_mov_b64 {vr(NEGM,2)}, 0\nv_mov_b64 {vr(NEGM+2,2)}, 0\nv_mov_b32 v{LSUM}, 0')
    K = c.K
    ring = ['N'] * c.npre + ['D'] * (NSLOT - c.npre)
    left = ntile - NSLOT - K; act = []; rk = 0
    for r in range(ntile):
        if r in c.rrounds and rk < K: act.append('R'); ring.append('N'); rk += 1; assert 'D' in ring[NSLOT:r+1] or True
        elif r in c.skips or left == 0: act.append('S')
        else: act.append('D'); ring.append('D'); left -= 1
        assert len(ring) > r + 1 or r == ntile - 1, 'ring ran dry'
    assert left == 0 and rk == K and len(ring) == ntile, (left, rk, len(ring))
    for r in range(ntile):
        if act[r] == 'R': assert 'D' in ring[NSLOT:r + 1], 'staged tile used before its loads are known landed'
    mW = sum(1 << r for r in range(ntile) if ring[r] == 'D'); mD = sum(1 << r for r in range(ntile) if act[r] == 'D'); mR = sum(1 << r for r in range(ntile) if act[r] == 'R')
    e.c(f'actions {"".join(act)} arrivals {"".join(ring)}')
    e(f's_mov_b32 s28, 1\ns_mov_b32 s45, 0\ns_mov_b32 s25, 0\ns_mov_b32 s33, {TILE}\ns_mov_b32 s46, {mW}\ns_mov_b32 s47, {mD}\ns_mov_b32 s48, {mR}\ns_mov_b32 s49, {NSLOT-c.npre}\ns_mov_b32 s50, 0')
    e(f'v_lshlrev_b32 v{T0}, 4, v0\ns_mul_i32 s51, s5, 24576\ns_add_u32 s51, s51, {AF}')
    def stage_loads(k):
        out = []
        for j in range(8):
            srd, so = ('s[8:11]', 26) if j < 6 else ('s[12:15]', 27)
            x = f'buffer_load_dwordx4 {ar(STG+32*k+4*j)}, v{DO+j}, {srd}, s{so} offen{nt}'
            out.append(x if j < 7 else 's_mov_b32 exec_hi, 0\n' + x + '\ns_mov_b32 exec_hi, -1')
        return out
    kpre = getattr(c, 'kpre', 0)
    for k in range(kpre):
        for x in stage_loads(k): e(x)
        src_adv()
    stamp(e, c, 2)
    spoll0(e, GOA, 1, c.pollsleep)
    stamp(e, c, 3)
    for ks in range(24):
        e(f'buffer_load_dwordx4 {ar(4*ks)}, v{T0}, s[16:19], s51 offen offset:{1024*(ks%4)} sc1')
        if ks % 4 == 3: e('s_add_u32 s51, s51, 4096')
    if NSLOT - c.npre: issue_tiles(NSLOT - c.npre)
    for k in range(kpre, K):
        for x in stage_loads(k): e(x)
        src_adv()
    e(f's_waitcnt vmcnt({8*(NSLOT-c.npre+K-kpre)})')
    stamp(e, c, 4)
    loop = e.label('L_tile'); slow = e.label('L_slow'); back = e.label('L_back'); nw = e.label('L_nw'); nod = e.label('L_nod'); nxt = e.label('L_nxt')
    e(f'.p2align 3\n{loop}:\ns_bitcmp1_b32 s46, s25\ns_cbranch_scc0 {nw}\ns_sub_u32 s49, s49, 1')
    for n in range(4, 0, -1): e(f's_waitcnt vmcnt({8*n})\ns_cmp_ge_u32 s49, {n}\ns_cbranch_scc1 {nw}')
    e(f's_waitcnt vmcnt(0)\n{nw}:\ns_barrier')
    if c.diag: e(f's_memrealtime s[{64+2*5}:{65+2*5}]')
    def sread(k):
        base = (SH if k < 12 else SL); ks = k % 12
        e.dsop(f'ds_read_b128 {vr(FB+4*(k%NB))}, v{base+(ks&3)} offset:{256*(ks>>2)}', ('s', k))
    trs = []
    for pg in range(2):
        for t in range(3):
            for u in range(2): trs.append(f'ds_read_b64_tr_b16 {vr(VA+8*t+4*pg+2*u,2)}, v{PH+2*t+u} offset:{12288*pg}')
    for t in range(3): trs.append(f'ds_read_b64_tr_b16 {vr(VL+2*t,2)}, v{PL+t}')
    for k in range(NB): sread(k)
    for k in range(24):
        e.dswait(('s', k))
        e(f'v_mfma_f32_16x16x32_bf16 {vr(S)}, {vr(FB+4*(k%NB))}, {ar(4*k)}, {vr(S) if k else vr(NEGM)}')
        if k + NB < 24: sread(k + NB)
        elif trs: e.dsop(trs.pop(0), 'tr')
    while trs: e.dsop(trs.pop(0), 'tr')
    e('s_nop 0')
    def expwrite():
        for i in range(4): e(f'v_exp_f32 v{TMP+i}, v{S+i}')
        e(f'v_add_f32 v{TMP+4}, v{TMP}, v{TMP+1}\nv_add_f32 v{TMP+5}, v{TMP+2}, v{TMP+3}\nv_cvt_pk_bf16_f32 v{PK}, v{TMP}, v{TMP+1}\nv_cvt_pk_bf16_f32 v{PK+1}, v{TMP+2}, v{TMP+3}')
        e(f'v_add_f32 v{POOL}, v{TMP+4}, v{TMP+5}\nds_write_b64 v{PW}, {vr(PK,2)}\nv_cvt_pk_bf16_f32 v{PK+2}, v{POOL}, v{POOL}\nds_write_b16 v{PW2}, v{PK+2}')
        e.dsall(); e('s_barrier')
        e(f'ds_read_b64 {vr(PFL,2)}, v{PR2}\nds_read_b128 {vr(PF)}, v{PR}\nds_read_b128 {vr(PF+4)}, v{PR} offset:1024')
    expwrite()
    e(f's_add_u32 s45, s45, 1\ns_cmp_eq_u32 s45, {NSLOT}\ns_cselect_b32 s32, {-(NSLOT-1)*TILE}, s33\ns_cselect_b32 s45, 0, s45')
    e(f's_waitcnt lgkmcnt(2)\nv_or_b32 v{TMP}, v{PFL}, v{PFL+1}\nv_and_b32 v{TMP}, 0x40004000, v{TMP}\nv_cmp_ne_u32 vcc, 0, v{TMP}')
    e(f's_cmp_lg_u32 s28, 0\ns_cbranch_scc1 {slow}\ns_cbranch_vccnz {slow}')
    e(f'{back}:')
    e(f'v_add_f32 v{LSUM}, v{LSUM}, v{POOL}\ns_bitcmp1_b32 s47, s25\ns_cbranch_scc0 {nod}')
    def pv(dm):
        adds = [f'v_add_u32 v{r}, s32, v{r}' for r in range(SH, PL + 3)]
        mf = [f'v_mfma_f32_32x32x8_bf16 {vr(ACC+48+16*t,16)}, {vr(VL+2*t,2)}, {vr(PFL,2)}, {vr(ACC+48+16*t,16)}' for t in range(3)]
        for pg in range(2):
            for t in range(3): mf.append(f'v_mfma_f32_32x32x16_bf16 {vr(ACC+16*t,16)}, {vr(VA+8*t+4*pg)}, {vr(PF+4*pg)}, {vr(ACC+16*t,16)}')
        for i, m in enumerate(mf):
            if i == 3: e('s_waitcnt lgkmcnt(0)')
            e(m)
            if dm:
                a, b = dm.pop(0)
                if 'exec' in a: e(adds.pop(0)); e(adds.pop(0)); e(a); e(b)
                else: e(a); e(adds.pop(0)); e(adds.pop(0)); e(b)
            else:
                for _ in range(2):
                    if adds: e(adds.pop(0))
        while adds: e(adds.pop(0))
    pv(dma_items()); src_adv(); slot_adv()
    e(f's_add_u32 s49, s49, 1\ns_add_u32 s25, s25, 1\ns_branch {loop}')
    e(f'{nod}:')
    pv([])
    if K:
        e(f's_bitcmp1_b32 s48, s25\ns_cbranch_scc0 {nxt}')
        e(f'v_lshl_add_u32 v{RW}, v0, 4, s24\nv_add_u32 v{RW+1}, s29, v{RW}')
        done = e.label('L_rdone')
        for k in range(K):
            nx = e.label('L_rk')
            if k < K - 1: e(f's_cmp_lg_u32 s50, {k}\ns_cbranch_scc1 {nx}')
            for j in range(6): e(f'ds_write_b128 v{RW}, {ar(STG+32*k+4*j)} offset:{1024*j}')
            e(f'ds_write_b128 v{RW+1}, {ar(STG+32*k+24)} offset:5120\ns_mov_b32 exec_hi, 0\nds_write_b128 v{RW+1}, {ar(STG+32*k+28)} offset:6144\ns_mov_b32 exec_hi, -1')
            if k < K - 1: e(f's_branch {done}\n{nx}:')
        e(f'{done}:\ns_add_u32 s50, s50, 1'); slot_adv(); e('s_waitcnt lgkmcnt(0)')
    e(f'{nxt}:\ns_add_u32 s25, s25, 1\ns_cmp_lg_u32 s25, {ntile}\ns_cbranch_scc1 {loop}')
    stamp(e, c, 6)
    xsum16_32(e, LSUM, TMP)
    e(f'ds_write_b32 v{MXW}, v{LSUM} offset:256')
    e(f'v_lshlrev_b32 v{T0}, 4, v0\ns_mul_i32 s30, s35, 49152\ns_mul_i32 s26, s3, 6144\ns_add_u32 s30, s30, s26\ns_add_u32 s30, s30, {PART}')
    for s in range(12):
        b = FB + 4 * (s % 8)
        for i in range(4): e(f'v_cvt_pk_bf16_f32 v{b+i}, v{ACC+8*s+2*i}, v{ACC+8*s+2*i+1}')
        e(f'buffer_store_dwordx4 {vr(b)}, v{T0}, s[16:19], s30 offen offset:{1024*(s%2)} sc1')
        if s % 2 == 1: e(f's_add_u32 s30, s30, {2048 if s != 5 else 2048 + 24576 - 6144}')
        if s == 1: e(f's_waitcnt lgkmcnt(0)\ns_barrier\nds_read2_b32 {vr(TMP,2)}, v{MXS} offset0:64 offset1:96')
    e(f's_waitcnt lgkmcnt(0)\nv_add_f32 v{TMP+1}, v{TMP}, v{TMP+1}\nv_sub_f32 v{TMP}, 0, v{NEGM}\nv_min_u32 v{TMP+1}, -2, v{TMP+1}\nv_min_u32 v{TMP}, -2, v{TMP}')
    e(f'v_lshlrev_b32 v2, 3, v0\ns_lshl_b32 s30, s5, 15\ns_lshl_b32 s26, s35, 7\ns_add_u32 s30, s30, s26\ns_add_u32 s30, s30, {ML}')
    ni = NS // 16
    e(f's_and_b32 s36, s35, 1\ns_lshl_b32 s38, s36, 15\ns_lshl_b32 s26, s3, 9\ns_add_u32 s38, s38, s26\ns_add_u32 s38, s38, {ML}')
    for k in range(1, (ni + 1) // 2): e(f's_add_u32 s{38+k}, s38, {4096*k}')
    e(f'v_lshrrev_b32 v3, 4, v0\nv_mul_u32_u24 v3, 49152, v3\nv_and_b32 v4, 15, v0\nv_lshl_add_u32 v3, v4, 4, v3')
    e(f's_lshl_b32 s27, s35, 8\ns_mul_i32 s26, s3, {4*49152}\ns_add_u32 s27, s27, s26\ns_add_u32 s27, s27, {PART}\ns_mov_b32 s46, {(1<<ni)-1}')
    e('s_waitcnt vmcnt(0)')
    stamp(e, c, 7)
    e('s_barrier')
    nml = e.label('L_nml')
    e(f's_cmp_lg_u32 s4, 0\ns_cbranch_scc1 {nml}')
    e(f's_mov_b64 exec, 0xffff\nbuffer_store_dwordx2 {vr(TMP,2)}, v2, s[16:19], s30 offen sc1\ns_mov_b64 exec, -1\n{nml}:')
    if NS > 192: e('s_cmp_ge_u32 s35, 192\ns_cbranch_scc1 L_fin')
    MLR, X, A, T = 16, 68, 140, 148
    pl = e.label('L_t1')
    e(f'{pl}:')
    for i in range(ni): e(f'buffer_load_dwordx2 {vr(MLR+2*i,2)}, v2, s[16:19], s{38+i//2} offen offset:{2048*(i%2)} sc1')
    e('s_sub_u32 s61, s61, 1\ns_cmp_gt_i32 s61, 0\ns_cselect_b32 s46, s46, 0\ns_waitcnt vmcnt(0)')
    for i in range(ni):
        sk = e.label('L_t1s')
        e(f'v_max_u32 v5, v{MLR+2*i}, v{MLR+2*i+1}\nv_cmp_eq_u32 vcc, -1, v5\ns_bitcmp1_b32 s46, {i}\ns_cbranch_scc0 {sk}\ns_cbranch_vccnz {sk}')
        e(f's_add_u32 s30, s27, {16*49152*i}\ns_bitset0_b32 s46, {i}\nbuffer_load_dwordx4 {vr(X+4*i)}, v3, s[16:19], s30 offen sc1\n{sk}:')
    e(f's_cmp_lg_u32 s46, 0\ns_cbranch_scc1 {pl}')
    stamp(e, c, 8)
    e(f'v_max_f32 v6, v{MLR}, v{MLR+2}')
    for i in range(2, ni, 2): e(f'v_max3_f32 v6, v6, v{MLR+2*i}, v{MLR+2*min(i+1,ni-1)}')
    xsum16_32(e, 6, 5, 'v_max_f32')
    for i in range(ni): e(f'v_sub_f32 v{MLR+2*i}, v{MLR+2*i}, v6')
    for i in range(ni): e(f'v_exp_f32 v{MLR+2*i}, v{MLR+2*i}')
    e(f'v_mul_f32 v7, v{MLR}, v{MLR+1}')
    for i in range(1, ni): e(f'v_fmac_f32 v7, v{MLR+2*i}, v{MLR+2*i+1}')
    xsum16_32(e, 7, 5)
    e('v_lshlrev_b32 v8, 4, v0\ns_lshl_b32 s30, s3, 10\nv_add_u32 v9, s30, v8')
    e('s_waitcnt vmcnt(0)')
    stamp(e, c, 9)
    for i in range(ni):
        for d in range(4): e(f'v_lshlrev_b32 v{T+2*d}, 16, v{X+4*i+d}\nv_and_b32 v{T+2*d+1}, 0xffff0000, v{X+4*i+d}')
        for d in range(4):
            if i == 0: e(f'v_pk_mul_f32 {vr(A+2*d,2)}, {vr(T+2*d,2)}, {vr(MLR,2)} op_sel_hi:[1,0]')
            else: e(f'v_pk_fma_f32 {vr(A+2*d,2)}, {vr(T+2*d,2)}, {vr(MLR+2*i,2)}, {vr(A+2*d,2)} op_sel_hi:[1,0,1]')
    e('s_nop 1')
    for k in range(4): e(f'v_permlane32_swap_b32 v{A+k}, v{A+k+4}')
    for k in range(4): e(f'v_add_f32 v{A+k}, v{A+k}, v{A+k+4}')
    e('s_nop 1')
    for k in range(2): e(f'v_permlane16_swap_b32 v{A+k}, v{A+k+2}')
    e(f'v_add_f32 v4, v{A}, v{A+2}\nv_add_f32 v5, v{A+1}, v{A+3}')
    e('ds_write_b128 v9, v[4:7]\ns_waitcnt lgkmcnt(0)\ns_barrier')
    e('s_cmp_lg_u32 s3, 0\ns_cbranch_scc1 L_fin')
    for w in range(4): e(f'ds_read_b128 {vr(16+4*w)}, v8 offset:{1024*w}')
    e('v_and_b32 v8, 15, v0\nv_lshrrev_b32 v9, 4, v0\nv_lshlrev_b32 v8, 4, v8\nv_lshl_add_u32 v8, v9, 2, v8')
    e(f's_mul_i32 s30, s36, 24576\ns_lshr_b32 s26, s35, 1\ns_lshl_b32 s26, s26, 8\ns_add_u32 s30, s30, s26\ns_add_u32 s30, s30, {UF}')
    e('s_waitcnt lgkmcnt(0)\nv_max3_f32 v6, v18, v22, v26\nv_max_f32 v6, v6, v30')
    for w in range(4): e(f'v_sub_f32 v{18+4*w}, v{18+4*w}, v6')
    for w in range(4): e(f'v_exp_f32 v{18+4*w}, v{18+4*w}')
    e('v_mul_f32 v7, v19, v18\nv_mul_f32 v4, v16, v18\nv_mul_f32 v5, v17, v18')
    for w in range(1, 4): e(f'v_fmac_f32 v7, v{19+4*w}, v{18+4*w}')
    e('v_rcp_f32 v7, v7')
    for w in range(1, 4): e(f'v_fmac_f32 v4, v{16+4*w}, v{18+4*w}\nv_fmac_f32 v5, v{17+4*w}, v{18+4*w}')
    e('v_mul_f32 v4, v4, v7\nv_mul_f32 v5, v5, v7\nv_cvt_pk_bf16_f32 v4, v4, v5\nv_min_u32 v4, -2, v4')
    e('buffer_store_dword v4, v8, s[16:19], s30 offen sc1')
    stamp(e, c, 10)
    e('L_fin:')
    dump(e, c)
    e('L_end:\ns_endpgm')
    e(f'{slow}:')
    e(f'v_max3_f32 v{TMP}, v{S}, v{S+1}, v{S+2}\nv_max_f32 v{TMP}, v{TMP}, v{S+3}')
    xsum16_32(e, TMP, TMP + 1, 'v_max_f32')
    e(f'ds_write_b32 v{MXW}, v{TMP}\ns_waitcnt lgkmcnt(0)\ns_barrier')
    e(f'ds_read2_b32 {vr(TMP,2)}, v{MXS} offset0:0 offset1:32\nds_read2_b32 {vr(TMP+2,2)}, v{MXP} offset0:0 offset1:32\ns_waitcnt lgkmcnt(0)')
    e(f'v_max_f32 v{TMP}, v{TMP}, v{TMP+1}\nv_max_f32 v{TMP+2}, v{TMP+2}, v{TMP+3}')
    e(f'v_add_f32 v{TMP}, {fx(9.0)}, v{TMP}\nv_add_f32 v{TMP+2}, {fx(9.0)}, v{TMP+2}')
    nf = e.label()
    e(f's_cmp_lg_u32 s28, 0\ns_cbranch_scc1 {nf}')
    e(f'v_max_f32 v{TMP}, 0, v{TMP}\nv_max_f32 v{TMP+2}, 0, v{TMP+2}')
    e(f'v_exp_f32 v{TMP+1}, -v{TMP}\nv_exp_f32 v{TMP+4}, -v{TMP+2}\ns_nop 0\nv_mul_f32 v{LSUM}, v{LSUM}, v{TMP+1}')
    for i in range(0, 96, 2): e(f'v_pk_mul_f32 {vr(ACC+i,2)}, {vr(ACC+i,2)}, {vr(TMP+4,2)} op_sel_hi:[1,0]')
    e(f'{nf}:\ns_mov_b32 s28, 0')
    for i in range(4): e(f'v_sub_f32 v{NEGM+i}, v{NEGM+i}, v{TMP}\nv_sub_f32 v{S+i}, v{S+i}, v{TMP}')
    expwrite()
    e(f's_waitcnt lgkmcnt(0)\ns_branch {back}')

def role_p1(e, c):
    e('L_p1:')
    load_srds(e, [(8, 'wq'), (12, 'q'), (24, 'wo'), (52, 'wkv')])
    e('s_sub_u32 s35, s2, 48\ns_and_b32 s4, s35, 1\ns_lshr_b32 s5, s35, 1')
    rows_src(e, 4, 768, 10, 11, 12)
    slab128_src(e, 7, 768, 10, 11)
    e('s_mul_i32 s36, s4, 12288\ns_waitcnt lgkmcnt(0)')
    stamp(e, c, 1)
    rows_dma(e, 4, 's[12:15]', 36, 49152, 1, 768)
    slab128_dma(e, 7, 's[8:11]', 5, 768, 0)
    XF, WF, D, CS, RA = 16, 64, 112, 116, 120
    rows_rd(e, RA, 49152, 10, 11, 12)
    slab128_rd(e, 13, 10, 11)
    e('s_lshl_b32 s30, s3, 5\nv_xor_b32 v13, s30, v13')
    e('v_and_b32 v2, 15, v0\nv_lshrrev_b32 v3, 4, v0'); tile_off(e, 14, 2, 3, 10)
    e(f's_lshl_b32 s37, s5, 2\ns_add_u32 s37, s37, s3\ns_lshl_b32 s38, s37, 9\ns_add_u32 s38, s38, s36\ns_add_u32 s38, s38, {QF}')
    e('s_mov_b32 s30, 0x3f803f80\nv_mov_b32 v8, 0\nv_mov_b32 v9, 0')
    for i in range(4): e(f'v_mov_b32 v{124+i}, s30')
    e('s_waitcnt vmcnt(12)\ns_barrier')
    stamp(e, c, 2)
    for ks in range(12): e(f'ds_read_b128 {vr(XF+4*ks)}, v{RA+(ks&3)} offset:{256*(ks>>2)}')
    e('s_waitcnt lgkmcnt(0)')
    for i in range(48): e(f'v_dot2c_f32_bf16 v8, v{XF+i}, v124\nv_dot2c_f32_bf16 v9, v{XF+i}, v{XF+i}')
    e('s_nop 2')
    xsum16_32(e, 8, 10); xsum16_32(e, 9, 10); ln_finish(e, 8, 9)
    spoll(e, CP, 16)
    stamp(e, c, 3)
    e('s_waitcnt vmcnt(0)\ns_barrier')
    stamp(e, c, 4)
    def mm(k):
        e.dswait(('w', k))
        e(f'v_mfma_f32_16x16x32_bf16 {vr(D)}, {vr(WF+4*k)}, {vr(XF+4*k)}, {vr(D) if k else 0}')
        e(f'v_mfma_f32_16x16x32_bf16 {vr(CS)}, {vr(WF+4*k)}, v[124:127], {vr(CS) if k else 0}')
    for ks in range(12):
        for u in range(2): e.dsop(f'ds_read_b64_tr_b16 {vr(WF+4*ks+2*u,2)}, v13 offset:{4096*ks+512*u}', ('w', ks))
        if ks >= 5: mm(ks - 5)
    for k in range(7, 12): mm(k)
    e('s_nop 7')
    for i in range(4): e(f'v_fma_f32 v{D+i}, -v8, v{CS+i}, v{D+i}')
    for i in range(4): e(f'v_mul_f32 v{D+i}, v9, v{D+i}')
    pack_store(e, D, 10, 14, 38)
    stamp(e, c, 5)
    e('s_barrier')
    slab128_dma(e, 7, 's[24:27]', 5, 768, 0)
    rows_src(e, 4, 1536, 10, 11, 12)
    e(f's_mul_i32 s36, s4, {192*1536}\ns_add_u32 s36, s36, 768')
    rows_dma(e, 4, 's[52:55]', 36, 49152, 8, 1536)
    e('s_waitcnt vmcnt(24)\ns_barrier')
    for ks in range(12):
        for u in range(2): e(f'ds_read_b64_tr_b16 {vr(XF+4*ks+2*u,2)}, v13 offset:{4096*ks+512*u}')
        if ks % 6 == 5: e('s_waitcnt lgkmcnt(0)')
    e('s_barrier')
    rows_dma(e, 4, 's[52:55]', 36, 0, 4, 1536)
    e(f's_mul_i32 s38, s37, 12288\ns_mul_i32 s30, s4, 6144\ns_add_u32 s38, s38, s30\ns_add_u32 s38, s38, {YF}')
    e('s_waitcnt vmcnt(12)\ns_barrier')
    rowgemm(e, RA, 8, XF, WF, D, 10, 14, 38)
    rows_rd(e, RA, 0, 10, 11, 12)
    e('s_waitcnt vmcnt(0)\ns_barrier')
    rowgemm(e, RA, 4, XF, WF, D, 10, 14, 38)
    e('s_waitcnt vmcnt(0)')
    arrive(e, CY, 10, 11)
    stamp(e, c, 6)
    e('s_branch L_fin')

def role_spare(e, c):
    e('L_spare:')
    e('s_sub_u32 s35, s2, 60\ns_lshl_b32 s35, s35, 2\ns_add_u32 s35, s35, s3')
    e('v_lshlrev_b32 v2, 4, v0\nv_mov_b64 v[4:5], -1\nv_mov_b64 v[6:7], -1')
    e('s_mul_i32 s36, s35, 6144\ns_waitcnt lgkmcnt(0)')
    for k in range(6): e('buffer_store_dwordx4 v[4:7], v2, s[16:19], s36 offen sc1\ns_add_u32 s36, s36, 1024')
    e(f's_mul_i32 s36, s35, 15360\ns_add_u32 s36, s36, {UF}\ns_waitcnt vmcnt(0)')
    arrive(e, CP, 10, 11)
    stamp(e, c, 1)
    for k in range(15): e('buffer_store_dwordx4 v[4:7], v2, s[16:19], s36 offen sc1\ns_add_u32 s36, s36, 1024')
    e('s_waitcnt vmcnt(0)')
    arrive(e, CP2, 10, 11)
    stamp(e, c, 2)
    e('s_cmp_lg_u32 s2, 60\ns_cbranch_scc1 L_fin')
    spoll(e, CP2, 16)
    e(f's_mul_i32 s36, s3, 12288\ns_add_u32 s36, s36, {AF}'); soffs(e, 36, 3)
    gather(e, frag_loads(16, 12, 2, 36), 10)
    e('s_barrier\ns_cmp_lg_u32 s3, 0\ns_cbranch_scc1 L_fin')
    e(f'v_mov_b32 v10, 1\nv_mov_b32 v11, {GOA}\ns_mov_b64 exec, 1\nbuffer_store_dword v10, v11, s[20:23], 0 offen sc1')
    stamp(e, c, 3)
    e('s_branch L_fin')

def role_tail(e, c):
    e('L_tail:')
    load_srds(e, [(8, 'wkv'), (12, 'lat_hi'), (24, 'lat_lo'), (52, 'w1'), (56, 'w2')])
    e('s_and_b32 s4, s2, 1\ns_lshr_b32 s5, s2, 1')
    WF, XF, D = 16, 64, 112
    e('v_and_b32 v2, 15, v0\nv_lshrrev_b32 v3, 4, v0\nv_lshlrev_b32 v12, 4, v0'); tile_off(e, 14, 2, 3, 10)
    e('s_cmp_eq_u32 s3, 0\ns_cselect_b32 s32, 1536, 0\ns_max_u32 s32, s32, 768\nv_mul_u32_u24 v4, s32, v2\nv_lshl_add_u32 v4, v3, 4, v4\ns_mul_i32 s33, s32, s5\ns_lshl_b32 s33, s33, 4')
    e(f's_mul_i32 s35, s4, 12288\ns_add_u32 s36, s35, {QF}\ns_add_u32 s39, s35, {TF}'); soffs(e, 36, 3); soffs(e, 39, 3)
    e('s_waitcnt lgkmcnt(0)')
    e('s_mov_b64 s[44:45], s[8:9]\ns_mov_b32 s46, s10\ns_mov_b32 s47, 0x20000')
    e('s_cmp_eq_u32 s3, 1\ns_cselect_b32 s44, s12, s44\ns_cselect_b32 s45, s13, s45\ns_cselect_b32 s46, s14, s46')
    e('s_cmp_eq_u32 s3, 2\ns_cselect_b32 s44, s24, s44\ns_cselect_b32 s45, s25, s45\ns_cselect_b32 s46, s26, s46')
    b1 = e.label('L_b1'); b2 = e.label('L_b2'); w3 = e.label('L_w3')
    e(f's_cmp_eq_u32 s3, 3\ns_cbranch_scc1 {w3}')
    for ks in range(12): e(f'buffer_load_dwordx4 {vr(WF+4*ks)}, v4, s[44:47], s33 offen offset:{64*ks}')
    e(f's_cmp_lg_u32 s3, 0\ns_cbranch_scc1 {b1}')
    stamp(e, c, 1)
    spoll(e, CP, 16)
    e('s_waitcnt vmcnt(0)')
    stamp(e, c, 2)
    gather(e, frag_loads(XF, 12, 12, 36), 10)
    stamp(e, c, 3)
    for ks in range(12): e(f'v_mfma_f32_16x16x32_bf16 {vr(D)}, {vr(WF+4*ks)}, {vr(XF+4*ks)}, {vr(D) if ks else 0}')
    e('s_lshl_b32 s30, s5, 9\ns_add_u32 s30, s30, s39\ns_nop 5')
    pack_store(e, D, 10, 14, 30)
    e(f's_branch {b1}')
    e(f'{w3}:')
    if c.touch:
        e(f's_getpc_b64 s[44:45]\nL_pc:\ns_sub_u32 s44, s44, L_pc-{KNAME}\ns_subb_u32 s45, s45, 0\nv_lshlrev_b32 v4, 7, v0')
        for k in range(c.code_bytes // 8192): e('global_load_dword v5, v4, s[44:45]\nv_add_u32 v4, 8192, v4')
    e(f'{b1}:\ns_barrier')
    e(f's_add_u32 s30, s3, 1\ns_and_b32 s30, s30, 2\ns_cbranch_scc0 {b2}')
    e('s_waitcnt vmcnt(0)')
    gather(e, frag_loads(XF, 12, 12, 39), 10)
    stamp(e, c, 4)
    for ks in range(12): e(f'v_mfma_f32_16x16x32_bf16 {vr(D)}, {vr(WF+4*ks)}, {vr(XF+4*ks)}, {vr(D) if ks else 0}')
    e(f's_lshl_b32 s30, s5, 9\ns_mul_i32 s31, s3, 12288\ns_add_u32 s30, s30, s31\ns_lshl_b32 s31, s35, 1\ns_add_u32 s30, s30, s31\ns_add_u32 s30, s30, {AF-12288}\ns_nop 1')
    for i in range(4): e(f'v_mul_f32 v{D+i}, {fx(384**-0.5*LOG2E)}, v{D+i}')
    pack_store(e, D, 10, 14, 30)
    stamp(e, c, 5)
    e(f'{b2}:\ns_waitcnt vmcnt(0)\ns_barrier')
    W1, W2, WC, CS, QR = 128, 176, 224, 248, 252
    load_srds(e, [(8, 'q'), (44, 'out')])
    slab128_src(e, 7, 3072, 10, 11)
    slab128_dma(e, 7, 's[52:55]', 5, 3072, 0)
    slab32_src(e, 4, 10, 768)
    e(f's_lshl_b32 s36, s5, 5\ns_mul_i32 s30, s3, {384*768}\ns_add_u32 s36, s36, s30\ns_mul_i32 s37, s3, 12288\ns_add_u32 s37, s37, 49152\ns_mov_b32 m0, s37')
    lp = e.label('L_w2')
    e(f's_mov_b32 s31, 12\n{lp}:\nbuffer_load_dwordx4 v4, s[56:59], s36 offen lds\ns_add_u32 m0, m0, 1024\ns_add_u32 s36, s36, 24576\ns_sub_u32 s31, s31, 1\ns_cmp_lg_u32 s31, 0\ns_cbranch_scc1 {lp}')
    e('v_mul_u32_u24 v15, 768, v2\nv_lshl_add_u32 v15, v3, 3, v15\ns_lshl_b32 s48, s5, 5\ns_add_u32 s48, s48, s35\ns_waitcnt lgkmcnt(0)')
    e(f'buffer_load_dwordx2 {vr(QR,2)}, v15, s[8:11], s48 offen')
    slab128_rd(e, 13, 10, 11)
    slab32_rd(e, 6, 7, 10)
    e('v_add_u32 v6, s37, v6\nv_add_u32 v7, s37, v7\ns_mov_b32 s30, 0x3f803f80')
    for i in range(4): e(f'v_mov_b32 v{124+i}, s30')
    e('s_lshl_b32 s30, s3, 5\nv_xor_b32 v8, s30, v13\ns_mul_i32 s30, s3, 12288\nv_add_u32 v13, s30, v13')
    e('s_waitcnt vmcnt(0)\ns_barrier')
    for ks in range(12):
        for u in range(2): e(f'ds_read_b64_tr_b16 {vr(WF+4*ks+2*u,2)}, v8 offset:{4096*ks+512*u}')
        if ks % 6 == 5: e('s_waitcnt lgkmcnt(0)')
    for ks in range(12): e(f'v_mfma_f32_16x16x32_bf16 {vr(CS)}, {vr(WF+4*ks)}, v[124:127], {vr(CS) if ks else 0}')
    for t in range(4):
        e(f'v_xor_b32 v9, {32*t}, v13')
        for k in range(3):
            for u in range(2): e(f'ds_read_b64_tr_b16 {vr(W1+12*t+4*k+2*u,2)}, v9 offset:{4096*k+512*u}')
        if t % 2: e('s_waitcnt lgkmcnt(0)')
    for ks in range(12):
        e(f'ds_read_b64_tr_b16 {vr(W2+4*ks,2)}, v6 offset:{1024*ks}\nds_read_b64_tr_b16 {vr(W2+4*ks+2,2)}, v7 offset:{1024*ks}')
        if ks % 6 == 5: e('s_waitcnt lgkmcnt(0)')
    e('s_barrier')
    stamp(e, c, 6)
    e(f's_mul_i32 s36, s2, 43\ns_lshr_b32 s36, s36, 8\ns_mul_i32 s30, s36, 6\ns_sub_u32 s37, s2, s30')
    e('s_cmp_ge_u32 s36, 4\ns_cselect_b32 s12, s24, s12\ns_cselect_b32 s13, s25, s13')
    e(f's_and_b32 s38, s36, 3\ns_mul_i32 s38, s38, {96*768}')
    rows_src(e, 4, 768, 8, 9, 10)
    rows_dma(e, 4, 's[12:15]', 38, 0, 6, 768)
    rows_rd(e, 120, 0, 8, 9, 10)
    e(f's_lshl_b32 s37, s37, 2\ns_add_u32 s37, s37, s3\ns_mul_i32 s39, s37, 12288\ns_add_u32 s39, s39, {YF}'); soffs(e, 39, 3)
    e(f's_mul_i32 s38, s37, 24576\ns_mul_i32 s30, s36, 3072\ns_add_u32 s38, s38, s30\ns_add_u32 s38, s38, {WCF}')
    spoll0(e, CY, 48, 8)
    for x, _, _ in frag_loads(XF, 12, 12, 39): e(x)
    e('s_waitcnt vmcnt(0)\ns_barrier')
    rowgemm(e, 120, 6, XF, WF, D, 10, 14, 38)
    e('s_waitcnt vmcnt(0)\ns_barrier')
    nar = e.label('L_nar')
    e(f's_cmp_lg_u32 s3, 0\ns_cbranch_scc1 {nar}'); arrive(e, CW, 10, 11); e(f'{nar}:')
    e(f's_mul_i32 s36, s5, 24576\ns_mul_i32 s30, s3, 6144\ns_add_u32 s36, s36, s30\ns_add_u32 s36, s36, {WCF}'); soffs(e, 36, 2)
    e(f's_lshl_b32 s38, s35, 1\ns_mul_i32 s30, s3, 6144\ns_add_u32 s38, s38, s30\ns_add_u32 s38, s38, {UF}'); soffs(e, 38, 2)
    spoll0(e, CW, 48, 8); spoll(e, CP2, 16, 8)
    for x, _, _ in frag_loads(WC, 6, 12, 36): e(x)
    e(f's_lshl_b32 s40, s5, 9\ns_add_u32 s40, s40, s35\ns_add_u32 s40, s40, {HF}')
    e(f's_mul_i32 s41, s4, 3072\ns_add_u32 s41, s41, {ST}\ns_lshl_b32 s42, s5, 7\ns_add_u32 s42, s42, s41')
    e(f's_mul_i32 s43, s3, 3072\ns_add_u32 s43, s43, s35\ns_add_u32 s43, s43, {HF}')
    e(f's_lshl_b32 s49, s5, 2\ns_add_u32 s49, s49, s3\ns_lshl_b32 s49, s49, 9\ns_lshl_b32 s30, s35, 2\ns_add_u32 s49, s49, s30\ns_add_u32 s49, s49, {GF}')
    e(f's_mul_i32 s24, s3, 12288\ns_add_u32 s24, s24, s30\ns_add_u32 s24, s24, {GF}'); soffs(e, 24, 3)
    e('v_lshlrev_b32 v11, 3, v0\ns_lshl_b32 s30, s3, 10\nv_add_u32 v9, s30, v12\ns_lshl_b32 s30, s3, 12\nv_add_u32 v8, s30, v12')
    e(f'v_lshlrev_b32 v120, 16, v{QR}\nv_and_b32 v121, 0xffff0000, v{QR}\nv_lshlrev_b32 v122, 16, v{QR+1}\nv_and_b32 v123, 0xffff0000, v{QR+1}')
    c1 = -2 * math.sqrt(2 / math.pi) * LOG2E; c3 = c1 * 0.044715
    e(f's_mov_b32 s50, {fx(c3)}\nv_mov_b32 v124, {fx(c1)}')
    e('s_waitcnt vmcnt(0)')
    stamp(e, c, 7)
    lp = e.label('L_lp')
    e('v_min_u32 v4, 23, v0\nv_lshlrev_b32 v4, 8, v4')
    e(f'{lp}:\nbuffer_load_dword v5, v4, s[16:19], s38 offen sc1\ns_waitcnt vmcnt(0)\nv_cmp_ne_u32 vcc, -1, v5\ns_cbranch_vccnz {lp}_d\ns_sleep 4\ns_sub_u32 s61, s61, 1\ns_cmp_gt_i32 s61, 0\ns_cbranch_scc1 {lp}\n{lp}_d:')
    stamp(e, c, 8)
    gather(e, frag_loads(XF, 6, 12, 38), 10)
    stamp(e, c, 9)
    for k in range(6): e(f'v_mfma_f32_16x16x32_bf16 {vr(D)}, {vr(WC+4*k)}, {vr(XF+4*k)}, {vr(D) if k else 0}')
    t3 = e.label('L_t3')
    e(f's_nop 7\nds_write_b128 v9, {vr(D)}\ns_waitcnt lgkmcnt(0)\ns_barrier\ns_cmp_lg_u32 s3, 0\ns_cbranch_scc1 {t3}')
    for w in range(1, 4): e(f'ds_read_b128 {vr(16+4*w)}, v12 offset:{1024*w}')
    for i in range(4): e(f'v_add_f32 v{D+i}, v{D+i}, v{120+i}')
    for w in (1, 2, 3):
        e(f's_waitcnt lgkmcnt({3-w})')
        for i in range(4): e(f'v_add_f32 v{D+i}, v{D+i}, v{16+4*w+i}')
    pack_store(e, D, 4, 14, 40)
    e('v_lshlrev_b32 v120, 16, v4\nv_and_b32 v121, 0xffff0000, v4\nv_lshlrev_b32 v122, 16, v5\nv_and_b32 v123, 0xffff0000, v5')
    e('v_add_f32 v16, v120, v121\nv_mul_f32 v17, v120, v120\nv_add_f32 v18, v122, v123\nv_fmac_f32 v17, v121, v121\nv_add_f32 v16, v16, v18\nv_fmac_f32 v17, v122, v122\nv_fmac_f32 v17, v123, v123')
    e('v_mov_b32 v18, v16\nv_mov_b32 v19, v17\ns_nop 0\nv_permlane16_swap_b32 v16, v18\nv_permlane16_swap_b32 v17, v19\nv_add_f32 v16, v16, v18\nv_add_f32 v17, v17, v19')
    e('v_mov_b32 v18, v16\nv_mov_b32 v19, v17\ns_nop 0\nv_permlane32_swap_b32 v16, v18\nv_permlane32_swap_b32 v17, v19\nv_add_f32 v16, v16, v18\nv_add_f32 v17, v17, v19')
    e('v_min_u32 v16, -2, v16\nv_min_u32 v17, -2, v17\ns_mov_b64 exec, 0xffff\nbuffer_store_dwordx2 v[16:17], v11, s[16:19], s42 offen sc1\ns_mov_b64 exec, -1')
    e(f'{t3}:')
    stamp(e, c, 10)
    SS = 32
    ld = frag_loads(XF, 3, 12, 43) + [(f'buffer_load_dwordx2 {vr(SS+2*i,2)}, v11, s[16:19], s41 offen offset:{512*i} sc1', SS + 2 * i, 2) for i in range(6)]
    gather(e, ld, 10)
    stamp(e, c, 11)
    DD = 96
    for k in range(3):
        for t in range(4): e(f'v_mfma_f32_16x16x32_bf16 {vr(DD+4*t)}, {vr(W1+12*t+4*k)}, {vr(XF+4*k)}, {vr(DD+4*t) if k else 0}')
    e(f'v_pk_add_f32 {vr(SS,2)}, {vr(SS,2)}, {vr(SS+2,2)}\nv_pk_add_f32 {vr(SS+4,2)}, {vr(SS+4,2)}, {vr(SS+6,2)}\nv_pk_add_f32 {vr(SS+8,2)}, {vr(SS+8,2)}, {vr(SS+10,2)}')
    e(f'v_pk_add_f32 {vr(SS,2)}, {vr(SS,2)}, {vr(SS+4,2)}\nv_pk_add_f32 {vr(SS,2)}, {vr(SS,2)}, {vr(SS+8,2)}')
    for t in range(4): e(f'ds_write_b128 v9, {vr(DD+4*t)} offset:{4096+4096*t}')
    for sw in ('16', '32'):
        e(f'v_mov_b32 v{SS+2}, v{SS}\nv_mov_b32 v{SS+3}, v{SS+1}\ns_nop 0\nv_permlane{sw}_swap_b32 v{SS}, v{SS+2}\nv_permlane{sw}_swap_b32 v{SS+1}, v{SS+3}\nv_add_f32 v{SS}, v{SS}, v{SS+2}\nv_add_f32 v{SS+1}, v{SS+1}, v{SS+3}')
    e('s_waitcnt lgkmcnt(0)\ns_barrier')
    for w in range(4): e(f'ds_read_b128 {vr(DD+4*w)}, v8 offset:{4096+1024*w}')
    ln_finish(e, SS, SS + 1)
    e('s_waitcnt lgkmcnt(2)')
    for i in range(4): e(f'v_add_f32 v{DD+i}, v{DD+i}, v{DD+4+i}')
    e('s_waitcnt lgkmcnt(0)')
    for i in range(4): e(f'v_add_f32 v{DD+8+i}, v{DD+8+i}, v{DD+12+i}')
    for i in range(4): e(f'v_fma_f32 v{DD+i}, -v{SS}, v{CS+i}, v{DD+i}')
    for i in range(4): e(f'v_add_f32 v{DD+i}, v{DD+i}, v{DD+8+i}')
    for i in range(4): e(f'v_mul_f32 v{DD+i}, v{SS+1}, v{DD+i}')
    G = DD + 4
    for i in range(4): e(f'v_mul_f32 v{G+i}, v{DD+i}, v{DD+i}')
    for i in range(4): e(f'v_fma_f32 v{G+i}, v{G+i}, s50, v124')
    for i in range(4): e(f'v_mul_f32 v{G+i}, v{G+i}, v{DD+i}')
    for i in range(4): e(f'v_exp_f32 v{G+i}, v{G+i}')
    for i in range(4): e(f'v_add_f32 v{G+i}, 1.0, v{G+i}')
    for i in range(4): e(f'v_rcp_f32 v{G+i}, v{G+i}')
    for i in range(4): e(f'v_mul_f32 v{DD+i}, v{DD+i}, v{G+i}')
    pack_store(e, DD, 4, 14, 49)
    stamp(e, c, 12)
    gather(e, frag_loads(XF, 12, 12, 24), 10)
    stamp(e, c, 13)
    for k in range(12): e(f'v_mfma_f32_16x16x32_bf16 {vr(D)}, {vr(W2+4*k)}, {vr(XF+4*k)}, {vr(D) if k else 0}')
    e(f's_nop 7\nds_write_b128 v9, {vr(D)}\ns_waitcnt lgkmcnt(0)\ns_barrier\ns_cmp_lg_u32 s3, 0\ns_cbranch_scc1 L_fin')
    for w in range(1, 4): e(f'ds_read_b128 {vr(16+4*w)}, v12 offset:{1024*w}')
    for i in range(4): e(f'v_add_f32 v{D+i}, v{D+i}, v{120+i}')
    for w in (1, 2, 3):
        e(f's_waitcnt lgkmcnt({3-w})')
        for i in range(4): e(f'v_add_f32 v{D+i}, v{D+i}, v{16+4*w+i}')
    e(f'v_cvt_pk_bf16_f32 v4, v{D}, v{D+1}\nv_cvt_pk_bf16_f32 v5, v{D+2}, v{D+3}')
    e('buffer_store_dwordx2 v[4:5], v15, s[44:47], s48 offen')
    stamp(e, c, 14)
    e('s_branch L_fin')

def gen(c):
    e = E()
    nwg = NH + c.NS
    head = f'; @launch grid=({nwg},1,1) block=(256,1,1) lds={LDS_BYTES}\n.amdgcn_target "amdgcn-amd-amdhsa--gfx950"\n.text\n'
    kstart(e, KNAME)
    stamp(e, c, 0)
    e(f's_cmp_ge_u32 s2, {nwg}\ns_cbranch_scc1 L_end')
    load_srds(e, [(8, 'feat_hi'), (12, 'feat_lo'), (16, 'ws'), (20, 'dbg')])
    e('v_lshrrev_b32 v1, 6, v0\nv_and_b32 v0, 63, v0\nv_readfirstlane_b32 s3, v1\ns_mov_b32 s61, 100000')
    e(f's_cmp_lt_u32 s2, {NH}\ns_cbranch_scc1 L_helper')
    streamer(e, c)
    e('L_helper:\ns_waitcnt lgkmcnt(0)\ns_cmp_lt_u32 s2, 48\ns_cbranch_scc1 L_tail\ns_cmp_ge_u32 s2, 60\ns_cbranch_scc1 L_spare')
    role_p1(e, c); role_spare(e, c); role_tail(e, c)
    e(f'.fill ({c.code_bytes} - (. - {KNAME})) / 4, 4, 0xbf800000\ns_endpgm')
    return head + e.text() + '.section .rodata,"a"\n' + kdesc(KNAME, 512, 100, 256)

if __name__ == '__main__':
    c = Cfg()
    for a in sys.argv[2:]:
        k, v = a.split('='); setattr(c, k, eval(v))
    t = gen(c)
    open(sys.argv[1], 'w').write(t)
    print(hazard.check(t), 'hazards')
```

```python
import sys, math
from common import *
import hazard
KNAME = 'standalone__detection_seg_detr_decoder__vision_kernel'
QF, TF, AF = 0x0, 0x6000, 0xC000
UF, HF, ST, GF, ML = 0x18000, 0x24000, 0x2A000, 0x2C000, 0x44000
WCF, YF, DG, PART, W2F = 0x80000, 0x110000, 0x180000, 0x200000, 0xE00000
FY, FW = 0x74000, 0x75000
LOG2E = 1.4426950408889634
TILE = 30720; NSLOT = 5; PB = TILE * NSLOT
PBUF = 2560; MXB = PB + 2 * PBUF; CMB = MXB + 256
LDS_BYTES = CMB + 4096
NH = 64

class Cfg:
    NS = 192; diag = False; chunk = 3; Ks = 1; Kp = 2; touch = True
    await_ = 99
    sched = None; dsplit = 5
    code_bytes = 0x8000; iso = False; t1sleep = 2; pro = 0; hot = False; xmap = True
    local = True; wqtouch = True; inband = False; prio = 'p'; lvalu = False; wstep = 2; R0 = 3; sstep = 4; look = 2; nbefore = 3; jbar = 4; endgame = 16; cut = 0; pflags = ' sc1'; pstride = 49408

def stamp(e, c, k):
    if c.diag: e(f's_memrealtime s[{64+2*k}:{65+2*k}]')
def dump(e, c):
    if not c.diag: return
    e('s_waitcnt lgkmcnt(0)\ns_mov_b64 exec, 1')
    e(f's_lshl_b32 s60, s2, 3\ns_add_u32 s60, s60, s7\ns_lshl_b32 s60, s60, 6\ns_add_u32 s60, s60, {DG}\nv_mov_b32 v1, 0')
    for k in range(16): e(f'v_mov_b32 v2, s{64+2*k}\nbuffer_store_dword v2, v1, s[16:19], s60 offen offset:{4*k}')

def budget(e, lp): e(f's_sub_u32 s61, s61, 1\ns_cmp_gt_i32 s61, 0\ns_cbranch_scc1 {lp}')
def early_load(e, v, sqh):
    e(f's_lshl_b32 s60, s{sqh}, 7\ns_mov_b64 exec, 1\nbuffer_load_dwordx4 {vr(v)}, off, s[20:23], s60 sc1\ns_mov_b64 exec, -1')
def early_wait(e, v, words):
    lp = e.label('L_ew')
    e(f'{lp}:\nv_readfirstlane_b32 s30, v{v+words[0]}')
    if len(words) > 1: e(f'v_readfirstlane_b32 s31, v{v+words[1]}\ns_and_b32 s30, s30, s31')
    e(f's_cmp_lg_u32 s30, 0\ns_cbranch_scc0 {lp}_r\n{lp}_d:')
    e.deferred.append(f'{lp}_r:\ns_sleep 2\ns_mov_b64 exec, 1\nbuffer_load_dwordx4 {vr(v)}, off, s[20:23], s60 sc1\ns_mov_b64 exec, -1\ns_waitcnt vmcnt(0)\ns_sub_u32 s61, s61, 1\ns_cmp_gt_i32 s61, 0\ns_cbranch_scc1 {lp}\ns_branch {lp}_d')
def late_addr(e, va): e(f'v_and_b32 v{va}, 1, v0\nv_lshlrev_b32 v{va}, 7, v{va}')
def late_load(e, v, va): e(f's_mov_b64 exec, 3\nbuffer_load_dwordx2 {vr(v,2)}, v{va}, s[20:23], 0 offen offset:16 sc1\ns_mov_b64 exec, -1')
def late_wait(e, v, va):
    lp = e.label('L_lw')
    e(f'{lp}:\nv_and_b32 v{v}, v{v}, v{v+1}\nv_cmp_eq_u32 vcc, 0, v{v}\ns_and_b32 s30, vcc_lo, 3\ns_cbranch_scc1 {lp}_r\n{lp}_d:')
    e.deferred.append(f'{lp}_r:\ns_sleep 8\ns_mov_b64 exec, 3\nbuffer_load_dwordx2 {vr(v,2)}, v{va}, s[20:23], 0 offen offset:16 sc1\ns_mov_b64 exec, -1\ns_waitcnt vmcnt(0)\ns_sub_u32 s61, s61, 1\ns_cmp_gt_i32 s61, 0\ns_cbranch_scc1 {lp}\ns_branch {lp}_d')
def flag_set(e, base, sidx, t):
    sk = e.label('L_fs')
    e(f's_cmp_lg_u32 s3, 0\ns_cbranch_scc1 {sk}\ns_lshl_b32 s30, s{sidx}, 7\ns_add_u32 s30, s30, {base}\nv_mov_b32 v{t}, 1\ns_mov_b64 exec, 1\nbuffer_store_dword v{t}, off, s[16:19], s30 sc1\ns_mov_b64 exec, -1\n{sk}:')
def flag_wait0(e, base, n, t, late=False):
    sk = e.label('L_fw')
    e(f's_cmp_lg_u32 s3, 0\ns_cbranch_scc1 {sk}')
    if late: late_addr(e, 1); late_load(e, t, 1); e('s_waitcnt vmcnt(0)'); late_wait(e, t, 1)
    e(f'v_min_u32 v1, {n-1}, v0\nv_lshlrev_b32 v1, 7, v1\ns_mov_b32 s30, {base}\n{sk}_l:\nbuffer_load_dword v{t}, v1, s[16:19], s30 offen sc1\ns_waitcnt vmcnt(0)\nv_cmp_eq_u32 vcc, -1, v{t}\ns_cbranch_vccz {sk}\ns_sleep 8')
    budget(e, f'{sk}_l')
    e(f'{sk}:\ns_barrier')

def validate(e, loads, t, younger=0):
    first = True
    for i, (_, r, n) in enumerate(loads):
        e(f's_waitcnt vmcnt({len(loads)-1-i+younger})')
        rs = list(range(r, r + n))
        if first:
            e(f'v_max_u32 v{t}, v{rs[0]}, v{rs[1]}'); rs = rs[2:]; first = False
        while rs:
            e(f'v_max3_u32 v{t}, v{t}, v{rs[0]}, v{rs[1]}'); rs = rs[2:]
    e(f'v_cmp_eq_u32 vcc, -1, v{t}')
def gather(e, loads, t):
    lp = e.label('L_g')
    e(f'{lp}:')
    for x, _, _ in loads: e(x)
    e('s_sub_u32 s61, s61, 1\ns_cmp_gt_i32 s61, 0\ns_cselect_b64 s[62:63], -1, 0')
    validate(e, loads, t)
    e(f's_and_b64 vcc, vcc, s[62:63]\ns_cbranch_scc1 {lp}')
def frag_loads(dst, n, voff, sreg0, flags=' sc1'):
    return [(f'buffer_load_dwordx4 {vr(dst+4*k)}, v{voff}, s[16:19], s{sreg0+k//4} offen offset:{1024*(k%4)}{flags}', dst + 4 * k, 4) for k in range(n)]
def soffs(e, s0, n):
    for k in range(1, n): e(f's_add_u32 s{s0+k}, s{s0}, {4096*k}')
def tile_off(e, vo, q, g, t):
    e(f'v_lshrrev_b32 v{vo}, 1, v{g}\nv_lshlrev_b32 v{vo}, 8, v{vo}\nv_lshl_add_u32 v{vo}, v{q}, 4, v{vo}')
def hstore(e, text, local):
    if not local: e(text + ' sc1'); return
    lb = e.label('L_hs')
    e(f's_cmp_lg_u32 s59, 0\ns_cbranch_scc0 {lb}\n{text}\n{lb}_b:')
    e.deferred.append(f'{lb}:\n{text} sc1\ns_branch {lb}_b')
def flush_deferred(e):
    for x in e.deferred: e(x)
    e.deferred = []
def pack_store(e, D, P, voff, soff, keep=None, local=False):
    e(f'v_cvt_pk_bf16_f32 v{P}, v{D}, v{D+1}\nv_cvt_pk_bf16_f32 v{P+1}, v{D+2}, v{D+3}\nv_min_u32 v{P}, -2, v{P}\nv_min_u32 v{P+1}, -2, v{P+1}')
    e(f'v_mov_b64 {vr(keep,2)}, {vr(P,2)}' if keep else 's_nop 0')
    e(f'v_permlane16_swap_b32 v{P}, v{P+2}\nv_permlane16_swap_b32 v{P+1}, v{P+3}')
    e('s_mov_b32 exec_lo, 0xffff\ns_mov_b32 exec_hi, 0xffff')
    hstore(e, f'buffer_store_dwordx4 {vr(P)}, v{voff}, s[16:19], s{soff} offen', local)
    e('s_mov_b64 exec, -1')
def local_flag(e, v):
    e(f'v_readfirstlane_b32 s56, v{v}\nv_readfirstlane_b32 s57, v{v+1}\ns_getreg_b32 s30, hwreg(HW_REG_XCC_ID, 0, 4)\ns_lshl_b32 s30, s30, 3')
    e('s_lshr_b64 s[56:57], s[56:57], s30\ns_and_b32 s56, s56, 0xff\ns_cmp_eq_u32 s56, 24\ns_cselect_b32 s59, 1, 0\ns_cmp_lt_u32 s30, 64\ns_cselect_b32 s59, s59, 0')

def rows_src(e, vo, stride, t0, t1, t2):
    e('s_lshl_b32 s30, s3, 1\ns_lshr_b32 s30, 0x78, s30\ns_and_b32 s30, s30, 3')
    e(f's_mul_i32 s31, s3, {4*stride}')
    for b in range(3):
        e(f'v_add_u32 v{t0}, {64*b}, v0\nv_mul_u32_u24 v{t1}, 1366, v{t0}\nv_lshrrev_b32 v{t1}, 16, v{t1}')
        e(f'v_mul_u32_u24 v{t2}, 48, v{t1}\nv_sub_u32 v{t0}, v{t0}, v{t2}\nv_lshl_or_b32 v{t2}, v{t1}, 2, s30\nv_xor_b32 v{t0}, v{t0}, v{t2}')
        e(f'v_mul_u32_u24 v{t1}, {stride}, v{t1}\nv_lshl_add_u32 v{t0}, v{t0}, 4, v{t1}\nv_add_u32 v{vo+b}, s31, v{t0}')
def rows_dma(e, vo, srd, soff, ldsbase, ntile, stride):
    e(f's_mul_i32 s30, s3, 3072\ns_add_u32 m0, s30, {ldsbase}')
    lp = e.label('L_rd')
    if ntile > 1: e(f's_mov_b32 s31, {ntile}\n{lp}:')
    for b in range(3):
        e(f's_nop 0\nbuffer_load_dwordx4 v{vo+b}, {srd}, s{soff} offen lds\ns_add_u32 m0, m0, {1024 if b < 2 else 12288-2048}')
    if ntile > 1: e(f's_add_u32 s{soff}, s{soff}, {16*stride}\ns_sub_u32 s31, s31, 1\ns_cmp_lg_u32 s31, 0\ns_cbranch_scc1 {lp}')
def rows_rd(e, va, base, t0, t1, t2):
    e(f'v_and_b32 v{t0}, 15, v0\nv_lshrrev_b32 v{t1}, 2, v{t0}\nv_lshlrev_b32 v{t1}, 1, v{t1}\ns_mov_b32 s30, 0x78\nv_lshrrev_b32 v{t1}, v{t1}, s30\nv_and_b32 v{t1}, 3, v{t1}')
    e(f'v_and_b32 v{t2}, 3, v0\nv_lshl_or_b32 v{t1}, v{t2}, 2, v{t1}\nv_lshrrev_b32 v{t2}, 4, v0\nv_xor_b32 v{t1}, v{t1}, v{t2}')
    e(f'v_mul_u32_u24 v{t0}, 768, v{t0}\nv_lshl_add_u32 v{t0}, v{t1}, 4, v{t0}\nv_add_u32 v{va}, {base}, v{t0}')
    for b in range(1, 4): e(f'v_xor_b32 v{va+b}, {64*b}, v{va}')
def rowgemm(e, va, ntile, BF, AFR, D, P, voff, soff):
    lp = e.label('L_rg')
    e(f's_mov_b32 s31, {ntile}\n{lp}:')
    for ks in range(12): e(f'ds_read_b128 {vr(AFR+4*ks)}, v{va+(ks&3)} offset:{256*(ks>>2)}')
    for ks in range(12):
        e(f's_waitcnt lgkmcnt({11-ks})\nv_mfma_f32_16x16x32_bf16 {vr(D)}, {vr(AFR+4*ks)}, {vr(BF+4*ks)}, {vr(D) if ks else 0}')
    for b in range(4): e(f'v_add_u32 v{va+b}, 12288, v{va+b}')
    e('s_nop 3')
    pack_store(e, D, P, voff, soff)
    e(f's_add_u32 s{soff}, s{soff}, 512\ns_sub_u32 s31, s31, 1\ns_cmp_lg_u32 s31, 0\ns_cbranch_scc1 {lp}')
def slab128_src(e, vo, stride, t0, t1):
    e(f'v_lshrrev_b32 v{vo}, 3, v0\nv_mul_u32_u24 v{vo}, {stride}, v{vo}')
    e(f'v_bfe_u32 v{t0}, v0, 4, 1\ns_and_b32 s30, s3, 1\ns_lshl_b32 s30, s30, 1\nv_or_b32 v{t0}, s30, v{t0}\nv_lshlrev_b32 v{t0}, 1, v{t0}')
    e(f'v_and_b32 v{t1}, 7, v0\nv_xor_b32 v{t0}, v{t0}, v{t1}\nv_lshl_add_u32 v{vo}, v{t0}, 4, v{vo}')
def slab128_dma(e, vo, srd, sj, stride, ldsbase, n=12, srow=None):
    e(f's_lshl_b32 s34, s{sj}, 7\ns_mul_i32 s30, s3, {8*stride}\ns_add_u32 s34, s34, s30\ns_lshl_b32 s30, s3, 10\ns_add_u32 m0, s30, {ldsbase}')
    lp = e.label('L_sl')
    if srow: e(f's_add_u32 s34, s34, s{srow}')
    e(f's_mov_b32 s31, {n}\n{lp}:\nbuffer_load_dwordx4 v{vo}, {srd}, s34 offen lds')
    e(f's_add_u32 s34, s34, {32*stride}\ns_add_u32 m0, m0, 4096\ns_sub_u32 s31, s31, 1\ns_cmp_lg_u32 s31, 0\ns_cbranch_scc1 {lp}')
def slab128_rd(e, vo, t0, t1):
    e(f'v_bfe_u32 v{t0}, v0, 2, 2\nv_lshrrev_b32 v{t1}, 4, v0\nv_lshlrev_b32 v{vo}, 10, v{t1}\nv_lshl_add_u32 v{vo}, v{t0}, 7, v{vo}')
    e(f'v_lshrrev_b32 v{t0}, 1, v{t0}\nv_and_b32 v{t1}, 1, v{t1}\nv_lshl_or_b32 v{t0}, v{t1}, 1, v{t0}\nv_lshl_add_u32 v{vo}, v{t0}, 5, v{vo}')
    e(f'v_and_b32 v{t0}, 3, v0\nv_lshl_add_u32 v{vo}, v{t0}, 3, v{vo}')
def slab32_src(e, vout, t, stride):
    e(f'v_lshrrev_b32 v{vout}, 1, v0\nv_bfe_u32 v{t}, v0, 4, 1\nv_lshlrev_b32 v{t}, 2, v{t}\nv_xor_b32 v{vout}, v{vout}, v{t}')
    e(f'v_mul_u32_u24 v{vout}, {stride}, v{vout}\nv_and_b32 v{t}, 1, v0\nv_lshl_add_u32 v{vout}, v{t}, 4, v{vout}')
def slab32_rd(e, v0_, v1_, t):
    e(f'v_lshrrev_b32 v{t}, 4, v0\nv_lshlrev_b32 v{v0_}, 8, v{t}\nv_and_b32 v{t}, 1, v{t}\nv_lshl_add_u32 v{v0_}, v{t}, 7, v{v0_}')
    e(f'v_and_b32 v{t}, 15, v0\nv_lshl_add_u32 v{v0_}, v{t}, 3, v{v0_}\nv_xor_b32 v{v1_}, 128, v{v0_}')
def ln_finish(e, s1, s2):
    e(f'v_mul_f32 v{s1}, {fx(1/384)}, v{s1}\nv_mul_f32 v{s2}, {fx(1/384)}, v{s2}\nv_fma_f32 v{s2}, -v{s1}, v{s1}, v{s2}\nv_max_f32 v{s2}, 0, v{s2}\nv_add_f32 v{s2}, {fx(1e-5)}, v{s2}\nv_rsq_f32 v{s2}, v{s2}')
```

```python
from gen_v5_base import *

def role_p1(e, c):
    e('L_p1:')
    load_srds(e, [(8, 'wq'), (12, 'q'), (24, 'wo'), (52, 'wkv')])
    e('s_sub_u32 s35, s2, 48\ns_and_b32 s4, s35, 1\ns_lshr_b32 s5, s35, 1')
    rows_src(e, 4, 768, 10, 11, 12)
    slab128_src(e, 7, 768, 10, 11)
    e('s_mul_i32 s36, s4, 12288\ns_waitcnt lgkmcnt(0)')
    stamp(e, c, 1)
    rows_dma(e, 4, 's[12:15]', 36, 49152, 1, 768)
    slab128_dma(e, 7, 's[8:11]', 5, 768, 0)
    XF, WF, D, CS, RA, PS = 16, 64, 112, 116, 120, 128
    rows_rd(e, RA, 49152, 10, 11, 12)
    slab128_rd(e, 13, 10, 11)
    e('s_lshl_b32 s30, s3, 5\nv_xor_b32 v13, s30, v13')
    e('v_and_b32 v2, 15, v0\nv_lshrrev_b32 v3, 4, v0'); tile_off(e, 14, 2, 3, 10)
    e(f's_lshl_b32 s37, s5, 2\ns_add_u32 s37, s37, s3\ns_lshl_b32 s38, s37, 9\ns_add_u32 s38, s38, s36\ns_add_u32 s38, s38, {QF}')
    e('s_mov_b32 s30, 0x3f803f80\nv_mov_b32 v8, 0\nv_mov_b32 v9, 0')
    for i in range(4): e(f'v_mov_b32 v{124+i}, s30')
    e('s_waitcnt vmcnt(12)\ns_barrier')
    stamp(e, c, 2)
    for ks in range(12): e(f'ds_read_b128 {vr(XF+4*ks)}, v{RA+(ks&3)} offset:{256*(ks>>2)}')
    e('s_waitcnt lgkmcnt(0)')
    for i in range(48): e(f'v_dot2c_f32_bf16 v8, v{XF+i}, v124\nv_dot2c_f32_bf16 v9, v{XF+i}, v{XF+i}')
    e('s_nop 2')
    xsum16_32(e, 8, 10); xsum16_32(e, 9, 10); ln_finish(e, 8, 9)
    stamp(e, c, 3)
    early_load(e, 132, 4)
    e('s_waitcnt vmcnt(1)\ns_barrier')
    stamp(e, c, 4)
    def mm(k):
        e.dswait(('w', k))
        e(f'v_mfma_f32_16x16x32_bf16 {vr(D)}, {vr(WF+4*k)}, {vr(XF+4*k)}, {vr(D) if k else 0}')
        e(f'v_mfma_f32_16x16x32_bf16 {vr(CS)}, {vr(WF+4*k)}, v[124:127], {vr(CS) if k else 0}')
    for ks in range(12):
        for u in range(2): e.dsop(f'ds_read_b64_tr_b16 {vr(WF+4*ks+2*u,2)}, v13 offset:{4096*ks+512*u}', ('w', ks))
        if ks >= 5: mm(ks - 5)
    for k in range(7, 12): mm(k)
    e('s_waitcnt vmcnt(0)'); early_wait(e, 132, (0,)); local_flag(e, 134)
    for i in range(4): e(f'v_fma_f32 v{D+i}, -v8, v{CS+i}, v{D+i}')
    for i in range(4): e(f'v_mul_f32 v{D+i}, v9, v{D+i}')
    pack_store(e, D, PS, 14, 38, local=c.local)
    stamp(e, c, 5)
    e('s_barrier')
    slab128_dma(e, 7, 's[24:27]', 5, 768, 0)
    rows_src(e, 4, 1536, 10, 11, 12)
    e(f's_mul_i32 s36, s4, {192*1536}\ns_add_u32 s36, s36, 768')
    rows_dma(e, 4, 's[52:55]', 36, 49152, 8, 1536)
    e('s_waitcnt vmcnt(24)\ns_barrier')
    for ks in range(12):
        for u in range(2): e(f'ds_read_b64_tr_b16 {vr(XF+4*ks+2*u,2)}, v13 offset:{4096*ks+512*u}')
        if ks % 6 == 5: e('s_waitcnt lgkmcnt(0)')
    e('s_barrier')
    rows_dma(e, 4, 's[52:55]', 36, 0, 4, 1536)
    e(f's_mul_i32 s38, s37, 12288\ns_mul_i32 s30, s4, 6144\ns_add_u32 s38, s38, s30\ns_add_u32 s38, s38, {YF}')
    e('s_waitcnt vmcnt(12)\ns_barrier')
    rowgemm(e, RA, 8, XF, WF, D, PS, 14, 38)
    rows_rd(e, RA, 0, 10, 11, 12)
    e('s_waitcnt vmcnt(0)\ns_barrier')
    rowgemm(e, RA, 4, XF, WF, D, PS, 14, 38)
    late_addr(e, 1); late_load(e, 10, 1)
    e('s_waitcnt vmcnt(0)'); late_wait(e, 10, 1)
    e('s_barrier'); flag_set(e, FY, 35, 10)
    stamp(e, c, 6)
    e('s_branch L_fin')
    flush_deferred(e)

def role_spare(e, c):
    e('L_spare:\ns_and_b32 s4, s2, 1\ns_bfe_u32 s5, s2, 0x10001')
    e('v_lshlrev_b32 v2, 4, v0\nv_mov_b64 v[4:5], -1\nv_mov_b64 v[6:7], -1\nv_mov_b32 v8, 1')
    e(f's_mul_i32 s36, s4, 12288\ns_lshl_b32 s36, s36, s5\ns_mul_i32 s30, s7, 3072\ns_add_u32 s36, s36, s30')
    e(f's_cmp_ge_u32 s7, 4\ns_cselect_b32 s30, {TF-12288}, 0\ns_cmp_lg_u32 s5, 0\ns_cselect_b32 s30, {AF}, s30\ns_add_u32 s36, s36, s30')
    for k in range(3): e(f'buffer_store_dwordx4 v[4:7], v2, s[16:19], s36 offen offset:{1024*k} sc1')
    e(f's_lshl_b32 s38, s4, 7\ns_lshl_b32 s30, s5, 2\ns_add_u32 s38, s38, s30\ns_and_b32 s36, s2, 3\ns_lshl_b32 s36, s36, 3\ns_add_u32 s36, s36, s7\ns_mul_i32 s36, s36, 12288\ns_add_u32 s36, s36, {UF}')
    for off in (0, 16):
        sk = e.label('L_sp')
        e(f's_waitcnt vmcnt(0)\ns_barrier\ns_cmp_lg_u32 s7, 0\ns_cbranch_scc1 {sk}\ns_mov_b64 exec, 1\nbuffer_store_dword v8, off, s[20:23], s38 offset:{off} sc1\ns_mov_b64 exec, -1\n{sk}:')
        stamp(e, c, 1 + off // 16)
        if off == 0:
            for k in range(12):
                e(f'buffer_store_dwordx4 v[4:7], v2, s[16:19], s36 offen offset:{1024*(k%4)} sc1')
                if k % 4 == 3: e('s_add_u32 s36, s36, 4096')
    e('s_branch L_fin')

def role_tail(e, c):
    e('L_tail:')
    load_srds(e, [(8, 'wkv'), (12, 'lat_hi'), (24, 'lat_lo'), (52, 'w1'), (96, 'w2')])
    e('s_and_b32 s4, s2, 1\ns_lshr_b32 s5, s2, 1')
    WF, XF, D, PS = 16, 64, 112, 116
    e('v_lshlrev_b32 v12, 4, v0')
    rows_src(e, 4, 768, 8, 9, 10)
    e('s_mul_i32 s32, s5, 12288\ns_lshl_b32 s33, s32, 1')
    for b in range(3): e(f'v_add_u32 v8, {64*b}, v0\nv_mul_u32_u24 v8, 1366, v8\nv_lshrrev_b32 v8, 16, v8\nv_mul_u32_u24 v8, 768, v8\nv_add3_u32 v{124+b}, v8, v{4+b}, s31')
    e('s_waitcnt lgkmcnt(0)')
    rows_dma(e, 124, 's[8:11]', 33, 12288, 1, 1536)
    rows_dma(e, 4, 's[12:15]', 32, 24576, 1, 768)
    rows_dma(e, 4, 's[24:27]', 32, 36864, 1, 768)
    stamp(e, c, 1)
    e('v_and_b32 v2, 15, v0\nv_lshrrev_b32 v3, 4, v0'); tile_off(e, 14, 2, 3, 10)
    rows_rd(e, 120, 12288, 8, 9, 10)
    for k in range(3): e(f's_mul_i32 s30, s3, 192\ns_add_u32 s30, s30, {64*k}\ns_and_b32 s31, s30, 0xc0\ns_and_b32 s30, s30, 0x300\nv_xor_b32 v{121+k}, s31, v120\nv_add_u32 v{121+k}, s30, v{121+k}')
    e(f's_mul_i32 s35, s4, 12288\ns_mul_i32 s30, s3, 3072\ns_add_u32 s36, s35, s30\ns_add_u32 s37, s36, {TF}\ns_add_u32 s36, s36, {QF}')
    e('s_lshl_b32 s30, s3, 10\nv_add_u32 v9, s30, v12')
    early_load(e, 132, 4)
    e('s_waitcnt vmcnt(1)\ns_barrier')
    for m in range(3):
        for k in range(3): e(f'ds_read_b128 {vr(WF+12*m+4*k)}, v{121+k} offset:{12288*m}')
    e('s_waitcnt vmcnt(0)'); early_wait(e, 132, (0, 1)); local_flag(e, 134)
    e('s_waitcnt lgkmcnt(0)')
    stamp(e, c, 2)
    gather(e, frag_loads(XF, 3, 12, 36), 10)
    stamp(e, c, 3)
    for k in range(3): e(f'v_mfma_f32_16x16x32_bf16 {vr(D)}, {vr(WF+4*k)}, {vr(XF+4*k)}, {vr(D) if k else 0}')
    p3 = e.label('L_p3'); p3b = e.label('L_p3b')
    e(f's_lshl_b32 s38, s5, 9\ns_add_u32 s38, s38, s35\ns_add_u32 s38, s38, {TF}\ns_nop 4')
    e(f'ds_write_b128 v9, {vr(D)}\ns_waitcnt lgkmcnt(0)\ns_barrier\ns_cmp_lg_u32 s3, 0\ns_cbranch_scc1 {p3}')
    for w in range(1, 4): e(f'ds_read_b128 {vr(XF+4*w)}, v12 offset:{1024*w}')
    for w in (1, 2, 3):
        e(f's_waitcnt lgkmcnt({3-w})')
        for i in range(4): e(f'v_add_f32 v{D+i}, v{D+i}, v{XF+4*w+i}')
    pack_store(e, D, PS, 14, 38, local=c.local)
    e(f'{p3}:')
    gather(e, frag_loads(XF, 3, 12, 37), 10)
    stamp(e, c, 4)
    for k in range(3):
        for t in range(2): e(f'v_mfma_f32_16x16x32_bf16 {vr(D+4*t)}, {vr(WF+12+12*t+4*k)}, {vr(XF+4*k)}, {vr(D+4*t) if k else 0}')
    b2 = e.label('L_b2')
    e(f's_lshl_b32 s38, s5, 9\ns_mul_i32 s31, s3, 12288\ns_add_u32 s38, s38, s31\ns_lshl_b32 s31, s35, 1\ns_add_u32 s38, s38, s31\ns_add_u32 s38, s38, {AF-12288}')
    e(f's_lshl_b32 s30, s3, 12\nv_add_u32 v8, s30, v12\nds_write_b128 v9, {vr(D)} offset:4096\nds_write_b128 v9, {vr(D+4)} offset:8192\ns_waitcnt lgkmcnt(0)\ns_barrier')
    e(f's_add_u32 s30, s3, 1\ns_and_b32 s30, s30, 2\ns_cbranch_scc0 {b2}')
    for w in range(4): e(f'ds_read_b128 {vr(XF+4*w)}, v8 offset:{1024*w}')
    e('s_waitcnt lgkmcnt(2)')
    for i in range(4): e(f'v_add_f32 v{D+i}, v{XF+i}, v{XF+4+i}')
    e('s_waitcnt lgkmcnt(0)')
    for i in range(4): e(f'v_add_f32 v{XF+8+i}, v{XF+8+i}, v{XF+12+i}')
    for i in range(4): e(f'v_add_f32 v{D+i}, v{D+i}, v{XF+8+i}')
    for i in range(4): e(f'v_mul_f32 v{D+i}, {fx(384**-0.5*LOG2E)}, v{D+i}')
    pack_store(e, D, PS, 14, 38)
    stamp(e, c, 5)
    e(f'{b2}:\ns_waitcnt vmcnt(0)\ns_barrier')
    if c.pro: e('s_branch L_fin')
    W1, W2, WC, CS, QR = 128, 176, 224, 248, 252
    load_srds(e, [(8, 'q'), (44, 'out')])
    e(f's_mul_i32 s36, s2, 43\ns_lshr_b32 s36, s36, 8\ns_mul_i32 s30, s36, 6\ns_sub_u32 s37, s2, s30')
    e('s_cmp_ge_u32 s36, 4\ns_cselect_b32 s12, s24, s12\ns_cselect_b32 s13, s25, s13')
    e(f's_and_b32 s38, s36, 3\ns_mul_i32 s38, s38, {96*768}\ns_mul_i32 s39, s36, {192*768}')
    slab128_src(e, 7, 768, 10, 11)
    slab128_dma(e, 7, 's[96:99]', 37, 768, 49152, 6, 39)
    rows_src(e, 4, 768, 8, 10, 11)
    rows_dma(e, 4, 's[12:15]', 38, 73728, 6, 768)
    slab128_src(e, 7, 3072, 10, 11)
    slab128_dma(e, 7, 's[52:55]', 5, 3072, 0)
    e('v_mul_u32_u24 v15, 768, v2\nv_lshl_add_u32 v15, v3, 3, v15\ns_lshl_b32 s48, s5, 5\ns_add_u32 s48, s48, s35\ns_waitcnt lgkmcnt(0)')
    e(f'buffer_load_dwordx2 {vr(QR,2)}, v15, s[8:11], s48 offen')
    slab128_rd(e, 13, 10, 11)
    rows_rd(e, 120, 73728, 8, 10, 11)
    e('s_mov_b32 s30, 0x3f803f80')
    for i in range(4): e(f'v_mov_b32 v{124+i}, s30')
    e('s_lshl_b32 s30, s3, 5\nv_xor_b32 v8, s30, v13\nv_add_u32 v7, 49152, v8\ns_mul_i32 s30, s3, 12288\nv_add_u32 v13, s30, v13')
    e(f's_lshl_b32 s37, s37, 2\ns_add_u32 s37, s37, s3\ns_mul_i32 s39, s37, 12288\ns_add_u32 s39, s39, {YF}'); soffs(e, 39, 3)
    e(f's_mul_i32 s38, s37, 24576\ns_mul_i32 s30, s36, 3072\ns_add_u32 s38, s38, s30\ns_add_u32 s42, s38, s38\ns_add_u32 s42, s42, {W2F}\ns_add_u32 s38, s38, {WCF}'); soffs(e, 42, 2)
    e('s_waitcnt vmcnt(31)\ns_barrier')
    for ks in range(6):
        for u in range(2): e(f'ds_read_b64_tr_b16 {vr(WF+4*ks+2*u,2)}, v7 offset:{4096*ks+512*u}')
    e('s_waitcnt lgkmcnt(0)')
    for ks in range(6): e(f'buffer_store_dwordx4 {vr(WF+4*ks)}, v12, s[16:19], s{42+ks//4} offen offset:{1024*(ks%4)} sc1')
    flag_wait0(e, FY, 12, 10, late=True)
    for x, _, _ in frag_loads(XF, 12, 12, 39): e(x)
    e('s_waitcnt vmcnt(0)\ns_barrier')
    stamp(e, c, 6)
    rowgemm(e, 120, 6, XF, WF, D, PS, 14, 38)
    e('s_waitcnt vmcnt(0)\ns_barrier')
    flag_set(e, FW, 2, 10)
    for ks in range(12):
        for u in range(2): e(f'ds_read_b64_tr_b16 {vr(WF+4*ks+2*u,2)}, v8 offset:{4096*ks+512*u}')
        if ks % 6 == 5: e('s_waitcnt lgkmcnt(0)')
    for ks in range(12): e(f'v_mfma_f32_16x16x32_bf16 {vr(CS)}, {vr(WF+4*ks)}, v[124:127], {vr(CS) if ks else 0}')
    for t in range(4):
        e(f'v_xor_b32 v10, {32*t}, v13')
        for k in range(3):
            for u in range(2): e(f'ds_read_b64_tr_b16 {vr(W1+12*t+4*k+2*u,2)}, v10 offset:{4096*k+512*u}')
        if t % 2: e('s_waitcnt lgkmcnt(0)')
    e(f's_mul_i32 s36, s5, 24576\ns_mul_i32 s30, s3, 6144\ns_add_u32 s36, s36, s30\ns_add_u32 s40, s36, s36\ns_add_u32 s40, s40, {W2F}\ns_add_u32 s36, s36, {WCF}'); soffs(e, 36, 2); soffs(e, 40, 3)
    e(f's_lshl_b32 s38, s35, 1\ns_mul_i32 s30, s3, 6144\ns_add_u32 s38, s38, s30\ns_add_u32 s38, s38, {UF}'); soffs(e, 38, 2)
    flag_wait0(e, FW, 48, 10)
    for x, _, _ in frag_loads(WC, 6, 12, 36) + frag_loads(W2, 12, 12, 40): e(x)
    e(f's_lshl_b32 s40, s5, 9\ns_add_u32 s40, s40, s35\ns_add_u32 s40, s40, {HF}')
    e(f's_mul_i32 s41, s4, 3072\ns_add_u32 s41, s41, {ST}\ns_lshl_b32 s42, s5, 7\ns_add_u32 s42, s42, s41')
    e(f's_mul_i32 s43, s3, 3072\ns_add_u32 s43, s43, s35\ns_add_u32 s43, s43, {HF}')
    e(f's_lshl_b32 s49, s5, 2\ns_add_u32 s49, s49, s3\ns_lshl_b32 s49, s49, 9\ns_lshl_b32 s30, s35, 2\ns_add_u32 s49, s49, s30\ns_add_u32 s49, s49, {GF}')
    e(f's_mul_i32 s24, s3, 12288\ns_add_u32 s24, s24, s30\ns_add_u32 s24, s24, {GF}'); soffs(e, 24, 3)
    e('v_lshlrev_b32 v11, 3, v0\ns_lshl_b32 s30, s3, 12\nv_add_u32 v8, s30, v12')
    e(f'v_lshlrev_b32 v120, 16, v{QR}\nv_and_b32 v121, 0xffff0000, v{QR}\nv_lshlrev_b32 v122, 16, v{QR+1}\nv_and_b32 v123, 0xffff0000, v{QR+1}')
    c1 = -2 * math.sqrt(2 / math.pi) * LOG2E; c3 = c1 * 0.044715
    e(f's_mov_b32 s50, {fx(c3)}\nv_mov_b32 v124, {fx(c1)}')
    SS = 32
    ld3 = frag_loads(XF, 3, 12, 43) + [(f'buffer_load_dwordx2 {vr(SS+2*i,2)}, v11, s[16:19], s41 offen offset:{512*i} sc1', SS + 2 * i, 2) for i in range(6)]
    early_load(e, 4, 4)
    if c.local:
        for x, _, _ in ld3 + frag_loads(XF, 12, 12, 24): e(x)
    e('s_waitcnt vmcnt(0)'); local_flag(e, 6)
    stamp(e, c, 7)
    if c.cut: e('s_branch L_fin')
    lp = e.label('L_lp')
    e('v_min_u32 v4, 23, v0\nv_lshlrev_b32 v4, 8, v4')
    e(f'{lp}:\nbuffer_load_dword v5, v4, s[16:19], s38 offen sc1\ns_waitcnt vmcnt(0)\nv_cmp_ne_u32 vcc, -1, v5\ns_cbranch_vccnz {lp}_d\ns_sleep 4\ns_sub_u32 s61, s61, 1\ns_cmp_gt_i32 s61, 0\ns_cbranch_scc1 {lp}\n{lp}_d:')
    stamp(e, c, 8)
    gather(e, frag_loads(XF, 6, 12, 38), 10)
    stamp(e, c, 9)
    for k in range(6): e(f'v_mfma_f32_16x16x32_bf16 {vr(D)}, {vr(WC+4*k)}, {vr(XF+4*k)}, {vr(D) if k else 0}')
    t3 = e.label('L_t3')
    e(f's_nop 7\nds_write_b128 v9, {vr(D)}\ns_waitcnt lgkmcnt(0)\ns_barrier\ns_cmp_lg_u32 s3, 0\ns_cbranch_scc1 {t3}')
    for w in range(1, 4): e(f'ds_read_b128 {vr(16+4*w)}, v12 offset:{1024*w}')
    for i in range(4): e(f'v_add_f32 v{D+i}, v{D+i}, v{120+i}')
    for w in (1, 2, 3):
        e(f's_waitcnt lgkmcnt({3-w})')
        for i in range(4): e(f'v_add_f32 v{D+i}, v{D+i}, v{16+4*w+i}')
    pack_store(e, D, PS, 14, 40, keep=4, local=c.local)
    e('v_lshlrev_b32 v120, 16, v4\nv_and_b32 v121, 0xffff0000, v4\nv_lshlrev_b32 v122, 16, v5\nv_and_b32 v123, 0xffff0000, v5')
    e('v_add_f32 v16, v120, v121\nv_mul_f32 v17, v120, v120\nv_add_f32 v18, v122, v123\nv_fmac_f32 v17, v121, v121\nv_add_f32 v16, v16, v18\nv_fmac_f32 v17, v122, v122\nv_fmac_f32 v17, v123, v123')
    for sw in ('16', '32'):
        e(f'v_mov_b32 v18, v16\nv_mov_b32 v19, v17\ns_nop 0\nv_permlane{sw}_swap_b32 v16, v18\nv_permlane{sw}_swap_b32 v17, v19\nv_add_f32 v16, v16, v18\nv_add_f32 v17, v17, v19')
    e('v_min_u32 v16, -2, v16\nv_min_u32 v17, -2, v17\ns_mov_b64 exec, 0xffff')
    hstore(e, 'buffer_store_dwordx2 v[16:17], v11, s[16:19], s42 offen', c.local); e('s_mov_b64 exec, -1')
    e(f'{t3}:')
    stamp(e, c, 10)
    gather(e, ld3, 10)
    stamp(e, c, 11)
    DD = 96
    for k in range(3):
        for t in range(4): e(f'v_mfma_f32_16x16x32_bf16 {vr(DD+4*t)}, {vr(W1+12*t+4*k)}, {vr(XF+4*k)}, {vr(DD+4*t) if k else 0}')
    e(f'v_pk_add_f32 {vr(SS,2)}, {vr(SS,2)}, {vr(SS+2,2)}\nv_pk_add_f32 {vr(SS+4,2)}, {vr(SS+4,2)}, {vr(SS+6,2)}\nv_pk_add_f32 {vr(SS+8,2)}, {vr(SS+8,2)}, {vr(SS+10,2)}')
    e(f'v_pk_add_f32 {vr(SS,2)}, {vr(SS,2)}, {vr(SS+4,2)}\nv_pk_add_f32 {vr(SS,2)}, {vr(SS,2)}, {vr(SS+8,2)}')
    for t in range(4): e(f'ds_write_b128 v9, {vr(DD+4*t)} offset:{4096+4096*t}')
    for sw in ('16', '32'):
        e(f'v_mov_b32 v{SS+2}, v{SS}\nv_mov_b32 v{SS+3}, v{SS+1}\ns_nop 0\nv_permlane{sw}_swap_b32 v{SS}, v{SS+2}\nv_permlane{sw}_swap_b32 v{SS+1}, v{SS+3}\nv_add_f32 v{SS}, v{SS}, v{SS+2}\nv_add_f32 v{SS+1}, v{SS+1}, v{SS+3}')
    e('s_waitcnt lgkmcnt(0)\ns_barrier')
    for w in range(4): e(f'ds_read_b128 {vr(DD+4*w)}, v8 offset:{4096+1024*w}')
    ln_finish(e, SS, SS + 1)
    e('s_waitcnt lgkmcnt(2)')
    for i in range(4): e(f'v_add_f32 v{DD+i}, v{DD+i}, v{DD+4+i}')
    e('s_waitcnt lgkmcnt(0)')
    for i in range(4): e(f'v_add_f32 v{DD+8+i}, v{DD+8+i}, v{DD+12+i}')
    for i in range(4): e(f'v_fma_f32 v{DD+i}, -v{SS}, v{CS+i}, v{DD+i}')
    for i in range(4): e(f'v_add_f32 v{DD+i}, v{DD+i}, v{DD+8+i}')
    for i in range(4): e(f'v_mul_f32 v{DD+i}, v{SS+1}, v{DD+i}')
    G = DD + 4
    for i in range(4): e(f'v_mul_f32 v{G+i}, v{DD+i}, v{DD+i}')
    for i in range(4): e(f'v_fma_f32 v{G+i}, v{G+i}, s50, v124')
    for i in range(4): e(f'v_mul_f32 v{G+i}, v{G+i}, v{DD+i}')
    for i in range(4): e(f'v_exp_f32 v{G+i}, v{G+i}')
    for i in range(4): e(f'v_add_f32 v{G+i}, 1.0, v{G+i}')
    for i in range(4): e(f'v_rcp_f32 v{G+i}, v{G+i}')
    for i in range(4): e(f'v_mul_f32 v{DD+i}, v{DD+i}, v{G+i}')
    pack_store(e, DD, PS, 14, 49, local=c.local)
    stamp(e, c, 12)
    gather(e, frag_loads(XF, 12, 12, 24), 10)
    stamp(e, c, 13)
    for k in range(12): e(f'v_mfma_f32_16x16x32_bf16 {vr(D)}, {vr(W2+4*k)}, {vr(XF+4*k)}, {vr(D) if k else 0}')
    e(f's_nop 7\nds_write_b128 v9, {vr(D)}\ns_waitcnt lgkmcnt(0)\ns_barrier\ns_cmp_lg_u32 s3, 0\ns_cbranch_scc1 L_fin')
    for w in range(1, 4): e(f'ds_read_b128 {vr(16+4*w)}, v12 offset:{1024*w}')
    for i in range(4): e(f'v_add_f32 v{D+i}, v{D+i}, v{120+i}')
    for w in (1, 2, 3):
        e(f's_waitcnt lgkmcnt({3-w})')
        for i in range(4): e(f'v_add_f32 v{D+i}, v{D+i}, v{16+4*w+i}')
    e(f'v_cvt_pk_bf16_f32 v4, v{D}, v{D+1}\nv_cvt_pk_bf16_f32 v5, v{D+2}, v{D+3}')
    e('buffer_store_dwordx2 v[4:5], v15, s[44:47], s48 offen')
    stamp(e, c, 14)
    e('s_branch L_fin')
    flush_deferred(e)
```

```python
from gen_v5_roles import *

def schedule(n, Ks, Kp, R0, start, step, look=2):
    seq = []; a, b = Kp, Ks
    while a or b:
        if a: seq.append('p'); a -= 1
        if b: seq.append('s'); b -= 1
    act = ['-'] * (n + 1); filled = R0
    rounds = [r for r in range(n - look)]
    usable = []
    for r in rounds:
        if filled < max(r - 1, 0) + NSLOT: usable.append(r); filled += 1
    seq += ['-'] * (len(usable) - (n - R0))
    pos = {start + step * i: x for i, x in enumerate(seq)}
    for r in usable: act[r] = pos.get(r, 'D')
    return ''.join(act)
def plan(act, n, Ks, Kp, R0):
    ring = ['D'] * R0; sslot = []
    for r, a in enumerate(act):
        assert len(ring) > r or r == n, 'ring ran dry'
        if a != '-':
            assert len(ring) < max(r - 1, 0) + NSLOT, 'no free slot'
            assert r > 0 or a == 'D'
            if a == 's': sslot.append(len(ring) % NSLOT)
            ring.append('D' if a == 'D' else 'N')
    assert len(ring) == n and act.count('s') == Ks and act.count('p') == Kp, (act, len(ring))
    f = lambda x, chs: sum(1 << r for r in range(len(x)) if x[r] in chs)
    return dict(W=f(ring, 'D'), D=f(act, 'D'), s=f(act, 's'), p=f(act, 'p'), sslot=sslot)

def streamer(e, c):
    fine = getattr(c, 'fine', None)
    def cyc(k):
        if fine is not None: e(f's_memtime s[{84+2*k}:{85+2*k}]')
    def cyc_save():
        if fine is None: return
        lb = e.label('L_fs')
        e(f's_cmp_lg_u32 s25, {fine}\ns_cbranch_scc1 {lb}\ns_waitcnt lgkmcnt(0)')
        for k in range(6): e(f's_mov_b32 s{66+2*k}, s{84+2*k}')
        e(f'{lb}:')
    NS = c.NS; n = 4608 // NS; nt = ' nt' if not c.hot else ''; ch = c.chunk; Ks, Kp = c.Ks, c.Kp
    assert 24 % ch == 0 and (NS * ch) % 24 == 0 and n % ch == 0
    ni = NS // 16
    T0, T1, T2, T3 = 2, 3, 4, 5
    L16, LH, LH2, LL, RW, STG = 6, 7, 8, 9, 10, 192
    scheds = c.sched or [schedule(n, Ks, Kp, c.R0, st, c.sstep, c.look) for st in (3, 4, 5, 4)]
    plans = [plan(a, n, Ks, Kp, c.R0) for a in scheds]
    def select(pairs):
        e('s_lshr_b32 s30, s35, 2\ns_and_b32 s30, s30, 3')
        for v, p in enumerate(plans):
            if v: e(f's_cmp_eq_u32 s30, {v}')
            for reg, fn in pairs: e(f's_mov_b32 s{reg}, {fn(p)}' if v == 0 else f's_cselect_b32 s{reg}, {fn(p)}, s{reg}')
    for a in scheds: e.c(a)
    if c.xmap: e('s_mul_i32 s35, s2, 3\ns_add_u32 s35, s35, s30\ns_sub_u32 s35, s35, 1')
    else: e(f's_sub_u32 s35, s2, {NH}')
    e(f's_mul_i32 s27, s35, {ch}\ns_mul_hi_u32 s30, s27, {-(-(1<<32)//24)}\ns_mul_i32 s30, s30, 24\ns_add_u32 s26, s27, s30\ns_mulk_i32 s26, 12288')
    e(f's_and_b32 s4, s3, 1\ns_lshr_b32 s5, s3, 1\ns_mul_i32 s30, s5, 48\ns_add_u32 s30, s30, s4\ns_mulk_i32 s30, 6144\nv_lshl_add_u32 v{LH}, v0, 4, s30')
    e(f's_mov_b32 s10, {SZ["feat_hi"]}\ns_mov_b32 s11, 0x20000')
    def common2():
        e(f's_mulk_i32 s27, 6144\ns_mov_b32 s42, 0\ns_mul_i32 s40, s3, 1536\nv_lshlrev_b32 v{L16}, 4, v0\nv_add_u32 v{LL}, s40, v{L16}\nv_add_u32 v{LH2}, 4096, v{LH}')
        e(f's_mov_b32 s14, {SZ["feat_lo"]}\ns_mov_b32 s15, 0x20000\ns_add_u32 s2, s35, {NH}')
    jump_hi = NS * ch * 12288 + (NS * ch // 24) * 294912 - ch * 12288; jump_lo = (NS - 1) * ch * 6144
    def src_adv():
        if c.hot: return
        if ch == 1: e(f's_add_u32 s26, s26, {12288+jump_hi}\ns_add_u32 s27, s27, {6144+jump_lo}')
        else:
            e(f's_add_u32 s42, s42, 1\ns_cmp_eq_u32 s42, {ch}\ns_cselect_b32 s42, 0, s42\ns_cselect_b32 s30, {jump_hi}, 0\ns_cselect_b32 s43, {jump_lo}, 0')
            e('s_add_u32 s26, s26, 12288\ns_add_u32 s27, s27, 6144\ns_add_u32 s26, s26, s30\ns_add_u32 s27, s27, s43')
    def stage_tile(k, mid=None):
        for j in range(6):
            if j == 4 and mid: mid()
            e(f'buffer_load_dwordx4 {vr(STG+32*k+4*j)}, v{LH if j < 4 else LH2}, s[8:11], s26 offen offset:{1024*(j%4)}{nt}')
        e(f'buffer_load_dwordx4 {vr(STG+32*k+24)}, v{LL}, s[12:15], s27 offen{nt}')
        e(f's_mov_b32 exec_hi, 0\nbuffer_load_dwordx4 {vr(STG+32*k+28)}, v{LL}, s[12:15], s27 offen offset:1024{nt}\ns_mov_b32 exec_hi, -1')
        src_adv()
    e('s_cmp_lt_u32 s7, 4\ns_cbranch_scc1 L_sw\ns_waitcnt lgkmcnt(0)')
    stamp(e, c, 1)
    if c.pro == 1 or not Kp: common2()
    if c.pro == 1: late_consts(e); e('s_branch L_fin')
    for k in range(Kp): stage_tile(k, common2 if k == 0 else None)
    for k in range(Ks): src_adv()
    e('s_branch L_pv')
    def setup_maps(DO):
        e('s_lshl_b32 s41, s4, 1\ns_lshl_b32 s44, s5, 1\ns_mul_i32 s45, s4, 12288\ns_mov_b32 s47, 0x78')
        if DO is not None:
            e('s_lshl_b32 s30, s4, 2\ns_lshr_b32 s36, 0x780, s30\ns_and_b32 s37, s36, 0xc0\ns_lshr_b32 s37, s37, 2\ns_and_b32 s36, s36, 0x30')
            e('s_mul_i32 s38, s3, 3072\ns_add_u32 s39, s38, 1536')
        for b in range(3):
            e(f'v_add_u32 v{T0}, {64*b}, v0\nv_mul_u32_u24 v{T1}, 1366, v{T0}\nv_lshrrev_b32 v{T1}, 16, v{T1}')
            e(f'v_mul_u32_u24 v{T2}, 48, v{T1}\nv_sub_u32 v{T0}, v{T0}, v{T2}')
            if b < 2:
                e(f'v_add_lshl_u32 v{T2}, v{T1}, s41, 2\nv_xor_b32 v{T2}, v{T2}, v{T0}\nv_lshlrev_b32 v{T2}, 4, v{T2}')
                e(f'v_mul_u32_u24 v{T3}, 768, v{T1}\nv_add3_u32 v{T3}, v{T3}, v{T2}, s40\nv_add_u32 v{RW+6+b}, 24576, v{T3}')
                if DO is not None: e(f'v_mov_b32 v{DO+6+b}, v{T3}')
            e(f'v_and_or_b32 v{T3}, v{T1}, 1, s44')
            for a in range(2):
                r = RW + 3 * a + b
                e(f'v_lshrrev_b32 v{T2}, 1, v{T1}\nv_add_u32 v{T2}, {2*a}, v{T2}\nv_lshl_add_u32 v{r}, v{T2}, 2, v{T3}\nv_mul_u32_u24 v{r}, 768, v{r}')
                e(f'v_lshlrev_b32 v{T2}, 1, v{T2}\nv_lshrrev_b32 v{T2}, v{T2}, s47\nv_and_b32 v{T2}, 3, v{T2}\nv_lshl_or_b32 v{T2}, v{T3}, 2, v{T2}\nv_xor_b32 v{T2}, v{T2}, v{T0}')
                e(f'v_lshl_add_u32 v{r}, v{T2}, 4, v{r}\nv_add_u32 v{r}, s45, v{r}')
            if DO is not None:
                e(f'v_lshlrev_b32 v{T2}, 2, v{T1}\nv_xor_b32 v{T0}, v{T0}, v{T2}\nv_lshlrev_b32 v{T0}, 4, v{T0}')
                e(f'v_lshrrev_b32 v{T2}, 1, v{T1}\nv_mul_u32_u24 v{T2}, 294912, v{T2}\nv_and_b32 v{T1}, 1, v{T1}\nv_mul_u32_u24 v{T1}, 768, v{T1}\nv_add3_u32 v{T0}, v{T0}, v{T1}, v{T2}')
                e(f'v_xor_b32 v{T1}, s36, v{T0}\nv_add_u32 v{DO+b}, s38, v{T1}\nv_xor_b32 v{T1}, s37, v{T0}\nv_add_u32 v{DO+3+b}, s39, v{T1}')
    def unstage(K, tag, tmp, sslot):
        for j in range(8): e(f'v_add_u32 v{tmp+j}, s{sslot}, v{RW+j}')
        e('s_add_u32 s50, s50, 1')
        for k in range(K):
            nx = e.label('L_rk')
            if k < K - 1: e(f's_cmp_lg_u32 s50, {k+1}\ns_cbranch_scc1 {nx}')
            for j in range(7): e(f'ds_write_b128 v{tmp+j}, {vr(STG+32*k+4*j)}')
            e(f's_mov_b32 exec_hi, 0\nds_write_b128 v{tmp+7}, {vr(STG+32*k+28)}\ns_mov_b32 exec_hi, -1')
            if k < K - 1: e(f's_branch L_un_{tag}\n{nx}:')
        e(f'L_un_{tag}:')
    def slot_delta(): e(f's_add_u32 s45, s45, 1\ns_cmp_eq_u32 s45, {NSLOT}\ns_cselect_b32 s32, {-(NSLOT-1)*TILE}, s33\ns_cselect_b32 s45, 0, s45')
    def check(PFL, t, slow):
        e(f'v_or_b32 v{t}, v{PFL}, v{PFL+1}\nv_and_b32 v{t}, 0x40004000, v{t}\nv_cmp_ne_u32 vcc, 0, v{t}\ns_or_b64 vcc, vcc, s[28:29]\ns_cbranch_scc1 {slow}')
    def quant(r): e(f'v_add_f32 v{r}, 4.0, v{r}\nv_mul_f32 v{r}, {fx(1/16)}, v{r}\nv_ceil_f32 v{r}, v{r}\nv_mul_f32 v{r}, {fx(16.0)}, v{r}')

    SH, SL, PW, PW2, PR2, MXW, MXS = 18, 22, 26, 27, 28, 29, 30
    NEGM, S, PK, PFL, TMP, FB, NB, AQ = 32, 36, 40, 44, 46, 56, 8, 96
    e('L_sw:'); common2(); late_consts(e)
    if c.touch:
        e('s_cmp_lg_u32 s7, 0\ns_cbranch_scc1 L_snt'); code_touch(e, c); e('L_snt:')
    for k in range(Kp): src_adv()
    if c.pro == 1: e('s_waitcnt lgkmcnt(0)\ns_branch L_fin')
    if Ks: setup_maps(None)
    e(f'v_and_b32 v{T0}, 15, v0\nv_lshrrev_b32 v{T1}, 4, v0')
    e(f'v_lshrrev_b32 v{T2}, 2, v{T0}\nv_lshlrev_b32 v{T3}, 1, v{T2}\ns_mov_b32 s30, 0x78\nv_lshrrev_b32 v{T3}, v{T3}, s30\nv_and_b32 v{T3}, 3, v{T3}')
    e(f'v_and_b32 v{TMP}, 3, v{T0}\nv_lshl_or_b32 v{T3}, v{TMP}, 2, v{T3}\nv_xor_b32 v{T3}, v{T3}, v{T1}\nv_lshlrev_b32 v{T3}, 4, v{T3}')
    e(f's_mul_i32 s30, s4, 12288\nv_mul_u32_u24 v{TMP}, 768, v{T0}\nv_add3_u32 v{SH}, v{T3}, v{TMP}, s30')
    e(f'v_lshl_or_b32 v{T3}, v{T2}, 2, v{T1}\nv_lshlrev_b32 v{T3}, 4, v{T3}\ns_mul_i32 s30, s4, 3072\ns_add_u32 s30, s30, 24576\nv_mul_u32_u24 v{TMP}, 768, v{T2}\nv_add3_u32 v{SL}, v{T3}, v{TMP}, s30')
    for b in range(1, 4): e(f'v_xor_b32 v{SH+b}, {64*b}, v{SH}\nv_xor_b32 v{SL+b}, {64*b}, v{SL}')
    e(f's_lshl_b32 s30, s5, 4\nv_add_u32 v{T3}, s30, v{T0}')
    e(f'v_lshrrev_b32 v{TMP}, 1, v{T1}\nv_lshlrev_b32 v{TMP}, 9, v{TMP}\nv_lshl_add_u32 v{TMP}, v{T3}, 4, v{TMP}\nv_and_b32 v{TMP+1}, 1, v{T1}\nv_lshl_add_u32 v{TMP}, v{TMP+1}, 3, v{TMP}')
    e(f's_lshl_b32 s30, s4, 10\ns_add_u32 s30, s30, {PB+PBUF}\nv_add_u32 v{PW}, s30, v{TMP}')
    e(f'v_lshlrev_b32 v{TMP}, 3, v{T3}\nv_lshl_add_u32 v{TMP}, v{T1}, 1, v{TMP}\ns_lshl_b32 s30, s4, 8\ns_add_u32 s30, s30, {PB+PBUF+2048}\nv_add_u32 v{PW2}, s30, v{TMP}')
    e(f'v_lshlrev_b32 v1, 3, v0\nv_add_u32 v{PR2}, {PB+PBUF+2048}, v1')
    e(f'v_lshlrev_b32 v{TMP}, 2, v{T3}\nv_add_u32 v{MXS}, {MXB}, v{TMP}\ns_lshl_b32 s30, s4, 7\nv_add_u32 v{MXW}, s30, v{MXS}')
    e(f'v_mov_b64 {vr(NEGM,2)}, 0\nv_mov_b64 {vr(NEGM+2,2)}, 0')
    select([(48, lambda p: p['s'])] + [(46 + k, (lambda k: lambda p: p['sslot'][k] * TILE)(k)) for k in range(Ks)])
    e(f's_mov_b64 s[28:29], -1\ns_mov_b32 s45, 0\ns_mov_b32 s25, 0\ns_mov_b32 s33, {TILE}\ns_mov_b32 s50, 0\ns_mov_b32 s58, {-PBUF}')
    e(f's_mul_i32 s52, s5, 24576\ns_add_u32 s52, s52, {AF if not c.iso else 0x1000000}'); soffs(e, 52, 6)
    e(f's_lshr_b32 s30, s35, 1\ns_cmp_ge_u32 s30, 48\ns_cselect_b32 s31, 48, 0\ns_sub_u32 s30, s30, s31\ns_mul_i32 s30, s30, 43\ns_lshr_b32 s30, s30, 9')
    e(f's_and_b32 s51, s35, 1\ns_lshl_b32 s30, s30, 1\ns_add_u32 s30, s30, s51\ns_mul_i32 s36, s30, {NS*128}\ns_lshl_b32 s30, s3, 9\ns_add_u32 s36, s36, s30\ns_add_u32 s36, s36, {ML}'); soffs(e, 36, (ni + 1) // 2)
    e('s_setprio 2\ns_waitcnt lgkmcnt(0)\ns_barrier')
    stamp(e, c, 1)
    early_load(e, T0, 5)
    for k in range(Ks): stage_tile(k)
    e(f's_waitcnt vmcnt({min(8*Ks, c.await_)})')
    if not c.iso: early_wait(e, T0, (1,))
    late_addr(e, 31)
    stamp(e, c, 2)
    if c.pro == 2: e('s_branch L_fin')
    aload = frag_loads(AQ, 24, L16, 52)
    e('L_aload:')
    for x, _, _ in aload: e(x)
    validate(e, aload, T0)
    e('s_cbranch_vccnz L_aretry\nL_aok:\ns_setprio 0')
    late_load(e, 54, 31)
    stamp(e, c, 4)
    def sread(k):
        base = (SH if k < 12 else SL); ks = k % 12
        e.dsop(f'ds_read_b128 {vr(FB+4*(k%NB))}, v{base+(ks&3)} offset:{256*(ks>>2)}', ('s', k))
    def expwrite():
        for i in range(4): e(f'v_exp_f32 v{TMP+i}, v{S+i}')
        e(f'v_add_f32 v{TMP+4}, v{TMP}, v{TMP+1}\nv_add_f32 v{TMP+5}, v{TMP+2}, v{TMP+3}\nv_cvt_pk_bf16_f32 v{PK}, v{TMP}, v{TMP+1}\nv_cvt_pk_bf16_f32 v{PK+1}, v{TMP+2}, v{TMP+3}')
        e(f'v_add_f32 v{TMP+4}, v{TMP+4}, v{TMP+5}\nds_write_b64 v{PW}, {vr(PK,2)}\nv_cvt_pk_bf16_f32 v{PK+2}, v{TMP+4}, v{TMP+4}\nds_write_b16 v{PW2}, v{PK+2}')
    e('s_barrier')
    stamp(e, c, 3)
    if c.diag: e('s_memtime s[86:87]')
    for k in range(NB): sread(k)
    e.ds = []
    e('s_branch L_s_back')
    e('.p2align 3\nL_s:\ns_barrier')
    if c.diag and fine is None: e(f's_memrealtime s[{64+2*5}:{65+2*5}]')
    cyc(0)
    e.dsop(f'ds_read_b64 {vr(PFL,2)}, v{PR2}', 'pfl')
    for k in range(NB): sread(k)
    e.dswait('pfl')
    check(PFL, TMP, 'L_s_slow')
    e('L_s_back:'); cyc(1)
    fill = [f'v_add_u32 v{r}, s58, v{r}' for r in (PW, PW2, PR2)] + ['s_sub_u32 s58, 0, s58']
    fill += [f's_add_u32 s45, s45, 1', f's_cmp_eq_u32 s45, {NSLOT}\ns_cselect_b32 s32, {-(NSLOT-1)*TILE}, s33\ns_cselect_b32 s45, 0, s45']
    late = [f'v_add_u32 v{r}, s32, v{r}' for r in range(SH, SL + 4)]
    for k in range(24):
        if k % c.wstep == 0: e.dswait(('s', min(k + c.wstep - 1, 23)))
        e(f'v_mfma_f32_16x16x32_bf16 {vr(S)}, {vr(FB+4*(k%NB))}, {vr(AQ+4*k)}, {vr(S) if k else vr(NEGM)}')
        if k == 11: cyc(2)
        if k + NB < 24:
            sread(k + NB)
            if fill and k % 2 == 1: e(fill.pop(0))
    assert not fill
    cyc(3)
    for x in late: e(x)
    expwrite()
    cyc(4)
    if fine is not None: e('s_waitcnt lgkmcnt(0)'); cyc(5); cyc_save()
    if Ks: e('s_bitcmp1_b32 s48, s25\ns_cbranch_scc1 L_s_unstage')
    e(f'L_s_next:\ns_add_u32 s25, s25, 1\ns_cmp_lg_u32 s25, {n}\ns_waitcnt lgkmcnt(0)\ns_cbranch_scc1 L_s')
    e.ds = []
    e('s_waitcnt vmcnt(0)')
    if not c.iso: late_wait(e, 54, 31)
    e(f's_barrier\nds_read_b64 {vr(PFL,2)}, v{PR2}')
    if fine is None: stamp(e, c, 6)
    if c.diag and fine is None: e('s_memtime s[88:89]')
    MLR, X = AQ, AQ + 32
    SEL, D, VX, VOOB, VT, VF, VG, VG8, VQ8, VQ16, VA0, VA1 = 56, 60, 64, 65, 66, 67, 68, 69, 76, 77, 78, 79
    M, MN, L, U0, U1 = 70, 71, 72, 73, 74
    npw = NS // 4
    full = (1 << npw) - 1
    mlloads = [f'buffer_load_dwordx2 {vr(MLR+2*i,2)}, v1, s[16:19], s{36+i//2} offen offset:{2048*(i%2)} sc1' for i in range(ni)]
    flagload = f's_or_b64 exec, s[44:45], 1\nbuffer_load_dword v{VT}, v{VF}, s[16:19], s36 offen offset:4 sc1\ns_mov_b64 exec, -1'
    e(f'v_min_u32 v{VF}, {npw-1}, v0\nv_lshrrev_b32 v{VT}, 2, v{VF}\nv_and_b32 v{VF}, 3, v{VF}\nv_lshlrev_b32 v{VF}, 7, v{VF}\nv_lshl_add_u32 v{VF}, v{VT}, 11, v{VF}')
    e('s_waitcnt lgkmcnt(0)')
    check(PFL, TMP, 'L_s_slow')
    e('L_s_last:')
    if c.iso or c.cut: e('s_branch L_fin')
    e(f's_mov_b32 s44, {full & 0xffffffff}\ns_mov_b32 s45, {full >> 32}')
    e(flagload)
    e(f'v_lshrrev_b32 v{VG}, 4, v0\nv_mul_u32_u24 v{VX}, {c.pstride}, v{VG}\nv_and_b32 v{U0}, 15, v0\nv_lshlrev_b32 v{VQ16}, 4, v{U0}\nv_lshlrev_b32 v{VQ8}, 3, v{U0}\nv_add_u32 v{VX}, v{VX}, v{VQ16}\nv_bfrev_b32 v{VOOB}, 1\nv_lshlrev_b32 v{VG8}, 3, v{VG}')
    e(f's_lshl_b32 s27, s35, 8\ns_mul_i32 s26, s3, {4*c.pstride}\ns_add_u32 s27, s27, s26\ns_add_u32 s27, s27, {PART}')
    e(f'v_and_b32 v{U0}, 3, v0\nv_lshlrev_b32 v{U1}, 4, v{U0}\ns_movk_i32 s30, 0x3f80\nv_lshlrev_b32 v{U1}, v{U1}, s30\nv_cmp_gt_u32 vcc, 2, v{U0}\nv_bfe_u32 v{U0}, v0, 2, 2\nv_mov_b32 v{L}, 0\nv_cndmask_b32 v{U1}, 0, v{U1}, vcc')
    for d in range(4): e(f'v_cmp_eq_u32 vcc, {d}, v{U0}\nv_mov_b32 v{D+d}, 0\ns_nop 0\nv_cndmask_b32 v{SEL+d}, 0, v{U1}, vcc')
    e(f'v_mov_b32 v{M}, 0xff800000\nv_mov_b32 v{MN}, 0x7f800000\ns_mov_b32 s43, {c.pstride}')
    e(f's_waitcnt vmcnt(0)\nv_cmp_ne_u32 vcc, -1, v{VT}\ns_barrier')
    e('s_and_b64 s[46:47], vcc, s[44:45]\ns_branch L_t1c')
    e('L_t1b:\ns_andn2_b64 s[44:45], s[44:45], s[46:47]')
    def stats(mreg, valid):
        e(f'v_cndmask_b32 v{U0}, v{M}, v{mreg}, {valid}\nv_cndmask_b32 v{U1}, v{MN}, v{mreg}, {valid}\nv_add_f32 v{L}, v{L}, v{mreg+1}\nv_max_f32 v{M}, v{M}, v{U0}\nv_min_f32 v{MN}, v{MN}, v{U1}\nv_fmac_f32 v{L}, 0, v{mreg}')
    e(f'v_lshrrev_b32 v{VA0}, v{VG}, s46\nv_lshrrev_b32 v{VA1}, v{VG}, s47')
    for i in range(ni):
        e(f'v_and_b32 v{VT}, {1 << (4*(i%8))}, v{VA0 if i < 8 else VA1}\nv_cmp_ne_u32 vcc, 0, v{VT}\ns_add_u32 s30, s27, {16*c.pstride*i}\ns_nop 0')
        e(f'v_cndmask_b32 v{U0}, v{VOOB}, v1, vcc\nv_cndmask_b32 v{U1}, v{VOOB}, v{VX}, vcc')
        e(mlloads[i].replace(', v1, ', f', v{U0}, ')); e(f'buffer_load_dwordx4 {vr(X+4*i)}, v{U1}, s[16:19], s30 offen sc1')
    e(flagload)
    for i in range(ni):
        e(f'v_and_b32 v{U0}, {1 << (4*(i%8))}, v{VA0 if i < 8 else VA1}\nv_cmp_ne_u32 vcc, 0, v{U0}\ns_waitcnt vmcnt({2*(ni-1-i)+1})')
        e(f'v_mfma_f32_16x16x32_bf16 {vr(D)}, {vr(SEL)}, {vr(X+4*i)}, {vr(D)}')
        stats(MLR + 2 * i, 'vcc')
    e('s_cmp_eq_u64 s[44:45], 0\ns_cbranch_scc1 L_t1done\ns_branch L_t1w')
    e(f'L_t1s:\ns_sleep {c.t1sleep}\nL_t1:\n{flagload}\ns_sub_u32 s61, s61, 1\ns_cmp_gt_i32 s61, 0\ns_cbranch_scc0 L_t1done')
    e(f'L_t1w:\ns_waitcnt vmcnt(0)\nv_cmp_ne_u32 vcc, -1, v{VT}\ns_and_b64 s[46:47], vcc, s[44:45]\nL_t1c:\ns_cbranch_scc0 L_t1s')
    e(f's_bcnt1_i32_b64 s30, s[46:47]\ns_cmp_gt_u32 s30, 8\ns_cbranch_scc1 L_t1b\ns_bcnt1_i32_b64 s30, s[44:45]\ns_cmp_gt_u32 s30, {c.endgame}\ns_cbranch_scc1 L_t1s')
    for r in range(2):
        for g in range(4):
            e(f's_ff1_i32_b64 s30, s[46:47]\ns_bitset0_b64 s[46:47], s30\ns_bitset0_b64 s[44:45], s30')
            e(f's_and_b32 s48, s30, 0xff' if g == 0 else f's_and_b32 s30, s30, 0xff\ns_lshl_b32 s30, s30, {8*g}\ns_or_b32 s48, s48, s30')
        mk = f's[{52+2*r}:{53+2*r}]'
        e(f'v_bfe_u32 v{VT}, s48, v{VG8}, 8\nv_cmp_gt_u32 {mk}, 64, v{VT}\nv_lshrrev_b32 v{U0}, 2, v{VT}\nv_and_b32 v{VT}, 3, v{VT}\nv_lshl_add_u32 v{VT}, v{U0}, 4, v{VT}')
        e(f'v_mad_u32_u24 v{U1}, v{VT}, s43, v{VQ16}\nv_lshl_add_u32 v{U0}, v{VT}, 7, v{VQ8}\nv_cndmask_b32 v{U1}, v{VOOB}, v{U1}, {mk}\nv_cndmask_b32 v{U0}, v{VOOB}, v{U0}, {mk}')
        e(f'buffer_load_dwordx4 {vr(X+4*r)}, v{U1}, s[16:19], s27 offen sc1\nbuffer_load_dwordx2 {vr(MLR+2*r,2)}, v{U0}, s[16:19], s36 offen sc1')
        if r == 0: e('s_cmp_eq_u64 s[46:47], 0\ns_cbranch_scc1 L_t1one')
    e(f's_waitcnt vmcnt(0)\nv_mfma_f32_16x16x32_bf16 {vr(D)}, {vr(SEL)}, {vr(X+4)}, {vr(D)}')
    stats(MLR + 2, 's[54:55]')
    e(f'L_t1one:\ns_waitcnt vmcnt(0)\nv_mfma_f32_16x16x32_bf16 {vr(D)}, {vr(SEL)}, {vr(X)}, {vr(D)}')
    stats(MLR, 's[52:53]')
    e('s_cmp_lg_u64 s[44:45], 0\ns_cbranch_scc1 L_t1\nL_t1done:')
    stamp(e, c, 8)
    for sw in ('16', '32'):
        e(f'v_mov_b32 v{U0}, v{M}\nv_mov_b32 v{U1}, v{L}\ns_nop 0\nv_permlane{sw}_swap_b32 v{M}, v{U0}\nv_permlane{sw}_swap_b32 v{L}, v{U1}\nv_max_f32 v{M}, v{M}, v{U0}\nv_add_f32 v{L}, v{L}, v{U1}')
    e(f'v_cmp_lt_f32 s[56:57], v{MN}, v{M}\nv_cmp_u_f32 vcc, v{L}, v{D}\ns_lshl_b32 s30, s3, 10\ns_add_u32 s30, s30, {CMB}\nv_add_u32 v{U0}, s30, v{L16}\nv_add_u32 v{U1}, {CMB}, v{L16}')
    e(f'v_mov_b32 v{D+2}, v{M}\nv_mov_b32 v{D+3}, v{L}\ns_or_b64 vcc, vcc, s[56:57]\ns_cbranch_scc1 L_t1gen\nL_t1back:')
    e(f'ds_write_b128 v{U0}, {vr(D)}\ns_waitcnt lgkmcnt(0)\ns_barrier')
    stamp(e, c, 9)
    e('s_cmp_lg_u32 s3, 0\ns_cbranch_scc1 L_fin')
    for w in range(4): e(f'ds_read_b128 {vr(16+4*w)}, v{U1} offset:{1024*w}')
    e(f's_mul_i32 s30, s51, 24576\ns_lshr_b32 s26, s35, 1\ns_lshl_b32 s26, s26, 8\ns_add_u32 s30, s30, s26\ns_add_u32 s30, s30, {UF}')
    e('s_waitcnt lgkmcnt(0)\nv_max3_f32 v10, v18, v22, v26\nv_max_f32 v10, v10, v30')
    for w in range(4): e(f'v_sub_f32 v{18+4*w}, v{18+4*w}, v10')
    for w in range(4): e(f'v_exp_f32 v{18+4*w}, v{18+4*w}')
    e('v_mul_f32 v11, v19, v18\nv_mul_f32 v8, v16, v18\nv_mul_f32 v9, v17, v18')
    for w in range(1, 4): e(f'v_fmac_f32 v11, v{19+4*w}, v{18+4*w}')
    e('v_rcp_f32 v11, v11')
    for w in range(1, 4): e(f'v_fmac_f32 v8, v{16+4*w}, v{18+4*w}\nv_fmac_f32 v9, v{17+4*w}, v{18+4*w}')
    e('v_mul_f32 v8, v8, v11\nv_mul_f32 v9, v9, v11\nv_cvt_pk_bf16_f32 v8, v8, v9\nv_min_u32 v8, -2, v8\ns_nop 1')
    e('v_permlane16_swap_b32 v8, v9\ns_nop 1\nv_permlane32_swap_b32 v8, v10\nv_permlane32_swap_b32 v9, v11')
    e(f's_mov_b64 exec, 0xffff\nbuffer_store_dwordx4 v[8:11], v{L16}, s[16:19], s30 offen sc1')
    stamp(e, c, 10)
    e('L_fin:')
    dump(e, c)
    e('L_end:\ns_endpgm')
    flush_deferred(e)
    if Ks:
        e('L_s_unstage:')
        unstage(Ks, 's', TMP, 46)
        e('s_mov_b32 s46, s47\ns_branch L_s_next')
    e(f'L_aretry:\nv_min_u32 v{T1}, 47, v0\nv_lshlrev_b32 v{T1}, 9, v{T1}\nL_aw:\ns_sub_u32 s61, s61, 1\ns_cmp_gt_i32 s61, 0\ns_cbranch_scc0 L_aok')
    e(f'buffer_load_dword v{T0}, v{T1}, s[16:19], s52 offen sc1\ns_waitcnt vmcnt(0)\nv_cmp_eq_u32 vcc, -1, v{T0}\ns_cbranch_vccz L_aload\ns_sleep 4\ns_branch L_aw')
    e('L_s_slow:')
    e(f'v_max3_f32 v{TMP}, v{S}, v{S+1}, v{S+2}\nv_max_f32 v{TMP}, v{TMP}, v{S+3}')
    xsum16_32(e, TMP, TMP + 1, 'v_max_f32')
    e(f'ds_write_b32 v{MXW}, v{TMP}\ns_waitcnt lgkmcnt(0)\ns_barrier')
    e(f'ds_read2_b32 {vr(TMP,2)}, v{MXS} offset0:0 offset1:32\ns_waitcnt lgkmcnt(0)\nv_max_f32 v{TMP}, v{TMP}, v{TMP+1}')
    quant(TMP)
    e(f'v_max_f32 v{TMP+1}, 0, v{TMP}\nv_cndmask_b32 v{TMP}, v{TMP+1}, v{TMP}, s[28:29]\ns_mov_b64 s[28:29], 0')
    for i in range(4): e(f'v_sub_f32 v{NEGM+i}, v{NEGM+i}, v{TMP}\nv_sub_f32 v{S+i}, v{S+i}, v{TMP}')
    expwrite()
    e(f's_waitcnt lgkmcnt(0)\ns_barrier\ns_cmp_lg_u32 s25, {n}\ns_cbranch_scc1 L_s_back\ns_branch L_s_last')
    e('L_t1gen:')
    xl = [(f's_add_u32 s30, s27, {16*c.pstride*i}\nbuffer_load_dwordx4 {vr(X+4*i)}, v{VX}, s[16:19], s30 offen sc1', X + 4 * i, 4) for i in range(ni)]
    gather(e, [(x, MLR + 2 * i, 2) for i, x in enumerate(mlloads)], VT)
    for x, _, _ in xl: e(x)
    e(f'v_max_f32 v{M}, v{MLR}, v{MLR+2}')
    for i in range(2, ni, 2): e(f'v_max3_f32 v{M}, v{M}, v{MLR+2*i}, v{MLR+2*i+2}')
    xsum16_32(e, M, VT, 'v_max_f32')
    e(f'v_mov_b32 v{D+2}, v{M}')
    for i in range(ni): e(f'v_sub_f32 v{MLR+2*i}, v{MLR+2*i}, v{M}')
    for i in range(ni): e(f'v_exp_f32 v{MLR+2*i}, v{MLR+2*i}')
    e(f'v_mul_f32 v{L}, v{MLR}, v{MLR+1}')
    for i in range(1, ni): e(f'v_fmac_f32 v{L}, v{MLR+2*i}, v{MLR+2*i+1}')
    xsum16_32(e, L, VT)
    A, T = 24, 32
    e(f'v_mov_b32 v{D+3}, v{L}\ns_waitcnt vmcnt(0)')
    for i in range(ni):
        for d in range(4): e(f'v_lshlrev_b32 v{T+2*d}, 16, v{X+4*i+d}\nv_and_b32 v{T+2*d+1}, 0xffff0000, v{X+4*i+d}')
        for d in range(4):
            if i == 0: e(f'v_pk_mul_f32 {vr(A+2*d,2)}, {vr(T+2*d,2)}, {vr(MLR,2)} op_sel_hi:[1,0]')
            else: e(f'v_pk_fma_f32 {vr(A+2*d,2)}, {vr(T+2*d,2)}, {vr(MLR+2*i,2)}, {vr(A+2*d,2)} op_sel_hi:[1,0,1]')
    e('s_nop 1')
    for k in range(4): e(f'v_permlane32_swap_b32 v{A+k}, v{A+k+4}')
    for k in range(4): e(f'v_add_f32 v{A+k}, v{A+k}, v{A+k+4}')
    e('s_nop 1')
    for k in range(2): e(f'v_permlane16_swap_b32 v{A+k}, v{A+k+2}')
    e(f'v_add_f32 v{D}, v{A}, v{A+2}\nv_add_f32 v{D+1}, v{A+1}, v{A+3}\ns_branch L_t1back')

    DO, PH, PL, PR, PR2, MXP, MPV, LSUM = 18, 26, 32, 35, 36, 37, 38, 39
    TMP, PFL, PF, VA, VL, ONES, ACC = 40, 48, 52, 60, 84, 50, 96
    e('L_pv:'); late_consts(e)
    if c.prio == 'p': e('s_setprio 1')
    setup_maps(DO)
    e(f's_mul_i32 s24, s3, 6144\ns_mul_i32 s34, s3, -4608\ns_add_u32 s34, s34, {24576-5120}\ns_add_u32 s31, s24, {PB}')
    def dma_items():
        it = []
        for j in range(6):
            it.append(('s_mov_b32 m0, s24' if j == 0 else 's_add_u32 m0, m0, 1024') + f'\ns_nop 0\nbuffer_load_dwordx4 v{DO+j}, s[8:11], s26 offen{nt} lds')
        it.append(f's_add_u32 m0, m0, s34\ns_nop 0\nbuffer_load_dwordx4 v{DO+6}, s[12:15], s27 offen{nt} lds')
        it.append(f's_add_u32 m0, m0, 1024\ns_mov_b32 exec_hi, 0\nbuffer_load_dwordx4 v{DO+7}, s[12:15], s27 offen{nt} lds\ns_mov_b32 exec_hi, -1')
        return it
    def slot_adv(): e(f's_add_u32 s24, s24, {TILE}\ns_cmp_ge_u32 s24, s31\ns_cselect_b32 s30, {PB}, 0\ns_sub_u32 s24, s24, s30')
    e(f's_mul_i32 s52, s35, {c.pstride}\ns_add_u32 s52, s52, s24\ns_add_u32 s52, s52, {PART}\ns_add_u32 s53, s52, 4096\ns_add_u32 s54, s52, 24576\ns_add_u32 s55, s52, {24576+4096}')
    pstore = lambda s, r: f'buffer_store_dwordx4 {vr(r)}, v{L16}, s[16:19], s{52 + 2*(s//6) + (s%6)//4} offen offset:{1024*((s%6)%4)} sc1'
    lp = e.label('L_is')
    if c.inband and not c.iso: e(f'v_mov_b64 {vr(TMP,2)}, -1\nv_mov_b64 {vr(TMP+2,2)}, -1')
    for x in dma_items(): e(x)
    src_adv(); slot_adv()
    if c.inband and not c.iso:
        for s in range(12): e(pstore(s, TMP))
    e(f'v_lshrrev_b32 v{T0}, 5, v0\nv_bfe_u32 v{T1}, v0, 2, 2')
    e(f'v_bfe_u32 v{T2}, v0, 4, 1\nv_and_b32 v{T3}, 1, v0\nv_lshl_or_b32 v{T2}, v{T2}, 1, v{T3}\nv_lshl_or_b32 v{T2}, v{T1}, 2, v{T2}')
    e(f'v_bfe_u32 v{T3}, v0, 1, 1\nv_lshlrev_b32 v{T3}, 3, v{T3}')
    Q0 = PF
    for t in range(3):
        e(f's_mul_i32 s30, s3, 12\ns_add_u32 s30, s30, {4*t}\nv_xor_b32 v{Q0}, s30, v{T2}')
        e(f'v_lshl_add_u32 v{Q0+1}, v{T0}, 2, v{T1}\nv_mul_u32_u24 v{Q0+1}, 768, v{Q0+1}\nv_lshl_add_u32 v{Q0+1}, v{Q0}, 4, v{Q0+1}\nv_add_u32 v{Q0+1}, v{Q0+1}, v{T3}\nv_add_u32 v{PL+t}, 24576, v{Q0+1}')
        for u in range(2):
            e(f'v_lshlrev_b32 v{Q0+1}, 2, v{T0}\nv_add_u32 v{Q0+1}, {2*u}, v{Q0+1}\ns_mov_b32 s30, 0x78\nv_lshrrev_b32 v{Q0+1}, v{Q0+1}, s30\nv_and_b32 v{Q0+1}, 3, v{Q0+1}\nv_xor_b32 v{Q0+1}, v{Q0+1}, v{Q0}')
            e(f'v_lshl_add_u32 v{Q0+2}, v{T0}, 3, v{T1}\nv_add_u32 v{Q0+2}, {4*u}, v{Q0+2}\nv_mul_u32_u24 v{Q0+2}, 768, v{Q0+2}\nv_lshl_add_u32 v{Q0+2}, v{Q0+1}, 4, v{Q0+2}\nv_add_u32 v{PH+2*t+u}, v{Q0+2}, v{T3}')
    def pv_state():
        e(f'v_add_u32 v{PR}, {PB}, v{L16}\nv_lshlrev_b32 v1, 3, v0\nv_add_u32 v{PR2}, {PB+2048}, v1')
        e(f'v_and_b32 v{T0}, 31, v0\nv_lshlrev_b32 v{T0}, 2, v{T0}\nv_add_u32 v{MXP}, {MXB}, v{T0}')
        for i in range(0, 96, 2): e(f'v_mov_b64 {vr(ACC+i,2)}, 0')
        e(f'v_mov_b64 {vr(MPV,2)}, 0\nv_mov_b32 v{ONES}, 0x3f803f80')
        select([(46, lambda p: p['W']), (47, lambda p: p['D']), (48, lambda p: p['p']), (44, lambda p: p['s'])])
        e(f's_mov_b64 s[28:29], -1\ns_mov_b32 s45, 0\ns_mov_b32 s25, 1\ns_mov_b32 s33, {TILE}\ns_mov_b32 s49, {c.R0 - 1 + (scheds[0][0] == "D")}\ns_mov_b32 s50, 0\ns_mov_b32 s58, {PBUF}')
        e(f'v_bfe_u32 v{T0}, v0, 4, 1\nv_mul_u32_u24 v{T0}, {NS*128}, v{T0}\nv_and_b32 v{T1}, 15, v0\nv_lshl_add_u32 v{T0}, v{T1}, 3, v{T0}')
        e(f's_mul_i32 s51, s3, {NS*256}\ns_lshl_b32 s30, s35, 7\ns_add_u32 s51, s51, s30\ns_add_u32 s51, s51, {ML}')
    assert Kp + 1 <= c.jbar <= Kp + c.R0
    for j in range(1, c.R0 + 1):
        if Kp + j == c.jbar: e('s_barrier')
        if j == 1: pv_state()
        if j < c.R0:
            for x in dma_items(): e(x)
            src_adv(); slot_adv()
    stamp(e, c, 2)
    if c.pro == 2: e('s_waitcnt vmcnt(0)'); stamp(e, c, 3); e('s_branch L_fin')
    d0 = scheds[0][0] == 'D'; assert all((x[0] == 'D') == d0 for x in scheds)
    e(f's_waitcnt vmcnt({8*(c.R0-1)})\ns_barrier')
    if d0:
        for x in dma_items(): e(x)
        src_adv(); slot_adv()
    for i in range(0, 32, 2): e(f'v_mov_b64 {vr(PF+i,2)}, 0')
    nw = e.label('L_nw')
    e(f'.p2align 3\nL_p:\ns_bitcmp1_b32 s46, s25\ns_cbranch_scc0 {nw}\ns_sub_u32 s49, s49, 1')
    for k in range(3, 0, -1): e(f's_waitcnt vmcnt({8*k})\ns_cmp_ge_u32 s49, {k}\ns_cbranch_scc1 {nw}')
    e(f's_waitcnt vmcnt(0)\n{nw}:'); cyc(5); e('s_barrier'); cyc(0)
    rpfl = f'ds_read_b64 {vr(PFL,2)}, v{PR2}'
    rd = [(f'ds_read_b64_tr_b16 {vr(VL+2*t,2)}, v{PL+t}', ('l', t)) for t in range(3)]
    rd += [(f'ds_read_b128 {vr(PF)}, v{PR}', 'pf'), (f'ds_read_b128 {vr(PF+4)}, v{PR} offset:1024', 'pf')]
    for t in range(3):
        for pg in range(2):
            for u in range(2): rd.append((f'ds_read_b64_tr_b16 {vr(VA+8*t+4*pg+2*u,2)}, v{PH+2*t+u} offset:{12288*pg}', ('h', t, pg)))
    mf = [(f'v_mfma_f32_32x32x8_bf16 {vr(ACC+48+16*t,16)}, {vr(VL+2*t,2)}, {vr(PFL,2)}, {vr(ACC+48+16*t,16)}', ('l', t)) for t in range(3)]
    for t in range(3):
        for pg in range(2): mf.append((f'v_mfma_f32_32x32x16_bf16 {vr(ACC+16*t,16)}, {vr(VA+8*t+4*pg)}, {vr(PF+4*pg)}, {vr(ACC+16*t,16)}', ('h', t, pg)))
    nb = c.nbefore
    e(rpfl)
    for m, _ in mf[nb:]: e(m)
    slot_delta()
    e('s_waitcnt lgkmcnt(0)')
    check(PFL, TMP, 'L_p_slow')
    e('L_p_back:'); cyc(1)
    lsum = f'v_dot2c_f32_bf16 v{LSUM}, v{PFL}, v{ONES}\nv_dot2c_f32_bf16 v{LSUM}, v{PFL+1}, v{ONES}'
    if c.lvalu: lsum = f'v_lshlrev_b32 v{TMP}, 16, v{PFL}\nv_and_b32 v{TMP+1}, 0xffff0000, v{PFL}\nv_lshlrev_b32 v{TMP+2}, 16, v{PFL+1}\nv_and_b32 v{TMP+3}, 0xffff0000, v{PFL+1}\nv_add_f32 v{TMP}, v{TMP}, v{TMP+1}\nv_add_f32 v{TMP+2}, v{TMP+2}, v{TMP+3}\nv_add_f32 v{LSUM}, v{LSUM}, v{TMP}\nv_add_f32 v{LSUM}, v{LSUM}, v{TMP+2}'; e(lsum); lsum = ''
    e(f's_cmp_eq_u32 s25, {n}\ns_cbranch_scc1 L_p_last')
    dm = dma_items(); nd = e.label('L_nd')
    if c.dsplit:
        e(f's_bitcmp1_b32 s47, s25\ns_cbranch_scc0 {nd}')
        for x in dm[:c.dsplit]: e(x)
        e(f'{nd}:')
    cyc(2)
    def reads_and(mfs, between):
        for x, tag in rd[:15]: e.dsop(x, tag)
        rest = rd[15:]
        for i, (m, tag) in enumerate(mfs):
            e.dswait(tag)
            if rest and i < 2: x, tg = rest.pop(0); e.dsop(x, tg)
            e(m); between(i)
    adds = [f'v_add_u32 v{r}, s32, v{r}' for r in range(PH, PL + 3)] + [f'v_add_u32 v{r}, s58, v{r}' for r in (PR, PR2)] + ['s_sub_u32 s58, 0, s58']
    def addfill(i):
        if i >= 1:
            for _ in range(6):
                if adds: e(adds.pop(0))
    reads_and(mf[:nb], addfill)
    assert not adds
    e(lsum)
    e.dsall()
    cyc(3)
    e('s_bitcmp1_b32 s47, s25\ns_cbranch_scc0 L_p_nod')
    for x in dm[c.dsplit:]: e(x)
    src_adv()
    e('s_add_u32 s49, s49, 1\nL_p_adv:'); slot_adv()
    e('L_p_next:'); cyc(4); cyc_save(); e('s_add_u32 s25, s25, 1\ns_branch L_p')
    e('L_p_nod:\ns_bitcmp1_b32 s44, s25\ns_cbranch_scc1 L_p_adv')
    if Kp:
        e('s_bitcmp1_b32 s48, s25\ns_cbranch_scc0 L_p_next\ns_mul_i32 s30, s3, 6144\ns_sub_u32 s30, s24, s30')
        unstage(Kp, 'p', TMP, 30)
        e('s_waitcnt lgkmcnt(0)\ns_branch L_p_adv')
    else: e('s_branch L_p_next')
    e('L_p_last:')
    def cvt(s):
        b = ACC + 8 * s
        for i in range(4): e(f'v_cvt_pk_bf16_f32 v{b+i}, v{b+2*i}, v{b+2*i+1}')
        if c.inband:
            for i in range(4): e(f'v_min_u32 v{b+i}, -2, v{b+i}')
        if not c.iso and c.cut != 1: e(pstore(s, b).replace(' sc1', c.pflags))
    def lastfill(i):
        if i == 0: e(lsum)
        if i == 4: e(f'v_mov_b32 v{TMP}, v{LSUM}\nv_min_u32 v{MPV}, -2, v{MPV}\ns_nop 0\nv_permlane32_swap_b32 v{LSUM}, v{TMP}\nv_add_f32 v{LSUM}, v{LSUM}, v{TMP}\nv_min_u32 v{LSUM}, -2, v{LSUM}')
        if 4 <= i < 8: cvt(6 + i - 4)
    reads_and(mf, lastfill)
    for s in (10, 11, 0, 1, 2, 3, 4, 5): cvt(s)
    if fine is None: stamp(e, c, 6)
    e('s_barrier\ns_waitcnt vmcnt(0)')
    stamp(e, c, 7)
    if not c.iso: e(f's_mov_b64 exec, 0xffffffff\nbuffer_store_dwordx2 {vr(MPV,2)}, v{T0}, s[16:19], s51 offen sc1')
    e('s_branch L_fin')
    e('L_p_slow:\ns_waitcnt lgkmcnt(0)\ns_barrier')
    e(f'ds_read2_b32 {vr(TMP,2)}, v{MXP} offset0:0 offset1:32\ns_waitcnt lgkmcnt(0)\nv_max_f32 v{TMP}, v{TMP}, v{TMP+1}')
    quant(TMP)
    nf = e.label()
    e(f's_cmp_lg_u64 s[28:29], 0\ns_cbranch_scc1 {nf}')
    e(f'v_max_f32 v{TMP}, 0, v{TMP}\nv_exp_f32 v{TMP+2}, -v{TMP}\ns_nop 0\nv_mul_f32 v{LSUM}, v{LSUM}, v{TMP+2}')
    for i in range(0, 96, 2): e(f'v_pk_mul_f32 {vr(ACC+i,2)}, {vr(ACC+i,2)}, {vr(TMP+2,2)} op_sel_hi:[1,0]')
    e(f'{nf}:\ns_mov_b64 s[28:29], 0\nv_add_f32 v{MPV}, v{MPV}, v{TMP}\ns_barrier')
    e(rpfl)
    e('s_waitcnt lgkmcnt(0)\ns_branch L_p_back')

def code_touch(e, c):
    nl = c.code_bytes // 128 // 32; lb = e.label('L_pc')
    e(f's_getpc_b64 s[24:25]\n{lb}:\ns_sub_u32 s24, s24, {lb}-{KNAME}\ns_subb_u32 s25, s25, 0\ns_lshr_b32 s30, s6, 3\ns_mul_i32 s30, s30, {nl*128}')
    e(f'v_lshl_add_u32 v2, v0, 7, s30\ns_mov_b64 exec, {(1<<nl)-1}\nglobal_load_dword v55, v2, s[24:25]\ns_mov_b64 exec, -1')

def helper_extra(e, c):
    e('L_extra:')
    if c.touch:
        e('s_cmp_lg_u32 s7, 7\ns_cbranch_scc1 L_x6'); code_touch(e, c); e('s_endpgm\nL_x6:')
    e('s_cmp_ge_u32 s2, 48\ns_cbranch_scc1 L_end\ns_cmp_lg_u32 s7, 6\ns_cbranch_scc1 L_end')
    e('s_getreg_b32 s30, hwreg(HW_REG_XCC_ID, 0, 4)\ns_cmp_ge_u32 s30, 8\ns_cbranch_scc1 L_end\ns_lshl_b32 s30, s30, 3\ns_lshl_b64 s[32:33], 1, s30')
    e(f's_and_b32 s30, s2, 1\ns_lshl_b32 s30, s30, 7\nv_mov_b32 v2, s32\nv_mov_b32 v3, s33\ns_mov_b64 exec, 1\nbuffer_atomic_add_x2 v[2:3], off, s[20:23], s30 offset:8\ns_endpgm')

def late_consts(e):
    e(f's_mov_b32 s18, {SZ["ws"]}\ns_mov_b32 s19, 0x20000\ns_mov_b32 s22, {SZ["dbg"]}\ns_mov_b32 s23, 0x20000\ns_mov_b32 s61, 100000')

def gen(c):
    e = E()
    nwg = NH + c.NS
    head = f'; @launch grid=({nwg},1,1) block=(512,1,1) lds={LDS_BYTES}\n.amdgcn_target "amdgcn-amd-amdhsa--gfx950"\n.text\n'
    kstart(e, KNAME)
    stamp(e, c, 0)
    for r, nm in ((8, 'feat_hi'), (96, 'wq'), (98, 'q'), (12, 'feat_lo'), (16, 'ws'), (20, 'dbg')): e(f's_load_dwordx2 s[{r}:{r+1}], s[0:1], {KA[nm]}')
    e(f'v_lshrrev_b32 v1, 6, v0\nv_and_b32 v0, 63, v0\nv_readfirstlane_b32 s7, v1\ns_cmpk_ge_u32 s2, {nwg}\ns_cbranch_scc1 L_end\ns_mov_b32 s6, s2\ns_and_b32 s3, s7, 3')
    if c.xmap: e('s_lshr_b32 s2, s2, 2\ns_and_b32 s30, s6, 3\ns_cbranch_scc1 L_strm')
    else: e(f's_cmp_ge_u32 s2, {NH}\ns_cbranch_scc1 L_strm')
    if c.wqtouch:
        e('s_cmp_gt_u32 s7, 2\ns_cbranch_scc1 L_helper\ns_and_b32 s30, s2, 62\ns_add_u32 s30, s30, s7\ns_mulk_i32 s30, 4608\ns_mov_b32 exec_hi, 15')
        e('s_cmp_lg_u32 s7, 2\ns_waitcnt lgkmcnt(0)\ns_cbranch_scc1 L_tq')
        e('s_lshr_b32 s30, s2, 1\ns_and_b32 s31, s2, 1\ns_lshl_b32 s31, s31, 5\ns_add_u32 s30, s30, s31\ns_mulk_i32 s30, 384\ns_mov_b64 s[96:97], s[98:99]\ns_mov_b64 exec, 7')
        e('L_tq:\nv_lshl_add_u32 v2, v0, 7, s30\nglobal_load_dword v255, v2, s[96:97]\ns_mov_b64 exec, -1')
    e('s_branch L_helper\nL_strm:')
    streamer(e, c)
    e('L_helper:'); late_consts(e); e('s_waitcnt lgkmcnt(0)')
    if c.iso: e('s_branch L_fin')
    e('s_cmp_ge_u32 s2, 60\ns_cbranch_scc1 L_spare\ns_cmp_ge_u32 s7, 4\ns_cbranch_scc1 L_extra\ns_cmp_lt_u32 s2, 48\ns_cbranch_scc1 L_tail\ns_branch L_p1')
    role_spare(e, c); helper_extra(e, c); role_p1(e, c); role_tail(e, c)
    e(f'.fill ({c.code_bytes} - (. - {KNAME})) / 4, 4, 0xbf800000\ns_endpgm\ns_endpgm')
    return head + e.text() + '.section .rodata,"a"\n' + kdesc(KNAME, 256, 100, 256)

if __name__ == '__main__':
    c = Cfg()
    for a in sys.argv[2:]:
        k, v = a.split('='); setattr(c, k, eval(v))
    t = gen(c)
    open(sys.argv[1], 'w').write(t)
    print(hazard.check(t), 'hazards')
```

```python
import sys, math
from common import *
import hazard
KNAME = 'standalone__detection_seg_detr_decoder__vision_kernel'
QF, TF, AF = 0x0, 0x6000, 0xC000
UF, HF, ST, GF = 0x18000, 0x24000, 0x2A000, 0x2C000
XU, XL, FL, FY, FW, FD = 0x44000, 0x8C000, 0x8D000, 0x8E000, 0x8F000, 0x91000
WCF, YF, DG, PART = 0xA0000, 0x130000, 0x180000, 0x200000
PS_ = 49152 + 1024
LOG2E = 1.4426950408889634
TILE = 30720; NSLOT = 5; PB = TILE * NSLOT
PBUF = 2560; MXB = PB + 2 * PBUF; LOCW = MXB + 256
LDS_BYTES = 159744
NH = 64

class Cfg:
    diag = False; chunk = 3; Ks = 2; Kp = 2; R0 = 3; jp = 30; pf = True; touch = True
    sched = None; sstep = 4; look = 2; nbefore = 3; dearly = 3; epos = (0, 2, 4, 1, 3, 5); dsplit = 5; wstep = 2
    code_bytes = 0x8000; iso = False; pro = 0; hot = False; cut = 0; fine = None
    local = True; wqtouch = True; alds = True; weave = 24
    hook1 = 14; hook2 = 20; ptouch = 21; t1sleep = 1; fsamp = 22; ndyn = 6; dlate = True; bsamp = 6; wb = False; smask = 15; pnt = ''

def stamp(e, c, k):
    if c.diag: e(f's_memrealtime s[{64+2*k}:{65+2*k}]')
def dump(e, c):
    if not c.diag: return
    e('s_waitcnt lgkmcnt(0)\ns_mov_b64 exec, 1')
    e(f's_lshl_b32 s60, s2, 3\ns_add_u32 s60, s60, s7\ns_lshl_b32 s60, s60, 6\ns_add_u32 s60, s60, {DG}\nv_mov_b32 v1, 0')
    for k in range(16): e(f'v_mov_b32 v2, s{64+2*k}\nbuffer_store_dword v2, v1, s[16:19], s60 offen offset:{4*k}')

def late_consts(e):
    e(f's_mov_b32 s18, {SZ["ws"]}\ns_mov_b32 s19, 0x20000\ns_mov_b32 s22, {SZ["dbg"]}\ns_mov_b32 s23, 0x20000\ns_mov_b32 s61, 100000')
def budget(e, lp): e(f's_sub_u32 s61, s61, 1\ns_cmp_gt_i32 s61, 0\ns_cbranch_scc1 {lp}')
def early_load(e, v, sqh):
    e(f's_lshl_b32 s60, s{sqh}, 7\ns_mov_b64 exec, 1\nbuffer_load_dwordx4 {vr(v)}, off, s[20:23], s60 sc1\ns_mov_b64 exec, -1')
def early_wait(e, v, words):
    lp = e.label('L_ew')
    e(f'{lp}:\nv_readfirstlane_b32 s30, v{v+words[0]}')
    if len(words) > 1: e(f'v_readfirstlane_b32 s31, v{v+words[1]}\ns_and_b32 s30, s30, s31')
    e(f's_cmp_lg_u32 s30, 0\ns_cbranch_scc0 {lp}_r\n{lp}_d:')
    e.deferred.append(f'{lp}_r:\ns_sleep 2\ns_mov_b64 exec, 1\nbuffer_load_dwordx4 {vr(v)}, off, s[20:23], s60 sc1\ns_mov_b64 exec, -1\ns_waitcnt vmcnt(0)\ns_sub_u32 s61, s61, 1\ns_cmp_gt_i32 s61, 0\ns_cbranch_scc1 {lp}\ns_branch {lp}_d')
def late_addr(e, va): e(f'v_and_b32 v{va}, 1, v0\nv_lshlrev_b32 v{va}, 7, v{va}')
def late_load(e, v, va): e(f's_mov_b64 exec, 3\nbuffer_load_dwordx2 {vr(v,2)}, v{va}, s[20:23], 0 offen offset:16 sc1\ns_mov_b64 exec, -1')
def late_wait(e, v, va):
    lp = e.label('L_lw')
    e(f'{lp}:\nv_and_b32 v{v}, v{v}, v{v+1}\nv_cmp_eq_u32 vcc, 0, v{v}\ns_and_b32 s30, vcc_lo, 3\ns_cbranch_scc1 {lp}_r\n{lp}_d:')
    e.deferred.append(f'{lp}_r:\ns_sleep 8\ns_mov_b64 exec, 3\nbuffer_load_dwordx2 {vr(v,2)}, v{va}, s[20:23], 0 offen offset:16 sc1\ns_mov_b64 exec, -1\ns_waitcnt vmcnt(0)\ns_sub_u32 s61, s61, 1\ns_cmp_gt_i32 s61, 0\ns_cbranch_scc1 {lp}\ns_branch {lp}_d')
def flag_set(e, base, sidx, t):
    sk = e.label('L_fs')
    e(f's_cmp_lg_u32 s3, 0\ns_cbranch_scc1 {sk}\ns_lshl_b32 s30, s{sidx}, 7\ns_add_u32 s30, s30, {base}\nv_mov_b32 v{t}, 1\ns_mov_b64 exec, 1\nbuffer_store_dword v{t}, off, s[16:19], s30 sc1\ns_mov_b64 exec, -1\n{sk}:')
def flag_wait0(e, base, n, t, late=False):
    sk = e.label('L_fw')
    e(f's_cmp_lg_u32 s3, 0\ns_cbranch_scc1 {sk}')
    if late: late_addr(e, 1); late_load(e, t, 1); e('s_waitcnt vmcnt(0)'); late_wait(e, t, 1)
    e(f'v_min_u32 v1, {n-1}, v0\nv_lshlrev_b32 v1, 7, v1\ns_mov_b32 s30, {base}\n{sk}_l:\nbuffer_load_dword v{t}, v1, s[16:19], s30 offen sc1\ns_waitcnt vmcnt(0)\nv_cmp_eq_u32 vcc, -1, v{t}\ns_cbranch_vccz {sk}\ns_sleep 8')
    budget(e, f'{sk}_l')
    e(f'{sk}:\ns_barrier')

def validate(e, loads, t, younger=0):
    first = True
    for i, (_, r, n) in enumerate(loads):
        e(f's_waitcnt vmcnt({len(loads)-1-i+younger})')
        rs = list(range(r, r + n))
        if first:
            e(f'v_max_u32 v{t}, v{rs[0]}, v{rs[1]}'); rs = rs[2:]; first = False
        while rs:
            e(f'v_max3_u32 v{t}, v{t}, v{rs[0]}, v{rs[1]}'); rs = rs[2:]
    e(f'v_cmp_eq_u32 vcc, -1, v{t}')
def gather(e, loads, t):
    lp = e.label('L_g')
    e(f'{lp}:')
    for x, _, _ in loads: e(x)
    e('s_sub_u32 s61, s61, 1\ns_cmp_gt_i32 s61, 0\ns_cselect_b64 s[62:63], -1, 0')
    validate(e, loads, t)
    e(f's_and_b64 vcc, vcc, s[62:63]\ns_cbranch_scc1 {lp}')
def frag_loads(dst, n, voff, sreg0, flags=' sc1'):
    return [(f'buffer_load_dwordx4 {vr(dst+4*k)}, v{voff}, s[16:19], s{sreg0+k//4} offen offset:{1024*(k%4)}{flags}', dst + 4 * k, 4) for k in range(n)]
def soffs(e, s0, n):
    for k in range(1, n): e(f's_add_u32 s{s0+k}, s{s0}, {4096*k}')
def tile_off(e, vo, q, g, t):
    e(f'v_lshrrev_b32 v{vo}, 1, v{g}\nv_lshlrev_b32 v{vo}, 8, v{vo}\nv_lshl_add_u32 v{vo}, v{q}, 4, v{vo}')
def hstore(e, text, local):
    if not local: e(text + ' sc1'); return
    lb = e.label('L_hs')
    e(f's_cmp_lg_u32 s59, 0\ns_cbranch_scc0 {lb}\n{text}\n{lb}_b:')
    e.deferred.append(f'{lb}:\n{text} sc1\ns_branch {lb}_b')
def flush_deferred(e):
    for x in e.deferred: e(x)
    e.deferred = []
def pack_store(e, D, P, voff, soff, keep=None, local=False):
    e(f'v_cvt_pk_bf16_f32 v{P}, v{D}, v{D+1}\nv_cvt_pk_bf16_f32 v{P+1}, v{D+2}, v{D+3}\nv_min_u32 v{P}, -2, v{P}\nv_min_u32 v{P+1}, -2, v{P+1}')
    e(f'v_mov_b64 {vr(keep,2)}, {vr(P,2)}' if keep else 's_nop 0')
    e(f'v_permlane16_swap_b32 v{P}, v{P+2}\nv_permlane16_swap_b32 v{P+1}, v{P+3}')
    e('s_mov_b32 exec_lo, 0xffff\ns_mov_b32 exec_hi, 0xffff')
    hstore(e, f'buffer_store_dwordx4 {vr(P)}, v{voff}, s[16:19], s{soff} offen', local)
    e('s_mov_b64 exec, -1')
def local_flag(e, v, n=24):
    e(f'v_readfirstlane_b32 s56, v{v}\nv_readfirstlane_b32 s57, v{v+1}\ns_getreg_b32 s30, hwreg(HW_REG_XCC_ID, 0, 4)\ns_lshl_b32 s30, s30, 3')
    e(f's_lshr_b64 s[56:57], s[56:57], s30\ns_and_b32 s56, s56, 0xff\ns_cmp_eq_u32 s56, {n}\ns_cselect_b32 s59, 1, 0\ns_cmp_lt_u32 s30, 64\ns_cselect_b32 s59, s59, 0')

def rows_src(e, vo, stride, t0, t1, t2):
    e('s_lshl_b32 s30, s3, 1\ns_lshr_b32 s30, 0x78, s30\ns_and_b32 s30, s30, 3')
    e(f's_mul_i32 s31, s3, {4*stride}')
    for b in range(3):
        e(f'v_add_u32 v{t0}, {64*b}, v0\nv_mul_u32_u24 v{t1}, 1366, v{t0}\nv_lshrrev_b32 v{t1}, 16, v{t1}')
        e(f'v_mul_u32_u24 v{t2}, 48, v{t1}\nv_sub_u32 v{t0}, v{t0}, v{t2}\nv_lshl_or_b32 v{t2}, v{t1}, 2, s30\nv_xor_b32 v{t0}, v{t0}, v{t2}')
        e(f'v_mul_u32_u24 v{t1}, {stride}, v{t1}\nv_lshl_add_u32 v{t0}, v{t0}, 4, v{t1}\nv_add_u32 v{vo+b}, s31, v{t0}')
def rows_dma(e, vo, srd, soff, ldsbase, ntile, stride, fl=''):
    e(f's_mul_i32 s30, s3, 3072\ns_add_u32 m0, s30, {ldsbase}')
    lp = e.label('L_rd')
    if ntile > 1: e(f's_mov_b32 s31, {ntile}\n{lp}:')
    for b in range(3):
        e(f's_nop 0\nbuffer_load_dwordx4 v{vo+b}, {srd}, s{soff} offen{fl} lds\ns_add_u32 m0, m0, {1024 if b < 2 else 12288-2048}')
    if ntile > 1: e(f's_add_u32 s{soff}, s{soff}, {16*stride}\ns_sub_u32 s31, s31, 1\ns_cmp_lg_u32 s31, 0\ns_cbranch_scc1 {lp}')
def rows_rd(e, va, base, t0, t1, t2):
    e(f'v_and_b32 v{t0}, 15, v0\nv_lshrrev_b32 v{t1}, 2, v{t0}\nv_lshlrev_b32 v{t1}, 1, v{t1}\ns_mov_b32 s30, 0x78\nv_lshrrev_b32 v{t1}, v{t1}, s30\nv_and_b32 v{t1}, 3, v{t1}')
    e(f'v_and_b32 v{t2}, 3, v0\nv_lshl_or_b32 v{t1}, v{t2}, 2, v{t1}\nv_lshrrev_b32 v{t2}, 4, v0\nv_xor_b32 v{t1}, v{t1}, v{t2}')
    e(f'v_mul_u32_u24 v{t0}, 768, v{t0}\nv_lshl_add_u32 v{t0}, v{t1}, 4, v{t0}\nv_add_u32 v{va}, {base}, v{t0}')
    for b in range(1, 4): e(f'v_xor_b32 v{va+b}, {64*b}, v{va}')
def rowgemm(e, va, ntile, BF, AFR, D, P, voff, soff):
    lp = e.label('L_rg')
    e(f's_mov_b32 s31, {ntile}\n{lp}:')
    for ks in range(12): e(f'ds_read_b128 {vr(AFR+4*ks)}, v{va+(ks&3)} offset:{256*(ks>>2)}')
    for ks in range(12):
        e(f's_waitcnt lgkmcnt({11-ks})\nv_mfma_f32_16x16x32_bf16 {vr(D)}, {vr(AFR+4*ks)}, {vr(BF+4*ks)}, {vr(D) if ks else 0}')
    for b in range(4): e(f'v_add_u32 v{va+b}, 12288, v{va+b}')
    e('s_nop 3')
    pack_store(e, D, P, voff, soff)
    e(f's_add_u32 s{soff}, s{soff}, 512\ns_sub_u32 s31, s31, 1\ns_cmp_lg_u32 s31, 0\ns_cbranch_scc1 {lp}')
def slab128_src(e, vo, stride, t0, t1):
    e(f'v_lshrrev_b32 v{vo}, 3, v0\nv_mul_u32_u24 v{vo}, {stride}, v{vo}')
    e(f'v_bfe_u32 v{t0}, v0, 4, 1\ns_and_b32 s30, s3, 1\ns_lshl_b32 s30, s30, 1\nv_or_b32 v{t0}, s30, v{t0}\nv_lshlrev_b32 v{t0}, 1, v{t0}')
    e(f'v_and_b32 v{t1}, 7, v0\nv_xor_b32 v{t0}, v{t0}, v{t1}\nv_lshl_add_u32 v{vo}, v{t0}, 4, v{vo}')
def slab128_dma(e, vo, srd, sj, stride, ldsbase, n=12, srow=None):
    e(f's_lshl_b32 s34, s{sj}, 7\ns_mul_i32 s30, s3, {8*stride}\ns_add_u32 s34, s34, s30\ns_lshl_b32 s30, s3, 10\ns_add_u32 m0, s30, {ldsbase}')
    lp = e.label('L_sl')
    if srow: e(f's_add_u32 s34, s34, s{srow}')
    e(f's_mov_b32 s31, {n}\n{lp}:\nbuffer_load_dwordx4 v{vo}, {srd}, s34 offen lds')
    e(f's_add_u32 s34, s34, {32*stride}\ns_add_u32 m0, m0, 4096\ns_sub_u32 s31, s31, 1\ns_cmp_lg_u32 s31, 0\ns_cbranch_scc1 {lp}')
def slab128_rd(e, vo, t0, t1):
    e(f'v_bfe_u32 v{t0}, v0, 2, 2\nv_lshrrev_b32 v{t1}, 4, v0\nv_lshlrev_b32 v{vo}, 10, v{t1}\nv_lshl_add_u32 v{vo}, v{t0}, 7, v{vo}')
    e(f'v_lshrrev_b32 v{t0}, 1, v{t0}\nv_and_b32 v{t1}, 1, v{t1}\nv_lshl_or_b32 v{t0}, v{t1}, 1, v{t0}\nv_lshl_add_u32 v{vo}, v{t0}, 5, v{vo}')
    e(f'v_and_b32 v{t0}, 3, v0\nv_lshl_add_u32 v{vo}, v{t0}, 3, v{vo}')
def slab32_src(e, vout, t, stride):
    e(f'v_lshrrev_b32 v{vout}, 1, v0\nv_bfe_u32 v{t}, v0, 4, 1\nv_lshlrev_b32 v{t}, 2, v{t}\nv_xor_b32 v{vout}, v{vout}, v{t}')
    e(f'v_mul_u32_u24 v{vout}, {stride}, v{vout}\nv_and_b32 v{t}, 1, v0\nv_lshl_add_u32 v{vout}, v{t}, 4, v{vout}')
def slab32_rd(e, v0_, v1_, t):
    e(f'v_lshrrev_b32 v{t}, 4, v0\nv_lshlrev_b32 v{v0_}, 8, v{t}\nv_and_b32 v{t}, 1, v{t}\nv_lshl_add_u32 v{v0_}, v{t}, 7, v{v0_}')
    e(f'v_and_b32 v{t}, 15, v0\nv_lshl_add_u32 v{v0_}, v{t}, 3, v{v0_}\nv_xor_b32 v{v1_}, 128, v{v0_}')
def ln_finish(e, s1, s2):
    e(f'v_mul_f32 v{s1}, {fx(1/384)}, v{s1}\nv_mul_f32 v{s2}, {fx(1/384)}, v{s2}\nv_fma_f32 v{s2}, -v{s1}, v{s1}, v{s2}\nv_max_f32 v{s2}, 0, v{s2}\nv_add_f32 v{s2}, {fx(1e-5)}, v{s2}\nv_rsq_f32 v{s2}, v{s2}')
```

```python
from gen_v7_base import *

def wait_a(e):
    lw = e.label('L_aw')
    e(f's_cmp_lg_u32 s7, 0\ns_cbranch_scc1 {lw}_d\ns_sleep 40'); early_load(e, 12, 4); e('s_waitcnt vmcnt(0)'); early_wait(e, 12, (1,))
    e(f's_mul_i32 s30, s4, 24576\ns_add_u32 s30, s30, {AF}\ns_mov_b64 exec, 1\n{lw}:\ns_sleep 8\nbuffer_load_dword v9, off, s[16:19], s30 offset:256 sc1\ns_waitcnt vmcnt(0)\nv_cmp_ne_u32 vcc, -1, v9\ns_cbranch_vccnz {lw}_x')
    budget(e, lw)
    e(f'{lw}_x:\ns_mov_b64 exec, -1\n{lw}_d:\ns_barrier')

def role_pf(e, c):
    e('L_pf:'); late_consts(e); e('s_waitcnt lgkmcnt(0)')
    if c.cut in (3, 6) or c.iso or c.pro or not c.pf: e('s_endpgm'); return
    load_srds(e, [(8, 'w1'), (12, 'w2')])
    e('s_and_b32 s4, s2, 1\ns_sub_u32 s5, s2, 48\ns_lshr_b32 s5, s5, 1\ns_lshl_b32 s5, s5, 2\ns_add_u32 s5, s5, s3\ns_mul_i32 s5, s5, 49152\nv_lshlrev_b32 v2, 7, v0')
    wait_a(e)
    e('s_waitcnt lgkmcnt(0)\ns_cmp_eq_u32 s4, 0\ns_cselect_b64 s[24:25], s[8:9], s[12:13]\ns_cselect_b64 s[8:9], s[12:13], s[8:9]')
    for m in range(2):
        for k in range(6): e(f's_add_u32 s30, s5, {8192*k}\nbuffer_load_dword v3, v2, s[8:11], s30 offen')
        if m == 0: e('s_mov_b64 s[8:9], s[24:25]')
    e('s_endpgm')
    flush_deferred(e)

def role_spare(e, c):
    e('L_spare:'); late_consts(e)
    if c.iso: e('s_waitcnt lgkmcnt(0)\ns_branch L_fin')
    e('s_and_b32 s4, s2, 1\ns_bfe_u32 s5, s2, 0x10001')
    e('v_lshlrev_b32 v2, 4, v0\nv_mov_b64 v[4:5], -1\nv_mov_b64 v[6:7], -1\nv_mov_b32 v8, 1')
    e(f's_mul_i32 s36, s4, 12288\ns_lshl_b32 s36, s36, s5\ns_mul_i32 s30, s7, 3072\ns_add_u32 s36, s36, s30')
    e(f's_cmp_ge_u32 s7, 4\ns_cselect_b32 s30, {TF-12288}, 0\ns_cmp_lg_u32 s5, 0\ns_cselect_b32 s30, {AF}, s30\ns_add_u32 s36, s36, s30\ns_waitcnt lgkmcnt(0)')
    for k in range(3): e(f'buffer_store_dwordx4 v[4:7], v2, s[16:19], s36 offen offset:{1024*k} sc1')
    e(f's_lshl_b32 s38, s4, 7\ns_lshl_b32 s30, s5, 2\ns_add_u32 s38, s38, s30\ns_and_b32 s36, s2, 3\ns_lshl_b32 s36, s36, 3\ns_add_u32 s36, s36, s7\ns_lshl_b32 s36, s36, 14\ns_add_u32 s36, s36, {UF}')
    for off in (0, 16):
        sk = e.label('L_sp')
        e(f's_waitcnt vmcnt(0)\ns_barrier\ns_cmp_lg_u32 s7, 0\ns_cbranch_scc1 {sk}\ns_mov_b64 exec, 1\nbuffer_store_dword v8, off, s[20:23], s38 offset:{off} sc1\ns_mov_b64 exec, -1\n{sk}:')
        stamp(e, c, 1 + off // 16)
        if off == 0:
            wait_a(e)
            for k in range(16 if c.cut != 6 else 0):
                e(f'buffer_store_dwordx4 v[4:7], v2, s[16:19], s36 offen offset:{1024*(k%4)} sc1')
                if k % 4 == 3: e('s_add_u32 s36, s36, 4096')
    e('s_branch L_fin')
    flush_deferred(e)

def role_tail(e, c):
    e('L_tail:\ns_waitcnt lgkmcnt(0)')
    load_srds(e, [(44, 'q'), (40, 'wq'), (8, 'wkv'), (12, 'lat_hi'), (24, 'lat_lo')])
    e('s_and_b32 s4, s2, 1\ns_lshr_b32 s5, s2, 1\ns_mul_i32 s35, s4, 12288')
    WF, XF, D, PS = 16, 64, 112, 116
    rows_src(e, 4, 768, 8, 9, 10)
    slab32_src(e, 7, 8, 768)
    e(f's_lshl_b32 s36, s5, 5\ns_mul_i32 s30, s3, {96*768}\ns_add_u32 s36, s36, s30\ns_waitcnt lgkmcnt(0)')
    if c.iso: late_consts(e); e('s_branch L_fin')
    rows_dma(e, 4, 's[44:47]', 35, 49152, 1, 768)
    for k in range(3): e('s_nop 0\nbuffer_load_dwordx4 v7, s[40:43], s36 offen lds\ns_add_u32 m0, m0, 1024\ns_add_u32 s36, s36, 24576')
    stamp(e, c, 1)
    e('s_mul_i32 s32, s5, 12288\ns_lshl_b32 s33, s32, 1')
    for b in range(3): e(f'v_add_u32 v8, {64*b}, v0\nv_mul_u32_u24 v8, 1366, v8\nv_lshrrev_b32 v8, 16, v8\nv_mul_u32_u24 v8, 768, v8\nv_add3_u32 v{124+b}, v8, v{4+b}, s31')
    late_consts(e)
    rows_dma(e, 124, 's[8:11]', 33, 12288, 1, 1536, c.pnt)
    rows_dma(e, 4, 's[12:15]', 32, 24576, 1, 768, c.pnt)
    rows_dma(e, 4, 's[24:27]', 32, 36864, 1, 768, c.pnt)
    e('v_lshlrev_b32 v12, 4, v0\nv_and_b32 v2, 15, v0\nv_lshrrev_b32 v3, 4, v0'); tile_off(e, 14, 2, 3, 10)
    rows_rd(e, 120, 12288, 8, 9, 10)
    for k in range(3): e(f's_mul_i32 s30, s3, 192\ns_add_u32 s30, s30, {64*k}\ns_and_b32 s31, s30, 0xc0\ns_and_b32 s30, s30, 0x300\nv_xor_b32 v{121+k}, s31, v120\nv_add_u32 v{121+k}, s30, v{121+k}')
    slab32_rd(e, 6, 7, 8)
    e(f's_mul_i32 s30, s3, 3072\ns_add_u32 s36, s35, s30\ns_add_u32 s37, s36, {TF}\ns_add_u32 s36, s36, {QF}\ns_add_u32 s30, s30, 61440\nv_add_u32 v6, s30, v6\nv_add_u32 v7, s30, v7')
    e(f's_lshl_b32 s38, s5, 9\ns_add_u32 s38, s38, s35\ns_add_u32 s38, s38, {QF}')
    e('s_lshl_b32 s30, s3, 10\nv_add_u32 v9, s30, v12\nv_add_u32 v13, 73728, v9\ns_mov_b32 s30, 0x3f803f80\nv_mov_b64 v[140:141], 0')
    for i in range(4): e(f'v_mov_b32 v{124+i}, s30')
    QW, CS = XF + 12, D + 4
    e('s_waitcnt vmcnt(9)\ns_barrier')
    stamp(e, c, 2)
    early_load(e, 132, 4)
    for k in range(3): e(f'ds_read_b128 {vr(XF+4*k)}, v{121+k} offset:36864')
    for k in range(3): e(f'ds_read_b64_tr_b16 {vr(QW+4*k,2)}, v6 offset:{1024*k}\nds_read_b64_tr_b16 {vr(QW+4*k+2,2)}, v7 offset:{1024*k}')
    e('s_waitcnt lgkmcnt(6)')
    for i in range(12): e(f'v_dot2c_f32_bf16 v140, v{XF+i}, v124\nv_dot2c_f32_bf16 v141, v{XF+i}, v{XF+i}')
    e('s_waitcnt lgkmcnt(0)')
    for k in range(3):
        e(f'v_mfma_f32_16x16x32_bf16 {vr(D)}, {vr(QW+4*k)}, {vr(XF+4*k)}, {vr(D) if k else 0}')
        e(f'v_mfma_f32_16x16x32_bf16 {vr(CS)}, {vr(QW+4*k)}, v[124:127], {vr(CS) if k else 0}')
    for sw in ('16', '32'):
        e(f'v_mov_b64 v[142:143], v[140:141]\ns_nop 1\nv_permlane{sw}_swap_b32 v140, v142\nv_permlane{sw}_swap_b32 v141, v143\nv_add_f32 v140, v140, v142\nv_add_f32 v141, v141, v143')
    p2 = e.label('L_p2')
    e(f'ds_write_b128 v13, {vr(D)}\nds_write_b128 v13, {vr(CS)} offset:4096\nds_write_b64 v13, v[140:141] offset:8192\ns_waitcnt vmcnt(1) lgkmcnt(0)\ns_barrier')
    e(f's_cmp_lg_u32 s3, 0\ns_cbranch_scc1 {p2}')
    for w in range(1, 4): e(f'ds_read_b64 {vr(142+2*w,2)}, v13 offset:{8192+1024*w}')
    for w in range(1, 4): e(f'ds_read_b128 {vr(XF+8*w)}, v13 offset:{1024*w}\nds_read_b128 {vr(XF+8*w+4)}, v13 offset:{4096+1024*w}')
    e(f'{p2}:\ns_waitcnt vmcnt(0)'); early_wait(e, 132, (0, 1)); local_flag(e, 134)
    e(f's_cmp_lg_u32 s3, 0\ns_cbranch_scc1 {p2}_b\ns_waitcnt lgkmcnt(6)')
    for w in range(1, 4): e(f'v_pk_add_f32 v[140:141], v[140:141], {vr(142+2*w,2)}')
    ln_finish(e, 140, 141)
    for w in range(1, 4):
        e(f's_waitcnt lgkmcnt({2*(3-w)})')
        for i in range(0, 8, 2): e(f'v_pk_add_f32 {vr(D+i,2)}, {vr(D+i,2)}, {vr(XF+8*w+i,2)}')
    for i in range(4): e(f'v_fma_f32 v{D+i}, -v140, v{CS+i}, v{D+i}')
    for i in range(4): e(f'v_mul_f32 v{D+i}, v141, v{D+i}')
    pack_store(e, D, PS, 14, 38, local=c.local)
    stamp(e, c, 5)
    e(f'{p2}_b:\ns_add_u32 s38, s38, {TF-QF}\nv_lshlrev_b32 v10, 7, v0\ns_mov_b64 exec, 15\nbuffer_load_dword v11, v10, s[16:19], s38 offen sc1\ns_mov_b64 exec, -1')
    for m in range(3):
        for k in range(3): e(f'ds_read_b128 {vr(WF+12*m+4*k)}, v{121+k} offset:{12288*m}')
    gather(e, frag_loads(XF, 3, 12, 36), 10)
    stamp(e, c, 3)
    e('s_waitcnt lgkmcnt(0)')
    for k in range(3): e(f'v_mfma_f32_16x16x32_bf16 {vr(D)}, {vr(WF+4*k)}, {vr(XF+4*k)}, {vr(D) if k else 0}')
    p3 = e.label('L_p3'); p3b = e.label('L_p3b')
    e('s_nop 7')
    e(f'ds_write_b128 v9, {vr(D)}\ns_waitcnt lgkmcnt(0)\ns_barrier\ns_cmp_lg_u32 s3, 0\ns_cbranch_scc1 {p3}')
    for w in range(1, 4): e(f'ds_read_b128 {vr(XF+4*w)}, v12 offset:{1024*w}')
    for w in (1, 2, 3):
        e(f's_waitcnt lgkmcnt({3-w})')
        for i in range(4): e(f'v_add_f32 v{D+i}, v{D+i}, v{XF+4*w+i}')
    pack_store(e, D, PS, 14, 38, local=c.local)
    e(f'{p3}:')
    gather(e, frag_loads(XF, 3, 12, 37), 10)
    stamp(e, c, 4)
    for k in range(3):
        for t in range(2): e(f'v_mfma_f32_16x16x32_bf16 {vr(D+4*t)}, {vr(WF+12+12*t+4*k)}, {vr(XF+4*k)}, {vr(D+4*t) if k else 0}')
    b2 = e.label('L_b2')
    e(f's_lshl_b32 s38, s5, 9\ns_mul_i32 s31, s3, 12288\ns_add_u32 s38, s38, s31\ns_lshl_b32 s31, s35, 1\ns_add_u32 s38, s38, s31\ns_add_u32 s38, s38, {AF-12288}')
    e(f's_lshl_b32 s30, s3, 12\nv_add_u32 v8, s30, v12\nds_write_b128 v9, {vr(D)} offset:4096\nds_write_b128 v9, {vr(D+4)} offset:8192\ns_waitcnt lgkmcnt(0)\ns_barrier')
    e(f's_add_u32 s30, s3, 1\ns_and_b32 s30, s30, 2\ns_cbranch_scc0 {b2}')
    for w in range(4): e(f'ds_read_b128 {vr(XF+4*w)}, v8 offset:{1024*w}')
    e('s_waitcnt lgkmcnt(2)')
    for i in range(4): e(f'v_add_f32 v{D+i}, v{XF+i}, v{XF+4+i}')
    e('s_waitcnt lgkmcnt(0)')
    for i in range(4): e(f'v_add_f32 v{XF+8+i}, v{XF+8+i}, v{XF+12+i}')
    for i in range(4): e(f'v_add_f32 v{D+i}, v{D+i}, v{XF+8+i}')
    for i in range(4): e(f'v_mul_f32 v{D+i}, {fx(384**-0.5*LOG2E)}, v{D+i}')
    pack_store(e, D, PS, 14, 38)
    stamp(e, c, 5)
    e(f'{b2}:\ns_waitcnt vmcnt(0)\ns_barrier')
    if c.pro or c.cut in (3, 6, 7): e('s_branch L_fin')
    W1, W2, WC, CS, QR = 128, 176, 224, 248, 252
    load_srds(e, [(40, 'q'), (44, 'out'), (52, 'w1'), (96, 'w2'), (36, 'wo')])
    e('s_lshl_b32 s30, s5, 2\ns_add_u32 s30, s30, s3\ns_mul_i32 s30, s30, 24\nv_add_u32 v4, s30, v0\nv_mul_u32_u24 v5, 0xaaab, v4\nv_lshrrev_b32 v5, 18, v5\nv_mad_u32_u24 v5, v5, 6, v4\nv_lshlrev_b32 v4, 7, v4\nv_lshlrev_b32 v5, 7, v5')
    e('s_mov_b64 exec, 0xffffff\ns_waitcnt lgkmcnt(0)\nbuffer_load_dword v6, v4, s[36:39], 0 offen\nbuffer_load_dword v6, v5, s[8:11], 0 offen offset:768\ns_mov_b64 exec, -1')
    slab32_src(e, 126, 10, 768)
    e('v_mul_u32_u24 v15, 768, v2\nv_lshl_add_u32 v15, v3, 3, v15\ns_lshl_b32 s48, s5, 5\ns_add_u32 s48, s48, s35')
    e(f'buffer_load_dwordx2 {vr(QR,2)}, v15, s[40:43], s48 offen')
    e(f's_lshl_b32 s32, s5, 5\ns_mul_i32 s30, s3, {96*768}\ns_add_u32 s32, s32, s30\ns_mul_i32 s30, s3, 3072\ns_add_u32 m0, s30, 147456\ns_waitcnt vmcnt(0)')
    for k in range(3): e('buffer_load_dwordx4 v126, s[36:39], s32 offen lds\ns_add_u32 m0, m0, 1024\ns_add_u32 s32, s32, 24576')
    slab32_rd(e, 124, 125, 10)
    e('v_add_u32 v4, 147456, v124\nv_add_u32 v5, 147456, v125\ns_waitcnt vmcnt(0)\ns_barrier')
    for ks in range(12):
        e(f'ds_read_b64_tr_b16 {vr(XF+4*ks,2)}, v4 offset:{1024*ks}\nds_read_b64_tr_b16 {vr(XF+4*ks+2,2)}, v5 offset:{1024*ks}')
        if ks % 6 == 5: e('s_waitcnt lgkmcnt(0)')
    e('s_barrier')
    RA = 120
    e('s_mul_i32 s34, s3, 36864\ns_add_u32 s49, s34, 36864')
    def rowstream(srd, stride, ntile, tag):
        for b in range(3):
            e(f'v_add_u32 v8, {64*b}, v0\nv_mul_u32_u24 v10, 1366, v8\nv_lshrrev_b32 v10, 16, v10\nv_mul_u32_u24 v11, 48, v10\nv_sub_u32 v8, v8, v11')
            e(f'v_lshlrev_b32 v11, 2, v10\nv_xor_b32 v8, v8, v11\nv_mul_u32_u24 v10, {stride}, v10\nv_lshl_add_u32 v{4+b}, v8, 4, v10')
        rows_rd(e, RA, 0, 8, 10, 11)
        for b in range(4): e(f'v_add_u32 v{RA+b}, s34, v{RA+b}')
        def issue():
            e('s_mov_b32 m0, s50\ns_mov_b32 s33, s32')
            for q in range(4):
                for b in range(3): e(f'v_xor_b32 v8, {[0,2,3,1][q]*16}, v{4+b}\nbuffer_load_dwordx4 v8, {srd}, s33 offen lds\ns_add_u32 m0, m0, 1024')
                if q < 3: e(f's_add_u32 s33, s33, {8*stride}')
            e(f's_add_u32 s50, s50, 12288\ns_cmp_eq_u32 s50, s49\ns_cselect_b32 s50, s34, s50\ns_xor_b32 s51, s51, 1\ns_cselect_b32 s30, 4, 28\ns_mul_i32 s30, s30, {stride}\ns_add_u32 s32, s32, s30')
        e(f's_mov_b32 s50, s34\ns_mov_b32 s51, 0\ns_mov_b32 s31, -3\ns_mov_b32 s29, 0\ns_branch L_{tag}_i')
        e(f'L_{tag}:\ns_waitcnt vmcnt(24)\ns_cmp_lt_i32 s31, {ntile-2}\ns_cbranch_scc1 L_{tag}_w\ns_waitcnt vmcnt(0)\nL_{tag}_w:')
        for ks in range(12): e(f'ds_read_b128 {vr(WF+4*ks)}, v{RA+(ks&3)} offset:{256*(ks>>2)}')
        e('s_add_u32 s29, s29, 1\ns_cmp_eq_u32 s29, 3\ns_cselect_b32 s29, 0, s29\ns_cselect_b32 s30, -2, 1\ns_mulk_i32 s30, 12288')
        for i in range(0, 22, 2): e(f'v_mov_b64 {vr(WC+i,2)}, {vr(WC+i+2,2)}')
        for ks in range(12):
            e(f's_waitcnt lgkmcnt({11-ks})\nv_mfma_f32_16x16x32_bf16 {vr(D)}, {vr(WF+4*ks)}, {vr(XF+4*ks)}, {vr(D) if ks else 0}')
        for b in range(4): e(f'v_add_u32 v{RA+b}, s30, v{RA+b}')
        e(f's_nop 3\nv_cvt_pk_bf16_f32 v{WC+22}, v{D}, v{D+1}\nv_cvt_pk_bf16_f32 v{WC+23}, v{D+2}, v{D+3}')
        e(f's_cmp_ge_i32 s31, {ntile-3}\ns_cbranch_scc1 L_{tag}_n\nL_{tag}_i:')
        issue()
        e(f'L_{tag}_n:\ns_add_u32 s31, s31, 1\ns_cmp_lt_i32 s31, 0\ns_cbranch_scc1 L_{tag}_i\ns_cmp_lt_i32 s31, {ntile}\ns_cbranch_scc1 L_{tag}')
    e(f's_mul_i32 s32, s3, {96*1536}\ns_add_u32 s32, s32, 768')
    rowstream('s[8:11]', 1536, 6, 'ys')
    e('s_mul_i32 s30, s3, 3072\ns_add_u32 s30, s30, 147456\nv_add_u32 v8, s30, v12\nv_add_u32 v10, 147456, v12')
    for k in range(3): e(f'ds_write_b128 v8, {vr(WC+12+4*k)} offset:{1024*k}')
    e('s_waitcnt lgkmcnt(0)\ns_barrier')
    for ks in range(12): e(f'ds_read_b128 {vr(XF+4*ks)}, v10 offset:{1024*ks}')
    e(f's_cmp_ge_u32 s3, 2\ns_cselect_b32 s12, s24, s12\ns_cselect_b32 s13, s25, s13\ns_and_b32 s32, s3, 1\ns_mul_i32 s32, s32, {192*768}\ns_waitcnt lgkmcnt(0)')
    rowstream('s[12:15]', 768, 12, 'ws')
    e('s_barrier')
    stamp(e, c, 6)
    slab128_src(e, 7, 3072, 10, 11)
    slab128_dma(e, 7, 's[52:55]', 5, 3072, 0)
    e(f's_lshl_b32 s32, s5, 5\ns_mul_i32 s30, s3, {384*768}\ns_add_u32 s32, s32, s30\ns_mul_i32 s33, s3, 12288\ns_add_u32 s33, s33, 49152\ns_mov_b32 m0, s33')
    lp = e.label('L_w2')
    e(f's_mov_b32 s31, 12\n{lp}:\nbuffer_load_dwordx4 v126, s[96:99], s32 offen lds\ns_add_u32 m0, m0, 1024\ns_add_u32 s32, s32, 24576\ns_sub_u32 s31, s31, 1\ns_cmp_lg_u32 s31, 0\ns_cbranch_scc1 {lp}')
    slab128_rd(e, 13, 10, 11)
    e('v_add_u32 v6, s33, v124\nv_add_u32 v7, s33, v125\ns_mov_b32 s30, 0x3f803f80')
    for i in range(4): e(f'v_mov_b32 v{124+i}, s30')
    e('s_lshl_b32 s30, s3, 5\nv_xor_b32 v8, s30, v13\ns_mul_i32 s30, s3, 12288\nv_add_u32 v13, s30, v13')
    e('s_waitcnt vmcnt(12)\ns_barrier')
    for ks in range(12):
        for u in range(2): e(f'ds_read_b64_tr_b16 {vr(WF+4*ks+2*u,2)}, v8 offset:{4096*ks+512*u}')
        if ks % 6 == 5: e('s_waitcnt lgkmcnt(0)')
    for ks in range(12): e(f'v_mfma_f32_16x16x32_bf16 {vr(CS)}, {vr(WF+4*ks)}, v[124:127], {vr(CS) if ks else 0}')
    for t in range(4):
        e(f'v_xor_b32 v10, {32*t}, v13')
        for k in range(3):
            for u in range(2): e(f'ds_read_b64_tr_b16 {vr(W1+12*t+4*k+2*u,2)}, v10 offset:{4096*k+512*u}')
        if t % 2: e('s_waitcnt lgkmcnt(0)')
    e('s_waitcnt vmcnt(0)')
    for ks in range(12):
        e(f'ds_read_b64_tr_b16 {vr(W2+4*ks,2)}, v6 offset:{1024*ks}\nds_read_b64_tr_b16 {vr(W2+4*ks+2,2)}, v7 offset:{1024*ks}')
        if ks % 6 == 5: e('s_waitcnt lgkmcnt(0)')
    late_addr(e, 1); late_load(e, 10, 1); e('s_waitcnt vmcnt(0)'); late_wait(e, 10, 1)
    e('s_barrier')
    e(f's_lshl_b32 s38, s35, 1\ns_mul_i32 s30, s3, 6144\ns_add_u32 s38, s38, s30\ns_add_u32 s38, s38, {UF}'); soffs(e, 38, 2)
    e(f's_lshl_b32 s40, s5, 9\ns_add_u32 s40, s40, s35\ns_add_u32 s40, s40, {HF}')
    e(f's_mul_i32 s41, s4, 3072\ns_add_u32 s41, s41, {ST}\ns_lshl_b32 s42, s5, 7\ns_add_u32 s42, s42, s41')
    e(f's_mul_i32 s43, s3, 3072\ns_add_u32 s43, s43, s35\ns_add_u32 s43, s43, {HF}')
    e(f's_lshl_b32 s49, s5, 2\ns_add_u32 s49, s49, s3\ns_lshl_b32 s49, s49, 9\ns_lshl_b32 s30, s35, 2\ns_add_u32 s49, s49, s30\ns_add_u32 s49, s49, {GF}')
    e(f's_mul_i32 s24, s3, 12288\ns_add_u32 s24, s24, s30\ns_add_u32 s24, s24, {GF}'); soffs(e, 24, 3)
    e('v_lshlrev_b32 v11, 3, v0\ns_lshl_b32 s30, s3, 12\nv_add_u32 v8, s30, v12')
    e(f'v_lshlrev_b32 v120, 16, v{QR}\nv_and_b32 v121, 0xffff0000, v{QR}\nv_lshlrev_b32 v122, 16, v{QR+1}\nv_and_b32 v123, 0xffff0000, v{QR+1}')
    c1 = -2 * math.sqrt(2 / math.pi) * LOG2E; c3 = c1 * 0.044715
    e(f's_mov_b32 s50, {fx(c3)}\nv_mov_b32 v124, {fx(c1)}')
    SS = 32
    ld3 = frag_loads(XF, 3, 12, 43) + [(f'buffer_load_dwordx2 {vr(SS+2*i,2)}, v11, s[16:19], s41 offen offset:{512*i} sc1', SS + 2 * i, 2) for i in range(6)]
    early_load(e, 4, 4)
    if c.local:
        for x, _, _ in ld3 + frag_loads(XF, 12, 12, 24) + frag_loads(XF, 6, 12, 38): e(x)
    e('s_waitcnt vmcnt(0)'); local_flag(e, 6)
    stamp(e, c, 7)
    if c.cut: e('s_branch L_fin')
    e(f's_mul_i32 s52, s4, 147456\ns_mul_i32 s30, s5, 6144\ns_add_u32 s52, s52, s30\ns_lshl_b32 s30, s3, 8\ns_add_u32 s52, s52, s30\ns_add_u32 s52, s52, {XU}\ns_add_u32 s53, s52, 4096')
    e(f's_mul_i32 s54, s4, 768\ns_add_u32 s54, s54, {XL}\ns_lshl_b32 s55, s5, 10\ns_add_u32 s55, s55, s30\ns_lshl_b32 s30, s35, 1\ns_add_u32 s55, s55, s30\ns_add_u32 s55, s55, {UF}')
    e('v_lshlrev_b32 v6, 2, v0\nv_lshrrev_b32 v7, 2, v0\nv_lshlrev_b32 v7, 3, v7\nv_lshlrev_b32 v4, 7, v0')
    e('s_xor_b32 s51, s3, 3\ns_or_b32 s51, s51, s5')
    lp = e.label('L_lp')
    e(f's_mov_b64 exec, 63\n{lp}:\nbuffer_load_dword v5, v4, s[16:19], s54 offen sc1\ns_waitcnt vmcnt(0)\nv_cmp_ne_u32 vcc, -1, v5\ns_cbranch_vccnz {lp}_d\ns_sleep 4')
    budget(e, lp)
    e(f'{lp}_d:\ns_mov_b64 exec, -1')
    stamp(e, c, 8)
    XM, XV = 44, 56
    ldx = [(f'buffer_load_dwordx2 {vr(XM+2*g,2)}, v7, s[16:19], s54 offen offset:{128*g} sc1', XM + 2 * g, 2) for g in range(6)]
    ldx += [(f'buffer_load_dword v{XV+2*g}, v6, s[16:19], s{52+g//2} offen offset:{2048*(g%2)} sc1\nbuffer_load_dword v{XV+2*g+1}, v6, s[16:19], s{52+g//2} offen offset:{2048*(g%2)+1024} sc1', XV + 2 * g, 2) for g in range(3)]
    gather(e, ldx[:6], 10)
    lg = e.label('L_gx')
    for x, _, _ in ldx[6:]: e(x)
    e(f'v_max3_f32 v4, v{XM}, v{XM+2}, v{XM+4}\nv_max3_f32 v4, v4, v{XM+6}, v{XM+8}\nv_max_f32 v4, v4, v{XM+10}')
    for g in range(6): e(f'v_sub_f32 v{XM+2*g}, v{XM+2*g}, v4')
    for g in range(6): e(f'v_exp_f32 v{XM+2*g}, v{XM+2*g}')
    e(f'v_mul_f32 v5, v{XM}, v{XM+1}')
    for g in range(1, 6): e(f'v_fmac_f32 v5, v{XM+2*g}, v{XM+2*g+1}')
    e('v_rcp_f32 v5, v5\ns_nop 0')
    for g in range(6): e(f'v_mul_f32 v{XM+2*g}, v{XM+2*g}, v5')
    e(f's_branch {lg}_c\n{lg}:')
    for x, _, _ in ldx[6:]: e(x)
    e(f'{lg}_c:\ns_sub_u32 s61, s61, 1\ns_cmp_gt_i32 s61, 0\ns_cselect_b64 s[62:63], -1, 0\ns_waitcnt vmcnt(0)')
    e(f'v_max3_u32 v10, v{XV}, v{XV+1}, v{XV+2}\nv_max3_u32 v10, v10, v{XV+3}, v{XV+4}\nv_max_u32 v10, v10, v{XV+5}')
    e(f'v_cmp_eq_u32 vcc, -1, v10\ns_and_b64 vcc, vcc, s[62:63]\ns_cbranch_scc1 {lg}')
    stamp(e, c, 15)
    for g in range(6):
        e(f'v_lshlrev_b32 v16, 16, v{XV+g}\nv_and_b32 v17, 0xffff0000, v{XV+g}')
        e(f'v_mul_f32 v18, v16, v{XM}\nv_mul_f32 v19, v17, v{XM}' if g == 0 else f'v_fmac_f32 v18, v16, v{XM+2*g}\nv_fmac_f32 v19, v17, v{XM+2*g}')
    e('v_cvt_pk_bf16_f32 v18, v18, v19\nv_min_u32 v18, -2, v18')
    hstore(e, 'buffer_store_dword v18, v6, s[16:19], s55 offen', c.local)
    if c.wb:
        sk = e.label('L_fd')
        e(f's_cmp_lg_u32 s51, 0\ns_cbranch_scc0 {sk}\n{sk}_b:')
        e.deferred.append(f'{sk}:\ns_lshl_b32 s30, s4, 7\ns_add_u32 s30, s30, {FD}\ns_mov_b64 exec, 1\nbuffer_store_dword v18, off, s[16:19], s30 sc1\ns_mov_b64 exec, -1\ns_branch {sk}_b')
    gather(e, frag_loads(XF, 6, 12, 38), 10)
    stamp(e, c, 9)
    for k in range(6): e(f'v_mfma_f32_16x16x32_bf16 {vr(D)}, {vr(WC+4*k)}, {vr(XF+4*k)}, {vr(D) if k else 0}')
    t3 = e.label('L_t3')
    e(f's_nop 7\nds_write_b128 v9, {vr(D)}\ns_waitcnt lgkmcnt(0)\ns_barrier\ns_cmp_lg_u32 s3, 0\ns_cbranch_scc1 {t3}')
    for w in range(1, 4): e(f'ds_read_b128 {vr(16+4*w)}, v12 offset:{1024*w}')
    for i in range(4): e(f'v_add_f32 v{D+i}, v{D+i}, v{120+i}')
    for w in (1, 2, 3):
        e(f's_waitcnt lgkmcnt({3-w})')
        for i in range(4): e(f'v_add_f32 v{D+i}, v{D+i}, v{16+4*w+i}')
    pack_store(e, D, PS, 14, 40, keep=4, local=c.local)
    e('v_lshlrev_b32 v120, 16, v4\nv_and_b32 v121, 0xffff0000, v4\nv_lshlrev_b32 v122, 16, v5\nv_and_b32 v123, 0xffff0000, v5')
    e('v_add_f32 v16, v120, v121\nv_mul_f32 v17, v120, v120\nv_add_f32 v18, v122, v123\nv_fmac_f32 v17, v121, v121\nv_add_f32 v16, v16, v18\nv_fmac_f32 v17, v122, v122\nv_fmac_f32 v17, v123, v123')
    for sw in ('16', '32'):
        e(f'v_mov_b32 v18, v16\nv_mov_b32 v19, v17\ns_nop 0\nv_permlane{sw}_swap_b32 v16, v18\nv_permlane{sw}_swap_b32 v17, v19\nv_add_f32 v16, v16, v18\nv_add_f32 v17, v17, v19')
    e('v_min_u32 v16, -2, v16\nv_min_u32 v17, -2, v17\ns_mov_b64 exec, 0xffff')
    hstore(e, 'buffer_store_dwordx2 v[16:17], v11, s[16:19], s42 offen', c.local); e('s_mov_b64 exec, -1')
    e(f'{t3}:')
    stamp(e, c, 10)
    gather(e, ld3, 10)
    stamp(e, c, 11)
    DD = 96
    for k in range(3):
        for t in range(4): e(f'v_mfma_f32_16x16x32_bf16 {vr(DD+4*t)}, {vr(W1+12*t+4*k)}, {vr(XF+4*k)}, {vr(DD+4*t) if k else 0}')
    e(f'v_pk_add_f32 {vr(SS,2)}, {vr(SS,2)}, {vr(SS+2,2)}\nv_pk_add_f32 {vr(SS+4,2)}, {vr(SS+4,2)}, {vr(SS+6,2)}\nv_pk_add_f32 {vr(SS+8,2)}, {vr(SS+8,2)}, {vr(SS+10,2)}')
    e(f'v_pk_add_f32 {vr(SS,2)}, {vr(SS,2)}, {vr(SS+4,2)}\nv_pk_add_f32 {vr(SS,2)}, {vr(SS,2)}, {vr(SS+8,2)}')
    for t in range(4): e(f'ds_write_b128 v9, {vr(DD+4*t)} offset:{4096+4096*t}')
    for sw in ('16', '32'):
        e(f'v_mov_b32 v{SS+2}, v{SS}\nv_mov_b32 v{SS+3}, v{SS+1}\ns_nop 0\nv_permlane{sw}_swap_b32 v{SS}, v{SS+2}\nv_permlane{sw}_swap_b32 v{SS+1}, v{SS+3}\nv_add_f32 v{SS}, v{SS}, v{SS+2}\nv_add_f32 v{SS+1}, v{SS+1}, v{SS+3}')
    e('s_waitcnt lgkmcnt(0)\ns_barrier')
    for w in range(4): e(f'ds_read_b128 {vr(DD+4*w)}, v8 offset:{4096+1024*w}')
    ln_finish(e, SS, SS + 1)
    e('s_waitcnt lgkmcnt(2)')
    for i in range(4): e(f'v_add_f32 v{DD+i}, v{DD+i}, v{DD+4+i}')
    e('s_waitcnt lgkmcnt(0)')
    for i in range(4): e(f'v_add_f32 v{DD+8+i}, v{DD+8+i}, v{DD+12+i}')
    for i in range(4): e(f'v_fma_f32 v{DD+i}, -v{SS}, v{CS+i}, v{DD+i}')
    for i in range(4): e(f'v_add_f32 v{DD+i}, v{DD+i}, v{DD+8+i}')
    for i in range(4): e(f'v_mul_f32 v{DD+i}, v{SS+1}, v{DD+i}')
    G = DD + 4
    for i in range(4): e(f'v_mul_f32 v{G+i}, v{DD+i}, v{DD+i}')
    for i in range(4): e(f'v_fma_f32 v{G+i}, v{G+i}, s50, v124')
    for i in range(4): e(f'v_mul_f32 v{G+i}, v{G+i}, v{DD+i}')
    for i in range(4): e(f'v_exp_f32 v{G+i}, v{G+i}')
    for i in range(4): e(f'v_add_f32 v{G+i}, 1.0, v{G+i}')
    for i in range(4): e(f'v_rcp_f32 v{G+i}, v{G+i}')
    for i in range(4): e(f'v_mul_f32 v{DD+i}, v{DD+i}, v{G+i}')
    pack_store(e, DD, PS, 14, 49, local=c.local)
    stamp(e, c, 12)
    gather(e, frag_loads(XF, 12, 12, 24), 10)
    stamp(e, c, 13)
    for k in range(12): e(f'v_mfma_f32_16x16x32_bf16 {vr(D)}, {vr(W2+4*k)}, {vr(XF+4*k)}, {vr(D) if k else 0}')
    e(f's_nop 7\nds_write_b128 v9, {vr(D)}\ns_waitcnt lgkmcnt(0)\ns_barrier\ns_cmp_lg_u32 s3, 0\ns_cbranch_scc1 L_fin')
    for w in range(1, 4): e(f'ds_read_b128 {vr(16+4*w)}, v12 offset:{1024*w}')
    for i in range(4): e(f'v_add_f32 v{D+i}, v{D+i}, v{120+i}')
    for w in (1, 2, 3):
        e(f's_waitcnt lgkmcnt({3-w})')
        for i in range(4): e(f'v_add_f32 v{D+i}, v{D+i}, v{16+4*w+i}')
    if getattr(c, 'probe', None):
        for i in range(4): e(f'v_mul_f32 v{D+i}, {fx(c.probe[0])}, v{D+i}\nv_add_f32 v{D+i}, {fx(c.probe[1])}, v{D+i}')
    e(f'v_cvt_pk_bf16_f32 v4, v{D}, v{D+1}\nv_cvt_pk_bf16_f32 v5, v{D+2}, v{D+3}')
    e('buffer_store_dwordx2 v[4:5], v15, s[44:47], s48 offen')
    stamp(e, c, 14)
    e('s_branch L_fin')
    flush_deferred(e)
```

```python
from gen_v7_roles import *

def schedule(n, Ks, Kp, R0, start, step, look=2):
    seq = []; a, b = Kp, Ks
    while a or b:
        if a: seq.append('p'); a -= 1
        if b: seq.append('s'); b -= 1
    act = ['-'] * (n + 1); filled = R0
    rounds = [r for r in range(n - look)]
    usable = []
    for r in rounds:
        if filled < max(r - 1, 0) + NSLOT: usable.append(r); filled += 1
    seq += ['-'] * (len(usable) - (n - R0))
    pos = {start + step * i: x for i, x in enumerate(seq)}
    for r in usable: act[r] = pos.get(r, 'D')
    return ''.join(act)
def plan(act, n, Ks, Kp, R0):
    ring = ['D'] * R0; sslot = []
    for r, a in enumerate(act):
        assert len(ring) > r or r == n, 'ring ran dry'
        if a != '-':
            assert len(ring) < max(r - 1, 0) + NSLOT, 'no free slot'
            assert r > 0 or a == 'D'
            if a == 's': sslot.append(len(ring) % NSLOT)
            ring.append('D' if a == 'D' else 'N')
    assert len(ring) == n and act.count('s') == Ks and act.count('p') == Kp, (act, len(ring))
    f = lambda x, chs: sum(1 << r for r in range(len(x)) if x[r] in chs)
    late = sum(1 << r for r in range(n) if act[r] == 'D' and act[r + 1] != 'D' and 'D' in act[r + 1:])
    return dict(L=late, W=f(ring, 'D'), D=f(act, 'D'), s=f(act, 's'), p=f(act, 'p'), sslot=sslot)


class Cap:
    def __init__(s): s.g = []
    def __call__(s, t): s.g.append(t)
    def take(s, e, n):
        while s.g and n > 0:
            t = s.g.pop(0); e(t); n -= t.count('\n') + 1

def streamer(e, c):
    fine = c.fine
    def cyc(k):
        if fine is not None: e(f's_memtime s[{84+2*k}:{85+2*k}]')
    def cyc_save():
        if fine is None: return
        lb = e.label('L_fs')
        e(f's_cmp_lg_u32 s25, {fine}\ns_cbranch_scc1 {lb}\ns_waitcnt lgkmcnt(0)')
        for k in range(6): e(f's_mov_b32 s{66+2*k}, s{84+2*k}')
        e(f'{lb}:')
    NS = 192; n = 24; nt = ' nt' if not c.hot else ''; ch = c.chunk; Ks, Kp, R0 = c.Ks, c.Kp, c.R0
    assert 24 % ch == 0 and Kp >= 1 and (R0 <= 3 or not c.alds)
    T0, T1, T2, T3 = 2, 3, 4, 5
    L16, LH2, SW, STG = 6, 7, 10, 192
    scheds = c.sched or [schedule(n, Ks, Kp, R0, st, c.sstep, c.look) for st in (3, 4, 5, 4)]
    plans = [plan(a, n, Ks, Kp, R0) for a in scheds]
    def select(pairs):
        t = 's_lshr_b32 s30, s6, 3\ns_and_b32 s30, s30, 3'
        for v, p in enumerate(plans):
            if v: t += f'\ns_cmp_eq_u32 s30, {v}'
            for reg, fn in pairs: t += f'\ns_mov_b32 s{reg}, {fn(p)}' if v == 0 else f'\ns_cselect_b32 s{reg}, {fn(p)}, s{reg}'
        return t
    for a in scheds: e.c(a)
    e(f's_mul_i32 s27, s35, {ch}\ns_mul_hi_u32 s30, s27, {-(-(1<<32)//24)}\ns_mul_i32 s30, s30, 24\ns_add_u32 s26, s27, s30\ns_lshl_b32 s26, s26, 1')
    e(f's_and_b32 s4, s3, 1\ns_lshr_b32 s5, s3, 1\ns_mul_i32 s30, s5, 48\ns_add_u32 s30, s30, s4\ns_add_u32 s26, s26, s30\ns_mulk_i32 s26, 6144\nv_lshlrev_b32 v{L16}, 4, v0')
    e(f's_mov_b32 s10, {SZ["feat_hi"]}\ns_mov_b32 s11, 0x20000')
    def common2():
        e(f's_lshl_b32 s27, s27, 2\ns_add_u32 s27, s27, s3\ns_mulk_i32 s27, 1536\ns_mov_b32 s42, 0\nv_add_u32 v{LH2}, 4096, v{L16}')
        e(f's_mov_b32 s14, {SZ["feat_lo"]}\ns_mov_b32 s15, 0x20000\ns_add_u32 s2, s35, {NH}')
    jump_hi = NS * ch * 12288 + (NS * ch // 24) * 294912 - ch * 12288; jump_lo = (NS - 1) * ch * 6144
    def src_adv():
        if c.hot: return
        if ch == 1: e(f's_add_u32 s26, s26, {12288+jump_hi}\ns_add_u32 s27, s27, {6144+jump_lo}')
        else:
            e(f's_add_u32 s42, s42, 1\ns_cmp_eq_u32 s42, {ch}\ns_cselect_b32 s42, 0, s42\ns_cselect_b32 s30, {jump_hi}, 0\ns_cselect_b32 s43, {jump_lo}, 0')
            e('s_add_u32 s26, s26, 12288\ns_add_u32 s27, s27, 6144\ns_add_u32 s26, s26, s30\ns_add_u32 s27, s27, s43')
    def stage_items(k):
        it = [f'buffer_load_dwordx4 {vr(STG+32*k+4*j)}, v{L16 if j < 4 else LH2}, s[8:11], s26 offen offset:{1024*(j%4)}{nt}' for j in range(6)]
        it.append(f'buffer_load_dwordx4 {vr(STG+32*k+24)}, v{L16}, s[12:15], s27 offen{nt}')
        it.append(f's_mov_b32 exec_hi, 0\nbuffer_load_dwordx4 {vr(STG+32*k+28)}, v{L16}, s[12:15], s27 offen offset:1024{nt}\ns_mov_b32 exec_hi, -1')
        return it
    def setup_sw(e):
        e('s_lshl_b32 s41, s4, 1\ns_lshl_b32 s44, s5, 1\ns_mov_b32 s47, 0x78')
        for b in range(3):
            e(f'v_add_u32 v{T0}, {64*b}, v0\nv_mul_u32_u24 v{T1}, 1366, v{T0}\nv_lshrrev_b32 v{T1}, 16, v{T1}')
            e(f'v_mul_u32_u24 v{T2}, 48, v{T1}\nv_sub_u32 v{T0}, v{T0}, v{T2}\nv_lshlrev_b32 v8, 4, v{T2}')
            if b < 2: e(f'v_add_lshl_u32 v{T2}, v{T1}, s41, 2\nv_xor_b32 v{T2}, v{T2}, v{T0}\nv_lshl_add_u32 v{SW+6+b}, v{T2}, 4, v8')
            e(f'v_and_or_b32 v{T3}, v{T1}, 1, s44\nv_lshlrev_b32 v{T3}, 2, v{T3}\nv_xor_b32 v{T0}, v{T0}, v{T3}\nv_and_b32 v{T1}, 2, v{T1}\nv_lshrrev_b32 v{T1}, v{T1}, s47')
            e(f'v_and_b32 v{T2}, 3, v{T1}\nv_xor_b32 v{T2}, v{T2}, v{T0}\nv_lshl_add_u32 v{SW+b}, v{T2}, 4, v8')
            e(f'v_bfe_u32 v{T2}, v{T1}, 4, 2\nv_xor_b32 v{T2}, v{T2}, v{T0}\nv_lshl_add_u32 v{T2}, v{T2}, 4, v8\nv_add_u32 v{SW+3+b}, 3072, v{T2}')
        e(f's_mul_i32 s24, s3, 6144\ns_mul_i32 s34, s3, -4608\ns_add_u32 s34, s34, {24576-5120}\ns_add_u32 s31, s24, {PB}')
    def unstage(K, tag, tmp, sslot):
        e(f's_add_u32 s30, s{sslot}, s34\ns_add_u32 s30, s30, 5120\ns_add_u32 s50, s50, 1')
        for j in range(8): e(f'v_add_u32 v{tmp+j}, s{sslot if j < 6 else 30}, v{SW+j}')
        for k in range(K):
            nx = e.label('L_rk')
            if k < K - 1: e(f's_cmp_lg_u32 s50, {k+1}\ns_cbranch_scc1 {nx}')
            for j in range(7): e(f'ds_write_b128 v{tmp+j}, {vr(STG+32*k+4*j)}')
            e(f's_mov_b32 exec_hi, 0\nds_write_b128 v{tmp+7}, {vr(STG+32*k+28)}\ns_mov_b32 exec_hi, -1')
            if k < K - 1: e(f's_branch L_un_{tag}\n{nx}:')
        e(f'L_un_{tag}:')
    def slot_delta(): e(f's_add_u32 s45, s45, 1\ns_cmp_eq_u32 s45, {NSLOT}\ns_cselect_b32 s32, {-(NSLOT-1)*TILE}, s33\ns_cselect_b32 s45, 0, s45')
    def check(PFL, t, slow):
        e(f'v_or_b32 v{t}, v{PFL}, v{PFL+1}\nv_and_b32 v{t}, 0x40004000, v{t}\nv_cmp_ne_u32 vcc, 0, v{t}\ns_or_b64 vcc, vcc, s[28:29]\ns_cbranch_scc1 {slow}')
    def quant(r): e(f'v_add_f32 v{r}, 4.0, v{r}\nv_mul_f32 v{r}, {fx(1/16)}, v{r}\nv_ceil_f32 v{r}, v{r}\nv_mul_f32 v{r}, {fx(16.0)}, v{r}')
    grp = f's_bfe_u32 s36, s6, 0x10002\ns_mul_i32 s36, s36, 3\ns_and_b32 s30, s6, 3\ns_add_u32 s36, s36, s30\ns_sub_u32 s36, s36, 1\ns_lshr_b32 s37, s6, 3\ns_mul_i32 s38, s36, {32*PS_}\ns_add_u32 s38, s38, {PART}'

    PH, PL, PR, PR2, MXP, MPV, LSUM = 26, 32, 35, 36, 37, 38, 39
    TMP, PFL, ONES, LOC, PF, VA, VL, ACC = 40, 48, 50, 51, 52, 60, 84, 96
    e('s_cmp_lt_u32 s7, 4\ns_cbranch_scc1 L_sw\ns_waitcnt lgkmcnt(0)')
    stamp(e, c, 1)
    if c.pro == 1: common2(); late_consts(e); e('s_branch L_fin')
    g = Cap(); setup_sw(g); nsw = len(g.g)
    late_consts(g)
    g(f'v_lshrrev_b32 v{T0}, 5, v0\nv_bfe_u32 v{T1}, v0, 2, 2')
    g(f'v_bfe_u32 v{T2}, v0, 4, 1\nv_and_b32 v{T3}, 1, v0\nv_lshl_or_b32 v{T2}, v{T2}, 1, v{T3}\nv_lshl_or_b32 v{T2}, v{T1}, 2, v{T2}')
    g(f'v_bfe_u32 v{T3}, v0, 1, 1\nv_lshlrev_b32 v{T3}, 3, v{T3}')
    Q0 = TMP
    g(f'v_lshl_add_u32 v{Q0+3}, v{T0}, 2, v{T1}\nv_mul_u32_u24 v{Q0+3}, 768, v{Q0+3}\nv_add_u32 v{Q0+3}, v{Q0+3}, v{T3}\nv_add_u32 v{Q0+3}, 24576, v{Q0+3}')
    g(f'v_lshrrev_b32 v{Q0+4}, 1, v{T1}\nv_lshlrev_b32 v{Q0+4}, 4, v{Q0+4}\nv_lshl_add_u32 v{Q0+4}, v{T0}, 2, v{Q0+4}\nv_and_or_b32 v{Q0+4}, v{T1}, 1, v{Q0+4}\nv_mul_u32_u24 v{Q0+4}, 768, v{Q0+4}\nv_add_u32 v{Q0+4}, v{Q0+4}, v{T3}')
    g(f'v_lshlrev_b32 v{Q0+5}, 2, v{T0}\ns_mov_b32 s30, 0x78\nv_lshrrev_b32 v{Q0+5}, v{Q0+5}, s30\nv_bfe_u32 v{Q0+6}, v{Q0+5}, 2, 2\nv_and_b32 v{Q0+5}, 3, v{Q0+5}')
    for t in range(3):
        g(f's_mul_i32 s30, s3, 12\ns_add_u32 s30, s30, {4*t}\nv_xor_b32 v{Q0}, s30, v{T2}\nv_lshl_add_u32 v{PL+t}, v{Q0}, 4, v{Q0+3}')
        g(f'v_xor_b32 v{Q0+1}, v{Q0}, v{Q0+5}\nv_lshl_add_u32 v{PH+2*t}, v{Q0+1}, 4, v{Q0+4}\nv_xor_b32 v{Q0+1}, v{Q0}, v{Q0+6}\nv_lshl_add_u32 v{Q0+1}, v{Q0+1}, 4, v{Q0+4}\nv_add_u32 v{PH+2*t+1}, 1536, v{Q0+1}')
    g(f'v_add_u32 v{PR}, {PB}, v{L16}\nv_lshlrev_b32 v1, 3, v0\nv_add_u32 v{PR2}, {PB+2048}, v1')
    g(f'v_and_b32 v{T0}, 31, v0\nv_lshlrev_b32 v{T0}, 2, v{T0}\nv_add_u32 v{MXP}, {MXB}, v{T0}\nv_mov_b32 v{T0}, {LOCW}')
    for i in range(0, 96, 2): g(f'v_mov_b64 {vr(ACC+i,2)}, 0')
    for i in range(0, 32, 2): g(f'v_mov_b64 {vr(PF+i,2)}, 0')
    g(f'v_mov_b64 {vr(MPV,2)}, 0\nv_mov_b32 v{ONES}, 0x3f803f80')
    g(select([(46, lambda p: p['W']), (47, lambda p: p['D']), (48, lambda p: p['p']), (44, lambda p: p['s']), (39, lambda p: p['D'] & ~p['L'] if c.dlate else p['D'])]))
    d0 = scheds[0][0] == 'D'; assert all((x[0] == 'D') == d0 for x in scheds)
    g(f's_mov_b64 s[28:29], -1\ns_mov_b32 s45, 0\ns_mov_b32 s25, 1\ns_mov_b32 s33, {TILE}\ns_mov_b32 s49, {R0-1+d0}\ns_mov_b32 s50, 0\ns_mov_b32 s58, {PBUF}')
    g(grp)
    g(f's_mul_i32 s52, s37, {PS_}\ns_add_u32 s52, s52, s38\ns_lshl_b32 s30, s3, 8\ns_add_u32 s56, s52, s30\ns_add_u32 s56, s56, 49152')
    g(f's_mul_i32 s30, s3, 6144\ns_add_u32 s52, s52, s30\ns_add_u32 s53, s52, 4096\ns_add_u32 s54, s52, 24576\ns_add_u32 s55, s52, {24576+4096}')
    g(f's_lshl_b32 s51, s36, 2\ns_add_u32 s51, s51, s3\ns_lshl_b32 s51, s51, 5\ns_add_u32 s51, s51, s37\ns_lshl_b32 s51, s51, 2\ns_add_u32 s51, s51, {FL}')
    def dma_items():
        it = []
        for j in range(6):
            it.append(('s_mov_b32 m0, s24' if j == 0 else 's_add_u32 m0, m0, 1024') + f'\ns_nop 0\nbuffer_load_dwordx4 v{SW+j}, s[8:11], s26 offen{nt} lds')
        it.append(f's_add_u32 m0, m0, s34\ns_nop 0\nbuffer_load_dwordx4 v{SW+6}, s[12:15], s27 offen{nt} lds')
        it.append(f's_add_u32 m0, m0, 1024\ns_mov_b32 exec_hi, 0\nbuffer_load_dwordx4 v{SW+7}, s[12:15], s27 offen{nt} lds\ns_mov_b32 exec_hi, -1')
        return it
    def slot_adv(): e(f's_add_u32 s24, s24, {TILE}\ns_cmp_ge_u32 s24, s31\ns_cselect_b32 s30, {PB}, 0\ns_sub_u32 s24, s24, s30')
    total = len(g.g); cnt = 0
    for j in range(Kp + R0):
        if j == Kp:
            while total - len(g.g) < nsw: g.take(e, 1)
            for k in range(Ks): src_adv()
        for i, x in enumerate(stage_items(j) if j < Kp else dma_items()):
            if j == 0 and i == 4: common2()
            if cnt == c.jp: e('s_barrier')
            e(x); cnt += 1
            if cnt >= 10: g.take(e, c.weave)
        src_adv()
        if j >= Kp: slot_adv()
    g.take(e, 9999)
    if c.jp == cnt: e('s_barrier')
    assert c.jp <= cnt
    stamp(e, c, 2)
    if c.pro == 2: e('s_waitcnt vmcnt(0)'); stamp(e, c, 3); e('s_branch L_fin')
    e('s_setprio 1')
    if c.alds: e('s_barrier')
    e(f's_waitcnt vmcnt({8*(R0-1)})\ns_barrier')
    if d0:
        for x in dma_items(): e(x)
        src_adv(); slot_adv()
    nw = e.label('L_nw')
    e(f'.p2align 3\nL_p:\ns_bitcmp1_b32 s46, s25\ns_cbranch_scc0 {nw}\ns_sub_u32 s49, s49, 1')
    for k in range(3, 0, -1): e(f's_waitcnt vmcnt({8*k})\ns_cmp_ge_u32 s49, {k}\ns_cbranch_scc1 {nw}')
    e(f's_waitcnt vmcnt(0)\n{nw}:'); cyc(5); e('s_barrier'); cyc(0)
    rpfl = f'ds_read_b64 {vr(PFL,2)}, v{PR2}'
    rd = [(f'ds_read_b64_tr_b16 {vr(VL+2*t,2)}, v{PL+t}', ('l', t)) for t in range(3)]
    rd += [(f'ds_read_b128 {vr(PF)}, v{PR}', 'pf'), (f'ds_read_b128 {vr(PF+4)}, v{PR} offset:1024', 'pf')]
    for t in range(3):
        for pg in range(2):
            for u in range(2): rd.append((f'ds_read_b64_tr_b16 {vr(VA+8*t+4*pg+2*u,2)}, v{PH+2*t+u} offset:{6144*pg}', ('h', t, pg)))
    mf = [(f'v_mfma_f32_32x32x8_bf16 {vr(ACC+48+16*t,16)}, {vr(VL+2*t,2)}, {vr(PFL,2)}, {vr(ACC+48+16*t,16)}', ('l', t)) for t in range(3)]
    for t in range(3):
        for pg in range(2): mf.append((f'v_mfma_f32_32x32x16_bf16 {vr(ACC+16*t,16)}, {vr(VA+8*t+4*pg)}, {vr(PF+4*pg)}, {vr(ACC+16*t,16)}', ('h', t, pg)))
    nb = c.nbefore; assert nb >= 3
    dm = dma_items(); de = c.dearly
    e(rpfl)
    for i, (m, _) in enumerate(mf[nb:]):
        e(m)
        if i == 0 and de: e('s_bitcmp1_b32 s47, s25\ns_cselect_b64 vcc, -1, 0')
        if i in c.epos[:de]:
            lb = e.label('L_de'); e(f's_cbranch_vccz {lb}\n{dm.pop(0)}\n{lb}:')
    slot_delta()
    e('s_waitcnt lgkmcnt(0)')
    check(PFL, TMP, 'L_p_slow')
    e('L_p_back:'); cyc(1)
    lsum = f'v_dot2c_f32_bf16 v{LSUM}, v{PFL}, v{ONES}\nv_dot2c_f32_bf16 v{LSUM}, v{PFL+1}, v{ONES}'
    e(f's_cmp_eq_u32 s25, {n}\ns_cbranch_scc1 L_p_last')
    nd = e.label('L_nd')
    if c.dsplit:
        e(f's_bitcmp1_b32 s39, s25\ns_cbranch_scc0 {nd}')
        for x in dm[:c.dsplit]: e(x)
        e(f'{nd}:')
    cyc(2)
    def reads_and(mfs, between, tog):
        if tog: e('s_setprio 0')
        for x, tag in rd[:15]: e.dsop(x, tag)
        if tog: e('s_setprio 1')
        rest = rd[15:]
        for i, (m, tag) in enumerate(mfs):
            e.dswait(tag)
            if rest and i < 2: x, tg = rest.pop(0); e.dsop(x, tg)
            e(m); between(i)
    adds = [f'v_add_u32 v{r}, s32, v{r}' for r in range(PH, PL + 3)] + [f'v_add_u32 v{r}, s58, v{r}' for r in (PR, PR2)] + ['s_sub_u32 s58, 0, s58']
    def addfill(i):
        if i >= 1:
            for _ in range(6):
                if adds: e(adds.pop(0))
    reads_and(mf[:nb], addfill, True)
    assert not adds
    e(lsum)
    e.dsall()
    cyc(3)
    e('s_bitcmp1_b32 s47, s25\ns_cbranch_scc0 L_p_nod')
    if c.dlate:
        e('s_bitcmp1_b32 s39, s25\ns_cbranch_scc0 L_p_late\nL_p_lb:')
        e.deferred.append('L_p_late:\n' + '\n'.join(dm[:c.dsplit]) + '\ns_branch L_p_lb')
    for x in dm[c.dsplit:]: e(x)
    src_adv()
    e('s_add_u32 s49, s49, 1\nL_p_adv:'); slot_adv()
    e('L_p_next:'); cyc(4); cyc_save(); e('s_add_u32 s25, s25, 1\ns_branch L_p')
    e('L_p_nod:\ns_bitcmp1_b32 s44, s25\ns_cbranch_scc1 L_p_adv\ns_bitcmp1_b32 s48, s25\ns_cbranch_scc0 L_p_next')
    unstage(Kp, 'p', TMP, 24)
    e('s_waitcnt lgkmcnt(0)\ns_branch L_p_adv')
    flush_deferred(e)
    e('L_p_last:')
    nost = c.iso or c.cut in (1, 3, 4, 5, 6, 7)
    pstore = lambda s: f'buffer_store_dwordx4 {vr(ACC+8*s)}, v{L16}, s[16:19], s{52 + 2*(s//6) + (s%6)//4} offen offset:{1024*((s%6)%4)}'
    mlstore = f's_mov_b32 exec_hi, 0\nbuffer_store_dwordx2 {vr(MPV,2)}, v1, s[16:19], s56 offen%s\ns_mov_b32 exec_hi, -1'
    def cvt(s):
        b = ACC + 8 * s
        for i in range(4): e(f'v_cvt_pk_bf16_f32 v{b+i}, v{b+2*i}, v{b+2*i+1}')
        if not nost: e(pstore(s))
    def lastfill(i):
        if i == 0: e(lsum)
        if i == 2: e.dsop(f'ds_read_b32 v{LOC}, v{T0}', 'loc')
        if i == 4:
            e(f'v_mov_b32 v{TMP}, v{LSUM}\nv_readfirstlane_b32 s57, v{MPV}\ns_nop 0\nv_permlane32_swap_b32 v{LSUM}, v{TMP}\nv_add_f32 v{LSUM}, v{LSUM}, v{TMP}\nv_cmp_neq_f32 vcc, s57, v{MPV}')
            if not nost: e(mlstore % '')
        if 4 <= i < 8: cvt(6 + i - 4)
    reads_and(mf, lastfill, False)
    for s in (10, 11, 0, 1, 2, 3, 4, 5): cvt(s)
    if fine is None: stamp(e, c, 6)
    e(f's_waitcnt lgkmcnt(0)\ns_cmp_eq_u64 vcc, 0\ns_cselect_b32 s57, s57, -2\nv_readfirstlane_b32 s59, v{LOC}\nv_mov_b32 v{TMP}, s57'); e.ds = []
    e('s_cmp_eq_u32 s59, 0\ns_waitcnt vmcnt(0)\ns_cbranch_scc1 L_p_far')
    stamp(e, c, 7)
    if not nost: e(f's_mov_b64 exec, 1\nbuffer_store_dword v{TMP}, off, s[16:19], s51')
    e('s_branch L_fin')
    e('L_p_far:')
    if not nost:
        for s in range(12): e(pstore(s) + ' sc1')
        e(mlstore % ' sc1')
        e(f's_waitcnt vmcnt(0)\ns_mov_b64 exec, 1\nbuffer_store_dword v{TMP}, off, s[16:19], s51 sc1')
    e('s_branch L_fin')
    e('L_p_slow:\ns_waitcnt lgkmcnt(0)\ns_barrier')
    e(f'ds_read2_b32 {vr(TMP,2)}, v{MXP} offset0:0 offset1:32\ns_waitcnt lgkmcnt(0)\nv_max_f32 v{TMP}, v{TMP}, v{TMP+1}')
    quant(TMP)
    nf = e.label()
    e(f's_cmp_lg_u64 s[28:29], 0\ns_cbranch_scc1 {nf}')
    e(f'v_max_f32 v{TMP}, 0, v{TMP}\nv_exp_f32 v{TMP+2}, -v{TMP}\ns_nop 0\nv_mul_f32 v{LSUM}, v{LSUM}, v{TMP+2}')
    for i in range(0, 96, 2): e(f'v_pk_mul_f32 {vr(ACC+i,2)}, {vr(ACC+i,2)}, {vr(TMP+2,2)} op_sel_hi:[1,0]')
    e(f'{nf}:\ns_mov_b64 s[28:29], 0\nv_add_f32 v{MPV}, v{MPV}, v{TMP}\ns_barrier')
    e(rpfl)
    e('s_waitcnt lgkmcnt(0)\ns_branch L_p_back')

    SH, SL, PW, PW2, PR2, MXW, MXS, LA = 18, 22, 26, 27, 28, 29, 30, 31
    NEGM, S, PK, PFL, TMP, LF, FB, NB, XG, AQ = 32, 36, 40, 44, 46, 54, 56, 8, 90, 96
    e('L_sw:'); common2(); late_consts(e)
    if c.touch:
        e('s_cmp_lg_u32 s7, 0\ns_cbranch_scc1 L_snt'); code_touch(e, c); e('L_snt:')
    if c.pro == 1: e('s_waitcnt lgkmcnt(0)\ns_branch L_fin')
    for k in range(Kp): src_adv()
    setup_sw(e)
    e(f'v_and_b32 v{T0}, 15, v0\nv_lshrrev_b32 v{T1}, 4, v0')
    e(f'v_lshrrev_b32 v{T2}, 2, v{T0}\nv_lshlrev_b32 v{T3}, 1, v{T2}\nv_lshrrev_b32 v{TMP+1}, v{T3}, s47\nv_and_b32 v{TMP+1}, 3, v{TMP+1}')
    e(f'v_and_b32 v{TMP}, 3, v{T0}\nv_lshl_or_b32 v{TMP+1}, v{TMP}, 2, v{TMP+1}\nv_xor_b32 v{TMP+1}, v{TMP+1}, v{T1}\nv_lshlrev_b32 v{TMP+1}, 4, v{TMP+1}')
    e(f'v_lshrrev_b32 v{TMP}, 1, v{TMP}\nv_lshl_add_u32 v{T3}, v{TMP}, 4, v{T3}\nv_and_or_b32 v{T3}, v{T0}, 1, v{T3}\nv_mul_u32_u24 v{T3}, 768, v{T3}\ns_mul_i32 s30, s4, 6144\nv_add3_u32 v{SH}, v{T3}, v{TMP+1}, s30')
    e(f'v_lshl_or_b32 v{T3}, v{T2}, 2, v{T1}\nv_lshlrev_b32 v{T3}, 4, v{T3}\ns_mul_i32 s30, s4, 3072\ns_add_u32 s30, s30, 24576\nv_mul_u32_u24 v{TMP}, 768, v{T2}\nv_add3_u32 v{SL}, v{T3}, v{TMP}, s30')
    for b in range(1, 4): e(f'v_xor_b32 v{SH+b}, {64*b}, v{SH}\nv_xor_b32 v{SL+b}, {64*b}, v{SL}')
    e(f's_lshl_b32 s30, s5, 4\nv_add_u32 v{T3}, s30, v{T0}')
    e(f'v_lshrrev_b32 v{TMP}, 1, v{T1}\nv_lshlrev_b32 v{TMP}, 9, v{TMP}\nv_lshl_add_u32 v{TMP}, v{T3}, 4, v{TMP}\nv_and_b32 v{TMP+1}, 1, v{T1}\nv_lshl_add_u32 v{TMP}, v{TMP+1}, 3, v{TMP}')
    e(f's_lshl_b32 s30, s4, 10\ns_add_u32 s30, s30, {PB+PBUF}\nv_add_u32 v{PW}, s30, v{TMP}')
    e(f'v_lshlrev_b32 v{TMP}, 3, v{T3}\nv_lshl_add_u32 v{TMP}, v{T1}, 1, v{TMP}\ns_lshl_b32 s30, s4, 8\ns_add_u32 s30, s30, {PB+PBUF+2048}\nv_add_u32 v{PW2}, s30, v{TMP}')
    e(f'v_lshlrev_b32 v1, 3, v0\nv_add_u32 v{PR2}, {PB+PBUF+2048}, v1')
    e(f'v_lshlrev_b32 v{TMP}, 2, v{T3}\nv_add_u32 v{MXS}, {MXB}, v{TMP}\ns_lshl_b32 s30, s4, 7\nv_add_u32 v{MXW}, s30, v{MXS}')
    e(f'v_mov_b64 {vr(NEGM,2)}, 0\nv_mov_b64 {vr(NEGM+2,2)}, 0')
    hooks = (1 << c.hook1) | (1 << c.hook2) | (1 << c.ptouch) | (1 << c.fsamp); assert c.hook1 < c.hook2 <= c.fsamp < n
    assert all(p['s'] >> c.hook2 == 0 for p in plans)
    e(select([(48, lambda p: p['s'])] + [(46 + k, (lambda k: lambda p: p['sslot'][k] * TILE)(k)) for k in range(Ks)]))
    e(f's_add_u32 s46, s46, s24\ns_add_u32 s47, s47, s24\ns_or_b32 s44, s48, {hooks}')
    e(f's_mov_b64 s[28:29], -1\ns_mov_b32 s45, 0\ns_mov_b32 s25, 0\ns_mov_b32 s33, {TILE}\ns_mov_b32 s50, 0\ns_mov_b32 s58, {-PBUF}')
    e(f's_mul_i32 s52, s5, 24576\ns_add_u32 s52, s52, {AF if not c.iso else 0x1000000}'); soffs(e, 52, 6)
    e(grp)
    e('s_lshr_b32 s39, s36, 1\ns_lshl_b32 s39, s39, 3\ns_and_b32 s30, s36, 1\ns_lshl_b32 s30, s30, 7\ns_add_u32 s39, s39, s30')
    late_addr(e, LA)
    e('s_setprio 2\ns_waitcnt lgkmcnt(0)\ns_barrier')
    stamp(e, c, 1)
    early_load(e, T0, 5)
    for k in range(Ks):
        for x in stage_items(k): e(x)
        src_adv()
    e(f's_waitcnt vmcnt({8*Ks})')
    if not c.iso: early_wait(e, T0, (1,))
    stamp(e, c, 2)
    if c.pro == 2: e('s_branch L_fin')
    aload = frag_loads(AQ, 24, L16, 52)
    if c.alds:
        e(f's_mul_i32 s30, s3, 12288\ns_add_u32 m0, s30, {3*TILE}\ns_mul_i32 s40, s4, 12288\ns_add_u32 s40, s40, s52')
        for k in range(12):
            e(f'buffer_load_dwordx4 v{L16}, s[16:19], s40 offen offset:{1024*(k%4)} sc1 lds')
            if k % 4 == 3 and k < 11: e('s_add_u32 m0, m0, 4096\ns_add_u32 s40, s40, 4096')
        e(f's_mul_i32 s30, s5, 24576\ns_add_u32 s30, s30, {3*TILE}\nv_add_u32 v{T1}, s30, v{L16}\ns_setprio 0\ns_waitcnt vmcnt(0)\ns_barrier')
        for k in range(24):
            e.dsop(f'ds_read_b128 {vr(AQ+4*k)}, v{T1} offset:{1024*k}', ('a', k))
            if k >= 10:
                kk = k - 10; e.dswait(('a', kk))
                e(f'v_max3_u32 v{T0}, v{AQ+4*kk}, v{AQ+4*kk+1}, v{T0 if kk else AQ}\nv_max3_u32 v{T0}, v{T0}, v{AQ+4*kk+2}, v{AQ+4*kk+3}')
        for kk in range(14, 24):
            e.dswait(('a', kk)); e(f'v_max3_u32 v{T0}, v{AQ+4*kk}, v{AQ+4*kk+1}, v{T0}\nv_max3_u32 v{T0}, v{T0}, v{AQ+4*kk+2}, v{AQ+4*kk+3}')
        e(f'v_cmp_eq_u32 vcc, -1, v{T0}\ns_cbranch_vccnz L_aretry\nL_aok:')
    else:
        e('s_branch L_aload\nL_aok:\ns_setprio 0')
    stamp(e, c, 4)
    def sread(k):
        base = (SH if k < 12 else SL); ks = k % 12
        e.dsop(f'ds_read_b128 {vr(FB+4*(k%NB))}, v{base+(ks&3)} offset:{256*(ks>>2)}', ('s', k))
    def expwrite():
        for i in range(4): e(f'v_exp_f32 v{TMP+i}, v{S+i}')
        e(f'v_add_f32 v{TMP+4}, v{TMP}, v{TMP+1}\nv_add_f32 v{TMP+5}, v{TMP+2}, v{TMP+3}\nv_cvt_pk_bf16_f32 v{PK}, v{TMP}, v{TMP+1}\nv_cvt_pk_bf16_f32 v{PK+1}, v{TMP+2}, v{TMP+3}')
        e(f'v_add_f32 v{TMP+4}, v{TMP+4}, v{TMP+5}\nds_write_b64 v{PW}, {vr(PK,2)}\nv_cvt_pk_bf16_f32 v{PK+2}, v{TMP+4}, v{TMP+4}\nds_write_b16 v{PW2}, v{PK+2}')
    e('s_barrier')
    stamp(e, c, 3)
    if c.diag: e('s_memtime s[86:87]')
    for k in range(NB): sread(k)
    e.ds = []
    e('s_cmp_lg_u32 s3, 0\ns_cbranch_scc1 L_s_back\ns_getreg_b32 s30, hwreg(HW_REG_XCC_ID, 0, 3)\ns_lshl_b32 s30, s30, 3\ns_lshl_b64 s[40:41], 1, s30')
    e(f'v_mov_b32 v{T0}, s40\nv_mov_b32 v{T1}, s41\ns_mov_b64 exec, 1\nbuffer_atomic_add_x2 {vr(T0,2)}, off, s[20:23], s39 offset:32\ns_mov_b64 exec, -1\ns_branch L_s_back')
    e('.p2align 3\nL_s:\ns_barrier')
    if c.diag and fine is None: e(f's_memrealtime s[{64+2*5}:{65+2*5}]')
    cyc(0)
    e.dsop(f'ds_read_b64 {vr(PFL,2)}, v{PR2}', 'pfl')
    for k in range(NB): sread(k)
    e.dswait('pfl')
    check(PFL, TMP, 'L_s_slow')
    e('L_s_back:'); cyc(1)
    fill = [f'v_add_u32 v{r}, s58, v{r}' for r in (PW, PW2, PR2)] + ['s_sub_u32 s58, 0, s58']
    fill += [f's_add_u32 s45, s45, 1', f's_cmp_eq_u32 s45, {NSLOT}\ns_cselect_b32 s32, {-(NSLOT-1)*TILE}, s33\ns_cselect_b32 s45, 0, s45']
    for k in range(24):
        if k % c.wstep == 0: e.dswait(('s', min(k + c.wstep - 1, 23)))
        e(f'v_mfma_f32_16x16x32_bf16 {vr(S)}, {vr(FB+4*(k%NB))}, {vr(AQ+4*k)}, {vr(S) if k else vr(NEGM)}')
        if k == 11: cyc(2)
        if k + NB < 24:
            sread(k + NB)
            if fill and k % 2 == 1: e(fill.pop(0))
    assert not fill
    cyc(3)
    for r in range(SH, SL + 4): e(f'v_add_u32 v{r}, s32, v{r}')
    expwrite()
    cyc(4)
    if fine is not None: e('s_waitcnt lgkmcnt(0)'); cyc(5); cyc_save()
    e('s_bitcmp1_b32 s44, s25\ns_cbranch_scc1 L_s_hook')
    e(f'L_s_next:\ns_add_u32 s25, s25, 1\ns_cmp_lg_u32 s25, {n}\ns_waitcnt lgkmcnt(0)\ns_cbranch_scc1 L_s')
    e.ds = []
    e(f's_barrier\nds_read_b64 {vr(PFL,2)}, v{PR2}')
    if fine is None: stamp(e, c, 6)
    if c.diag and fine is None: e('s_memtime s[88:89]')
    X, MLR = AQ, AQ + 64
    SEL, D, VX, VOOB, VF, VFA, VH, VH8, VQ16, VM, U0, U1, VO = 192, 196, 212, 213, 214, 215, 216, 217, 218, 219, 220, 221, 222
    flagload = f's_mov_b32 exec_hi, 0\nbuffer_load_dword v{VF}, v{VFA}, s[16:19], s40 offen sc1\ns_mov_b32 exec_hi, -1'
    def t1_setup():
        e(f'v_lshlrev_b32 v{VFA}, 2, v0\ns_bfe_u32 s41, s37, 0x20002\ns_lshl_b32 s40, s36, 2\ns_add_u32 s40, s40, s41\ns_lshl_b32 s40, s40, 7\ns_add_u32 s40, s40, {FL}')
        e(f'v_lshrrev_b32 v{VH}, 5, v0\nv_and_b32 v{U0}, 31, v0\nv_lshlrev_b32 v{VQ16}, 4, v{U0}\ns_mov_b32 s43, {PS_}\nv_mad_u32_u24 v{VX}, v{VH}, s43, v{VQ16}\nv_lshlrev_b32 v{U0}, 3, v{U0}\nv_mad_u32_u24 v{VM}, v{VH}, s43, v{U0}')
        e(f's_lshl_b32 s41, s41, 8\ns_add_u32 s41, s41, s38\ns_add_u32 s41, s41, 49152')
        e(f's_mul_i32 s42, s37, 3\ns_add_u32 s42, s42, s3\ns_lshl_b32 s27, s42, 9\ns_add_u32 s27, s27, s38\nv_bfrev_b32 v{VOOB}, 1\nv_lshlrev_b32 v{VH8}, 3, v{VH}')
        e(f'v_and_b32 v{U0}, 1, v0\nv_lshlrev_b32 v{U0}, 4, v{U0}\ns_movk_i32 s30, 0x3f80\nv_lshlrev_b32 v{U0}, v{U0}, s30\nv_bfe_u32 v{U1}, v0, 1, 4')
        for d in range(4): e(f'v_cmp_eq_u32 vcc, {(d & 1) + 4 * (d >> 1)}, v{U1}\nv_mov_b64 {vr(D+4*d,2)}, 0\nv_mov_b64 {vr(D+4*d+2,2)}, 0\nv_cndmask_b32 v{SEL+d}, 0, v{U0}, vcc')
        e(f's_lshr_b32 s26, s42, 2\ns_mul_i32 s26, s26, 6\ns_add_u32 s26, s26, s36\ns_lshl_b32 s26, s26, 2\ns_and_b32 s30, s42, 3\ns_add_u32 s26, s26, s30\ns_lshl_b32 s26, s26, 8\ns_add_u32 s26, s26, {XU}')
        e(f'v_bfe_u32 v{VO}, v0, 4, 1\nv_mul_u32_u24 v{VO}, {147456-256}, v{VO}\nv_add_u32 v{VO}, v{VO}, v{VQ16}')
    e('s_waitcnt lgkmcnt(0)')
    check(PFL, TMP, 'L_s_slow')
    e('L_s_last:')
    if c.iso or c.cut: e('s_branch L_fin')
    e('s_mov_b32 s44, -1\ns_cmp_eq_u32 s3, 3\ns_cbranch_scc1 L_t1l\ns_branch L_t1w')
    mm = lambda r: f'v_mfma_f32_32x32x16_bf16 {vr(D,16)}, {vr(SEL)}, {vr(r)}, {vr(D,16)}'
    e(f'L_t1b:\ns_andn2_b32 s44, s44, s46\nv_lshrrev_b32 v{U1}, v{VH}, s46')
    for i in range(16):
        e(f'v_and_b32 v{U0}, {1 << (2*i)}, v{U1}\nv_cmp_ne_u32 vcc, 0, v{U0}\ns_add_u32 s30, s27, {2*PS_*i}\ns_nop 0\nv_cndmask_b32 v{U0}, v{VOOB}, v{VX}, vcc\nbuffer_load_dwordx4 {vr(X+4*i)}, v{U0}, s[16:19], s30 offen sc1')
    for i in range(16):
        e(f's_waitcnt vmcnt({15-i+(i > c.bsamp)})\n' + mm(X + 4 * i))
        if i == c.bsamp: e(flagload)
    e('s_cmp_eq_u32 s44, 0\ns_cbranch_scc1 L_t1done\ns_branch L_t1w')
    e(f'L_t1s:\ns_sleep {c.t1sleep}\nL_t1:\n{flagload}\ns_sub_u32 s61, s61, 1\ns_cmp_gt_i32 s61, 0\ns_cbranch_scc0 L_t1done')
    e(f'L_t1w:\ns_waitcnt vmcnt(0)\nv_cmp_ne_u32 vcc, -1, v{VF}\ns_and_b32 s46, vcc_lo, s44\ns_cbranch_scc0 L_t1s')
    stamp(e, c, 9)
    if c.diag: e('s_bcnt1_i32_b32 s94, s46')
    e(f's_bcnt1_i32_b32 s30, s46\ns_cmp_gt_u32 s30, {2*c.ndyn}\ns_cbranch_scc1 L_t1b\ns_andn2_b32 s44, s44, s46')
    for r in range(c.ndyn):
        e('s_ff1_i32_b32 s48, s46\ns_bitset0_b32 s46, s48\ns_ff1_i32_b32 s30, s46\ns_lshl_b32 s47, s30, 8\ns_or_b32 s48, s48, s47\ns_lshl_b64 s[56:57], 1, s30\ns_andn2_b32 s46, s46, s56')
        e(f'v_bfe_u32 v{U0}, s48, v{VH8}, 8\nv_cmp_gt_u32 vcc, 32, v{U0}\nv_mad_u32_u24 v{U0}, v{U0}, s43, v{VQ16}\ns_cmp_eq_u32 s46, 0\nv_cndmask_b32 v{U0}, v{VOOB}, v{U0}, vcc')
        e(f'buffer_load_dwordx4 {vr(X+4*r)}, v{U0}, s[16:19], s27 offen sc1')
        if r < c.ndyn - 1: e(f's_cbranch_scc1 L_t1m{r}')
    for r in range(c.ndyn - 1, -1, -1): e(f'L_t1m{r}:\ns_waitcnt vmcnt(0)\n{mm(X+4*r)}')
    e('s_cmp_lg_u32 s44, 0\ns_cbranch_scc1 L_t1\nL_t1done:')
    stamp(e, c, 8)
    uni = f'v_readfirstlane_b32 s47, v{VF}\ns_nop 1\nv_cmp_ne_u32 vcc, s47, v{VF}\ns_cmp_eq_u32 s47, -2\ns_cselect_b32 s30, 1, 0\ns_or_b32 s30, s30, vcc_lo'
    e(f's_waitcnt vmcnt(0)\n{uni}\ns_cbranch_scc1 L_t1gen\ns_nop 1\nL_t1back:')
    for i in range(4): e(f'v_cvt_pk_bf16_f32 v{D+i}, v{D+2*i}, v{D+2*i+1}')
    for i in range(4): e(f'v_min_u32 v{D+i}, -2, v{D+i}')
    e(f's_mov_b32 exec_hi, 0\nbuffer_store_dwordx4 {vr(D)}, v{VO}, s[16:19], s26 offen sc1')
    stamp(e, c, 10)
    e('L_fin:')
    dump(e, c)
    e('L_end:\ns_endpgm')
    mll = [f's_add_u32 s30, s41, {2*PS_*i}\nbuffer_load_dwordx2 {vr(MLR+2*i,2)}, v{VM}, s[16:19], s30 offen sc1' for i in range(16)]
    def weights(M, L):
        e(f'v_max_f32 v{M}, v{MLR}, v{MLR+2}')
        for i in range(2, 16, 2): e(f'v_max3_f32 v{M}, v{M}, v{MLR+2*i}, v{MLR+2*i+2}')
        e(f'v_mov_b32 v{L}, v{M}\ns_nop 1\nv_permlane32_swap_b32 v{M}, v{L}\nv_max_f32 v{M}, v{M}, v{L}')
        for i in range(16): e(f'v_sub_f32 v{MLR+2*i}, v{MLR+2*i}, v{M}')
        for i in range(16): e(f'v_exp_f32 v{MLR+2*i}, v{MLR+2*i}')
    e(f'L_t1l:\ns_cmp_lg_u32 s37, 0\ns_cbranch_scc1 L_fin')
    e(f'v_bfe_u32 v{T0}, v0, 4, 1\nv_mul_u32_u24 v{T0}, {768-128}, v{T0}\nv_add_u32 v{T0}, v{T0}, v1\ns_lshl_b32 s26, s36, 7\ns_add_u32 s27, s26, {FD}\ns_add_u32 s26, s26, {XL}')
    e(f'L_t1lw:\n{flagload}\ns_waitcnt vmcnt(0)\nv_cmp_eq_u32 vcc, -1, v{VF}\ns_cmp_eq_u32 vcc_lo, 0\ns_cbranch_scc1 L_t1ld'); budget(e, 'L_t1lw')
    e('L_t1ld:')
    for x in mll: e(x)
    e(f'{uni}\ns_cbranch_scc1 L_t1lg\nv_mov_b32 v{U0}, s47\ns_waitcnt vmcnt(14)\nv_add_f32 v{U1}, v{MLR+1}, v{MLR+3}')
    for i in range(2, 16): e(f's_waitcnt vmcnt({15-i})\nv_add_f32 v{U1}, v{U1}, v{MLR+2*i+1}')
    e(f'L_t1lb:\nv_mov_b32 v{T1}, v{U1}\nv_min_u32 v{U0}, -2, v{U0}\ns_nop 0\nv_permlane32_swap_b32 v{U1}, v{T1}\nv_add_f32 v{U1}, v{U1}, v{T1}\nv_min_u32 v{U1}, -2, v{U1}')
    e(f's_mov_b32 exec_hi, 0\nbuffer_store_dwordx2 {vr(U0,2)}, v{T0}, s[16:19], s26 offen sc1')
    stamp(e, c, 10)
    if c.wb:
        e(f's_mov_b64 exec, 3\nv_lshlrev_b32 v{T0}, 7, v0\ns_mov_b32 s27, {FD}')
        e(f'L_wbw:\ns_sleep 4\nbuffer_load_dword v{T1}, v{T0}, s[16:19], s27 offen sc1\ns_waitcnt vmcnt(0)\nv_cmp_eq_u32 vcc, -1, v{T1}\ns_cbranch_vccz L_wbd'); budget(e, 'L_wbw')
        e('L_wbd:'); stamp(e, c, 13); e('buffer_wbl2 sc1\ns_waitcnt vmcnt(0)'); stamp(e, c, 14)
    e('s_branch L_fin')
    e('L_t1lg:\ns_waitcnt vmcnt(0)')
    weights(U0, U1)
    e(f'v_mul_f32 v{U1}, v{MLR}, v{MLR+1}')
    for i in range(1, 16): e(f'v_fmac_f32 v{U1}, v{MLR+2*i}, v{MLR+2*i+1}')
    e('s_branch L_t1lb')
    e('L_t1gen:')
    for x in mll: e(x)
    for i in range(16): e(f's_add_u32 s30, s27, {2*PS_*i}\nbuffer_load_dwordx4 {vr(X+4*i)}, v{VX}, s[16:19], s30 offen sc1')
    e('s_waitcnt vmcnt(16)')
    weights(U0, U1)
    T = 32
    e('s_waitcnt vmcnt(0)')
    for i in range(16):
        for d in range(4): e(f'v_lshlrev_b32 v{T+2*d}, 16, v{X+4*i+d}\nv_and_b32 v{T+2*d+1}, 0xffff0000, v{X+4*i+d}')
        for d in range(4):
            if i == 0: e(f'v_pk_mul_f32 {vr(D+2*d,2)}, {vr(T+2*d,2)}, {vr(MLR,2)} op_sel_hi:[1,0]')
            else: e(f'v_pk_fma_f32 {vr(D+2*d,2)}, {vr(T+2*d,2)}, {vr(MLR+2*i,2)}, {vr(D+2*d,2)} op_sel_hi:[1,0,1]')
    e('s_nop 1')
    for k in range(8): e(f'v_permlane32_swap_b32 v{D+k}, v{T+k}')
    for k in range(8): e(f'v_add_f32 v{D+k}, v{D+k}, v{T+k}')
    e('s_branch L_t1back')
    xgload = f's_mov_b64 exec, 1\nbuffer_load_dwordx2 {vr(XG,2)}, off, s[20:23], s39 offset:32 sc1\ns_mov_b64 exec, -1'
    e(f'L_s_hook:\ns_cmp_lg_u32 s25, {c.hook1}\ns_cbranch_scc1 L_h2')
    late_load(e, LF, LA); e(xgload)
    e(f'L_h2:\ns_cmp_lg_u32 s25, {c.hook2}\ns_cbranch_scc1 L_h3\ns_waitcnt vmcnt(0)')
    if not c.iso: late_wait(e, LF, LA)
    e(f'L_xg:\nv_add_u32 v{TMP}, v{XG}, v{XG+1}\ns_nop 0\nv_readfirstlane_b32 s30, v{TMP}\ns_mul_i32 s30, s30, 0x01010101\ns_lshr_b32 s30, s30, 24\ns_cmp_ge_u32 s30, 32\ns_cbranch_scc1 L_xgd')
    e(f's_sleep 8\n{xgload}\ns_waitcnt vmcnt(0)'); budget(e, 'L_xg')
    e('L_xgd:'); local_flag(e, XG, 32)
    if not c.local: e('s_mov_b32 s59, 0')
    e(f'v_mov_b32 v{TMP}, s59\nv_mov_b32 v{TMP+1}, {LOCW}\nds_write_b32 v{TMP+1}, v{TMP}')
    t1_setup()
    e(f'L_h3:\ns_cmp_lg_u32 s25, {c.ptouch}\ns_cbranch_scc1 L_h4')
    if c.local and not nost:
        e(f's_mul_i32 s30, s37, {PS_}\ns_add_u32 s30, s30, s38\ns_mul_i32 s31, s3, {PS_//4}\ns_add_u32 s30, s30, s31\nv_mul_u32_u24 v{TMP+2}, 128, v0\ns_mov_b32 exec_hi, 0x1ffff')
        e(f'buffer_load_dword v{XG+2}, v{TMP+2}, s[16:19], s30 offen\ns_add_u32 s30, s30, {49*128}\nbuffer_load_dword v{XG+2}, v{TMP+2}, s[16:19], s30 offen\ns_mov_b32 exec_hi, -1')
    e(f'L_h4:\ns_cmp_lg_u32 s25, {c.fsamp}\ns_cbranch_scc1 L_h5\n{flagload}\nL_h5:\ns_bitcmp1_b32 s48, s25\ns_cbranch_scc0 L_s_next')
    if Ks:
        unstage(Ks, 's', TMP, 46)
        e('s_mov_b32 s46, s47')
    e('s_branch L_s_next')
    flush_deferred(e)
    e(f'L_aretry:\nv_min_u32 v{T1}, 47, v0\nv_lshlrev_b32 v{T1}, 9, v{T1}\nL_aw:\ns_sub_u32 s61, s61, 1\ns_cmp_gt_i32 s61, 0\ns_cbranch_scc0 L_aok')
    e(f'buffer_load_dword v{T0}, v{T1}, s[16:19], s52 offen sc1\ns_waitcnt vmcnt(0)\nv_cmp_eq_u32 vcc, -1, v{T0}\ns_cbranch_vccz L_aload\ns_sleep 4\ns_branch L_aw')
    e('L_aload:')
    for x, _, _ in aload: e(x)
    validate(e, aload, T0)
    e('s_cbranch_vccnz L_aretry\ns_branch L_aok')
    e('L_s_slow:')
    e(f'v_max3_f32 v{TMP}, v{S}, v{S+1}, v{S+2}\nv_max_f32 v{TMP}, v{TMP}, v{S+3}')
    xsum16_32(e, TMP, TMP + 1, 'v_max_f32')
    e(f'ds_write_b32 v{MXW}, v{TMP}\ns_waitcnt lgkmcnt(0)\ns_barrier')
    e(f'ds_read2_b32 {vr(TMP,2)}, v{MXS} offset0:0 offset1:32\ns_waitcnt lgkmcnt(0)\nv_max_f32 v{TMP}, v{TMP}, v{TMP+1}')
    quant(TMP)
    e(f'v_max_f32 v{TMP+1}, 0, v{TMP}\nv_cndmask_b32 v{TMP}, v{TMP+1}, v{TMP}, s[28:29]\ns_mov_b64 s[28:29], 0')
    for i in range(4): e(f'v_sub_f32 v{NEGM+i}, v{NEGM+i}, v{TMP}\nv_sub_f32 v{S+i}, v{S+i}, v{TMP}')
    expwrite()
    e(f's_waitcnt lgkmcnt(0)\ns_barrier\ns_cmp_lg_u32 s25, {n}\ns_cbranch_scc1 L_s_back\ns_branch L_s_last')

def code_touch(e, c):
    nl = c.code_bytes // 128 // 32; lb = e.label('L_pc')
    e(f's_getpc_b64 s[24:25]\n{lb}:\ns_sub_u32 s24, s24, {lb}-{KNAME}\ns_subb_u32 s25, s25, 0\ns_lshr_b32 s30, s6, 3\ns_mul_i32 s30, s30, {nl*128}')
    e(f'v_lshl_add_u32 v2, v0, 7, s30\ns_mov_b64 exec, {(1<<nl)-1}\nglobal_load_dword v55, v2, s[24:25]\ns_mov_b64 exec, -1')

def helper_extra(e, c):
    e('L_extra:'); late_consts(e); e('s_waitcnt lgkmcnt(0)')
    if c.touch:
        e('s_cmp_lg_u32 s7, 7\ns_cbranch_scc1 L_x6'); code_touch(e, c); e('s_endpgm\nL_x6:')
    e('s_cmp_ge_u32 s2, 48\ns_cbranch_scc1 L_end\ns_cmp_lg_u32 s7, 6\ns_cbranch_scc1 L_end')
    e('s_getreg_b32 s30, hwreg(HW_REG_XCC_ID, 0, 4)\ns_cmp_ge_u32 s30, 8\ns_cbranch_scc1 L_end\ns_lshl_b32 s30, s30, 3\ns_lshl_b64 s[32:33], 1, s30')
    e(f's_and_b32 s30, s2, 1\ns_lshl_b32 s30, s30, 7\nv_mov_b32 v2, s32\nv_mov_b32 v3, s33\ns_mov_b64 exec, 1\nbuffer_atomic_add_x2 v[2:3], off, s[20:23], s30 offset:8\ns_endpgm')

def gen(c):
    e = E()
    nwg = 256
    head = f'; @launch grid=({nwg},1,1) block=(512,1,1) lds={LDS_BYTES}\n.amdgcn_target "amdgcn-amd-amdhsa--gfx950"\n.text\n'
    kstart(e, KNAME)
    stamp(e, c, 0)
    e(f'v_lshrrev_b32 v1, 6, v0\nv_and_b32 v0, 63, v0\nv_readfirstlane_b32 s7, v1')
    for r, nm in ((8, 'feat_hi'), (98, 'q'), (12, 'feat_lo'), (16, 'ws'), (20, 'dbg')): e(f's_load_dwordx2 s[{r}:{r+1}], s[0:1], {KA[nm]}')
    e(f's_cmpk_ge_u32 s2, {nwg}\ns_cbranch_scc1 L_end\ns_mov_b32 s6, s2\ns_and_b32 s3, s7, 3')
    e('s_lshr_b32 s2, s2, 2\ns_and_b32 s33, s6, 3\ns_cbranch_scc0 L_hent')
    e('s_mul_i32 s35, s2, 3\ns_add_u32 s35, s35, s33\ns_sub_u32 s35, s35, 1')
    e(f's_bitcmp1_b32 {c.smask}, s7\ns_cbranch_scc0 L_strm\ns_mov_b32 s31, s7\ns_mov_b32 s30, s35\ns_mov_b32 s32, 12\ns_branch L_tch')
    e('L_hent:\ns_cmp_ge_u32 s2, 60\ns_cbranch_scc1 L_spare\ns_cmp_lt_u32 s7, 4\ns_cbranch_scc1 L_hq\ns_cmp_gt_u32 s7, 5\ns_cbranch_scc1 L_extra')
    e('s_mov_b32 s31, 2\ns_and_b32 s30, s2, 62\ns_add_u32 s30, s30, s3\ns_mov_b32 s32, 36')
    e('L_tch:\ns_lshl3_add_u32 s34, s31, 24\ns_load_dwordx2 s[96:97], s[0:1], s34')
    e('s_mul_i32 s30, s30, s32\nv_add_u32 v2, s30, v0\nv_mul_u32_u24 v3, 0xaaab, v2\nv_lshrrev_b32 v3, 18, v3')
    e('s_cmp_eq_u32 s31, 3\ns_cselect_b32 s30, 6, 0\nv_mad_u32_u24 v2, v3, s30, v2\nv_lshlrev_b32 v2, 7, v2')
    e('s_bfm_b64 exec, s32, 0\ns_waitcnt lgkmcnt(0)\nglobal_load_dword v55, v2, s[96:97]\ns_mov_b64 exec, -1\ns_cmp_lg_u32 s33, 0\ns_cbranch_scc1 L_strm\ns_endpgm')
    e('L_hq:\ns_lshr_b32 s30, s2, 1\ns_lshl2_add_u32 s30, s30, s7\ns_min_u32 s30, s30, 0x5f\ns_bitcmp1_b32 s2, 0\ns_cselect_b32 s31, 0x60, 0\ns_add_u32 s30, s30, s31\ns_lshl_b32 s30, s30, 7\nv_mov_b32 v3, s30')
    e('s_mov_b64 exec, 1\ns_waitcnt lgkmcnt(0)\nglobal_load_dword v255, v3, s[98:99]\ns_mov_b64 exec, -1')
    e('s_cmp_lt_u32 s2, 48\ns_cbranch_scc1 L_tail\ns_branch L_pf\nL_strm:')
    streamer(e, c)
    role_spare(e, c); helper_extra(e, c); role_pf(e, c); role_tail(e, c)
    e(f'.fill ({c.code_bytes} - (. - {KNAME})) / 4, 4, 0xbf800000\ns_endpgm\ns_endpgm')
    return head + e.text() + '.section .rodata,"a"\n' + kdesc(KNAME, 256, 100, 256)

if __name__ == '__main__':
    c = Cfg()
    for a in sys.argv[2:]:
        k, v = a.split('='); setattr(c, k, eval(v))
    t = gen(c)
    open(sys.argv[1], 'w').write(t)
    print(hazard.check(t), 'hazards')
```

```python
import sys, math
from common import *
import hazard
KNAME = 'standalone__detection_seg_detr_decoder__vision_kernel'
QF, TF, AF = 0x0, 0x6000, 0xC000
UF, HF, ST, GF = 0x18000, 0x24000, 0x2A000, 0x2C000
XU, XL, FL, TKC = 0x44000, 0x8C000, 0x8D000, 0x8E000
WCF, YF, DG, PART = 0xA0000, 0x130000, 0x180000, 0x200000
PS_ = 49152 + 1024
LOG2E = 1.4426950408889634
TILE = 30720; NSLOT = 5; PB = TILE * NSLOT
MXB = PB + 5120; TKW = MXB + 256
LDS_BYTES = 159744
NH = 64

class Cfg:
    diag = False; Ks = 2; Kp = 2; jp = 33; pf = True; touch = True; chunk = 1
    order = 'ssp'; cu = ((1, 4, 7), (2, 5, 8), (3, 6, 8), (2, 4, 7)); rd0 = 9; dyn = True; nshard = 8; n1 = 16; satom = True; tpos = (0, 0)
    wstep = 2; pprio = 1; d1 = (-2, -1, 0, 1, 2, 3, 4, 5); d2 = (7, 8, 9, 10, 11, 12, 13, 14); send = True
    code_bytes = 0x8000; iso = False; pro = 0; hot = False; cut = 0; fine = None; tl = False
    local = True; weave = 24; smask = 15; pnt = ''
    hookx = 4; t1sleep = 1; ndyn = 6; bsamp = 6

def stamp(e, c, k):
    if c.diag: e(f's_memrealtime s[{64+2*k}:{65+2*k}]')
def dump(e, c):
    if not c.diag: return
    e('s_waitcnt lgkmcnt(0)\ns_mov_b64 exec, 1')
    e(f's_lshl_b32 s60, s2, 3\ns_add_u32 s60, s60, s7\ns_lshl_b32 s60, s60, 6\ns_add_u32 s60, s60, {DG}\nv_mov_b32 v1, 0')
    for k in range(16): e(f'v_mov_b32 v2, s{64+2*k}\nbuffer_store_dword v2, v1, s[16:19], s60 offen offset:{4*k}')

def late_consts(e):
    e(f's_mov_b32 s18, {SZ["ws"]}\ns_mov_b32 s19, 0x20000\ns_mov_b32 s22, {SZ["dbg"]}\ns_mov_b32 s23, 0x20000\ns_mov_b32 s61, 100000')
def budget(e, lp): e(f's_sub_u32 s61, s61, 1\ns_cmp_gt_i32 s61, 0\ns_cbranch_scc1 {lp}')
def early_load(e, v, sqh):
    e(f's_lshl_b32 s60, s{sqh}, 7\ns_mov_b64 exec, 1\nbuffer_load_dwordx4 {vr(v)}, off, s[20:23], s60 sc1\ns_mov_b64 exec, -1')
def early_wait(e, v, words):
    lp = e.label('L_ew')
    e(f'{lp}:\nv_readfirstlane_b32 s30, v{v+words[0]}')
    if len(words) > 1: e(f'v_readfirstlane_b32 s31, v{v+words[1]}\ns_and_b32 s30, s30, s31')
    e(f's_cmp_lg_u32 s30, 0\ns_cbranch_scc0 {lp}_r\n{lp}_d:')
    e.deferred.append(f'{lp}_r:\ns_sleep 2\ns_mov_b64 exec, 1\nbuffer_load_dwordx4 {vr(v)}, off, s[20:23], s60 sc1\ns_mov_b64 exec, -1\ns_waitcnt vmcnt(0)\ns_sub_u32 s61, s61, 1\ns_cmp_gt_i32 s61, 0\ns_cbranch_scc1 {lp}\ns_branch {lp}_d')
def late_addr(e, va): e(f'v_and_b32 v{va}, 1, v0\nv_lshlrev_b32 v{va}, 7, v{va}')
def late_load(e, v, va): e(f's_mov_b64 exec, 3\nbuffer_load_dwordx2 {vr(v,2)}, v{va}, s[20:23], 0 offen offset:16 sc1\ns_mov_b64 exec, -1')
def late_wait(e, v, va):
    lp = e.label('L_lw')
    e(f'{lp}:\nv_and_b32 v{v}, v{v}, v{v+1}\nv_cmp_eq_u32 vcc, 0, v{v}\ns_and_b32 s30, vcc_lo, 3\ns_cbranch_scc1 {lp}_r\n{lp}_d:')
    e.deferred.append(f'{lp}_r:\ns_sleep 8\ns_mov_b64 exec, 3\nbuffer_load_dwordx2 {vr(v,2)}, v{va}, s[20:23], 0 offen offset:16 sc1\ns_mov_b64 exec, -1\ns_waitcnt vmcnt(0)\ns_sub_u32 s61, s61, 1\ns_cmp_gt_i32 s61, 0\ns_cbranch_scc1 {lp}\ns_branch {lp}_d')
def flag_set(e, base, sidx, t):
    sk = e.label('L_fs')
    e(f's_cmp_lg_u32 s3, 0\ns_cbranch_scc1 {sk}\ns_lshl_b32 s30, s{sidx}, 7\ns_add_u32 s30, s30, {base}\nv_mov_b32 v{t}, 1\ns_mov_b64 exec, 1\nbuffer_store_dword v{t}, off, s[16:19], s30 sc1\ns_mov_b64 exec, -1\n{sk}:')
def flag_wait0(e, base, n, t, late=False):
    sk = e.label('L_fw')
    e(f's_cmp_lg_u32 s3, 0\ns_cbranch_scc1 {sk}')
    if late: late_addr(e, 1); late_load(e, t, 1); e('s_waitcnt vmcnt(0)'); late_wait(e, t, 1)
    e(f'v_min_u32 v1, {n-1}, v0\nv_lshlrev_b32 v1, 7, v1\ns_mov_b32 s30, {base}\n{sk}_l:\nbuffer_load_dword v{t}, v1, s[16:19], s30 offen sc1\ns_waitcnt vmcnt(0)\nv_cmp_eq_u32 vcc, -1, v{t}\ns_cbranch_vccz {sk}\ns_sleep 8')
    budget(e, f'{sk}_l')
    e(f'{sk}:\ns_barrier')

def validate(e, loads, t, younger=0):
    first = True
    for i, (_, r, n) in enumerate(loads):
        e(f's_waitcnt vmcnt({len(loads)-1-i+younger})')
        rs = list(range(r, r + n))
        if first:
            e(f'v_max_u32 v{t}, v{rs[0]}, v{rs[1]}'); rs = rs[2:]; first = False
        while rs:
            e(f'v_max3_u32 v{t}, v{t}, v{rs[0]}, v{rs[1]}'); rs = rs[2:]
    e(f'v_cmp_eq_u32 vcc, -1, v{t}')
def gather(e, loads, t):
    lp = e.label('L_g')
    e(f'{lp}:')
    for x, _, _ in loads: e(x)
    e('s_sub_u32 s61, s61, 1\ns_cmp_gt_i32 s61, 0\ns_cselect_b64 s[62:63], -1, 0')
    validate(e, loads, t)
    e(f's_and_b64 vcc, vcc, s[62:63]\ns_cbranch_scc1 {lp}')
def frag_loads(dst, n, voff, sreg0, flags=' sc1'):
    return [(f'buffer_load_dwordx4 {vr(dst+4*k)}, v{voff}, s[16:19], s{sreg0+k//4} offen offset:{1024*(k%4)}{flags}', dst + 4 * k, 4) for k in range(n)]
def soffs(e, s0, n):
    for k in range(1, n): e(f's_add_u32 s{s0+k}, s{s0}, {4096*k}')
def tile_off(e, vo, q, g, t):
    e(f'v_lshrrev_b32 v{vo}, 1, v{g}\nv_lshlrev_b32 v{vo}, 8, v{vo}\nv_lshl_add_u32 v{vo}, v{q}, 4, v{vo}')
def hstore(e, text, local):
    if not local: e(text + ' sc1'); return
    lb = e.label('L_hs')
    e(f's_cmp_lg_u32 s59, 0\ns_cbranch_scc0 {lb}\n{text}\n{lb}_b:')
    e.deferred.append(f'{lb}:\n{text} sc1\ns_branch {lb}_b')
def flush_deferred(e):
    for x in e.deferred: e(x)
    e.deferred = []
def pack_store(e, D, P, voff, soff, keep=None, local=False):
    e(f'v_cvt_pk_bf16_f32 v{P}, v{D}, v{D+1}\nv_cvt_pk_bf16_f32 v{P+1}, v{D+2}, v{D+3}\nv_min_u32 v{P}, -2, v{P}\nv_min_u32 v{P+1}, -2, v{P+1}')
    e(f'v_mov_b64 {vr(keep,2)}, {vr(P,2)}' if keep else 's_nop 0')
    e(f'v_permlane16_swap_b32 v{P}, v{P+2}\nv_permlane16_swap_b32 v{P+1}, v{P+3}')
    e('s_mov_b32 exec_lo, 0xffff\ns_mov_b32 exec_hi, 0xffff')
    hstore(e, f'buffer_store_dwordx4 {vr(P)}, v{voff}, s[16:19], s{soff} offen', local)
    e('s_mov_b64 exec, -1')
def local_flag(e, v, n=24):
    e(f'v_readfirstlane_b32 s56, v{v}\nv_readfirstlane_b32 s57, v{v+1}\ns_getreg_b32 s30, hwreg(HW_REG_XCC_ID, 0, 4)\ns_lshl_b32 s30, s30, 3')
    e(f's_lshr_b64 s[56:57], s[56:57], s30\ns_and_b32 s56, s56, 0xff\ns_cmp_eq_u32 s56, {n}\ns_cselect_b32 s59, 1, 0\ns_cmp_lt_u32 s30, 64\ns_cselect_b32 s59, s59, 0')

def rows_src(e, vo, stride, t0, t1, t2):
    e('s_lshl_b32 s30, s3, 1\ns_lshr_b32 s30, 0x78, s30\ns_and_b32 s30, s30, 3')
    e(f's_mul_i32 s31, s3, {4*stride}')
    for b in range(3):
        e(f'v_add_u32 v{t0}, {64*b}, v0\nv_mul_u32_u24 v{t1}, 1366, v{t0}\nv_lshrrev_b32 v{t1}, 16, v{t1}')
        e(f'v_mul_u32_u24 v{t2}, 48, v{t1}\nv_sub_u32 v{t0}, v{t0}, v{t2}\nv_lshl_or_b32 v{t2}, v{t1}, 2, s30\nv_xor_b32 v{t0}, v{t0}, v{t2}')
        e(f'v_mul_u32_u24 v{t1}, {stride}, v{t1}\nv_lshl_add_u32 v{t0}, v{t0}, 4, v{t1}\nv_add_u32 v{vo+b}, s31, v{t0}')
def rows_dma(e, vo, srd, soff, ldsbase, ntile, stride, fl=''):
    e(f's_mul_i32 s30, s3, 3072\ns_add_u32 m0, s30, {ldsbase}')
    lp = e.label('L_rd')
    if ntile > 1: e(f's_mov_b32 s31, {ntile}\n{lp}:')
    for b in range(3):
        e(f's_nop 0\nbuffer_load_dwordx4 v{vo+b}, {srd}, s{soff} offen{fl} lds\ns_add_u32 m0, m0, {1024 if b < 2 else 12288-2048}')
    if ntile > 1: e(f's_add_u32 s{soff}, s{soff}, {16*stride}\ns_sub_u32 s31, s31, 1\ns_cmp_lg_u32 s31, 0\ns_cbranch_scc1 {lp}')
def rows_rd(e, va, base, t0, t1, t2):
    e(f'v_and_b32 v{t0}, 15, v0\nv_lshrrev_b32 v{t1}, 2, v{t0}\nv_lshlrev_b32 v{t1}, 1, v{t1}\ns_mov_b32 s30, 0x78\nv_lshrrev_b32 v{t1}, v{t1}, s30\nv_and_b32 v{t1}, 3, v{t1}')
    e(f'v_and_b32 v{t2}, 3, v0\nv_lshl_or_b32 v{t1}, v{t2}, 2, v{t1}\nv_lshrrev_b32 v{t2}, 4, v0\nv_xor_b32 v{t1}, v{t1}, v{t2}')
    e(f'v_mul_u32_u24 v{t0}, 768, v{t0}\nv_lshl_add_u32 v{t0}, v{t1}, 4, v{t0}\nv_add_u32 v{va}, {base}, v{t0}')
    for b in range(1, 4): e(f'v_xor_b32 v{va+b}, {64*b}, v{va}')
def rowgemm(e, va, ntile, BF, AFR, D, P, voff, soff):
    lp = e.label('L_rg')
    e(f's_mov_b32 s31, {ntile}\n{lp}:')
    for ks in range(12): e(f'ds_read_b128 {vr(AFR+4*ks)}, v{va+(ks&3)} offset:{256*(ks>>2)}')
    for ks in range(12):
        e(f's_waitcnt lgkmcnt({11-ks})\nv_mfma_f32_16x16x32_bf16 {vr(D)}, {vr(AFR+4*ks)}, {vr(BF+4*ks)}, {vr(D) if ks else 0}')
    for b in range(4): e(f'v_add_u32 v{va+b}, 12288, v{va+b}')
    e('s_nop 3')
    pack_store(e, D, P, voff, soff)
    e(f's_add_u32 s{soff}, s{soff}, 512\ns_sub_u32 s31, s31, 1\ns_cmp_lg_u32 s31, 0\ns_cbranch_scc1 {lp}')
def slab128_src(e, vo, stride, t0, t1):
    e(f'v_lshrrev_b32 v{vo}, 3, v0\nv_mul_u32_u24 v{vo}, {stride}, v{vo}')
    e(f'v_bfe_u32 v{t0}, v0, 4, 1\ns_and_b32 s30, s3, 1\ns_lshl_b32 s30, s30, 1\nv_or_b32 v{t0}, s30, v{t0}\nv_lshlrev_b32 v{t0}, 1, v{t0}')
    e(f'v_and_b32 v{t1}, 7, v0\nv_xor_b32 v{t0}, v{t0}, v{t1}\nv_lshl_add_u32 v{vo}, v{t0}, 4, v{vo}')
def slab128_dma(e, vo, srd, sj, stride, ldsbase, n=12, srow=None):
    e(f's_lshl_b32 s34, s{sj}, 7\ns_mul_i32 s30, s3, {8*stride}\ns_add_u32 s34, s34, s30\ns_lshl_b32 s30, s3, 10\ns_add_u32 m0, s30, {ldsbase}')
    lp = e.label('L_sl')
    if srow: e(f's_add_u32 s34, s34, s{srow}')
    e(f's_mov_b32 s31, {n}\n{lp}:\nbuffer_load_dwordx4 v{vo}, {srd}, s34 offen lds')
    e(f's_add_u32 s34, s34, {32*stride}\ns_add_u32 m0, m0, 4096\ns_sub_u32 s31, s31, 1\ns_cmp_lg_u32 s31, 0\ns_cbranch_scc1 {lp}')
def slab128_rd(e, vo, t0, t1):
    e(f'v_bfe_u32 v{t0}, v0, 2, 2\nv_lshrrev_b32 v{t1}, 4, v0\nv_lshlrev_b32 v{vo}, 10, v{t1}\nv_lshl_add_u32 v{vo}, v{t0}, 7, v{vo}')
    e(f'v_lshrrev_b32 v{t0}, 1, v{t0}\nv_and_b32 v{t1}, 1, v{t1}\nv_lshl_or_b32 v{t0}, v{t1}, 1, v{t0}\nv_lshl_add_u32 v{vo}, v{t0}, 5, v{vo}')
    e(f'v_and_b32 v{t0}, 3, v0\nv_lshl_add_u32 v{vo}, v{t0}, 3, v{vo}')
def slab32_src(e, vout, t, stride):
    e(f'v_lshrrev_b32 v{vout}, 1, v0\nv_bfe_u32 v{t}, v0, 4, 1\nv_lshlrev_b32 v{t}, 2, v{t}\nv_xor_b32 v{vout}, v{vout}, v{t}')
    e(f'v_mul_u32_u24 v{vout}, {stride}, v{vout}\nv_and_b32 v{t}, 1, v0\nv_lshl_add_u32 v{vout}, v{t}, 4, v{vout}')
def slab32_rd(e, v0_, v1_, t):
    e(f'v_lshrrev_b32 v{t}, 4, v0\nv_lshlrev_b32 v{v0_}, 8, v{t}\nv_and_b32 v{t}, 1, v{t}\nv_lshl_add_u32 v{v0_}, v{t}, 7, v{v0_}')
    e(f'v_and_b32 v{t}, 15, v0\nv_lshl_add_u32 v{v0_}, v{t}, 3, v{v0_}\nv_xor_b32 v{v1_}, 128, v{v0_}')
def ln_finish(e, s1, s2):
    e(f'v_mul_f32 v{s1}, {fx(1/384)}, v{s1}\nv_mul_f32 v{s2}, {fx(1/384)}, v{s2}\nv_fma_f32 v{s2}, -v{s1}, v{s1}, v{s2}\nv_max_f32 v{s2}, 0, v{s2}\nv_add_f32 v{s2}, {fx(1e-5)}, v{s2}\nv_rsq_f32 v{s2}, v{s2}')
```

```python
from gen_v10_base import *

def wait_a(e):
    lw = e.label('L_aw')
    e(f's_cmp_lg_u32 s7, 0\ns_cbranch_scc1 {lw}_d\ns_sleep 40'); early_load(e, 12, 4); e('s_waitcnt vmcnt(0)'); early_wait(e, 12, (1,))
    e(f's_mul_i32 s30, s4, 24576\ns_add_u32 s30, s30, {AF}\ns_mov_b64 exec, 1\n{lw}:\ns_sleep 8\nbuffer_load_dword v9, off, s[16:19], s30 offset:256 sc1\ns_waitcnt vmcnt(0)\nv_cmp_ne_u32 vcc, -1, v9\ns_cbranch_vccnz {lw}_x')
    budget(e, lw)
    e(f'{lw}_x:\ns_mov_b64 exec, -1\n{lw}_d:\ns_barrier')

def role_pf(e, c):
    e('L_pf:'); late_consts(e); e('s_waitcnt lgkmcnt(0)')
    if c.cut in (3, 6) or c.iso or c.pro or not c.pf: e('s_endpgm'); return
    load_srds(e, [(8, 'w1'), (12, 'w2')])
    e('s_and_b32 s4, s2, 1\ns_sub_u32 s5, s2, 48\ns_lshr_b32 s5, s5, 1\ns_lshl_b32 s5, s5, 2\ns_add_u32 s5, s5, s3\ns_mul_i32 s5, s5, 49152\nv_lshlrev_b32 v2, 7, v0')
    wait_a(e)
    e('s_waitcnt lgkmcnt(0)\ns_cmp_eq_u32 s4, 0\ns_cselect_b64 s[24:25], s[8:9], s[12:13]\ns_cselect_b64 s[8:9], s[12:13], s[8:9]')
    for m in range(2):
        for k in range(6): e(f's_add_u32 s30, s5, {8192*k}\nbuffer_load_dword v3, v2, s[8:11], s30 offen')
        if m == 0: e('s_mov_b64 s[8:9], s[24:25]')
    e('s_endpgm')
    flush_deferred(e)

def role_spare(e, c):
    e('L_spare:'); late_consts(e)
    if c.iso: e('s_waitcnt lgkmcnt(0)\ns_branch L_fin')
    e('s_and_b32 s4, s2, 1\ns_bfe_u32 s5, s2, 0x10001')
    e('v_lshlrev_b32 v2, 4, v0\nv_mov_b64 v[4:5], -1\nv_mov_b64 v[6:7], -1\nv_mov_b32 v8, 1')
    e(f's_mul_i32 s36, s4, 12288\ns_lshl_b32 s36, s36, s5\ns_mul_i32 s30, s7, 3072\ns_add_u32 s36, s36, s30')
    e(f's_cmp_ge_u32 s7, 4\ns_cselect_b32 s30, {TF-12288}, 0\ns_cmp_lg_u32 s5, 0\ns_cselect_b32 s30, {AF}, s30\ns_add_u32 s36, s36, s30\ns_waitcnt lgkmcnt(0)')
    for k in range(3): e(f'buffer_store_dwordx4 v[4:7], v2, s[16:19], s36 offen offset:{1024*k} sc1')
    e(f's_lshl_b32 s38, s4, 7\ns_lshl_b32 s30, s5, 2\ns_add_u32 s38, s38, s30\ns_and_b32 s36, s2, 3\ns_lshl_b32 s36, s36, 3\ns_add_u32 s36, s36, s7\ns_lshl_b32 s36, s36, 14\ns_add_u32 s36, s36, {UF}')
    for off in (0, 16):
        sk = e.label('L_sp')
        e(f's_waitcnt vmcnt(0)\ns_barrier\ns_cmp_lg_u32 s7, 0\ns_cbranch_scc1 {sk}\ns_mov_b64 exec, 1\nbuffer_store_dword v8, off, s[20:23], s38 offset:{off} sc1\ns_mov_b64 exec, -1\n{sk}:')
        stamp(e, c, 1 + off // 16)
        if off == 0:
            wait_a(e)
            for k in range(16 if c.cut != 6 else 0):
                e(f'buffer_store_dwordx4 v[4:7], v2, s[16:19], s36 offen offset:{1024*(k%4)} sc1')
                if k % 4 == 3: e('s_add_u32 s36, s36, 4096')
    e('s_branch L_fin')
    flush_deferred(e)

def role_tail(e, c):
    e('L_tail:\ns_waitcnt lgkmcnt(0)')
    load_srds(e, [(44, 'q'), (40, 'wq'), (8, 'wkv'), (12, 'lat_hi'), (24, 'lat_lo')])
    e('s_and_b32 s4, s2, 1\ns_lshr_b32 s5, s2, 1\ns_mul_i32 s35, s4, 12288')
    WF, XF, D, PS = 16, 64, 112, 116
    rows_src(e, 4, 768, 8, 9, 10)
    slab32_src(e, 7, 8, 768)
    e(f's_lshl_b32 s36, s5, 5\ns_mul_i32 s30, s3, {96*768}\ns_add_u32 s36, s36, s30\ns_waitcnt lgkmcnt(0)')
    if c.iso: late_consts(e); e('s_branch L_fin')
    rows_dma(e, 4, 's[44:47]', 35, 49152, 1, 768)
    for k in range(3): e('s_nop 0\nbuffer_load_dwordx4 v7, s[40:43], s36 offen lds\ns_add_u32 m0, m0, 1024\ns_add_u32 s36, s36, 24576')
    stamp(e, c, 1)
    e('s_mul_i32 s32, s5, 12288\ns_lshl_b32 s33, s32, 1')
    for b in range(3): e(f'v_add_u32 v8, {64*b}, v0\nv_mul_u32_u24 v8, 1366, v8\nv_lshrrev_b32 v8, 16, v8\nv_mul_u32_u24 v8, 768, v8\nv_add3_u32 v{124+b}, v8, v{4+b}, s31')
    late_consts(e)
    rows_dma(e, 124, 's[8:11]', 33, 12288, 1, 1536, c.pnt)
    rows_dma(e, 4, 's[12:15]', 32, 24576, 1, 768, c.pnt)
    rows_dma(e, 4, 's[24:27]', 32, 36864, 1, 768, c.pnt)
    e('v_lshlrev_b32 v12, 4, v0\nv_and_b32 v2, 15, v0\nv_lshrrev_b32 v3, 4, v0'); tile_off(e, 14, 2, 3, 10)
    rows_rd(e, 120, 12288, 8, 9, 10)
    for k in range(3): e(f's_mul_i32 s30, s3, 192\ns_add_u32 s30, s30, {64*k}\ns_and_b32 s31, s30, 0xc0\ns_and_b32 s30, s30, 0x300\nv_xor_b32 v{121+k}, s31, v120\nv_add_u32 v{121+k}, s30, v{121+k}')
    slab32_rd(e, 6, 7, 8)
    e(f's_mul_i32 s30, s3, 3072\ns_add_u32 s36, s35, s30\ns_add_u32 s37, s36, {TF}\ns_add_u32 s36, s36, {QF}\ns_add_u32 s30, s30, 61440\nv_add_u32 v6, s30, v6\nv_add_u32 v7, s30, v7')
    e(f's_lshl_b32 s38, s5, 9\ns_add_u32 s38, s38, s35\ns_add_u32 s38, s38, {QF}')
    e('s_lshl_b32 s30, s3, 10\nv_add_u32 v9, s30, v12\nv_add_u32 v13, 73728, v9\ns_mov_b32 s30, 0x3f803f80\nv_mov_b64 v[140:141], 0')
    for i in range(4): e(f'v_mov_b32 v{124+i}, s30')
    QW, CS = XF + 12, D + 4
    e('s_waitcnt vmcnt(9)\ns_barrier')
    stamp(e, c, 2)
    early_load(e, 132, 4)
    for k in range(3): e(f'ds_read_b128 {vr(XF+4*k)}, v{121+k} offset:36864')
    for k in range(3): e(f'ds_read_b64_tr_b16 {vr(QW+4*k,2)}, v6 offset:{1024*k}\nds_read_b64_tr_b16 {vr(QW+4*k+2,2)}, v7 offset:{1024*k}')
    e('s_waitcnt lgkmcnt(6)')
    for i in range(12): e(f'v_dot2c_f32_bf16 v140, v{XF+i}, v124\nv_dot2c_f32_bf16 v141, v{XF+i}, v{XF+i}')
    e('s_waitcnt lgkmcnt(0)')
    for k in range(3):
        e(f'v_mfma_f32_16x16x32_bf16 {vr(D)}, {vr(QW+4*k)}, {vr(XF+4*k)}, {vr(D) if k else 0}')
        e(f'v_mfma_f32_16x16x32_bf16 {vr(CS)}, {vr(QW+4*k)}, v[124:127], {vr(CS) if k else 0}')
    for sw in ('16', '32'):
        e(f'v_mov_b64 v[142:143], v[140:141]\ns_nop 1\nv_permlane{sw}_swap_b32 v140, v142\nv_permlane{sw}_swap_b32 v141, v143\nv_add_f32 v140, v140, v142\nv_add_f32 v141, v141, v143')
    p2 = e.label('L_p2')
    e(f'ds_write_b128 v13, {vr(D)}\nds_write_b128 v13, {vr(CS)} offset:4096\nds_write_b64 v13, v[140:141] offset:8192\ns_waitcnt vmcnt(1) lgkmcnt(0)\ns_barrier')
    e(f's_cmp_lg_u32 s3, 0\ns_cbranch_scc1 {p2}')
    for w in range(1, 4): e(f'ds_read_b64 {vr(142+2*w,2)}, v13 offset:{8192+1024*w}')
    for w in range(1, 4): e(f'ds_read_b128 {vr(XF+8*w)}, v13 offset:{1024*w}\nds_read_b128 {vr(XF+8*w+4)}, v13 offset:{4096+1024*w}')
    e(f'{p2}:\ns_waitcnt vmcnt(0)'); early_wait(e, 132, (0, 1)); local_flag(e, 134)
    e(f's_cmp_lg_u32 s3, 0\ns_cbranch_scc1 {p2}_b\ns_waitcnt lgkmcnt(6)')
    for w in range(1, 4): e(f'v_pk_add_f32 v[140:141], v[140:141], {vr(142+2*w,2)}')
    ln_finish(e, 140, 141)
    for w in range(1, 4):
        e(f's_waitcnt lgkmcnt({2*(3-w)})')
        for i in range(0, 8, 2): e(f'v_pk_add_f32 {vr(D+i,2)}, {vr(D+i,2)}, {vr(XF+8*w+i,2)}')
    for i in range(4): e(f'v_fma_f32 v{D+i}, -v140, v{CS+i}, v{D+i}')
    for i in range(4): e(f'v_mul_f32 v{D+i}, v141, v{D+i}')
    pack_store(e, D, PS, 14, 38, local=c.local)
    stamp(e, c, 5)
    e(f'{p2}_b:\ns_add_u32 s38, s38, {TF-QF}\nv_lshlrev_b32 v10, 7, v0\ns_mov_b64 exec, 15\nbuffer_load_dword v11, v10, s[16:19], s38 offen sc1\ns_mov_b64 exec, -1')
    for m in range(3):
        for k in range(3): e(f'ds_read_b128 {vr(WF+12*m+4*k)}, v{121+k} offset:{12288*m}')
    gather(e, frag_loads(XF, 3, 12, 36), 10)
    stamp(e, c, 3)
    e('s_waitcnt lgkmcnt(0)')
    for k in range(3): e(f'v_mfma_f32_16x16x32_bf16 {vr(D)}, {vr(WF+4*k)}, {vr(XF+4*k)}, {vr(D) if k else 0}')
    p3 = e.label('L_p3'); p3b = e.label('L_p3b')
    e('s_nop 7')
    e(f'ds_write_b128 v9, {vr(D)}\ns_waitcnt lgkmcnt(0)\ns_barrier\ns_cmp_lg_u32 s3, 0\ns_cbranch_scc1 {p3}')
    for w in range(1, 4): e(f'ds_read_b128 {vr(XF+4*w)}, v12 offset:{1024*w}')
    for w in (1, 2, 3):
        e(f's_waitcnt lgkmcnt({3-w})')
        for i in range(4): e(f'v_add_f32 v{D+i}, v{D+i}, v{XF+4*w+i}')
    pack_store(e, D, PS, 14, 38, local=c.local)
    e(f'{p3}:')
    gather(e, frag_loads(XF, 3, 12, 37), 10)
    stamp(e, c, 4)
    for k in range(3):
        for t in range(2): e(f'v_mfma_f32_16x16x32_bf16 {vr(D+4*t)}, {vr(WF+12+12*t+4*k)}, {vr(XF+4*k)}, {vr(D+4*t) if k else 0}')
    b2 = e.label('L_b2')
    e(f's_lshl_b32 s38, s5, 9\ns_mul_i32 s31, s3, 12288\ns_add_u32 s38, s38, s31\ns_lshl_b32 s31, s35, 1\ns_add_u32 s38, s38, s31\ns_add_u32 s38, s38, {AF-12288}')
    e(f's_lshl_b32 s30, s3, 12\nv_add_u32 v8, s30, v12\nds_write_b128 v9, {vr(D)} offset:4096\nds_write_b128 v9, {vr(D+4)} offset:8192\ns_waitcnt lgkmcnt(0)\ns_barrier')
    e(f's_add_u32 s30, s3, 1\ns_and_b32 s30, s30, 2\ns_cbranch_scc0 {b2}')
    for w in range(4): e(f'ds_read_b128 {vr(XF+4*w)}, v8 offset:{1024*w}')
    e('s_waitcnt lgkmcnt(2)')
    for i in range(4): e(f'v_add_f32 v{D+i}, v{XF+i}, v{XF+4+i}')
    e('s_waitcnt lgkmcnt(0)')
    for i in range(4): e(f'v_add_f32 v{XF+8+i}, v{XF+8+i}, v{XF+12+i}')
    for i in range(4): e(f'v_add_f32 v{D+i}, v{D+i}, v{XF+8+i}')
    for i in range(4): e(f'v_mul_f32 v{D+i}, {fx(384**-0.5*LOG2E)}, v{D+i}')
    pack_store(e, D, PS, 14, 38)
    stamp(e, c, 5)
    e(f'{b2}:\ns_waitcnt vmcnt(0)\ns_barrier')
    if c.pro or c.cut in (3, 6, 7): e('s_branch L_fin')
    W1, W2, WC, CS, QR = 128, 176, 224, 248, 252
    load_srds(e, [(40, 'q'), (44, 'out'), (52, 'w1'), (96, 'w2'), (36, 'wo')])
    e('s_lshl_b32 s30, s5, 2\ns_add_u32 s30, s30, s3\ns_mul_i32 s30, s30, 24\nv_add_u32 v4, s30, v0\nv_mul_u32_u24 v5, 0xaaab, v4\nv_lshrrev_b32 v5, 18, v5\nv_mad_u32_u24 v5, v5, 6, v4\nv_lshlrev_b32 v4, 7, v4\nv_lshlrev_b32 v5, 7, v5')
    e('s_mov_b64 exec, 0xffffff\ns_waitcnt lgkmcnt(0)\nbuffer_load_dword v6, v4, s[36:39], 0 offen\nbuffer_load_dword v6, v5, s[8:11], 0 offen offset:768\ns_mov_b64 exec, -1')
    slab32_src(e, 126, 10, 768)
    e('v_mul_u32_u24 v15, 768, v2\nv_lshl_add_u32 v15, v3, 3, v15\ns_lshl_b32 s48, s5, 5\ns_add_u32 s48, s48, s35')
    e(f'buffer_load_dwordx2 {vr(QR,2)}, v15, s[40:43], s48 offen')
    e(f's_lshl_b32 s32, s5, 5\ns_mul_i32 s30, s3, {96*768}\ns_add_u32 s32, s32, s30\ns_mul_i32 s30, s3, 3072\ns_add_u32 m0, s30, 147456\ns_waitcnt vmcnt(0)')
    for k in range(3): e('buffer_load_dwordx4 v126, s[36:39], s32 offen lds\ns_add_u32 m0, m0, 1024\ns_add_u32 s32, s32, 24576')
    slab32_rd(e, 124, 125, 10)
    e('v_add_u32 v4, 147456, v124\nv_add_u32 v5, 147456, v125\ns_waitcnt vmcnt(0)\ns_barrier')
    for ks in range(12):
        e(f'ds_read_b64_tr_b16 {vr(XF+4*ks,2)}, v4 offset:{1024*ks}\nds_read_b64_tr_b16 {vr(XF+4*ks+2,2)}, v5 offset:{1024*ks}')
        if ks % 6 == 5: e('s_waitcnt lgkmcnt(0)')
    e('s_barrier')
    RA = 120
    e('s_mul_i32 s34, s3, 36864\ns_add_u32 s49, s34, 36864')
    def rowstream(srd, stride, ntile, tag):
        for b in range(3):
            e(f'v_add_u32 v8, {64*b}, v0\nv_mul_u32_u24 v10, 1366, v8\nv_lshrrev_b32 v10, 16, v10\nv_mul_u32_u24 v11, 48, v10\nv_sub_u32 v8, v8, v11')
            e(f'v_lshlrev_b32 v11, 2, v10\nv_xor_b32 v8, v8, v11\nv_mul_u32_u24 v10, {stride}, v10\nv_lshl_add_u32 v{4+b}, v8, 4, v10')
        rows_rd(e, RA, 0, 8, 10, 11)
        for b in range(4): e(f'v_add_u32 v{RA+b}, s34, v{RA+b}')
        def issue():
            e('s_mov_b32 m0, s50\ns_mov_b32 s33, s32')
            for q in range(4):
                for b in range(3): e(f'v_xor_b32 v8, {[0,2,3,1][q]*16}, v{4+b}\nbuffer_load_dwordx4 v8, {srd}, s33 offen lds\ns_add_u32 m0, m0, 1024')
                if q < 3: e(f's_add_u32 s33, s33, {8*stride}')
            e(f's_add_u32 s50, s50, 12288\ns_cmp_eq_u32 s50, s49\ns_cselect_b32 s50, s34, s50\ns_xor_b32 s51, s51, 1\ns_cselect_b32 s30, 4, 28\ns_mul_i32 s30, s30, {stride}\ns_add_u32 s32, s32, s30')
        e(f's_mov_b32 s50, s34\ns_mov_b32 s51, 0\ns_mov_b32 s31, -3\ns_mov_b32 s29, 0\ns_branch L_{tag}_i')
        e(f'L_{tag}:\ns_waitcnt vmcnt(24)\ns_cmp_lt_i32 s31, {ntile-2}\ns_cbranch_scc1 L_{tag}_w\ns_waitcnt vmcnt(0)\nL_{tag}_w:')
        for ks in range(12): e(f'ds_read_b128 {vr(WF+4*ks)}, v{RA+(ks&3)} offset:{256*(ks>>2)}')
        e('s_add_u32 s29, s29, 1\ns_cmp_eq_u32 s29, 3\ns_cselect_b32 s29, 0, s29\ns_cselect_b32 s30, -2, 1\ns_mulk_i32 s30, 12288')
        for i in range(0, 22, 2): e(f'v_mov_b64 {vr(WC+i,2)}, {vr(WC+i+2,2)}')
        for ks in range(12):
            e(f's_waitcnt lgkmcnt({11-ks})\nv_mfma_f32_16x16x32_bf16 {vr(D)}, {vr(WF+4*ks)}, {vr(XF+4*ks)}, {vr(D) if ks else 0}')
        for b in range(4): e(f'v_add_u32 v{RA+b}, s30, v{RA+b}')
        e(f's_nop 3\nv_cvt_pk_bf16_f32 v{WC+22}, v{D}, v{D+1}\nv_cvt_pk_bf16_f32 v{WC+23}, v{D+2}, v{D+3}')
        e(f's_cmp_ge_i32 s31, {ntile-3}\ns_cbranch_scc1 L_{tag}_n\nL_{tag}_i:')
        issue()
        e(f'L_{tag}_n:\ns_add_u32 s31, s31, 1\ns_cmp_lt_i32 s31, 0\ns_cbranch_scc1 L_{tag}_i\ns_cmp_lt_i32 s31, {ntile}\ns_cbranch_scc1 L_{tag}')
    e(f's_mul_i32 s32, s3, {96*1536}\ns_add_u32 s32, s32, 768')
    rowstream('s[8:11]', 1536, 6, 'ys')
    e('s_mul_i32 s30, s3, 3072\ns_add_u32 s30, s30, 147456\nv_add_u32 v8, s30, v12\nv_add_u32 v10, 147456, v12')
    for k in range(3): e(f'ds_write_b128 v8, {vr(WC+12+4*k)} offset:{1024*k}')
    e('s_waitcnt lgkmcnt(0)\ns_barrier')
    for ks in range(12): e(f'ds_read_b128 {vr(XF+4*ks)}, v10 offset:{1024*ks}')
    e(f's_cmp_ge_u32 s3, 2\ns_cselect_b32 s12, s24, s12\ns_cselect_b32 s13, s25, s13\ns_and_b32 s32, s3, 1\ns_mul_i32 s32, s32, {192*768}\ns_waitcnt lgkmcnt(0)')
    rowstream('s[12:15]', 768, 12, 'ws')
    e('s_barrier')
    stamp(e, c, 6)
    slab128_src(e, 7, 3072, 10, 11)
    slab128_dma(e, 7, 's[52:55]', 5, 3072, 0)
    e(f's_lshl_b32 s32, s5, 5\ns_mul_i32 s30, s3, {384*768}\ns_add_u32 s32, s32, s30\ns_mul_i32 s33, s3, 12288\ns_add_u32 s33, s33, 49152\ns_mov_b32 m0, s33')
    lp = e.label('L_w2')
    e(f's_mov_b32 s31, 12\n{lp}:\nbuffer_load_dwordx4 v126, s[96:99], s32 offen lds\ns_add_u32 m0, m0, 1024\ns_add_u32 s32, s32, 24576\ns_sub_u32 s31, s31, 1\ns_cmp_lg_u32 s31, 0\ns_cbranch_scc1 {lp}')
    slab128_rd(e, 13, 10, 11)
    e('v_add_u32 v6, s33, v124\nv_add_u32 v7, s33, v125\ns_mov_b32 s30, 0x3f803f80')
    for i in range(4): e(f'v_mov_b32 v{124+i}, s30')
    e('s_lshl_b32 s30, s3, 5\nv_xor_b32 v8, s30, v13\ns_mul_i32 s30, s3, 12288\nv_add_u32 v13, s30, v13')
    e('s_waitcnt vmcnt(12)\ns_barrier')
    for ks in range(12):
        for u in range(2): e(f'ds_read_b64_tr_b16 {vr(WF+4*ks+2*u,2)}, v8 offset:{4096*ks+512*u}')
        if ks % 6 == 5: e('s_waitcnt lgkmcnt(0)')
    for ks in range(12): e(f'v_mfma_f32_16x16x32_bf16 {vr(CS)}, {vr(WF+4*ks)}, v[124:127], {vr(CS) if ks else 0}')
    for t in range(4):
        e(f'v_xor_b32 v10, {32*t}, v13')
        for k in range(3):
            for u in range(2): e(f'ds_read_b64_tr_b16 {vr(W1+12*t+4*k+2*u,2)}, v10 offset:{4096*k+512*u}')
        if t % 2: e('s_waitcnt lgkmcnt(0)')
    e('s_waitcnt vmcnt(0)')
    for ks in range(12):
        e(f'ds_read_b64_tr_b16 {vr(W2+4*ks,2)}, v6 offset:{1024*ks}\nds_read_b64_tr_b16 {vr(W2+4*ks+2,2)}, v7 offset:{1024*ks}')
        if ks % 6 == 5: e('s_waitcnt lgkmcnt(0)')
    late_addr(e, 1); late_load(e, 10, 1); e('s_waitcnt vmcnt(0)'); late_wait(e, 10, 1)
    e('s_barrier')
    e(f's_lshl_b32 s38, s35, 1\ns_mul_i32 s30, s3, 6144\ns_add_u32 s38, s38, s30\ns_add_u32 s38, s38, {UF}'); soffs(e, 38, 2)
    e(f's_lshl_b32 s40, s5, 9\ns_add_u32 s40, s40, s35\ns_add_u32 s40, s40, {HF}')
    e(f's_mul_i32 s41, s4, 3072\ns_add_u32 s41, s41, {ST}\ns_lshl_b32 s42, s5, 7\ns_add_u32 s42, s42, s41')
    e(f's_mul_i32 s43, s3, 3072\ns_add_u32 s43, s43, s35\ns_add_u32 s43, s43, {HF}')
    e(f's_lshl_b32 s49, s5, 2\ns_add_u32 s49, s49, s3\ns_lshl_b32 s49, s49, 9\ns_lshl_b32 s30, s35, 2\ns_add_u32 s49, s49, s30\ns_add_u32 s49, s49, {GF}')
    e(f's_mul_i32 s24, s3, 12288\ns_add_u32 s24, s24, s30\ns_add_u32 s24, s24, {GF}'); soffs(e, 24, 3)
    e('v_lshlrev_b32 v11, 3, v0\ns_lshl_b32 s30, s3, 12\nv_add_u32 v8, s30, v12')
    e(f'v_lshlrev_b32 v120, 16, v{QR}\nv_and_b32 v121, 0xffff0000, v{QR}\nv_lshlrev_b32 v122, 16, v{QR+1}\nv_and_b32 v123, 0xffff0000, v{QR+1}')
    c1 = -2 * math.sqrt(2 / math.pi) * LOG2E; c3 = c1 * 0.044715
    e(f's_mov_b32 s50, {fx(c3)}\nv_mov_b32 v124, {fx(c1)}')
    SS = 32
    ld3 = frag_loads(XF, 3, 12, 43) + [(f'buffer_load_dwordx2 {vr(SS+2*i,2)}, v11, s[16:19], s41 offen offset:{512*i} sc1', SS + 2 * i, 2) for i in range(6)]
    early_load(e, 4, 4)
    if c.local:
        for x, _, _ in ld3 + frag_loads(XF, 12, 12, 24) + frag_loads(XF, 6, 12, 38): e(x)
    e('s_waitcnt vmcnt(0)'); local_flag(e, 6)
    stamp(e, c, 7)
    if c.cut: e('s_branch L_fin')
    e(f's_mul_i32 s52, s4, 147456\ns_mul_i32 s30, s5, 6144\ns_add_u32 s52, s52, s30\ns_lshl_b32 s30, s3, 8\ns_add_u32 s52, s52, s30\ns_add_u32 s52, s52, {XU}\ns_add_u32 s53, s52, 4096')
    e(f's_mul_i32 s54, s4, 768\ns_add_u32 s54, s54, {XL}\ns_lshl_b32 s55, s5, 10\ns_add_u32 s55, s55, s30\ns_lshl_b32 s30, s35, 1\ns_add_u32 s55, s55, s30\ns_add_u32 s55, s55, {UF}')
    e('v_lshlrev_b32 v6, 2, v0\nv_lshrrev_b32 v7, 2, v0\nv_lshlrev_b32 v7, 3, v7\nv_lshlrev_b32 v4, 7, v0')
    lp = e.label('L_lp')
    e(f's_mov_b64 exec, 63\n{lp}:\nbuffer_load_dword v5, v4, s[16:19], s54 offen sc1\ns_waitcnt vmcnt(0)\nv_cmp_ne_u32 vcc, -1, v5\ns_cbranch_vccnz {lp}_d\ns_sleep 4')
    budget(e, lp)
    e(f'{lp}_d:\ns_mov_b64 exec, -1')
    stamp(e, c, 8)
    XM, XV = 44, 56
    ldx = [(f'buffer_load_dwordx2 {vr(XM+2*g,2)}, v7, s[16:19], s54 offen offset:{128*g} sc1', XM + 2 * g, 2) for g in range(6)]
    ldx += [(f'buffer_load_dword v{XV+2*g}, v6, s[16:19], s{52+g//2} offen offset:{2048*(g%2)} sc1\nbuffer_load_dword v{XV+2*g+1}, v6, s[16:19], s{52+g//2} offen offset:{2048*(g%2)+1024} sc1', XV + 2 * g, 2) for g in range(3)]
    gather(e, ldx[:6], 10)
    lg = e.label('L_gx')
    for x, _, _ in ldx[6:]: e(x)
    e(f'v_max3_f32 v4, v{XM}, v{XM+2}, v{XM+4}\nv_max3_f32 v4, v4, v{XM+6}, v{XM+8}\nv_max_f32 v4, v4, v{XM+10}')
    for g in range(6): e(f'v_sub_f32 v{XM+2*g}, v{XM+2*g}, v4')
    for g in range(6): e(f'v_exp_f32 v{XM+2*g}, v{XM+2*g}')
    e(f'v_mul_f32 v5, v{XM}, v{XM+1}')
    for g in range(1, 6): e(f'v_fmac_f32 v5, v{XM+2*g}, v{XM+2*g+1}')
    e('v_rcp_f32 v5, v5\ns_nop 0')
    for g in range(6): e(f'v_mul_f32 v{XM+2*g}, v{XM+2*g}, v5')
    e(f's_branch {lg}_c\n{lg}:')
    for x, _, _ in ldx[6:]: e(x)
    e(f'{lg}_c:\ns_sub_u32 s61, s61, 1\ns_cmp_gt_i32 s61, 0\ns_cselect_b64 s[62:63], -1, 0\ns_waitcnt vmcnt(0)')
    e(f'v_max3_u32 v10, v{XV}, v{XV+1}, v{XV+2}\nv_max3_u32 v10, v10, v{XV+3}, v{XV+4}\nv_max_u32 v10, v10, v{XV+5}')
    e(f'v_cmp_eq_u32 vcc, -1, v10\ns_and_b64 vcc, vcc, s[62:63]\ns_cbranch_scc1 {lg}')
    stamp(e, c, 15)
    for g in range(6):
        e(f'v_lshlrev_b32 v16, 16, v{XV+g}\nv_and_b32 v17, 0xffff0000, v{XV+g}')
        e(f'v_mul_f32 v18, v16, v{XM}\nv_mul_f32 v19, v17, v{XM}' if g == 0 else f'v_fmac_f32 v18, v16, v{XM+2*g}\nv_fmac_f32 v19, v17, v{XM+2*g}')
    e('v_cvt_pk_bf16_f32 v18, v18, v19\nv_min_u32 v18, -2, v18')
    hstore(e, 'buffer_store_dword v18, v6, s[16:19], s55 offen', c.local)
    gather(e, frag_loads(XF, 6, 12, 38), 10)
    stamp(e, c, 9)
    for k in range(6): e(f'v_mfma_f32_16x16x32_bf16 {vr(D)}, {vr(WC+4*k)}, {vr(XF+4*k)}, {vr(D) if k else 0}')
    t3 = e.label('L_t3')
    e(f's_nop 7\nds_write_b128 v9, {vr(D)}\ns_waitcnt lgkmcnt(0)\ns_barrier\ns_cmp_lg_u32 s3, 0\ns_cbranch_scc1 {t3}')
    for w in range(1, 4): e(f'ds_read_b128 {vr(16+4*w)}, v12 offset:{1024*w}')
    for i in range(4): e(f'v_add_f32 v{D+i}, v{D+i}, v{120+i}')
    for w in (1, 2, 3):
        e(f's_waitcnt lgkmcnt({3-w})')
        for i in range(4): e(f'v_add_f32 v{D+i}, v{D+i}, v{16+4*w+i}')
    pack_store(e, D, PS, 14, 40, keep=4, local=c.local)
    e('v_lshlrev_b32 v120, 16, v4\nv_and_b32 v121, 0xffff0000, v4\nv_lshlrev_b32 v122, 16, v5\nv_and_b32 v123, 0xffff0000, v5')
    e('v_add_f32 v16, v120, v121\nv_mul_f32 v17, v120, v120\nv_add_f32 v18, v122, v123\nv_fmac_f32 v17, v121, v121\nv_add_f32 v16, v16, v18\nv_fmac_f32 v17, v122, v122\nv_fmac_f32 v17, v123, v123')
    for sw in ('16', '32'):
        e(f'v_mov_b32 v18, v16\nv_mov_b32 v19, v17\ns_nop 0\nv_permlane{sw}_swap_b32 v16, v18\nv_permlane{sw}_swap_b32 v17, v19\nv_add_f32 v16, v16, v18\nv_add_f32 v17, v17, v19')
    e('v_min_u32 v16, -2, v16\nv_min_u32 v17, -2, v17\ns_mov_b64 exec, 0xffff')
    hstore(e, 'buffer_store_dwordx2 v[16:17], v11, s[16:19], s42 offen', c.local); e('s_mov_b64 exec, -1')
    e(f'{t3}:')
    stamp(e, c, 10)
    gather(e, ld3, 10)
    stamp(e, c, 11)
    DD = 96
    for k in range(3):
        for t in range(4): e(f'v_mfma_f32_16x16x32_bf16 {vr(DD+4*t)}, {vr(W1+12*t+4*k)}, {vr(XF+4*k)}, {vr(DD+4*t) if k else 0}')
    e(f'v_pk_add_f32 {vr(SS,2)}, {vr(SS,2)}, {vr(SS+2,2)}\nv_pk_add_f32 {vr(SS+4,2)}, {vr(SS+4,2)}, {vr(SS+6,2)}\nv_pk_add_f32 {vr(SS+8,2)}, {vr(SS+8,2)}, {vr(SS+10,2)}')
    e(f'v_pk_add_f32 {vr(SS,2)}, {vr(SS,2)}, {vr(SS+4,2)}\nv_pk_add_f32 {vr(SS,2)}, {vr(SS,2)}, {vr(SS+8,2)}')
    for t in range(4): e(f'ds_write_b128 v9, {vr(DD+4*t)} offset:{4096+4096*t}')
    for sw in ('16', '32'):
        e(f'v_mov_b32 v{SS+2}, v{SS}\nv_mov_b32 v{SS+3}, v{SS+1}\ns_nop 0\nv_permlane{sw}_swap_b32 v{SS}, v{SS+2}\nv_permlane{sw}_swap_b32 v{SS+1}, v{SS+3}\nv_add_f32 v{SS}, v{SS}, v{SS+2}\nv_add_f32 v{SS+1}, v{SS+1}, v{SS+3}')
    e('s_waitcnt lgkmcnt(0)\ns_barrier')
    for w in range(4): e(f'ds_read_b128 {vr(DD+4*w)}, v8 offset:{4096+1024*w}')
    ln_finish(e, SS, SS + 1)
    e('s_waitcnt lgkmcnt(2)')
    for i in range(4): e(f'v_add_f32 v{DD+i}, v{DD+i}, v{DD+4+i}')
    e('s_waitcnt lgkmcnt(0)')
    for i in range(4): e(f'v_add_f32 v{DD+8+i}, v{DD+8+i}, v{DD+12+i}')
    for i in range(4): e(f'v_fma_f32 v{DD+i}, -v{SS}, v{CS+i}, v{DD+i}')
    for i in range(4): e(f'v_add_f32 v{DD+i}, v{DD+i}, v{DD+8+i}')
    for i in range(4): e(f'v_mul_f32 v{DD+i}, v{SS+1}, v{DD+i}')
    G = DD + 4
    for i in range(4): e(f'v_mul_f32 v{G+i}, v{DD+i}, v{DD+i}')
    for i in range(4): e(f'v_fma_f32 v{G+i}, v{G+i}, s50, v124')
    for i in range(4): e(f'v_mul_f32 v{G+i}, v{G+i}, v{DD+i}')
    for i in range(4): e(f'v_exp_f32 v{G+i}, v{G+i}')
    for i in range(4): e(f'v_add_f32 v{G+i}, 1.0, v{G+i}')
    for i in range(4): e(f'v_rcp_f32 v{G+i}, v{G+i}')
    for i in range(4): e(f'v_mul_f32 v{DD+i}, v{DD+i}, v{G+i}')
    pack_store(e, DD, PS, 14, 49, local=c.local)
    stamp(e, c, 12)
    gather(e, frag_loads(XF, 12, 12, 24), 10)
    stamp(e, c, 13)
    for k in range(12): e(f'v_mfma_f32_16x16x32_bf16 {vr(D)}, {vr(W2+4*k)}, {vr(XF+4*k)}, {vr(D) if k else 0}')
    e(f's_nop 7\nds_write_b128 v9, {vr(D)}\ns_waitcnt lgkmcnt(0)\ns_barrier\ns_cmp_lg_u32 s3, 0\ns_cbranch_scc1 L_fin')
    for w in range(1, 4): e(f'ds_read_b128 {vr(16+4*w)}, v12 offset:{1024*w}')
    for i in range(4): e(f'v_add_f32 v{D+i}, v{D+i}, v{120+i}')
    for w in (1, 2, 3):
        e(f's_waitcnt lgkmcnt({3-w})')
        for i in range(4): e(f'v_add_f32 v{D+i}, v{D+i}, v{16+4*w+i}')
    e(f'v_cvt_pk_bf16_f32 v4, v{D}, v{D+1}\nv_cvt_pk_bf16_f32 v5, v{D+2}, v{D+3}')
    e('buffer_store_dwordx2 v[4:5], v15, s[44:47], s48 offen')
    stamp(e, c, 14)
    e('s_branch L_fin')
    flush_deferred(e)
```

```python
from gen_v10_roles import *

class Cap:
    def __init__(s): s.g = []
    def __call__(s, t): s.g.append(t)
    def take(s, e, n):
        while s.g and n > 0:
            t = s.g.pop(0); e(t); n -= t.count('\n') + 1

def streamer(e, c):
    fine = c.fine
    def cyc(k):
        if fine is not None: e(f's_memtime s[{84+2*k}:{85+2*k}]')
    def cyc_save():
        if fine is None: return
        lb = e.label('L_fs')
        e(f's_cmp_lg_u32 s25, {fine}\ns_cbranch_scc1 {lb}\ns_waitcnt lgkmcnt(0)')
        for k in range(6): e(f's_mov_b32 s{66+2*k}, s{84+2*k}')
        e(f'{lb}:')
    NS = 192; rd0 = c.rd0; ns = 2 * rd0 + 3; nt = ' nt' if not c.hot else ''; ch = c.chunk; Ks, Kp = c.Ks, c.Kp
    assert ch == 1
    K = Ks + Kp; who = 'p' + c.order; assert len(who) == K and who.count('p') == Kp and 1 <= Kp <= 2
    cus = [(0,) + tuple(v[:K - 1]) for v in c.cu]; assert all(len(v) == K and max(v) < rd0 and list(v) == sorted(set(v)) for v in cus)
    slotof = lambda r: ((2 * r + 3) % NSLOT) * TILE
    def select(pairs):
        t = 's_lshr_b32 s30, s6, 3\ns_and_b32 s30, s30, 3'
        for v, cu in enumerate(cus):
            if v: t += f'\ns_cmp_eq_u32 s30, {v}'
            for reg, fn in pairs: t += f'\ns_mov_b32 s{reg}, {fn(cu)}' if v == 0 else f'\ns_cselect_b32 s{reg}, {fn(cu)}, s{reg}'
        return t
    T0, T1, T2, T3 = 2, 3, 4, 5
    L16, LH2, SW = 6, 7, 10
    e(f's_mul_hi_u32 s30, s35, {-(-(1<<32)//24)}\ns_mul_i32 s30, s30, 24\ns_add_u32 s26, s35, s30\ns_lshl_b32 s26, s26, 1')
    e(f's_and_b32 s4, s3, 1\ns_lshr_b32 s5, s3, 1\ns_mul_i32 s42, s5, 48\ns_add_u32 s42, s42, s4\ns_add_u32 s26, s26, s42\ns_mulk_i32 s26, 6144\nv_lshlrev_b32 v{L16}, 4, v0')
    e(f's_mov_b32 s10, {SZ["feat_hi"]}\ns_mov_b32 s11, 0x20000')
    def common2():
        e(f's_lshl2_add_u32 s27, s35, s3\ns_mulk_i32 s27, 1536\nv_add_u32 v{LH2}, 4096, v{L16}')
        e(f's_mov_b32 s14, {SZ["feat_lo"]}\ns_mov_b32 s15, 0x20000\ns_add_u32 s2, s35, {NH}')
    jump_hi = NS * ch * 12288 + (NS * ch // 24) * 294912 - ch * 12288; jump_lo = (NS - 1) * ch * 6144
    def src_adv():
        if c.hot: return
        if ch == 1: e(f's_add_u32 s26, s26, {12288+jump_hi}\ns_add_u32 s27, s27, {6144+jump_lo}')
        else:
            e(f's_add_u32 s42, s42, 1\ns_cmp_eq_u32 s42, {ch}\ns_cselect_b32 s42, 0, s42\ns_cselect_b32 s30, {jump_hi}, 0\ns_cselect_b32 s43, {jump_lo}, 0')
            e('s_add_u32 s26, s26, 12288\ns_add_u32 s27, s27, 6144\ns_add_u32 s26, s26, s30\ns_add_u32 s27, s27, s43')
    def stage_items(B):
        it = [f'buffer_load_dwordx4 {vr(B+4*j)}, v{L16 if j < 4 else LH2}, s[8:11], s26 offen offset:{1024*(j%4)}{nt}' for j in range(6)]
        it.append(f'buffer_load_dwordx4 {vr(B+24)}, v{L16}, s[12:15], s27 offen{nt}')
        it.append(f's_mov_b32 exec_hi, 0\nbuffer_load_dwordx4 {vr(B+28)}, v{L16}, s[12:15], s27 offen offset:1024{nt}\ns_mov_b32 exec_hi, -1')
        return it
    def setup_sw(e):
        e('s_lshl_b32 s41, s4, 1\ns_lshl_b32 s44, s5, 1\ns_mov_b32 s47, 0x78')
        for b in range(3):
            e(f'v_add_u32 v{T0}, {64*b}, v0\nv_mul_u32_u24 v{T1}, 1366, v{T0}\nv_lshrrev_b32 v{T1}, 16, v{T1}')
            e(f'v_mul_u32_u24 v{T2}, 48, v{T1}\nv_sub_u32 v{T0}, v{T0}, v{T2}\nv_lshlrev_b32 v8, 4, v{T2}')
            if b < 2: e(f'v_add_lshl_u32 v{T2}, v{T1}, s41, 2\nv_or_b32 v{T2}, s44, v{T2}\nv_xor_b32 v{T2}, v{T2}, v{T0}\nv_lshl_add_u32 v{SW+6+b}, v{T2}, 4, v8')
            e(f'v_and_or_b32 v{T3}, v{T1}, 1, s44\nv_lshlrev_b32 v{T3}, 2, v{T3}\nv_xor_b32 v{T0}, v{T0}, v{T3}\nv_and_b32 v{T1}, 2, v{T1}\nv_lshrrev_b32 v{T1}, v{T1}, s47')
            e(f'v_and_b32 v{T2}, 3, v{T1}\nv_xor_b32 v{T2}, v{T2}, v{T0}\nv_lshl_add_u32 v{SW+b}, v{T2}, 4, v8')
            e(f'v_bfe_u32 v{T2}, v{T1}, 4, 2\nv_xor_b32 v{T2}, v{T2}, v{T0}\nv_lshl_add_u32 v{T2}, v{T2}, 4, v8\nv_add_u32 v{SW+3+b}, 3072, v{T2}')
        e(f's_mul_i32 s24, s3, 6144\ns_mul_i32 s34, s3, -4608\ns_add_u32 s34, s34, {24576-5120}\ns_add_u32 s31, s24, {PB}')
    def unstage_items(B, slot, tmp):
        it = [f'v_add_u32 v{tmp+(j&1)}, s43, v{SW+j}\nds_write_b128 v{tmp+(j&1)}, {vr(B+4*j)}' for j in range(7)]
        it[0] = f's_add_u32 s43, s40, {slot}\n' + it[0]; it[6] = f's_add_u32 s43, s41, {slot}\n' + it[6]
        it.append(f'v_add_u32 v{tmp+1}, s43, v{SW+7}\ns_mov_b32 exec_hi, 0\nds_write_b128 v{tmp+1}, {vr(B+28)}\ns_mov_b32 exec_hi, -1')
        return it
    shares = 's_mul_i32 s40, s3, 6144\ns_mul_i32 s41, s3, 1536\ns_add_u32 s41, s41, 24576'
    def check(PFL, t, slow):
        e(f'v_or3_b32 v{t}, v{PFL}, v{PFL+1}, v{PFL+2}\nv_or_b32 v{t}, v{t}, v{PFL+3}\nv_and_b32 v{t}, 0x40004000, v{t}\nv_cmp_ne_u32 vcc, 0, v{t}\ns_or_b64 vcc, vcc, s[28:29]\ns_cbranch_scc1 {slow}')
    def first_look(PFL, t, back, tag):
        e(f's_cmp_eq_u64 s[28:29], 0\ns_cbranch_scc1 L_{tag}_go\nv_cmp_ne_u32 s[56:57], 0, v{t}')
        e(f'v_pk_max_u16 v{t}, v{PFL}, v{PFL+1}\nv_pk_max_u16 v{t+1}, v{PFL+2}, v{PFL+3}\nv_pk_max_u16 v{t}, v{t}, v{t+1}\nv_lshlrev_b32 v{t+1}, 16, v{t}\nv_max_u32 v{t}, v{t}, v{t+1}')
        e(f'v_cmp_gt_u32 vcc, 0x2b800000, v{t}\ns_or_b64 vcc, vcc, s[56:57]\ns_cbranch_scc1 L_{tag}_go\ns_mov_b64 s[28:29], 0\ns_branch {back}\nL_{tag}_go:')
    def quant(r): e(f'v_add_f32 v{r}, 4.0, v{r}\nv_mul_f32 v{r}, {fx(1/16)}, v{r}\nv_ceil_f32 v{r}, v{r}\nv_mul_f32 v{r}, {fx(16.0)}, v{r}')
    grp = f's_bfe_u32 s36, s6, 0x10002\ns_mul_i32 s36, s36, 3\ns_and_b32 s30, s6, 3\ns_add_u32 s36, s36, s30\ns_sub_u32 s36, s36, 1\ns_lshr_b32 s37, s6, 3\ns_mul_i32 s38, s36, {32*PS_}\ns_add_u32 s38, s38, {PART}'
    grp += '\ns_lshr_b32 s39, s36, 1\ns_lshl_b32 s39, s39, 3\ns_and_b32 s30, s36, 1\ns_lshl_b32 s30, s30, 7\ns_add_u32 s39, s39, s30'
    nost = c.iso or c.cut in (1, 3, 4, 5, 6, 7)

    PH, PL, PR, MPV, LSUM, ONES, LA = 18, 24, 27, 28, 29, 30, 31
    TMP, VA, VL, PFL, PF, XG, ACC, STB = 32, 40, 88, 100, 104, 120, 128, 224
    pstage = [VA, STB]
    e('s_cmp_lt_u32 s7, 4\ns_cbranch_scc1 L_sw\ns_waitcnt lgkmcnt(0)')
    stamp(e, c, 1)
    if c.pro == 1: common2(); late_consts(e); e('s_branch L_fin')
    g = Cap(); setup_sw(g); nsw = len(g.g)
    late_consts(g)
    g(f'v_lshrrev_b32 v{T0}, 5, v0\nv_bfe_u32 v{T1}, v0, 2, 2')
    g(f'v_bfe_u32 v{T2}, v0, 4, 1\nv_and_b32 v{T3}, 1, v0\nv_lshl_or_b32 v{T2}, v{T2}, 1, v{T3}\nv_lshl_or_b32 v{T2}, v{T1}, 2, v{T2}')
    g(f'v_bfe_u32 v{T3}, v0, 1, 1\nv_lshlrev_b32 v{T3}, 3, v{T3}')
    Q0 = TMP
    g(f'v_lshl_add_u32 v{Q0+3}, v{T0}, 2, v{T1}\nv_mul_u32_u24 v{Q0+3}, 768, v{Q0+3}\nv_add_u32 v{Q0+3}, v{Q0+3}, v{T3}\nv_add_u32 v{Q0+3}, 24576, v{Q0+3}\nv_lshlrev_b32 v{Q0+7}, 1, v{T0}')
    g(f'v_lshrrev_b32 v{Q0+4}, 1, v{T1}\nv_lshlrev_b32 v{Q0+4}, 4, v{Q0+4}\nv_lshl_add_u32 v{Q0+4}, v{T0}, 2, v{Q0+4}\nv_and_or_b32 v{Q0+4}, v{T1}, 1, v{Q0+4}\nv_mul_u32_u24 v{Q0+4}, 768, v{Q0+4}\nv_add_u32 v{Q0+4}, v{Q0+4}, v{T3}')
    g(f'v_lshlrev_b32 v{Q0+5}, 2, v{T0}\ns_mov_b32 s30, 0x78\nv_lshrrev_b32 v{Q0+5}, v{Q0+5}, s30\nv_bfe_u32 v{Q0+6}, v{Q0+5}, 2, 2\nv_and_b32 v{Q0+5}, 3, v{Q0+5}')
    for t in range(3):
        g(f's_mul_i32 s30, s3, 12\ns_add_u32 s30, s30, {4*t}\nv_xor_b32 v{Q0}, s30, v{T2}\nv_xor_b32 v{Q0+1}, v{Q0}, v{Q0+7}\nv_lshl_add_u32 v{PL+t}, v{Q0+1}, 4, v{Q0+3}')
        g(f'v_xor_b32 v{Q0+1}, v{Q0}, v{Q0+5}\nv_lshl_add_u32 v{PH+2*t}, v{Q0+1}, 4, v{Q0+4}\nv_xor_b32 v{Q0+1}, v{Q0}, v{Q0+6}\nv_lshl_add_u32 v{Q0+1}, v{Q0+1}, 4, v{Q0+4}\nv_add_u32 v{PH+2*t+1}, 1536, v{Q0+1}')
    g(f'v_add_u32 v{PR}, {PB}, v{L16}\nv_lshlrev_b32 v1, 3, v0\nv_lshlrev_b32 v8, 7, v0'); late_addr(g, LA)
    for i in range(0, 96, 2): g(f'v_mov_b64 {vr(ACC+i,2)}, 0')
    g(f'v_mov_b32 v{MPV}, {fx(16.0)}\nv_mov_b32 v{LSUM}, 0\nv_mov_b32 v{ONES}, 0x3f803f80')
    rp = lambda cu: ([r for r, w in zip(cu[1:], who[1:]) if w == 'p'] + [64])[0]
    g(select([(46, lambda cu: sum(1 << r for r in cu) >> 1), (47, lambda cu: sum(1 << r for r in range(1, rd0) if r not in cu)), (44, rp), (42, lambda cu: slotof(rp(cu)))]))
    g(f's_mov_b64 s[28:29], -1\ns_mov_b32 s45, 0\ns_mov_b32 s25, 1\ns_mov_b32 s33, {TILE}\ns_mov_b32 s49, 0\ns_mov_b32 s58, 0\ns_mov_b32 s96, {12288+jump_hi}\ns_mov_b32 s97, {6144+jump_lo}\ns_mul_i32 s98, s5, 48\ns_add_u32 s98, s98, s4\nv_mov_b32 v{T0}, {TKW}')
    g(grp); g(shares)
    g(f's_mul_i32 s52, s37, {PS_}\ns_add_u32 s52, s52, s38\ns_lshl_b32 s30, s3, 8\ns_add_u32 s48, s52, s30\ns_add_u32 s48, s48, 49152')
    g(f's_mul_i32 s30, s3, {PS_//4}\ns_add_u32 s50, s52, s30')
    g(f's_add_u32 s52, s52, s40\ns_add_u32 s53, s52, 4096\ns_add_u32 s54, s52, 24576\ns_add_u32 s55, s52, {24576+4096}')
    g(f's_lshl_b32 s51, s36, 2\ns_add_u32 s51, s51, s3\ns_lshl_b32 s51, s51, 5\ns_add_u32 s51, s51, s37\ns_lshl_b32 s51, s51, 2\ns_add_u32 s51, s51, {FL}')
    def dma_items():
        it = []
        for j in range(6):
            it.append(('s_mov_b32 m0, s24' if j == 0 else 's_add_u32 m0, m0, 1024') + f'\ns_nop 0\nbuffer_load_dwordx4 v{SW+j}, s[8:11], s26 offen{nt} lds')
        it.append(f's_add_u32 m0, m0, s34\ns_nop 0\nbuffer_load_dwordx4 v{SW+6}, s[12:15], s27 offen{nt} lds')
        it.append(f's_add_u32 m0, m0, 1024\ns_mov_b32 exec_hi, 0\nbuffer_load_dwordx4 v{SW+7}, s[12:15], s27 offen{nt} lds\ns_mov_b32 exec_hi, -1')
        return it
    def slot_adv(step=f'{TILE}'): e(f's_add_u32 s24, s24, {step}\ns_cmp_ge_u32 s24, s31\ns_cselect_b32 s30, {PB}, 0\ns_sub_u32 s24, s24, s30')
    total = len(g.g); cnt = 0
    for j in range(Kp + 3):
        if j == Kp:
            while total - len(g.g) < nsw: g.take(e, 1)
            for k in range(Ks): src_adv()
        for i, x in enumerate(stage_items(pstage[j]) if j < Kp else dma_items()):
            if j == 0 and i == 4: common2()
            if cnt == c.jp: e('s_barrier')
            e(x); cnt += 1
            if cnt >= 10: g.take(e, c.weave)
        src_adv()
        if j >= Kp: e(f's_add_u32 s24, s24, {TILE if j < Kp + 2 else 2*TILE}')
    g.take(e, 9999)
    if c.jp == cnt: e('s_barrier')
    assert c.jp <= cnt
    stamp(e, c, 2)
    if c.pro == 2: e('s_waitcnt vmcnt(0)'); stamp(e, c, 3); e('s_branch L_fin')
    rP = [(f'ds_read_b128 {vr(PFL)}, v{PR} offset:4096', 'pfl')] + [(f'ds_read_b128 {vr(PF+4*i)}, v{PR} offset:{1024*i}', ('pf', i)) for i in range(4)]
    trH = lambda tt, t, pg: [f'ds_read_b64_tr_b16 {vr(VA+24*tt+8*t+4*pg+2*u,2)}, v{PH+2*t+u} offset:{6144*pg}' for u in range(2)]
    trL = lambda tt, t: [f'ds_read_b64_tr_b16 {vr(VL+4*t+2*tt,2)}, v{PL+t}']
    mL = lambda t: f'v_mfma_f32_32x32x16_bf16 {vr(ACC+48+16*t,16)}, {vr(VL+4*t)}, {vr(PFL)}, {vr(ACC+48+16*t,16)}'
    mH = lambda tt, t, pg: f'v_mfma_f32_32x32x16_bf16 {vr(ACC+16*t,16)}, {vr(VA+24*tt+8*t+4*pg)}, {vr(PF+8*tt+4*pg)}, {vr(ACC+16*t,16)}'
    sdelta = f's_add_u32 s45, s45, 1\ns_cmp_eq_u32 s45, {NSLOT}\ns_cselect_b32 s32, {-(NSLOT-1)*TILE}, s33\ns_cselect_b32 s45, 0, s45'
    adds = '\n'.join(f'v_add_u32 v{r}, s32, v{r}' for r in range(PH, PL + 3))
    def src_adv2():
        if not c.hot: e('s_add_u32 s26, s26, s96\ns_add_u32 s27, s27, s97')
    lsum = '\n'.join(f'v_dot2c_f32_bf16 v{LSUM}, v{PFL+i}, v{ONES}' for i in range(4))
    def tr(xs):
        for x in xs:
            if len(e.ds) >= 14: e(f's_waitcnt lgkmcnt(8)'); e.ds = e.ds[-8:]
            e.dsop(x, 'tr')
    def all_tr():
        for tt in range(2):
            for t in range(3): tr(trL(tt, t) + trH(tt, t, 0) + trH(tt, t, 1))
            e(sdelta); e(adds)
    steps = [(mL(t), None, trL(0, t)) for t in range(3)]
    steps += [(mH(0, t, pg), ('pf', pg) if t == 0 else None, trH(0, t, pg)) for t in range(3) for pg in range(2)]
    steps += [(mH(1, t, pg), ('pf', 2 + pg) if t == 0 else None, trH(1, t, pg) + (trL(1, t) if pg else [])) for t in range(3) for pg in range(2)]
    e(f's_setprio {c.pprio}\ns_barrier\ns_waitcnt vmcnt(8)\ns_barrier')
    skip = 's_bitcmp1_b32 s46, %s\ns_cselect_b32 s30, s33, 0\ns_add_u32 s24, s24, s30'
    for x, y in zip(dma_items(), unstage_items(pstage[0], slotof(0), TMP)): e(x); e(y)
    src_adv(); e(skip % '0'); slot_adv()
    e('s_waitcnt lgkmcnt(0)')
    all_tr(); e.dsall()
    if c.tl: e('v_mov_b32 v124, 0\ns_memrealtime s[92:93]')
    e('.p2align 3\nL_p:\ns_waitcnt vmcnt(8)'); cyc(5); e('s_barrier'); cyc(0)
    e(f'ds_read_b32 v{T1}, v{T0}')
    for x, tag in rP: e.dsop(x, tag)
    e(f's_bitcmp1_b32 {(1 << c.hookx) | (0xffffffff & ~((1 << rd0) - 1))}, s25\ns_cbranch_scc1 L_p_x1\nL_p_x1b:')
    dm = dma_items(); dm2 = dma_items()
    for p in c.d1:
        if p < 0: e(dm.pop(0))
    e.dswait('pfl')
    check(PFL, TMP, 'L_p_slow')
    e('L_p_back:'); e.dsall(); e('s_barrier'); cyc(1)
    if c.tl: e('s_waitcnt lgkmcnt(0)\ns_mov_b32 s95, m0\ns_mov_b32 m0, s25\ns_nop 0\nv_writelane_b32 v124, s92, m0\ns_mov_b32 m0, s95')
    un2 = unstage_items(pstage[1], 's42', TMP)
    for i, (m, w, xs) in enumerate(steps):
        if w and w in e.ds: e.dswait(w)
        e(m)
        if i == 9: e(adds)
        tr(xs)
        if i == 7: e(sdelta)
        if i == 13: e(sdelta)
        for _ in range(c.d1.count(i)):
            e(dm.pop(0))
            if not dm:
                src_adv2(); slot_adv()
                e('s_bitcmp1_b32 s47, s25\ns_cselect_b64 vcc, -1, 0')
        if c.d2.count(i):
            assert not dm
            lb = e.label('L_d2'); e(f's_cbranch_vccz {lb}')
            alt = []
            for _ in range(c.d2.count(i)): e(dm2.pop(0)); alt.append(un2.pop(0))
            if not dm2: src_adv2(); slot_adv()
            e(f'{lb}_b:')
            e.deferred.append(f'{lb}:\ns_cmp_lg_u32 s25, s44\ns_cbranch_scc1 {lb}_b\ns_waitcnt lgkmcnt(8)\n' + '\n'.join(alt) + f'\ns_branch {lb}_b')
        if i == 8: cyc(2)
    assert not dm and not dm2
    cyc(3)
    e(adds); e(lsum)
    e(skip % 's25'); slot_adv('0')
    e(f's_cmp_eq_u32 s25, {c.hookx+1}\ns_cbranch_scc1 L_p_x2\nL_p_x2b:')
    if c.tl: e('s_waitcnt lgkmcnt(0)\ns_memrealtime s[92:93]')
    cyc(4); cyc_save()
    e(f's_add_u32 s25, s25, 1\ns_min_u32 s25, s25, 31\ns_cmp_eq_u32 s58, 0' + ('\ns_waitcnt lgkmcnt(0)' if not c.tl else '') + '\ns_cbranch_scc1 L_p'); e.ds = []
    e('s_branch L_p_pen')
    e(f'L_p_x1:\ns_cmp_eq_u32 s25, {c.hookx}\ns_cbranch_scc1 L_p_x0\ns_waitcnt lgkmcnt(5)\nv_readfirstlane_b32 s27, v{T1}\ns_movk_i32 s96, 12288\ns_movk_i32 s97, 6144')
    e('s_lshr_b32 s58, s27, 30\ns_cselect_b32 s47, 0, -1\ns_cmp_lt_i32 s27, 0\ns_cselect_b32 s10, 0, s10\ns_cselect_b32 s14, 0, s14\ns_cselect_b32 s27, 0, s27\ns_and_b32 s27, s27, 0xffff')
    if c.hot: e('s_mov_b32 s27, s35')
    e(f's_mul_hi_u32 s30, s27, {-(-(1<<32)//24)}\ns_mul_i32 s30, s30, 24\ns_add_u32 s26, s27, s30\ns_lshl1_add_u32 s26, s26, s98\ns_mulk_i32 s26, 6144\ns_lshl2_add_u32 s27, s27, s3\ns_mulk_i32 s27, 1536')
    e('s_cmp_eq_u32 s10, 0\ns_cselect_b32 s26, 0, s26\ns_cselect_b32 s27, 0, s27\ns_branch L_p_x1b')
    flush_deferred(e)
    e('L_p_pen:')
    ntouch = 2 if c.local and not nost else 0
    def touches(pos):
        for k in range(ntouch):
            if c.tpos[k] == pos: e(f's_mov_b32 exec_hi, 0x1ffff\nbuffer_load_dword v9, v8, s[16:19], s50 offen\ns_add_u32 s50, s50, {49*128}\ns_mov_b32 exec_hi, -1')
    touches(0)
    e('s_mov_b32 s49, 1\ns_barrier')
    for x, tag in rP: e.dsop(x, tag)
    e.dswait('pfl')
    check(PFL, TMP, 'L_p_slow')
    e('L_p_back1:')
    for i, (m, w, xs) in enumerate(steps):
        if w: e.dswait(w)
        e(m)
    e(lsum)
    touches(1)
    e(f's_mov_b32 s49, 2\ns_waitcnt vmcnt({sum(p < 2 for p in c.tpos[:ntouch])})\ns_barrier\ns_setprio 0')
    touches(2)
    all_tr(); e.dsall()
    e(f's_setprio {c.pprio}\ns_barrier')
    for x, tag in rP: e.dsop(x, tag)
    e.dswait('pfl')
    check(PFL, TMP, 'L_p_slow')
    e('L_p_back2:')
    pstore = lambda s: f'buffer_store_dwordx4 {vr(ACC+8*s)}, v{L16}, s[16:19], s{52 + 2*(s//6) + (s%6)//4} offen offset:{1024*((s%6)%4)}'
    mlstore = f's_mov_b32 exec_hi, 0\nbuffer_store_dwordx2 {vr(MPV,2)}, v1, s[16:19], s48 offen%s\ns_mov_b32 exec_hi, -1'
    def cvt(s):
        b = ACC + 8 * s
        for i in range(4): e(f'v_cvt_pk_bf16_f32 v{b+i}, v{b+2*i}, v{b+2*i+1}')
        if not nost: e(pstore(s))
    last = [mL(t) for t in range(3)] + [mH(tt, t, pg) for t in range(3) for tt in range(2) for pg in range(2)]
    todo = {4: [6], 5: [7], 6: [8], 7: [9], 8: [10], 9: [11], 10: [0], 11: [1], 14: [2, 3]}
    for i, m in enumerate(last):
        if i == 3: e.dsall()
        e(m)
        if i in (2, 3):
            for j in (2 * (i - 2), 2 * (i - 2) + 1): e(f'v_lshlrev_b32 v{TMP}, 16, v{PFL+j}\nv_and_b32 v{TMP+1}, 0xffff0000, v{PFL+j}\nv_add_f32 v{LSUM}, v{LSUM}, v{TMP}\nv_add_f32 v{LSUM}, v{LSUM}, v{TMP+1}')
        if i == 12: e(f'v_mov_b32 v{TMP}, v{LSUM}\nv_readfirstlane_b32 s57, v{MPV}\ns_nop 0\nv_permlane32_swap_b32 v{LSUM}, v{TMP}\nv_add_f32 v{LSUM}, v{LSUM}, v{TMP}\nv_cmp_neq_f32 vcc, s57, v{MPV}')
        if i == 13 and not nost: e(mlstore % '')
        for s in todo.get(i, []): cvt(s)
    e(f's_cmp_eq_u64 vcc, 0\ns_cselect_b32 s57, s57, -2\nv_mov_b32 v{TMP}, s57\ns_nop 0')
    cvt(4); cvt(5)
    if fine is None: stamp(e, c, 6)
    if c.tl: e(f's_lshl_b32 s30, s35, 2\ns_add_u32 s30, s30, s3\ns_lshl_b32 s30, s30, 8\ns_add_u32 s30, s30, {DG+0x20000}\nv_lshlrev_b32 v125, 2, v0\nbuffer_store_dword v124, v125, s[16:19], s30 offen')
    e('s_cmp_eq_u32 s59, 0\ns_waitcnt vmcnt(0)\ns_cbranch_scc1 L_p_far')
    stamp(e, c, 7)
    if not nost: e(f's_mov_b64 exec, 1\nbuffer_store_dword v{TMP}, off, s[16:19], s51')
    e('s_branch L_fin')
    e('L_p_far:')
    if not nost:
        for s in range(12): e(pstore(s) + ' sc1')
        e(mlstore % ' sc1')
        e(f's_waitcnt vmcnt(0)\ns_mov_b64 exec, 1\nbuffer_store_dword v{TMP}, off, s[16:19], s51 sc1')
    e('s_branch L_fin')
    xgload = f's_mov_b64 exec, 1\nbuffer_load_dwordx2 {vr(XG,2)}, off, s[20:23], s39 offset:32 sc1\ns_mov_b64 exec, -1'
    e('L_p_x0:'); late_load(e, XG + 2, LA); e(xgload); e('s_branch L_p_x1b')
    e('L_p_x2:')
    if not c.iso: late_wait(e, XG + 2, LA)
    e(f'L_xg:\nv_add_u32 v{TMP}, v{XG}, v{XG+1}\ns_nop 0\nv_readfirstlane_b32 s30, v{TMP}\ns_mul_i32 s30, s30, 0x01010101\ns_lshr_b32 s30, s30, 24\ns_cmp_ge_u32 s30, 32\ns_cbranch_scc1 L_xgd')
    e(f's_sleep 8\n{xgload}\ns_waitcnt vmcnt(0)'); budget(e, 'L_xg')
    e('L_xgd:'); local_flag(e, XG, 32)
    if not c.local: e('s_mov_b32 s59, 0')
    e('s_branch L_p_x2b')
    flush_deferred(e)
    e('L_p_slow:'); first_look(PFL, TMP, 'L_p_back', 'pf')
    e(f's_mov_b32 s30, {MXB}\nv_and_b32 v{TMP+2}, 31, v0\nv_lshl_add_u32 v{TMP+2}, v{TMP+2}, 2, s30\ns_waitcnt lgkmcnt(0)\ns_barrier')
    e(f'ds_read2_b32 {vr(TMP,2)}, v{TMP+2} offset0:0 offset1:32\ns_waitcnt lgkmcnt(0)\nv_max_f32 v{TMP}, v{TMP}, v{TMP+1}')
    quant(TMP)
    nf = e.label()
    e(f's_cmp_lg_u64 s[28:29], 0\ns_cbranch_scc1 {nf}')
    e(f'v_max_f32 v{TMP}, 0, v{TMP}\nv_exp_f32 v{TMP+2}, -v{TMP}\ns_nop 0\nv_mul_f32 v{LSUM}, v{LSUM}, v{TMP+2}')
    for i in range(0, 96, 2): e(f'v_pk_mul_f32 {vr(ACC+i,2)}, {vr(ACC+i,2)}, {vr(TMP+2,2)} op_sel_hi:[1,0]')
    e(f'{nf}:\ns_mov_b64 s[28:29], 0\nv_add_f32 v{MPV}, v{MPV}, v{TMP}\ns_barrier')
    for x, _ in rP: e(x)
    e('s_cmp_eq_u32 s49, 1\ns_waitcnt lgkmcnt(0)\ns_cbranch_scc1 L_p_back1\ns_cmp_eq_u32 s49, 0\ns_cbranch_scc1 L_p_back\ns_branch L_p_back2')

    SH, SL, PW, PW2, PR2, MXO, TKA, TK, TA = 18, 22, 26, 27, 28, 29, 30, 31, 9
    NEGM, SLO, S0, S1, PFL, PK, FB, NB, TMP, AQ, STG = 32, 36, 40, 44, 48, 52, 56, 8, 88, 96, 192
    e('L_sw:'); common2(); late_consts(e)
    if c.touch:
        e('s_cmp_lg_u32 s7, 0\ns_cbranch_scc1 L_snt'); code_touch(e, c); e('L_snt:')
    if c.pro == 1: e('s_waitcnt lgkmcnt(0)\ns_branch L_fin')
    for k in range(Kp): src_adv()
    setup_sw(e)
    e(f'v_and_b32 v{T0}, 15, v0\nv_lshrrev_b32 v{T1}, 4, v0')
    e(f'v_lshrrev_b32 v{T2}, 2, v{T0}\nv_lshlrev_b32 v{T3}, 1, v{T2}\nv_lshrrev_b32 v{TMP+1}, v{T3}, s47\nv_and_b32 v{TMP+1}, 3, v{TMP+1}')
    e(f'v_and_b32 v{TMP}, 3, v{T0}\nv_lshl_or_b32 v{TMP+1}, v{TMP}, 2, v{TMP+1}\nv_xor_b32 v{TMP+1}, v{TMP+1}, v{T1}\nv_lshlrev_b32 v{TMP+1}, 4, v{TMP+1}')
    e(f'v_lshrrev_b32 v{TMP}, 1, v{TMP}\nv_lshl_add_u32 v{T3}, v{TMP}, 4, v{T3}\nv_and_or_b32 v{T3}, v{T0}, 1, v{T3}\nv_mul_u32_u24 v{T3}, 768, v{T3}\ns_mul_i32 s30, s4, {TILE}\nv_add3_u32 v{SH}, v{T3}, v{TMP+1}, s30')
    e(f'v_and_b32 v{TMP}, 1, v0\nv_lshlrev_b32 v{T3}, 1, v{TMP}\nv_lshl_or_b32 v{T3}, v{T2}, 2, v{T3}\nv_xor_b32 v{T3}, v{T3}, v{T1}\nv_lshlrev_b32 v{T3}, 4, v{T3}')
    e(f'v_lshl_add_u32 v{TMP}, v{TMP}, 2, v{T2}\nv_mul_u32_u24 v{TMP}, 768, v{TMP}\ns_add_u32 s30, s30, 24576\nv_add3_u32 v{SL}, v{T3}, v{TMP}, s30')
    for b in range(1, 4): e(f'v_xor_b32 v{SH+b}, {64*b}, v{SH}\nv_xor_b32 v{SL+b}, {64*b}, v{SL}')
    e(f's_lshl_b32 s30, s5, 4\nv_add_u32 v{T3}, s30, v{T0}')
    e(f'v_lshrrev_b32 v{TMP}, 1, v{T1}\nv_lshlrev_b32 v{TMP}, 9, v{TMP}\nv_lshl_add_u32 v{TMP}, v{T3}, 4, v{TMP}\nv_and_b32 v{TMP+1}, 1, v{T1}\nv_lshl_add_u32 v{TMP}, v{TMP+1}, 3, v{TMP}')
    e(f's_lshl_b32 s30, s4, 11\ns_add_u32 s30, s30, {PB}\nv_add_u32 v{PW}, s30, v{TMP}')
    e(f'v_lshlrev_b32 v{TMP}, 4, v{T3}\nv_lshl_add_u32 v{TMP}, v{T1}, 1, v{TMP}\ns_lshl_b32 s30, s4, 3\ns_add_u32 s30, s30, {PB+4096}\nv_add_u32 v{PW2}, s30, v{TMP}')
    e(f'v_lshlrev_b32 v1, 3, v0\nv_add_u32 v{PR2}, {PB+4096}, v{L16}\nv_lshlrev_b32 v{MXO}, 2, v{T3}\nv_add_u32 v{MXO}, {MXB}, v{MXO}\nv_mov_b32 v{TKA}, {TKW}')
    for i in range(4): e(f'v_mov_b32 v{NEGM+i}, {fx(-16.0)}')
    rs = lambda cu: [r for r, w in zip(cu, who) if w == 's']
    rsetup = rd0 - 2; assert all(max(rs(cu) + [0]) < rsetup for cu in cus) and c.hookx + 2 <= rsetup
    e(select([(44, lambda cu: 1 | (0xffffffff & ~((1 << rsetup) - 1)) | sum(1 << r for r in rs(cu)))] + [(46 + k, (lambda k: lambda cu: slotof(rs(cu)[k]))(k)) for k in range(Ks)]))
    e('s_mov_b32 s50, 0')
    e(f's_mov_b64 s[28:29], -1\ns_mov_b32 s45, s4\ns_mov_b32 s25, 0\ns_mov_b32 s33, {2*TILE}\ns_mov_b32 s49, 0')
    e(f's_mul_i32 s52, s5, 24576\ns_add_u32 s52, s52, {AF if not c.iso else 0x1000000}'); soffs(e, 52, 6)
    e(grp); e(shares)
    e(f's_and_b32 s48, s37, {c.nshard-1}\ns_lshl_b32 s51, s48, 7\ns_add_u32 s51, s51, {TKC}')
    e('s_setprio 2\ns_waitcnt lgkmcnt(0)\ns_barrier')
    stamp(e, c, 1)
    early_load(e, T0, 5)
    for k in range(Ks):
        for x in stage_items(STG + 32 * k): e(x)
        src_adv()
    e(f's_waitcnt vmcnt({8*Ks})')
    if not c.iso: early_wait(e, T0, (1,))
    stamp(e, c, 2)
    if c.pro == 2: e('s_branch L_fin')
    aload = frag_loads(AQ, 24, L16, 52)
    e(f's_mul_i32 s30, s3, 12288\ns_add_u32 m0, s30, {3*TILE}\ns_mul_i32 s43, s4, 12288\ns_add_u32 s43, s43, s52')
    for k in range(12):
        e(f'buffer_load_dwordx4 v{L16}, s[16:19], s43 offen offset:{1024*(k%4)} sc1 lds')
        if k % 4 == 3 and k < 11: e('s_add_u32 m0, m0, 4096\ns_add_u32 s43, s43, 4096')
    e(f's_mul_i32 s30, s5, 24576\ns_add_u32 s30, s30, {3*TILE}\nv_add_u32 v{T1}, s30, v{L16}\ns_setprio 0\ns_waitcnt vmcnt(0)\ns_barrier')
    for k in range(24):
        e.dsop(f'ds_read_b128 {vr(AQ+4*k)}, v{T1} offset:{1024*k}', ('a', k))
        if k >= 10:
            kk = k - 10; e.dswait(('a', kk))
            e(f'v_max3_u32 v{T0}, v{AQ+4*kk}, v{AQ+4*kk+1}, v{T0 if kk else AQ}\nv_max3_u32 v{T0}, v{T0}, v{AQ+4*kk+2}, v{AQ+4*kk+3}')
    for kk in range(14, 24):
        e.dswait(('a', kk)); e(f'v_max3_u32 v{T0}, v{AQ+4*kk}, v{AQ+4*kk+1}, v{T0}\nv_max3_u32 v{T0}, v{T0}, v{AQ+4*kk+2}, v{AQ+4*kk+3}')
    e(f'v_cmp_eq_u32 vcc, -1, v{T0}\ns_cbranch_vccnz L_aretry\nL_aok:')
    stamp(e, c, 4)
    def sread(k):
        ks = k % 12; base, off = (SL, 0) if k < 12 else (SH, 6144 * (k // 12 - 1))
        e.dsop(f'ds_read_b128 {vr(FB+4*(k%NB))}, v{base+(ks&3)} offset:{off+256*(ks>>2)}', ('s', k))
    def exp_items(S, pg):
        it = [f'v_exp_f32 v{TMP+i}, v{S+i}' for i in range(4)]
        it += [f'v_add_f32 v{TMP+4}, v{TMP}, v{TMP+1}', f'v_add_f32 v{TMP+5}, v{TMP+2}, v{TMP+3}', f'v_cvt_pk_bf16_f32 v{PK}, v{TMP}, v{TMP+1}', f'v_cvt_pk_bf16_f32 v{PK+1}, v{TMP+2}, v{TMP+3}']
        it += [f'v_add_f32 v{TMP+4}, v{TMP+4}, v{TMP+5}', f'ds_write_b64 v{PW}, {vr(PK,2)} offset:{1024*pg}', f'v_cvt_pk_bf16_f32 v{PK+2}, v{TMP+4}, v{TMP+4}', f'ds_write_b16 v{PW2}, v{PK+2} offset:{512*pg}']
        return it
    put = lambda x: e.dsop(x, 'w') if x.startswith('ds_') else e(x)
    stamp(e, c, 3)
    if c.diag: e('s_memtime s[86:87]')
    e('L_s_entry:\ns_lshl_b32 s49, s49, 1\ns_barrier')
    if c.diag and fine is None: e(f's_memrealtime s[{64+2*5}:{65+2*5}]')
    for k in range(NB): sread(k)
    e.ds = []
    e('s_branch L_s_go')
    e('.p2align 3\nL_s:\ns_barrier')
    cyc(0)
    e(f'ds_read_b32 v{TK}, v{TKA}')
    e.dsop(f'ds_read_b128 {vr(PFL)}, v{PR2}', 'pfl')
    for k in range(NB): sread(k)
    e.dswait('pfl')
    check(PFL, TMP, 'L_s_slow')
    e('L_s_back:\ns_barrier')
    e('L_s_go:'); cyc(1)
    fill = {
            9: ['s_add_u32 s45, s45, 2'], 11: [f's_cmp_ge_u32 s45, {NSLOT}\ns_cselect_b32 s32, {-3*TILE}, s33\ns_cselect_b32 s30, {NSLOT}, 0'], 12: ['s_sub_u32 s45, s45, s30']}
    for b in range(4): fill[13 + 2 * b] = [f'v_add_u32 v{SL+b}, s32, v{SL+b}']
    for i in range(4): fill[16 + 2 * i] = [f'v_mov_b32 v{S1+i}, v{SLO+1}']
    it = [f'v_add_f32 v{S0+i}, v{S0+i}, v{SLO}' for i in range(4)] + exp_items(S0, 0)
    for k, cntk in zip(range(27, 36), (1, 3, 2, 2, 2, 2, 2, 2, 0)):
        fill[k] = it[:cntk]; it = it[cntk:]
    assert not it
    for k in range(36):
        if k % c.wstep == 0: e.dswait(('s', min(k + c.wstep - 1, 35)))
        D, C, a = (SLO, vr(NEGM), 12 + k) if k < 12 else ((S0, 0, k - 12) if k < 24 else (S1, vr(S1), k - 24))
        e(f'v_mfma_f32_16x16x32_bf16 {vr(D)}, {vr(FB+4*(k%NB))}, {vr(AQ+4*a)}, {vr(D) if k % 12 else C}')
        if k == 17: cyc(2)
        if k + NB < 36: sread(k + NB)
        for x in fill.get(k, []): put(x)
    cyc(3)
    for b in range(4): e(f'v_add_u32 v{SH+b}, s32, v{SH+b}')
    e('s_nop 3')
    for x in exp_items(S1, 1): e(x)
    cyc(4)
    if fine is not None: e('s_waitcnt lgkmcnt(0)'); cyc(5); cyc_save()
    e('s_bitcmp1_b32 s44, s25\ns_cbranch_scc1 L_s_hook')
    e(f'L_s_next:\ns_add_u32 s25, s25, 1\ns_min_u32 s25, s25, 31\ns_cmp_eq_u32 s49, 0\ns_waitcnt lgkmcnt(0)\ns_cbranch_scc1 L_s')
    e.ds = []
    e(f's_barrier\nds_read_b128 {vr(PFL)}, v{PR2}')
    if fine is None: stamp(e, c, 6)
    if c.diag and fine is None: e('s_memtime s[88:89]')
    X, MLR = AQ, AQ + 64
    SEL, D, VX, VOOB, VF, VFA, VH, VH8, VQ16, VM, U0, U1, VO = 192, 196, 212, 213, 214, 215, 216, 217, 218, 219, 220, 221, 222
    flagload = f's_mov_b32 exec_hi, 0\nbuffer_load_dword v{VF}, v{VFA}, s[16:19], s40 offen sc1\ns_mov_b32 exec_hi, -1'
    def t1_setup():
        e(f'v_lshlrev_b32 v{VFA}, 2, v0\ns_bfe_u32 s41, s37, 0x20002\ns_lshl_b32 s40, s36, 2\ns_add_u32 s40, s40, s41\ns_lshl_b32 s40, s40, 7\ns_add_u32 s40, s40, {FL}')
        e(f'v_lshrrev_b32 v{VH}, 5, v0\nv_and_b32 v{U0}, 31, v0\nv_lshlrev_b32 v{VQ16}, 4, v{U0}\ns_mov_b32 s43, {PS_}\nv_mad_u32_u24 v{VX}, v{VH}, s43, v{VQ16}\nv_lshlrev_b32 v{U0}, 3, v{U0}\nv_mad_u32_u24 v{VM}, v{VH}, s43, v{U0}')
        e(f's_lshl_b32 s41, s41, 8\ns_add_u32 s41, s41, s38\ns_add_u32 s41, s41, 49152')
        e(f's_mul_i32 s42, s37, 3\ns_add_u32 s42, s42, s3\ns_lshl_b32 s27, s42, 9\ns_add_u32 s27, s27, s38\nv_bfrev_b32 v{VOOB}, 1\nv_lshlrev_b32 v{VH8}, 3, v{VH}')
        e(f'v_and_b32 v{U0}, 1, v0\nv_lshlrev_b32 v{U0}, 4, v{U0}\ns_movk_i32 s30, 0x3f80\nv_lshlrev_b32 v{U0}, v{U0}, s30\nv_bfe_u32 v{U1}, v0, 1, 4')
        for d in range(4): e(f'v_cmp_eq_u32 vcc, {(d & 1) + 4 * (d >> 1)}, v{U1}\nv_mov_b64 {vr(D+4*d,2)}, 0\nv_mov_b64 {vr(D+4*d+2,2)}, 0\nv_cndmask_b32 v{SEL+d}, 0, v{U0}, vcc')
        e(f's_lshr_b32 s26, s42, 2\ns_mul_i32 s26, s26, 6\ns_add_u32 s26, s26, s36\ns_lshl_b32 s26, s26, 2\ns_and_b32 s30, s42, 3\ns_add_u32 s26, s26, s30\ns_lshl_b32 s26, s26, 8\ns_add_u32 s26, s26, {XU}')
        e(f'v_bfe_u32 v{VO}, v0, 4, 1\nv_mul_u32_u24 v{VO}, {147456-256}, v{VO}\nv_add_u32 v{VO}, v{VO}, v{VQ16}')
    e('s_waitcnt lgkmcnt(0)')
    check(PFL, TMP, 'L_s_slow')
    e('L_s_last:\ns_cmp_eq_u32 s49, 1\ns_cbranch_scc1 L_s_entry')
    if c.diag: e(f'v_readfirstlane_b32 s92, v{TK}\ns_lshr_b32 s92, s92, 31\ns_sub_u32 s92, s25, s92\ns_add_u32 s92, s92, s25')
    if c.iso or c.cut: e('s_branch L_fin')
    e('s_mov_b32 s44, -1\ns_cmp_eq_u32 s3, 3\ns_cbranch_scc1 L_t1l\ns_branch L_t1')
    mm = lambda r: f'v_mfma_f32_32x32x16_bf16 {vr(D,16)}, {vr(SEL)}, {vr(r)}, {vr(D,16)}'
    e(f'L_t1b:\ns_andn2_b32 s44, s44, s46\nv_lshrrev_b32 v{U1}, v{VH}, s46')
    for i in range(16):
        e(f'v_and_b32 v{U0}, {1 << (2*i)}, v{U1}\nv_cmp_ne_u32 vcc, 0, v{U0}\ns_add_u32 s30, s27, {2*PS_*i}\ns_nop 0\nv_cndmask_b32 v{U0}, v{VOOB}, v{VX}, vcc\nbuffer_load_dwordx4 {vr(X+4*i)}, v{U0}, s[16:19], s30 offen sc1')
    for i in range(16):
        e(f's_waitcnt vmcnt({15-i+(i > c.bsamp)})\n' + mm(X + 4 * i))
        if i == c.bsamp: e(flagload)
    e('s_cmp_eq_u32 s44, 0\ns_cbranch_scc1 L_t1done\ns_branch L_t1w')
    e(f'L_t1s:\ns_sleep {c.t1sleep}\nL_t1:\n{flagload}\ns_sub_u32 s61, s61, 1\ns_cmp_gt_i32 s61, 0\ns_cbranch_scc0 L_t1done')
    e(f'L_t1w:\ns_waitcnt vmcnt(0)\nv_cmp_ne_u32 vcc, -1, v{VF}\ns_and_b32 s46, vcc_lo, s44\ns_cbranch_scc0 L_t1s')
    stamp(e, c, 9)
    if c.diag: e('s_bcnt1_i32_b32 s94, s46')
    e(f's_bcnt1_i32_b32 s30, s46\ns_cmp_gt_u32 s30, {2*c.ndyn}\ns_cbranch_scc1 L_t1b\ns_andn2_b32 s44, s44, s46')
    for r in range(c.ndyn):
        e('s_ff1_i32_b32 s48, s46\ns_bitset0_b32 s46, s48\ns_ff1_i32_b32 s30, s46\ns_lshl_b32 s47, s30, 8\ns_or_b32 s48, s48, s47\ns_lshl_b64 s[56:57], 1, s30\ns_andn2_b32 s46, s46, s56')
        e(f'v_bfe_u32 v{U0}, s48, v{VH8}, 8\nv_cmp_gt_u32 vcc, 32, v{U0}\nv_mad_u32_u24 v{U0}, v{U0}, s43, v{VQ16}\ns_cmp_eq_u32 s46, 0\nv_cndmask_b32 v{U0}, v{VOOB}, v{U0}, vcc')
        e(f'buffer_load_dwordx4 {vr(X+4*r)}, v{U0}, s[16:19], s27 offen sc1')
        if r < c.ndyn - 1: e(f's_cbranch_scc1 L_t1m{r}')
    for r in range(c.ndyn - 1, -1, -1): e(f'L_t1m{r}:\ns_waitcnt vmcnt(0)\n{mm(X+4*r)}')
    e('s_cmp_lg_u32 s44, 0\ns_cbranch_scc1 L_t1\nL_t1done:')
    stamp(e, c, 8)
    uni = f'v_readfirstlane_b32 s47, v{VF}\ns_nop 1\nv_cmp_ne_u32 vcc, s47, v{VF}\ns_cmp_eq_u32 s47, -2\ns_cselect_b32 s30, 1, 0\ns_or_b32 s30, s30, vcc_lo'
    e(f's_waitcnt vmcnt(0)\n{uni}\ns_cbranch_scc1 L_t1gen\ns_nop 1\nL_t1back:')
    for i in range(4): e(f'v_cvt_pk_bf16_f32 v{D+i}, v{D+2*i}, v{D+2*i+1}')
    for i in range(4): e(f'v_min_u32 v{D+i}, -2, v{D+i}')
    e(f's_mov_b32 exec_hi, 0\nbuffer_store_dwordx4 {vr(D)}, v{VO}, s[16:19], s26 offen sc1')
    stamp(e, c, 10)
    e('L_fin:')
    dump(e, c)
    e('L_end:\ns_endpgm')
    mll = [f's_add_u32 s30, s41, {2*PS_*i}\nbuffer_load_dwordx2 {vr(MLR+2*i,2)}, v{VM}, s[16:19], s30 offen sc1' for i in range(16)]
    def weights(M, L):
        e(f'v_max_f32 v{M}, v{MLR}, v{MLR+2}')
        for i in range(2, 16, 2): e(f'v_max3_f32 v{M}, v{M}, v{MLR+2*i}, v{MLR+2*i+2}')
        e(f'v_mov_b32 v{L}, v{M}\ns_nop 1\nv_permlane32_swap_b32 v{M}, v{L}\nv_max_f32 v{M}, v{M}, v{L}')
        for i in range(16): e(f'v_sub_f32 v{MLR+2*i}, v{MLR+2*i}, v{M}')
        for i in range(16): e(f'v_exp_f32 v{MLR+2*i}, v{MLR+2*i}')
    e(f'L_t1l:\ns_cmp_lg_u32 s37, 0\ns_cbranch_scc1 L_fin')
    e(f'v_bfe_u32 v{T0}, v0, 4, 1\nv_mul_u32_u24 v{T0}, {768-128}, v{T0}\nv_add_u32 v{T0}, v{T0}, v1\ns_lshl_b32 s26, s36, 7\ns_add_u32 s26, s26, {XL}')
    e(f'L_t1lw:\n{flagload}\ns_waitcnt vmcnt(0)\nv_cmp_eq_u32 vcc, -1, v{VF}\ns_cmp_eq_u32 vcc_lo, 0\ns_cbranch_scc1 L_t1ld'); budget(e, 'L_t1lw')
    e('L_t1ld:')
    for x in mll: e(x)
    e(f'{uni}\ns_cbranch_scc1 L_t1lg\nv_mov_b32 v{U0}, s47\ns_waitcnt vmcnt(14)\nv_add_f32 v{U1}, v{MLR+1}, v{MLR+3}')
    for i in range(2, 16): e(f's_waitcnt vmcnt({15-i})\nv_add_f32 v{U1}, v{U1}, v{MLR+2*i+1}')
    e(f'L_t1lb:\nv_mov_b32 v{T1}, v{U1}\nv_min_u32 v{U0}, -2, v{U0}\ns_nop 0\nv_permlane32_swap_b32 v{U1}, v{T1}\nv_add_f32 v{U1}, v{U1}, v{T1}\nv_min_u32 v{U1}, -2, v{U1}')
    e(f's_mov_b32 exec_hi, 0\nbuffer_store_dwordx2 {vr(U0,2)}, v{T0}, s[16:19], s26 offen sc1')
    stamp(e, c, 10)
    e('s_branch L_fin')
    e('L_t1lg:\ns_waitcnt vmcnt(0)')
    weights(U0, U1)
    e(f'v_mul_f32 v{U1}, v{MLR}, v{MLR+1}')
    for i in range(1, 16): e(f'v_fmac_f32 v{U1}, v{MLR+2*i}, v{MLR+2*i+1}')
    e('s_branch L_t1lb')
    e('L_t1gen:')
    for x in mll: e(x)
    for i in range(16): e(f's_add_u32 s30, s27, {2*PS_*i}\nbuffer_load_dwordx4 {vr(X+4*i)}, v{VX}, s[16:19], s30 offen sc1')
    e('s_waitcnt vmcnt(16)')
    weights(U0, U1)
    T = 32
    e('s_waitcnt vmcnt(0)')
    for i in range(16):
        for d in range(4): e(f'v_lshlrev_b32 v{T+2*d}, 16, v{X+4*i+d}\nv_and_b32 v{T+2*d+1}, 0xffff0000, v{X+4*i+d}')
        for d in range(4):
            if i == 0: e(f'v_pk_mul_f32 {vr(D+2*d,2)}, {vr(T+2*d,2)}, {vr(MLR,2)} op_sel_hi:[1,0]')
            else: e(f'v_pk_fma_f32 {vr(D+2*d,2)}, {vr(T+2*d,2)}, {vr(MLR+2*i,2)}, {vr(D+2*d,2)} op_sel_hi:[1,0,1]')
    e('s_nop 1')
    for k in range(8): e(f'v_permlane32_swap_b32 v{D+k}, v{T+k}')
    for k in range(8): e(f'v_add_f32 v{D+k}, v{D+k}, v{T+k}')
    e('s_branch L_t1back')
    e('L_s_hook:')
    e(f's_cmp_ge_u32 s25, {rsetup}\ns_cbranch_scc1 L_hk\ns_cmp_eq_u32 s25, 0\ns_cbranch_scc1 L_h0')
    for k in range(Ks):
        if k < Ks - 1: e(f's_cmp_lg_u32 s50, {k}\ns_cbranch_scc1 L_hu{k}\ns_mov_b32 s50, {k+1}')
        for x in unstage_items(STG + 32 * k, f's{46+k}', TMP + 6): e(x)
        e(f's_branch L_s_next\nL_hu{k}:')
    per = (4608 - NS * ns) // c.nshard; n1 = c.n1; n2 = (per - n1) // 2; assert 2 * n2 + n1 == per and n1 <= NS // c.nshard
    e(f'L_hk:\ns_cmp_eq_u32 s25, {rsetup}\ns_cbranch_scc1 L_hs\ns_cmp_eq_u32 s25, {rsetup+1}\ns_cbranch_scc1 L_hw')
    e(f'v_readfirstlane_b32 s30, v{TK}\ns_lshr_b32 s30, s30, 30\ns_cbranch_scc0 L_hw\ns_mov_b32 s49, 1\ns_mov_b32 s44, 0\ns_lshr_b32 s30, s30, 1\ns_and_b32 s30, s30, s4\ns_cbranch_scc0 L_s_next')
    for i in range(4): e(f'v_mov_b32 v{NEGM+i}, 0xff600000')
    e('s_branch L_s_next\nL_hs:')
    t1_setup()
    e('s_cmp_lg_u32 s3, 0\ns_cbranch_scc1 L_s_next\ns_branch L_draw')
    e('L_hw:\ns_cmp_lg_u32 s3, 0\ns_cbranch_scc1 L_s_next')
    if c.dyn and not c.iso:
        if c.satom: e('s_mov_b32 s30, 1\ns_atomic_add s30, s[16:17], s51 glc\ns_waitcnt lgkmcnt(0)')
        else: e(f's_waitcnt vmcnt(0)\nv_readfirstlane_b32 s30, v{TA}')
        e(f's_add_u32 s30, s30, 1\ns_mul_i32 s31, s30, {c.nshard}\ns_add_u32 s31, s31, s48')
        e(f's_lshl1_add_u32 s56, s31, {NS*ns}\ns_add_u32 s57, s31, {NS*ns + n2*c.nshard + (1<<30)}\ns_cmp_lt_u32 s30, {n2}\ns_cselect_b32 s31, s56, s57\ns_cmp_lt_u32 s30, {n2+n1}\ns_cselect_b32 s31, s31, -1')
    else:
        e(f's_sub_u32 s30, s25, {rsetup+1}\ns_mul_i32 s31, s30, {NS}\ns_add_u32 s31, s31, s35\ns_lshl1_add_u32 s56, s31, {NS*ns}\ns_add_u32 s57, s35, {4608-NS+(1<<30)}\ns_cmp_lt_u32 s25, 9\ns_cselect_b32 s31, s56, s57')
    e(f'v_mov_b32 v{TMP+6}, s31\nds_write_b32 v{TKA}, v{TMP+6}\ns_lshr_b32 s31, s31, 30\ns_cbranch_scc1 L_s_next\nL_draw:')
    if c.dyn and not c.iso and not c.satom: e(f'v_mov_b32 v{TA}, 1\ns_mov_b64 exec, 1\nbuffer_atomic_add v{TA}, off, s[16:19], s51 sc0\ns_mov_b64 exec, -1')
    e('s_branch L_s_next')
    e('L_h0:\ns_cmp_lg_u32 s3, 0\ns_cbranch_scc1 L_s_next\ns_getreg_b32 s30, hwreg(HW_REG_XCC_ID, 0, 3)\ns_lshl_b32 s30, s30, 3\ns_lshl_b64 s[56:57], 1, s30')
    e(f'v_mov_b32 v{T0}, s56\nv_mov_b32 v{T1}, s57\ns_mov_b64 exec, 1\nbuffer_atomic_add_x2 {vr(T0,2)}, off, s[20:23], s39 offset:32\ns_mov_b64 exec, -1\ns_branch L_s_next')
    flush_deferred(e)
    e(f'L_aretry:\nv_min_u32 v{T1}, 47, v0\nv_lshlrev_b32 v{T1}, 9, v{T1}\nL_aw:\ns_sub_u32 s61, s61, 1\ns_cmp_gt_i32 s61, 0\ns_cbranch_scc0 L_aok')
    e(f'buffer_load_dword v{T0}, v{T1}, s[16:19], s52 offen sc1\ns_waitcnt vmcnt(0)\nv_cmp_eq_u32 vcc, -1, v{T0}\ns_cbranch_vccz L_aload\ns_sleep 4\ns_branch L_aw')
    e('L_aload:')
    for x, _, _ in aload: e(x)
    validate(e, aload, T0)
    e('s_cbranch_vccnz L_aretry\ns_branch L_aok')
    e('L_s_slow:'); first_look(PFL, TMP, 'L_s_back', 'sf')
    e(f'v_max3_f32 v{TMP}, v{S0}, v{S0+1}, v{S0+2}\nv_max3_f32 v{TMP}, v{TMP}, v{S0+3}, v{S1}\nv_max3_f32 v{TMP}, v{TMP}, v{S1+1}, v{S1+2}\nv_max_f32 v{TMP}, v{TMP}, v{S1+3}')
    xsum16_32(e, TMP, TMP + 1, 'v_max_f32')
    e(f's_lshl_b32 s30, s4, 7\nv_add_u32 v{TMP+3}, s30, v{MXO}')
    e(f'ds_write_b32 v{TMP+3}, v{TMP}\ns_waitcnt lgkmcnt(0)\ns_barrier')
    e(f'ds_read2_b32 {vr(TMP,2)}, v{MXO} offset0:0 offset1:32\ns_waitcnt lgkmcnt(0)\nv_max_f32 v{TMP}, v{TMP}, v{TMP+1}')
    quant(TMP)
    e(f'v_max_f32 v{TMP+1}, 0, v{TMP}\nv_cndmask_b32 v{TMP}, v{TMP+1}, v{TMP}, s[28:29]\ns_mov_b64 s[28:29], 0')
    for i in range(4): e(f'v_sub_f32 v{NEGM+i}, v{NEGM+i}, v{TMP}\nv_sub_f32 v{S0+i}, v{S0+i}, v{TMP}\nv_sub_f32 v{S1+i}, v{S1+i}, v{TMP}')
    for x in exp_items(S0, 0) + exp_items(S1, 1): e(x)
    e('s_waitcnt lgkmcnt(0)\ns_barrier\ns_cmp_eq_u32 s49, 0\ns_cbranch_scc1 L_s_back\ns_branch L_s_last')

def code_touch(e, c):
    nl = c.code_bytes // 128 // 32; lb = e.label('L_pc')
    e(f's_getpc_b64 s[24:25]\n{lb}:\ns_sub_u32 s24, s24, {lb}-{KNAME}\ns_subb_u32 s25, s25, 0\ns_lshr_b32 s30, s6, 3\ns_mul_i32 s30, s30, {nl*128}')
    e(f'v_lshl_add_u32 v2, v0, 7, s30\ns_mov_b64 exec, {(1<<nl)-1}\nglobal_load_dword v55, v2, s[24:25]\ns_mov_b64 exec, -1')

def helper_extra(e, c):
    e('L_extra:'); late_consts(e); e('s_waitcnt lgkmcnt(0)')
    if c.touch:
        e('s_cmp_lg_u32 s7, 7\ns_cbranch_scc1 L_x6'); code_touch(e, c); e('s_endpgm\nL_x6:')
    e('s_cmp_ge_u32 s2, 48\ns_cbranch_scc1 L_end\ns_cmp_lg_u32 s7, 6\ns_cbranch_scc1 L_end')
    e('s_getreg_b32 s30, hwreg(HW_REG_XCC_ID, 0, 4)\ns_cmp_ge_u32 s30, 8\ns_cbranch_scc1 L_end\ns_lshl_b32 s30, s30, 3\ns_lshl_b64 s[32:33], 1, s30')
    e(f's_and_b32 s30, s2, 1\ns_lshl_b32 s30, s30, 7\nv_mov_b32 v2, s32\nv_mov_b32 v3, s33\ns_mov_b64 exec, 1\nbuffer_atomic_add_x2 v[2:3], off, s[20:23], s30 offset:8\ns_endpgm')

def gen(c):
    e = E()
    nwg = 256
    head = f'; @launch grid=({nwg},1,1) block=(512,1,1) lds={LDS_BYTES}\n.amdgcn_target "amdgcn-amd-amdhsa--gfx950"\n.text\n'
    kstart(e, KNAME)
    stamp(e, c, 0)
    e(f'v_lshrrev_b32 v1, 6, v0\nv_and_b32 v0, 63, v0\nv_readfirstlane_b32 s7, v1')
    for r, nm in ((8, 'feat_hi'), (98, 'q'), (12, 'feat_lo'), (16, 'ws'), (20, 'dbg')): e(f's_load_dwordx2 s[{r}:{r+1}], s[0:1], {KA[nm]}')
    e(f's_cmpk_ge_u32 s2, {nwg}\ns_cbranch_scc1 L_end\ns_mov_b32 s6, s2\ns_and_b32 s3, s7, 3')
    e('s_lshr_b32 s2, s2, 2\ns_and_b32 s33, s6, 3\ns_cbranch_scc0 L_hent')
    e('s_mul_i32 s35, s2, 3\ns_add_u32 s35, s35, s33\ns_sub_u32 s35, s35, 1')
    e(f's_bitcmp1_b32 {c.smask}, s7\ns_cbranch_scc0 L_strm\ns_mov_b32 s31, s7\ns_mov_b32 s30, s35\ns_mov_b32 s32, 12\ns_branch L_tch')
    e('L_hent:\ns_cmp_ge_u32 s2, 60\ns_cbranch_scc1 L_spare\ns_cmp_lt_u32 s7, 4\ns_cbranch_scc1 L_hq\ns_cmp_gt_u32 s7, 5\ns_cbranch_scc1 L_extra')
    e('s_mov_b32 s31, 2\ns_and_b32 s30, s2, 62\ns_add_u32 s30, s30, s3\ns_mov_b32 s32, 36')
    e('L_tch:\ns_lshl3_add_u32 s34, s31, 24\ns_load_dwordx2 s[96:97], s[0:1], s34')
    e('s_mul_i32 s30, s30, s32\nv_add_u32 v2, s30, v0\nv_mul_u32_u24 v3, 0xaaab, v2\nv_lshrrev_b32 v3, 18, v3')
    e('s_cmp_eq_u32 s31, 3\ns_cselect_b32 s30, 6, 0\nv_mad_u32_u24 v2, v3, s30, v2\nv_lshlrev_b32 v2, 7, v2')
    e('s_bfm_b64 exec, s32, 0\ns_waitcnt lgkmcnt(0)\nglobal_load_dword v55, v2, s[96:97]\ns_mov_b64 exec, -1\ns_cmp_lg_u32 s33, 0\ns_cbranch_scc1 L_strm\ns_endpgm')
    e('L_hq:\ns_lshr_b32 s30, s2, 1\ns_lshl2_add_u32 s30, s30, s7\ns_min_u32 s30, s30, 0x5f\ns_bitcmp1_b32 s2, 0\ns_cselect_b32 s31, 0x60, 0\ns_add_u32 s30, s30, s31\ns_lshl_b32 s30, s30, 7\nv_mov_b32 v3, s30')
    e('s_mov_b64 exec, 1\ns_waitcnt lgkmcnt(0)\nglobal_load_dword v255, v3, s[98:99]\ns_mov_b64 exec, -1')
    e('s_cmp_lt_u32 s2, 48\ns_cbranch_scc1 L_tail\ns_branch L_pf\nL_strm:')
    streamer(e, c)
    role_spare(e, c); helper_extra(e, c); role_pf(e, c); role_tail(e, c)
    e(f'.fill ({c.code_bytes} - (. - {KNAME})) / 4, 4, 0xbf800000\ns_endpgm\ns_endpgm')
    return head + e.text() + '.section .rodata,"a"\n' + kdesc(KNAME, 256, 100, 256)

if __name__ == '__main__':
    c = Cfg()
    for a in sys.argv[2:]:
        k, v = a.split('='); setattr(c, k, eval(v))
    t = gen(c)
    open(sys.argv[1], 'w').write(t)
    print(hazard.check(t), 'hazards')
```

```python
import sys, math
from common import *
import hazard
KNAME = 'standalone__detection_seg_detr_decoder__vision_kernel'
QF, TF, AF = 0x0, 0x6000, 0xC000
UF, HF, ST, GF = 0x18000, 0x24000, 0x2A000, 0x2C000
XU, XL, FL, TKC = 0x44000, 0x8C000, 0x8D000, 0x8E000
WCF, YF, DG, PART = 0xA0000, 0x130000, 0x180000, 0x200000
PS_ = 49152 + 1024
LOG2E = 1.4426950408889634
TILE = 30720; NSLOT = 5; PB = TILE * NSLOT
MXB = PB + 5120; TKW = MXB + 256
LDS_BYTES = 159744
NH = 64

class Cfg:
    diag = False; Ks = 2; Kp = 2; jp = 37; pf = True; touch = True; chunk = 1
    order = 'ssp'; cu = ((1, 4, 7), (2, 5, 8), (3, 6, 8), (2, 4, 7)); rd0 = 9; dyn = True; nshard = 8; n1 = 24; satom = True; tpos = (0, 0)
    wstep = 2; pprio = 1; d1 = (-2, -1, 0, 1, 2, 3, 4, 5); d2 = (7, 8, 9, 10, 11, 12, 13, 14); send = True
    code_bytes = 0x8000; iso = False; pro = 0; hot = False; cut = 0; fine = None; tl = False; enc = None
    local = True; weave = 24; smask = 15; pnt = ''
    hookx = 4; t1sleep = 1; ndyn = 6; bsamp = 6

def stamp(e, c, k):
    if c.diag: e(f's_memrealtime s[{64+2*k}:{65+2*k}]')
def dump(e, c):
    if not c.diag: return
    if c.enc:
        lo, hi, wmask, k = c.enc
        e(f's_waitcnt lgkmcnt(0)\ns_cmp_lt_u32 s2, {lo}\ns_cbranch_scc1 L_end\ns_cmp_ge_u32 s2, {hi}\ns_cbranch_scc1 L_end\ns_bitcmp1_b32 {wmask}, s7\ns_cbranch_scc0 L_end')
        e(f's_sub_u32 s30, s{64+2*k}, s64\ns_min_u32 s30, s30, 5000\ns_lshl_b32 s30, s30, 3\ns_add_u32 s30, s30, 4000')
        e('L_enc:\ns_memrealtime s[32:33]\ns_waitcnt lgkmcnt(0)\ns_sub_u32 s31, s32, s64\ns_cmp_lt_u32 s31, s30\ns_cbranch_scc1 L_enc')
        return
    e('s_waitcnt lgkmcnt(0)\ns_mov_b64 exec, 1')
    e(f's_lshl_b32 s60, s2, 3\ns_add_u32 s60, s60, s7\ns_lshl_b32 s60, s60, 6\ns_add_u32 s60, s60, {DG}\nv_mov_b32 v1, 0')
    for k in range(16): e(f'v_mov_b32 v2, s{64+2*k}\nbuffer_store_dword v2, v1, s[16:19], s60 offen offset:{4*k}')

def late_consts(e):
    e(f's_mov_b32 s18, {SZ["ws"]}\ns_mov_b32 s19, 0x20000\ns_mov_b32 s22, {SZ["dbg"]}\ns_mov_b32 s23, 0x20000\ns_mov_b32 s61, 100000')
def budget(e, lp): e(f's_sub_u32 s61, s61, 1\ns_cmp_gt_i32 s61, 0\ns_cbranch_scc1 {lp}')
def early_load(e, v, sqh):
    e(f's_lshl_b32 s60, s{sqh}, 7\ns_mov_b64 exec, 1\nbuffer_load_dwordx4 {vr(v)}, off, s[20:23], s60 sc1\ns_mov_b64 exec, -1')
def early_wait(e, v, words):
    lp = e.label('L_ew')
    e(f'{lp}:\nv_readfirstlane_b32 s30, v{v+words[0]}')
    if len(words) > 1: e(f'v_readfirstlane_b32 s31, v{v+words[1]}\ns_and_b32 s30, s30, s31')
    e(f's_cmp_lg_u32 s30, 0\ns_cbranch_scc0 {lp}_r\n{lp}_d:')
    e.deferred.append(f'{lp}_r:\ns_sleep 2\ns_mov_b64 exec, 1\nbuffer_load_dwordx4 {vr(v)}, off, s[20:23], s60 sc1\ns_mov_b64 exec, -1\ns_waitcnt vmcnt(0)\ns_sub_u32 s61, s61, 1\ns_cmp_gt_i32 s61, 0\ns_cbranch_scc1 {lp}\ns_branch {lp}_d')
def late_addr(e, va): e(f'v_and_b32 v{va}, 1, v0\nv_lshlrev_b32 v{va}, 7, v{va}')
def late_load(e, v, va): e(f's_mov_b64 exec, 3\nbuffer_load_dwordx2 {vr(v,2)}, v{va}, s[20:23], 0 offen offset:16 sc1\ns_mov_b64 exec, -1')
def late_wait(e, v, va):
    lp = e.label('L_lw')
    e(f'{lp}:\nv_and_b32 v{v}, v{v}, v{v+1}\nv_cmp_eq_u32 vcc, 0, v{v}\ns_and_b32 s30, vcc_lo, 3\ns_cbranch_scc1 {lp}_r\n{lp}_d:')
    e.deferred.append(f'{lp}_r:\ns_sleep 8\ns_mov_b64 exec, 3\nbuffer_load_dwordx2 {vr(v,2)}, v{va}, s[20:23], 0 offen offset:16 sc1\ns_mov_b64 exec, -1\ns_waitcnt vmcnt(0)\ns_sub_u32 s61, s61, 1\ns_cmp_gt_i32 s61, 0\ns_cbranch_scc1 {lp}\ns_branch {lp}_d')
def flag_set(e, base, sidx, t):
    sk = e.label('L_fs')
    e(f's_cmp_lg_u32 s3, 0\ns_cbranch_scc1 {sk}\ns_lshl_b32 s30, s{sidx}, 7\ns_add_u32 s30, s30, {base}\nv_mov_b32 v{t}, 1\ns_mov_b64 exec, 1\nbuffer_store_dword v{t}, off, s[16:19], s30 sc1\ns_mov_b64 exec, -1\n{sk}:')
def flag_wait0(e, base, n, t, late=False):
    sk = e.label('L_fw')
    e(f's_cmp_lg_u32 s3, 0\ns_cbranch_scc1 {sk}')
    if late: late_addr(e, 1); late_load(e, t, 1); e('s_waitcnt vmcnt(0)'); late_wait(e, t, 1)
    e(f'v_min_u32 v1, {n-1}, v0\nv_lshlrev_b32 v1, 7, v1\ns_mov_b32 s30, {base}\n{sk}_l:\nbuffer_load_dword v{t}, v1, s[16:19], s30 offen sc1\ns_waitcnt vmcnt(0)\nv_cmp_eq_u32 vcc, -1, v{t}\ns_cbranch_vccz {sk}\ns_sleep 8')
    budget(e, f'{sk}_l')
    e(f'{sk}:\ns_barrier')

def validate(e, loads, t, younger=0):
    first = True
    for i, (_, r, n) in enumerate(loads):
        e(f's_waitcnt vmcnt({len(loads)-1-i+younger})')
        rs = list(range(r, r + n))
        if first:
            e(f'v_max_u32 v{t}, v{rs[0]}, v{rs[1]}'); rs = rs[2:]; first = False
        while rs:
            e(f'v_max3_u32 v{t}, v{t}, v{rs[0]}, v{rs[1]}'); rs = rs[2:]
    e(f'v_cmp_eq_u32 vcc, -1, v{t}')
def gather(e, loads, t):
    lp = e.label('L_g')
    e(f'{lp}:')
    for x, _, _ in loads: e(x)
    e('s_sub_u32 s61, s61, 1\ns_cmp_gt_i32 s61, 0\ns_cselect_b64 s[62:63], -1, 0')
    validate(e, loads, t)
    e(f's_and_b64 vcc, vcc, s[62:63]\ns_cbranch_scc1 {lp}')
def frag_loads(dst, n, voff, sreg0, flags=' sc1'):
    return [(f'buffer_load_dwordx4 {vr(dst+4*k)}, v{voff}, s[16:19], s{sreg0+k//4} offen offset:{1024*(k%4)}{flags}', dst + 4 * k, 4) for k in range(n)]
def soffs(e, s0, n):
    for k in range(1, n): e(f's_add_u32 s{s0+k}, s{s0}, {4096*k}')
def tile_off(e, vo, q, g, t):
    e(f'v_lshrrev_b32 v{vo}, 1, v{g}\nv_lshlrev_b32 v{vo}, 8, v{vo}\nv_lshl_add_u32 v{vo}, v{q}, 4, v{vo}')
def hstore(e, text, local):
    if not local: e(text + ' sc1'); return
    lb = e.label('L_hs')
    e(f's_cmp_lg_u32 s59, 0\ns_cbranch_scc0 {lb}\n{text}\n{lb}_b:')
    e.deferred.append(f'{lb}:\n{text} sc1\ns_branch {lb}_b')
def flush_deferred(e):
    for x in e.deferred: e(x)
    e.deferred = []
def pack_store(e, D, P, voff, soff, keep=None, local=False):
    e(f'v_cvt_pk_bf16_f32 v{P}, v{D}, v{D+1}\nv_cvt_pk_bf16_f32 v{P+1}, v{D+2}, v{D+3}\nv_min_u32 v{P}, -2, v{P}\nv_min_u32 v{P+1}, -2, v{P+1}')
    e(f'v_mov_b64 {vr(keep,2)}, {vr(P,2)}' if keep else 's_nop 0')
    e(f'v_permlane16_swap_b32 v{P}, v{P+2}\nv_permlane16_swap_b32 v{P+1}, v{P+3}')
    e('s_mov_b32 exec_lo, 0xffff\ns_mov_b32 exec_hi, 0xffff')
    hstore(e, f'buffer_store_dwordx4 {vr(P)}, v{voff}, s[16:19], s{soff} offen', local)
    e('s_mov_b64 exec, -1')
def local_flag(e, v, n=24):
    e(f'v_readfirstlane_b32 s56, v{v}\nv_readfirstlane_b32 s57, v{v+1}\ns_getreg_b32 s30, hwreg(HW_REG_XCC_ID, 0, 4)\ns_lshl_b32 s30, s30, 3')
    e(f's_lshr_b64 s[56:57], s[56:57], s30\ns_and_b32 s56, s56, 0xff\ns_cmp_eq_u32 s56, {n}\ns_cselect_b32 s59, 1, 0\ns_cmp_lt_u32 s30, 64\ns_cselect_b32 s59, s59, 0')

def rows_src(e, vo, stride, t0, t1, t2):
    e('s_lshl_b32 s30, s3, 1\ns_lshr_b32 s30, 0x78, s30\ns_and_b32 s30, s30, 3')
    e(f's_mul_i32 s31, s3, {4*stride}')
    for b in range(3):
        e(f'v_add_u32 v{t0}, {64*b}, v0\nv_mul_u32_u24 v{t1}, 1366, v{t0}\nv_lshrrev_b32 v{t1}, 16, v{t1}')
        e(f'v_mul_u32_u24 v{t2}, 48, v{t1}\nv_sub_u32 v{t0}, v{t0}, v{t2}\nv_lshl_or_b32 v{t2}, v{t1}, 2, s30\nv_xor_b32 v{t0}, v{t0}, v{t2}')
        e(f'v_mul_u32_u24 v{t1}, {stride}, v{t1}\nv_lshl_add_u32 v{t0}, v{t0}, 4, v{t1}\nv_add_u32 v{vo+b}, s31, v{t0}')
def rows_dma(e, vo, srd, soff, ldsbase, ntile, stride, fl=''):
    e(f's_mul_i32 s30, s3, 3072\ns_add_u32 m0, s30, {ldsbase}')
    lp = e.label('L_rd')
    if ntile > 1: e(f's_mov_b32 s31, {ntile}\n{lp}:')
    for b in range(3):
        e(f's_nop 0\nbuffer_load_dwordx4 v{vo+b}, {srd}, s{soff} offen{fl} lds\ns_add_u32 m0, m0, {1024 if b < 2 else 12288-2048}')
    if ntile > 1: e(f's_add_u32 s{soff}, s{soff}, {16*stride}\ns_sub_u32 s31, s31, 1\ns_cmp_lg_u32 s31, 0\ns_cbranch_scc1 {lp}')
def rows_rd(e, va, base, t0, t1, t2):
    e(f'v_and_b32 v{t0}, 15, v0\nv_lshrrev_b32 v{t1}, 2, v{t0}\nv_lshlrev_b32 v{t1}, 1, v{t1}\ns_mov_b32 s30, 0x78\nv_lshrrev_b32 v{t1}, v{t1}, s30\nv_and_b32 v{t1}, 3, v{t1}')
    e(f'v_and_b32 v{t2}, 3, v0\nv_lshl_or_b32 v{t1}, v{t2}, 2, v{t1}\nv_lshrrev_b32 v{t2}, 4, v0\nv_xor_b32 v{t1}, v{t1}, v{t2}')
    e(f'v_mul_u32_u24 v{t0}, 768, v{t0}\nv_lshl_add_u32 v{t0}, v{t1}, 4, v{t0}\nv_add_u32 v{va}, {base}, v{t0}')
    for b in range(1, 4): e(f'v_xor_b32 v{va+b}, {64*b}, v{va}')
def rowgemm(e, va, ntile, BF, AFR, D, P, voff, soff):
    lp = e.label('L_rg')
    e(f's_mov_b32 s31, {ntile}\n{lp}:')
    for ks in range(12): e(f'ds_read_b128 {vr(AFR+4*ks)}, v{va+(ks&3)} offset:{256*(ks>>2)}')
    for ks in range(12):
        e(f's_waitcnt lgkmcnt({11-ks})\nv_mfma_f32_16x16x32_bf16 {vr(D)}, {vr(AFR+4*ks)}, {vr(BF+4*ks)}, {vr(D) if ks else 0}')
    for b in range(4): e(f'v_add_u32 v{va+b}, 12288, v{va+b}')
    e('s_nop 3')
    pack_store(e, D, P, voff, soff)
    e(f's_add_u32 s{soff}, s{soff}, 512\ns_sub_u32 s31, s31, 1\ns_cmp_lg_u32 s31, 0\ns_cbranch_scc1 {lp}')
def slab128_src(e, vo, stride, t0, t1):
    e(f'v_lshrrev_b32 v{vo}, 3, v0\nv_mul_u32_u24 v{vo}, {stride}, v{vo}')
    e(f'v_bfe_u32 v{t0}, v0, 4, 1\ns_and_b32 s30, s3, 1\ns_lshl_b32 s30, s30, 1\nv_or_b32 v{t0}, s30, v{t0}\nv_lshlrev_b32 v{t0}, 1, v{t0}')
    e(f'v_and_b32 v{t1}, 7, v0\nv_xor_b32 v{t0}, v{t0}, v{t1}\nv_lshl_add_u32 v{vo}, v{t0}, 4, v{vo}')
def slab128_dma(e, vo, srd, sj, stride, ldsbase, n=12, srow=None):
    e(f's_lshl_b32 s34, s{sj}, 7\ns_mul_i32 s30, s3, {8*stride}\ns_add_u32 s34, s34, s30\ns_lshl_b32 s30, s3, 10\ns_add_u32 m0, s30, {ldsbase}')
    lp = e.label('L_sl')
    if srow: e(f's_add_u32 s34, s34, s{srow}')
    e(f's_mov_b32 s31, {n}\n{lp}:\nbuffer_load_dwordx4 v{vo}, {srd}, s34 offen lds')
    e(f's_add_u32 s34, s34, {32*stride}\ns_add_u32 m0, m0, 4096\ns_sub_u32 s31, s31, 1\ns_cmp_lg_u32 s31, 0\ns_cbranch_scc1 {lp}')
def slab128_rd(e, vo, t0, t1):
    e(f'v_bfe_u32 v{t0}, v0, 2, 2\nv_lshrrev_b32 v{t1}, 4, v0\nv_lshlrev_b32 v{vo}, 10, v{t1}\nv_lshl_add_u32 v{vo}, v{t0}, 7, v{vo}')
    e(f'v_lshrrev_b32 v{t0}, 1, v{t0}\nv_and_b32 v{t1}, 1, v{t1}\nv_lshl_or_b32 v{t0}, v{t1}, 1, v{t0}\nv_lshl_add_u32 v{vo}, v{t0}, 5, v{vo}')
    e(f'v_and_b32 v{t0}, 3, v0\nv_lshl_add_u32 v{vo}, v{t0}, 3, v{vo}')
def slab32_src(e, vout, t, stride):
    e(f'v_lshrrev_b32 v{vout}, 1, v0\nv_bfe_u32 v{t}, v0, 4, 1\nv_lshlrev_b32 v{t}, 2, v{t}\nv_xor_b32 v{vout}, v{vout}, v{t}')
    e(f'v_mul_u32_u24 v{vout}, {stride}, v{vout}\nv_and_b32 v{t}, 1, v0\nv_lshl_add_u32 v{vout}, v{t}, 4, v{vout}')
def slab32_rd(e, v0_, v1_, t):
    e(f'v_lshrrev_b32 v{t}, 4, v0\nv_lshlrev_b32 v{v0_}, 8, v{t}\nv_and_b32 v{t}, 1, v{t}\nv_lshl_add_u32 v{v0_}, v{t}, 7, v{v0_}')
    e(f'v_and_b32 v{t}, 15, v0\nv_lshl_add_u32 v{v0_}, v{t}, 3, v{v0_}\nv_xor_b32 v{v1_}, 128, v{v0_}')
def ln_finish(e, s1, s2):
    e(f'v_mul_f32 v{s1}, {fx(1/384)}, v{s1}\nv_mul_f32 v{s2}, {fx(1/384)}, v{s2}\nv_fma_f32 v{s2}, -v{s1}, v{s1}, v{s2}\nv_max_f32 v{s2}, 0, v{s2}\nv_add_f32 v{s2}, {fx(1e-5)}, v{s2}\nv_rsq_f32 v{s2}, v{s2}')
```

```python
KA = dict(q=0, feat_hi=8, feat_lo=16, lat_hi=24, lat_lo=32, wq=40, wkv=48, wo=56, w1=64, w2=72, out=80, dbg=88, ws=96)
SZ = dict(q=24576, feat_hi=113246208, feat_lo=28311552, lat_hi=294912, lat_lo=294912, wq=294912, wkv=589824,
          wo=294912, w1=1179648, w2=1179648, out=24576, dbg=256, ws=452984832)
import struct
def f2u(x): return struct.unpack('<I', struct.pack('<f', x))[0]
def fx(x): return '0x%08x' % f2u(x)

class E:
    def __init__(s):
        s.l = []; s.ds = []; s.uid = 0; s.deferred = []
    def __call__(s, t):
        for x in t.split('\n'):
            x = x.strip()
            if x: s.l.append(x if x.endswith(':') or x.startswith('.') else '    ' + x)
    def c(s, t): s.l.append('    ; ' + t)
    def label(s, p='L'):
        s.uid += 1; return f'{p}_{s.uid}'
    def dsop(s, t, tag=None):
        s(t); s.ds.append(tag)
    def dswait(s, tag):
        idx = max(i for i, t in enumerate(s.ds) if t == tag)
        n = len(s.ds) - 1 - idx
        assert n <= 15, n
        s(f's_waitcnt lgkmcnt({n})'); s.ds = s.ds[idx + 1:]
    def dsall(s):
        s('s_waitcnt lgkmcnt(0)'); s.ds = []
    def text(s): return '\n'.join(s.l) + '\n'
    def mark(s, tag): s.l.append(f'    ;@{tag}')
    def place_pads(s, name, ways, every):
        out = []; on = False; cnt = 0; k = 0
        for x in s.l:
            t = x.strip()
            if t == f';@on_{name}': on = True; cnt = every; continue
            if t == f';@off_{name}': on = False; continue
            if on and x.startswith('    ') and not t.startswith(';'):
                if cnt >= every: out += [f'{name}_{k}:', f'    s_cbranch_execz @{name}@{k}']; k += 1; cnt = 0
                cnt += 1
            out.append(x)
        s.l = [x if f'@{name}@' not in x else x.split('@')[0] + (f'{name}_{int(x.split("@")[2]) + ways}' if int(x.split('@')[2]) + ways < k else f'{name}_ret') for x in out]
        return k

def vr(b, n=4, k='v'): return f'{k}[{b}:{b+n-1}]' if n > 1 else f'{k}{b}'
def ar(b, n=4): return vr(b, n, 'a')
def sr(b, n=4): return vr(b, n, 's')

def load_srds(e, items):
    for b, nm in items:
        e(f's_load_dwordx2 s[{b}:{b+1}], s[0:1], {KA[nm]}')
    for b, nm in items:
        e(f's_mov_b32 s{b+2}, {SZ[nm]}\ns_mov_b32 s{b+3}, 0x20000')

def kstart(e, name):
    e(f'.globl {name}\n.p2align 8\n.type {name},@function\n{name}:')
def kdesc(name, vgpr, sgpr, accum):
    return f'''.p2align 6
.amdhsa_kernel {name}
  .amdhsa_next_free_vgpr {vgpr}
  .amdhsa_next_free_sgpr {sgpr}
  .amdhsa_accum_offset {accum}
  .amdhsa_group_segment_fixed_size 0
  .amdhsa_kernarg_size 104
  .amdhsa_user_sgpr_count 2
  .amdhsa_user_sgpr_kernarg_segment_ptr 1
  .amdhsa_system_sgpr_workgroup_id_x 1
.end_amdhsa_kernel
'''
def xsum16_32(e, x, t, op='v_add_f32'):
    e(f'v_mov_b32 v{t}, v{x}\ns_nop 1\nv_permlane16_swap_b32 v{x}, v{t}\n{op} v{x}, v{x}, v{t}')
    e(f'v_mov_b32 v{t}, v{x}\ns_nop 1\nv_permlane32_swap_b32 v{x}, v{t}\n{op} v{x}, v{x}, v{t}')

def walk(e, name, sel, ways):
    e.c('idle time: hop along the s_cbranch_execz pads (branches only) so that the code ahead is in the instruction cache')
    e('s_mov_b64 exec, 0')
    for w in range(ways - 1): e(f's_cmp_eq_u32 s{sel}, {w}\ns_cbranch_scc1 {name}_{w}')
    e(f's_branch {name}_{ways-1}\n{name}_ret:\ns_mov_b64 exec, -1')
```

```python
import sys, math
from common import *
import hazard
KNAME = 'standalone__detection_seg_detr_decoder__vision_kernel'
QF, TF, AF = 0x0, 0x6000, 0xC000
UF, HF, ST, GF = 0x18000, 0x24000, 0x2A000, 0x2C000
XU, XL, FL, TKC = 0x44000, 0x8C000, 0x8D000, 0x8E000
WCF, YF, DG, PART = 0xA0000, 0x130000, 0x180000, 0x200000
PS_ = 49152 + 1024
LOG2E = 1.4426950408889634
TILE = 30720; NSLOT = 5; PB = TILE * NSLOT
MXB = PB + 5120; TKW = MXB + 256
LDS_BYTES = 159744
NH = 64

class Cfg:
    diag = False; Ks = 2; Kp = 2; jp = 33; pf = True; touch = True; chunk = 1
    order = 'ssp'; cu = ((1, 4, 7), (2, 5, 8), (3, 6, 8), (2, 4, 7)); rd0 = 9; dyn = True; nshard = 8; n1 = 0; xone = False; satom = False; latlate = False; pflat = True; sptouch = False; tpos = (0, 0)
    wstep = 2; pprio = 1; d1 = (-2, -1, 0, 1, 2, 3, 4, 5); d2 = (7, 8, 9, 10, 11, 12, 13, 14); send = True
    code_bytes = 0x8000; iso = False; pro = 0; hot = False; cut = 0; fine = None; tl = False; enc = None; walk = 0
    local = True; weave = 24; smask = 15; pnt = ''
    hookx = 4; t1sleep = 1; ndyn = 8; bsamp = 6

def stamp(e, c, k):
    if c.diag: e(f's_memrealtime s[{64+2*k}:{65+2*k}]')
def dump(e, c):
    if not c.diag: return
    if c.enc:
        lo, hi, wmask, k = c.enc
        e(f's_waitcnt lgkmcnt(0)\ns_cmp_lt_u32 s2, {lo}\ns_cbranch_scc1 L_end\ns_cmp_ge_u32 s2, {hi}\ns_cbranch_scc1 L_end\ns_bitcmp1_b32 {wmask}, s7\ns_cbranch_scc0 L_end')
        e(f's_sub_u32 s30, s{64+2*k}, s64\ns_min_u32 s30, s30, 5000\ns_lshl_b32 s30, s30, 3\ns_add_u32 s30, s30, 4000')
        e('L_enc:\ns_memrealtime s[32:33]\ns_waitcnt lgkmcnt(0)\ns_sub_u32 s31, s32, s64\ns_cmp_lt_u32 s31, s30\ns_cbranch_scc1 L_enc')
        return
    e('s_waitcnt lgkmcnt(0)\ns_mov_b64 exec, 1')
    e(f's_lshl_b32 s60, s2, 3\ns_add_u32 s60, s60, s7\ns_lshl_b32 s60, s60, 6\ns_add_u32 s60, s60, {DG}\nv_mov_b32 v1, 0')
    for k in range(16): e(f'v_mov_b32 v2, s{64+2*k}\nbuffer_store_dword v2, v1, s[16:19], s60 offen offset:{4*k}')

def late_consts(e):
    e(f's_mov_b32 s18, {SZ["ws"]}\ns_mov_b32 s19, 0x20000\ns_mov_b32 s22, {SZ["dbg"]}\ns_mov_b32 s23, 0x20000\ns_mov_b32 s61, 100000')
def budget(e, lp): e(f's_sub_u32 s61, s61, 1\ns_cmp_gt_i32 s61, 0\ns_cbranch_scc1 {lp}')
def early_load(e, v, sqh):
    e(f's_lshl_b32 s60, s{sqh}, 7\ns_mov_b64 exec, 1\nbuffer_load_dwordx4 {vr(v)}, off, s[20:23], s60 sc1\ns_mov_b64 exec, -1')
def early_wait(e, v, words):
    lp = e.label('L_ew')
    e(f'{lp}:\nv_readfirstlane_b32 s30, v{v+words[0]}')
    if len(words) > 1: e(f'v_readfirstlane_b32 s31, v{v+words[1]}\ns_and_b32 s30, s30, s31')
    e(f's_cmp_lg_u32 s30, 0\ns_cbranch_scc0 {lp}_r\n{lp}_d:')
    e.deferred.append(f'{lp}_r:\ns_sleep 2\ns_mov_b64 exec, 1\nbuffer_load_dwordx4 {vr(v)}, off, s[20:23], s60 sc1\ns_mov_b64 exec, -1\ns_waitcnt vmcnt(0)\ns_sub_u32 s61, s61, 1\ns_cmp_gt_i32 s61, 0\ns_cbranch_scc1 {lp}\ns_branch {lp}_d')
def late_addr(e, va): e(f'v_and_b32 v{va}, 1, v0\nv_lshlrev_b32 v{va}, 7, v{va}')
def late_load(e, v, va): e(f's_mov_b64 exec, 3\nbuffer_load_dwordx2 {vr(v,2)}, v{va}, s[20:23], 0 offen offset:16 sc1\ns_mov_b64 exec, -1')
def late_wait(e, v, va):
    lp = e.label('L_lw')
    e(f'{lp}:\nv_and_b32 v{v}, v{v}, v{v+1}\nv_cmp_eq_u32 vcc, 0, v{v}\ns_and_b32 s30, vcc_lo, 3\ns_cbranch_scc1 {lp}_r\n{lp}_d:')
    e.deferred.append(f'{lp}_r:\ns_sleep 8\ns_mov_b64 exec, 3\nbuffer_load_dwordx2 {vr(v,2)}, v{va}, s[20:23], 0 offen offset:16 sc1\ns_mov_b64 exec, -1\ns_waitcnt vmcnt(0)\ns_sub_u32 s61, s61, 1\ns_cmp_gt_i32 s61, 0\ns_cbranch_scc1 {lp}\ns_branch {lp}_d')
def flag_set(e, base, sidx, t):
    sk = e.label('L_fs')
    e(f's_cmp_lg_u32 s3, 0\ns_cbranch_scc1 {sk}\ns_lshl_b32 s30, s{sidx}, 7\ns_add_u32 s30, s30, {base}\nv_mov_b32 v{t}, 1\ns_mov_b64 exec, 1\nbuffer_store_dword v{t}, off, s[16:19], s30 sc1\ns_mov_b64 exec, -1\n{sk}:')
def flag_wait0(e, base, n, t, late=False):
    sk = e.label('L_fw')
    e(f's_cmp_lg_u32 s3, 0\ns_cbranch_scc1 {sk}')
    if late: late_addr(e, 1); late_load(e, t, 1); e('s_waitcnt vmcnt(0)'); late_wait(e, t, 1)
    e(f'v_min_u32 v1, {n-1}, v0\nv_lshlrev_b32 v1, 7, v1\ns_mov_b32 s30, {base}\n{sk}_l:\nbuffer_load_dword v{t}, v1, s[16:19], s30 offen sc1\ns_waitcnt vmcnt(0)\nv_cmp_eq_u32 vcc, -1, v{t}\ns_cbranch_vccz {sk}\ns_sleep 8')
    budget(e, f'{sk}_l')
    e(f'{sk}:\ns_barrier')

def validate(e, loads, t, younger=0, after=None):
    first = True
    for i, (_, r, n) in enumerate(loads):
        e(f's_waitcnt vmcnt({len(loads)-1-i+younger})')
        if after: after(i)
        rs = list(range(r, r + n))
        if first:
            e(f'v_max_u32 v{t}, v{rs[0]}, v{rs[1]}'); rs = rs[2:]; first = False
        while rs:
            e(f'v_max3_u32 v{t}, v{t}, v{rs[0]}, v{rs[1]}'); rs = rs[2:]
    e(f'v_cmp_eq_u32 vcc, -1, v{t}')
def gather(e, loads, t, after=None, extra=()):
    lp = e.label('L_g')
    e(f'{lp}:')
    for x, _, _ in loads: e(x)
    for x in extra: e(x)
    e('s_sub_u32 s61, s61, 1\ns_cmp_gt_i32 s61, 0\ns_cselect_b64 s[62:63], -1, 0')
    validate(e, loads, t, len(extra), after)
    e(f's_and_b64 vcc, vcc, s[62:63]\ns_cbranch_scc1 {lp}')
def frag_loads(dst, n, voff, sreg0, flags=' sc1'):
    return [(f'buffer_load_dwordx4 {vr(dst+4*k)}, v{voff}, s[16:19], s{sreg0+k//4} offen offset:{1024*(k%4)}{flags}', dst + 4 * k, 4) for k in range(n)]
def soffs(e, s0, n):
    for k in range(1, n): e(f's_add_u32 s{s0+k}, s{s0}, {4096*k}')
def tile_off(e, vo, q, g, t):
    e(f'v_lshrrev_b32 v{vo}, 1, v{g}\nv_lshlrev_b32 v{vo}, 8, v{vo}\nv_lshl_add_u32 v{vo}, v{q}, 4, v{vo}')
def hstore(e, text, local):
    if not local: e(text + ' sc1'); return
    lb = e.label('L_hs')
    e(f's_cmp_lg_u32 s59, 0\ns_cbranch_scc0 {lb}\n{text}\n{lb}_b:')
    e.deferred.append(f'{lb}:\n{text} sc1\ns_branch {lb}_b')
def flush_deferred(e):
    for x in e.deferred: e(x)
    e.deferred = []
def pack_store(e, D, P, voff, soff, keep=None, local=False):
    e(f'v_cvt_pk_bf16_f32 v{P}, v{D}, v{D+1}\nv_cvt_pk_bf16_f32 v{P+1}, v{D+2}, v{D+3}\nv_min_u32 v{P}, -2, v{P}\nv_min_u32 v{P+1}, -2, v{P+1}')
    e(f'v_mov_b64 {vr(keep,2)}, {vr(P,2)}' if keep else 's_nop 0')
    e(f'v_permlane16_swap_b32 v{P}, v{P+2}\nv_permlane16_swap_b32 v{P+1}, v{P+3}')
    e('s_mov_b32 exec_lo, 0xffff\ns_mov_b32 exec_hi, 0xffff')
    hstore(e, f'buffer_store_dwordx4 {vr(P)}, v{voff}, s[16:19], s{soff} offen', local)
    e('s_mov_b64 exec, -1')
def local_flag(e, v, n=24):
    e(f'v_readfirstlane_b32 s56, v{v}\nv_readfirstlane_b32 s57, v{v+1}\ns_getreg_b32 s30, hwreg(HW_REG_XCC_ID, 0, 4)\ns_lshl_b32 s30, s30, 3')
    e(f's_lshr_b64 s[56:57], s[56:57], s30\ns_and_b32 s56, s56, 0xff\ns_cmp_eq_u32 s56, {n}\ns_cselect_b32 s59, 1, 0\ns_cmp_lt_u32 s30, 64\ns_cselect_b32 s59, s59, 0')

def rows_src(e, vo, stride, t0, t1, t2):
    e('s_lshl_b32 s30, s3, 1\ns_lshr_b32 s30, 0x78, s30\ns_and_b32 s30, s30, 3')
    e(f's_mul_i32 s31, s3, {4*stride}')
    for b in range(3):
        e(f'v_add_u32 v{t0}, {64*b}, v0\nv_mul_u32_u24 v{t1}, 1366, v{t0}\nv_lshrrev_b32 v{t1}, 16, v{t1}')
        e(f'v_mul_u32_u24 v{t2}, 48, v{t1}\nv_sub_u32 v{t0}, v{t0}, v{t2}\nv_lshl_or_b32 v{t2}, v{t1}, 2, s30\nv_xor_b32 v{t0}, v{t0}, v{t2}')
        e(f'v_mul_u32_u24 v{t1}, {stride}, v{t1}\nv_lshl_add_u32 v{t0}, v{t0}, 4, v{t1}\nv_add_u32 v{vo+b}, s31, v{t0}')
def rows_dma(e, vo, srd, soff, ldsbase, ntile, stride, fl=''):
    e(f's_mul_i32 s30, s3, 3072\ns_add_u32 m0, s30, {ldsbase}')
    lp = e.label('L_rd')
    if ntile > 1: e(f's_mov_b32 s31, {ntile}\n{lp}:')
    for b in range(3):
        e(f's_nop 0\nbuffer_load_dwordx4 v{vo+b}, {srd}, s{soff} offen{fl} lds\ns_add_u32 m0, m0, {1024 if b < 2 else 12288-2048}')
    if ntile > 1: e(f's_add_u32 s{soff}, s{soff}, {16*stride}\ns_sub_u32 s31, s31, 1\ns_cmp_lg_u32 s31, 0\ns_cbranch_scc1 {lp}')
def rows_rd(e, va, base, t0, t1, t2):
    e(f'v_and_b32 v{t0}, 15, v0\nv_lshrrev_b32 v{t1}, 2, v{t0}\nv_lshlrev_b32 v{t1}, 1, v{t1}\ns_mov_b32 s30, 0x78\nv_lshrrev_b32 v{t1}, v{t1}, s30\nv_and_b32 v{t1}, 3, v{t1}')
    e(f'v_and_b32 v{t2}, 3, v0\nv_lshl_or_b32 v{t1}, v{t2}, 2, v{t1}\nv_lshrrev_b32 v{t2}, 4, v0\nv_xor_b32 v{t1}, v{t1}, v{t2}')
    e(f'v_mul_u32_u24 v{t0}, 768, v{t0}\nv_lshl_add_u32 v{t0}, v{t1}, 4, v{t0}\nv_add_u32 v{va}, {base}, v{t0}')
    for b in range(1, 4): e(f'v_xor_b32 v{va+b}, {64*b}, v{va}')
def rowgemm(e, va, ntile, BF, AFR, D, P, voff, soff):
    lp = e.label('L_rg')
    e(f's_mov_b32 s31, {ntile}\n{lp}:')
    for ks in range(12): e(f'ds_read_b128 {vr(AFR+4*ks)}, v{va+(ks&3)} offset:{256*(ks>>2)}')
    for ks in range(12):
        e(f's_waitcnt lgkmcnt({11-ks})\nv_mfma_f32_16x16x32_bf16 {vr(D)}, {vr(AFR+4*ks)}, {vr(BF+4*ks)}, {vr(D) if ks else 0}')
    for b in range(4): e(f'v_add_u32 v{va+b}, 12288, v{va+b}')
    e('s_nop 3')
    pack_store(e, D, P, voff, soff)
    e(f's_add_u32 s{soff}, s{soff}, 512\ns_sub_u32 s31, s31, 1\ns_cmp_lg_u32 s31, 0\ns_cbranch_scc1 {lp}')
def slab128_src(e, vo, stride, t0, t1):
    e(f'v_lshrrev_b32 v{vo}, 3, v0\nv_mul_u32_u24 v{vo}, {stride}, v{vo}')
    e(f'v_bfe_u32 v{t0}, v0, 4, 1\ns_and_b32 s30, s3, 1\ns_lshl_b32 s30, s30, 1\nv_or_b32 v{t0}, s30, v{t0}\nv_lshlrev_b32 v{t0}, 1, v{t0}')
    e(f'v_and_b32 v{t1}, 7, v0\nv_xor_b32 v{t0}, v{t0}, v{t1}\nv_lshl_add_u32 v{vo}, v{t0}, 4, v{vo}')
def slab128_dma(e, vo, srd, sj, stride, ldsbase, n=12, srow=None):
    e(f's_lshl_b32 s34, s{sj}, 7\ns_mul_i32 s30, s3, {8*stride}\ns_add_u32 s34, s34, s30\ns_lshl_b32 s30, s3, 10\ns_add_u32 m0, s30, {ldsbase}')
    lp = e.label('L_sl')
    if srow: e(f's_add_u32 s34, s34, s{srow}')
    e(f's_mov_b32 s31, {n}\n{lp}:\nbuffer_load_dwordx4 v{vo}, {srd}, s34 offen lds')
    e(f's_add_u32 s34, s34, {32*stride}\ns_add_u32 m0, m0, 4096\ns_sub_u32 s31, s31, 1\ns_cmp_lg_u32 s31, 0\ns_cbranch_scc1 {lp}')
def slab128_rd(e, vo, t0, t1):
    e(f'v_bfe_u32 v{t0}, v0, 2, 2\nv_lshrrev_b32 v{t1}, 4, v0\nv_lshlrev_b32 v{vo}, 10, v{t1}\nv_lshl_add_u32 v{vo}, v{t0}, 7, v{vo}')
    e(f'v_lshrrev_b32 v{t0}, 1, v{t0}\nv_and_b32 v{t1}, 1, v{t1}\nv_lshl_or_b32 v{t0}, v{t1}, 1, v{t0}\nv_lshl_add_u32 v{vo}, v{t0}, 5, v{vo}')
    e(f'v_and_b32 v{t0}, 3, v0\nv_lshl_add_u32 v{vo}, v{t0}, 3, v{vo}')
def slab32_src(e, vout, t, stride):
    e(f'v_lshrrev_b32 v{vout}, 1, v0\nv_bfe_u32 v{t}, v0, 4, 1\nv_lshlrev_b32 v{t}, 2, v{t}\nv_xor_b32 v{vout}, v{vout}, v{t}')
    e(f'v_mul_u32_u24 v{vout}, {stride}, v{vout}\nv_and_b32 v{t}, 1, v0\nv_lshl_add_u32 v{vout}, v{t}, 4, v{vout}')
def slab32_rd(e, v0_, v1_, t):
    e(f'v_lshrrev_b32 v{t}, 4, v0\nv_lshlrev_b32 v{v0_}, 8, v{t}\nv_and_b32 v{t}, 1, v{t}\nv_lshl_add_u32 v{v0_}, v{t}, 7, v{v0_}')
    e(f'v_and_b32 v{t}, 15, v0\nv_lshl_add_u32 v{v0_}, v{t}, 3, v{v0_}\nv_xor_b32 v{v1_}, 128, v{v0_}')
def ln_finish(e, s1, s2):
    e(f'v_mul_f32 v{s1}, {fx(1/384)}, v{s1}\nv_mul_f32 v{s2}, {fx(1/384)}, v{s2}\nv_fma_f32 v{s2}, -v{s1}, v{s1}, v{s2}\nv_max_f32 v{s2}, 0, v{s2}\nv_add_f32 v{s2}, {fx(1e-5)}, v{s2}\nv_rsq_f32 v{s2}, v{s2}')
```

```python
from gen_v12_base import *

def wait_a(e):
    lw = e.label('L_aw')
    e(f's_cmp_lg_u32 s7, 0\ns_cbranch_scc1 {lw}_d\ns_sleep 40'); early_load(e, 12, 4); e('s_waitcnt vmcnt(0)'); early_wait(e, 12, (1,))
    e(f's_mul_i32 s30, s4, 24576\ns_add_u32 s30, s30, {AF}\ns_mov_b64 exec, 1\n{lw}:\ns_sleep 8\nbuffer_load_dword v9, off, s[16:19], s30 offset:256 sc1\ns_waitcnt vmcnt(0)\nv_cmp_ne_u32 vcc, -1, v9\ns_cbranch_vccnz {lw}_x')
    budget(e, lw)
    e(f'{lw}_x:\ns_mov_b64 exec, -1\n{lw}_d:\ns_barrier')

def role_pf(e, c):
    e('L_pf:'); late_consts(e); e('s_waitcnt lgkmcnt(0)')
    if c.iso: e('s_endpgm'); return
    if c.pflat:
        load_srds(e, [(8, 'lat_hi'), (12, 'lat_lo')])
        e('s_sub_u32 s5, s2, 48\ns_lshr_b32 s5, s5, 1\ns_lshl_b32 s5, s5, 1\ns_and_b32 s30, s3, 1\ns_add_u32 s5, s5, s30\ns_mul_i32 s5, s5, 24576\nv_lshlrev_b32 v2, 7, v0')
        e('s_waitcnt lgkmcnt(0) vmcnt(0)\ns_cmp_ge_u32 s3, 2\ns_cselect_b64 s[8:9], s[12:13], s[8:9]')
        for k in range(3): e(f's_add_u32 s30, s5, {8192*k}\nbuffer_load_dword v3, v2, s[8:11], s30 offen')
    if c.cut in (3, 6) or c.pro or not c.pf: e('s_endpgm'); return
    load_srds(e, [(8, 'w1'), (12, 'w2')])
    e('s_and_b32 s4, s2, 1\ns_sub_u32 s5, s2, 48\ns_lshr_b32 s5, s5, 1\ns_lshl_b32 s5, s5, 2\ns_add_u32 s5, s5, s3\ns_mul_i32 s5, s5, 49152\nv_lshlrev_b32 v2, 7, v0')
    wait_a(e)
    e('s_waitcnt lgkmcnt(0)\ns_cmp_eq_u32 s4, 0\ns_cselect_b64 s[24:25], s[8:9], s[12:13]\ns_cselect_b64 s[8:9], s[12:13], s[8:9]')
    for m in range(2):
        for k in range(6): e(f's_add_u32 s30, s5, {8192*k}\nbuffer_load_dword v3, v2, s[8:11], s30 offen')
        if m == 0: e('s_mov_b64 s[8:9], s[24:25]')
    e('s_endpgm')
    flush_deferred(e)

def role_spare(e, c):
    e('L_spare:'); late_consts(e)
    if c.iso: e('s_waitcnt lgkmcnt(0)\ns_branch L_fin')
    e('s_and_b32 s4, s2, 1\ns_bfe_u32 s5, s2, 0x10001')
    e('v_lshlrev_b32 v2, 4, v0\nv_mov_b64 v[4:5], -1\nv_mov_b64 v[6:7], -1\nv_mov_b32 v8, 1')
    e(f's_mul_i32 s36, s4, 12288\ns_lshl_b32 s36, s36, s5\ns_mul_i32 s30, s7, 3072\ns_add_u32 s36, s36, s30')
    e(f's_cmp_ge_u32 s7, 4\ns_cselect_b32 s30, {TF-12288}, 0\ns_cmp_lg_u32 s5, 0\ns_cselect_b32 s30, {AF}, s30\ns_add_u32 s36, s36, s30\ns_waitcnt lgkmcnt(0)')
    for k in range(3): e(f'buffer_store_dwordx4 v[4:7], v2, s[16:19], s36 offen offset:{1024*k} sc1')
    e(f's_lshl_b32 s38, s4, 7\ns_lshl_b32 s30, s5, 2\ns_add_u32 s38, s38, s30\ns_and_b32 s36, s2, 3\ns_lshl_b32 s36, s36, 3\ns_add_u32 s36, s36, s7\ns_lshl_b32 s36, s36, 14\ns_add_u32 s36, s36, {UF}')
    for off in (0, 16):
        sk = e.label('L_sp')
        e(f's_waitcnt vmcnt(0)\ns_barrier\ns_cmp_lg_u32 s7, 0\ns_cbranch_scc1 {sk}\ns_mov_b64 exec, 1\nbuffer_store_dword v8, off, s[20:23], s38 offset:{off} sc1\ns_mov_b64 exec, -1\n{sk}:')
        stamp(e, c, 1 + off // 16)
        if off == 0:
            wait_a(e)
            for k in range(16 if c.cut != 6 else 0):
                e(f'buffer_store_dwordx4 v[4:7], v2, s[16:19], s36 offen offset:{1024*(k%4)} sc1')
                if k % 4 == 3: e('s_add_u32 s36, s36, 4096')
    e('s_branch L_fin')
    flush_deferred(e)

def role_tail(e, c):
    e('L_tail:\ns_waitcnt lgkmcnt(0)')
    load_srds(e, [(44, 'q'), (40, 'wq'), (8, 'wkv'), (12, 'lat_hi'), (24, 'lat_lo')])
    e('s_and_b32 s4, s2, 1\ns_lshr_b32 s5, s2, 1\ns_mul_i32 s35, s4, 12288')
    WF, XF, D, PS = 16, 64, 112, 116
    rows_src(e, 4, 768, 8, 9, 10)
    slab32_src(e, 7, 8, 768)
    e(f's_lshl_b32 s36, s5, 5\ns_mul_i32 s30, s3, {96*768}\ns_add_u32 s36, s36, s30\ns_waitcnt lgkmcnt(0)')
    if c.iso: late_consts(e); e('s_branch L_fin')
    rows_dma(e, 4, 's[44:47]', 35, 49152, 1, 768)
    for k in range(3): e('s_nop 0\nbuffer_load_dwordx4 v7, s[40:43], s36 offen lds\ns_add_u32 m0, m0, 1024\ns_add_u32 s36, s36, 24576')
    stamp(e, c, 1)
    e('s_mul_i32 s32, s5, 12288\ns_lshl_b32 s33, s32, 1')
    for b in range(3): e(f'v_add_u32 v8, {64*b}, v0\nv_mul_u32_u24 v8, 1366, v8\nv_lshrrev_b32 v8, 16, v8\nv_mul_u32_u24 v8, 768, v8\nv_add3_u32 v{124+b}, v8, v{4+b}, s31')
    late_consts(e)
    rows_dma(e, 124, 's[8:11]', 33, 12288, 1, 1536, c.pnt)
    def lat_dma():
        rows_dma(e, 136, 's[12:15]', 32, 24576, 1, 768, c.pnt)
        rows_dma(e, 136, 's[24:27]', 32, 36864, 1, 768, c.pnt)
    e('v_mov_b64 v[136:137], v[4:5]\nv_mov_b32 v138, v6')
    if not c.latlate: lat_dma()
    e('v_lshlrev_b32 v12, 4, v0\nv_and_b32 v2, 15, v0\nv_lshrrev_b32 v3, 4, v0'); tile_off(e, 14, 2, 3, 10)
    rows_rd(e, 120, 12288, 8, 9, 10)
    for k in range(3): e(f's_mul_i32 s30, s3, 192\ns_add_u32 s30, s30, {64*k}\ns_and_b32 s31, s30, 0xc0\ns_and_b32 s30, s30, 0x300\nv_xor_b32 v{121+k}, s31, v120\nv_add_u32 v{121+k}, s30, v{121+k}')
    slab32_rd(e, 6, 7, 8)
    e(f's_mul_i32 s30, s3, 3072\ns_add_u32 s36, s35, s30\ns_add_u32 s37, s36, {TF}\ns_add_u32 s36, s36, {QF}\ns_add_u32 s30, s30, 61440\nv_add_u32 v6, s30, v6\nv_add_u32 v7, s30, v7')
    e(f's_lshl_b32 s38, s5, 9\ns_add_u32 s38, s38, s35\ns_add_u32 s38, s38, {QF}')
    e('s_lshl_b32 s30, s3, 10\nv_add_u32 v9, s30, v12\nv_add_u32 v13, 73728, v9\ns_mov_b32 s30, 0x3f803f80\nv_mov_b64 v[140:141], 0')
    for i in range(4): e(f'v_mov_b32 v{124+i}, s30')
    QW, CS = XF + 12, D + 4
    e(f's_waitcnt vmcnt({3 if c.latlate else 9})\ns_barrier')
    stamp(e, c, 2)
    early_load(e, 132, 4)
    for k in range(3): e(f'ds_read_b128 {vr(XF+4*k)}, v{121+k} offset:36864')
    for k in range(3): e(f'ds_read_b64_tr_b16 {vr(QW+4*k,2)}, v6 offset:{1024*k}\nds_read_b64_tr_b16 {vr(QW+4*k+2,2)}, v7 offset:{1024*k}')
    e('s_waitcnt lgkmcnt(6)')
    for i in range(12): e(f'v_dot2c_f32_bf16 v140, v{XF+i}, v124\nv_dot2c_f32_bf16 v141, v{XF+i}, v{XF+i}')
    e('s_waitcnt lgkmcnt(0)')
    for k in range(3):
        e(f'v_mfma_f32_16x16x32_bf16 {vr(D)}, {vr(QW+4*k)}, {vr(XF+4*k)}, {vr(D) if k else 0}')
        e(f'v_mfma_f32_16x16x32_bf16 {vr(CS)}, {vr(QW+4*k)}, v[124:127], {vr(CS) if k else 0}')
    for sw in ('16', '32'):
        e(f'v_mov_b64 v[142:143], v[140:141]\ns_nop 1\nv_permlane{sw}_swap_b32 v140, v142\nv_permlane{sw}_swap_b32 v141, v143\nv_add_f32 v140, v140, v142\nv_add_f32 v141, v141, v143')
    p2 = e.label('L_p2')
    if c.pro: stamp(e, c, 8)
    e(f'ds_write_b128 v13, {vr(D)}\nds_write_b128 v13, {vr(CS)} offset:4096\nds_write_b64 v13, v[140:141] offset:8192\ns_waitcnt vmcnt(1) lgkmcnt(0)\ns_barrier')
    e(f's_cmp_lg_u32 s3, 0\ns_cbranch_scc1 {p2}')
    for w in range(1, 4): e(f'ds_read_b64 {vr(142+2*w,2)}, v13 offset:{8192+1024*w}')
    for w in range(1, 4): e(f'ds_read_b128 {vr(XF+8*w)}, v13 offset:{1024*w}\nds_read_b128 {vr(XF+8*w+4)}, v13 offset:{4096+1024*w}')
    e(f'{p2}:')
    if c.pro: stamp(e, c, 15)
    e('s_waitcnt vmcnt(0)')
    if c.pro: stamp(e, c, 9)
    early_wait(e, 132, (0, 1))
    if c.pro: stamp(e, c, 10)
    local_flag(e, 134)
    e(f's_cmp_lg_u32 s3, 0\ns_cbranch_scc1 {p2}_b\ns_waitcnt lgkmcnt(6)')
    for w in range(1, 4): e(f'v_pk_add_f32 v[140:141], v[140:141], {vr(142+2*w,2)}')
    ln_finish(e, 140, 141)
    for w in range(1, 4):
        e(f's_waitcnt lgkmcnt({2*(3-w)})')
        for i in range(0, 8, 2): e(f'v_pk_add_f32 {vr(D+i,2)}, {vr(D+i,2)}, {vr(XF+8*w+i,2)}')
    for i in range(4): e(f'v_fma_f32 v{D+i}, -v140, v{CS+i}, v{D+i}')
    for i in range(4): e(f'v_mul_f32 v{D+i}, v141, v{D+i}')
    pack_store(e, D, PS, 14, 38, local=c.local)
    stamp(e, c, 5)
    e(f'{p2}_b:\ns_add_u32 s38, s38, {TF-QF}\nv_lshlrev_b32 v10, 7, v0\ns_mov_b64 exec, 15\nbuffer_load_dword v11, v10, s[16:19], s38 offen sc1\ns_mov_b64 exec, -1')
    if c.latlate: lat_dma()
    def wread(ms):
        for m in ms:
            for k in range(3): e(f'ds_read_b128 {vr(WF+12*m+4*k)}, v{121+k} offset:{12288*m}')
    wread((0,) if c.latlate else (0, 1, 2))
    gather(e, frag_loads(XF, 3, 12, 36), 10)
    stamp(e, c, 3)
    e('s_waitcnt lgkmcnt(0)')
    for k in range(3): e(f'v_mfma_f32_16x16x32_bf16 {vr(D)}, {vr(WF+4*k)}, {vr(XF+4*k)}, {vr(D) if k else 0}')
    p3 = e.label('L_p3'); p3b = e.label('L_p3b')
    e('s_nop 7')
    e(f'ds_write_b128 v9, {vr(D)}\ns_waitcnt lgkmcnt(0)\ns_barrier\ns_cmp_lg_u32 s3, 0\ns_cbranch_scc1 {p3}')
    for w in range(1, 4): e(f'ds_read_b128 {vr(XF+4*w)}, v12 offset:{1024*w}')
    for w in (1, 2, 3):
        e(f's_waitcnt lgkmcnt({3-w})')
        for i in range(4): e(f'v_add_f32 v{D+i}, v{D+i}, v{XF+4*w+i}')
    pack_store(e, D, PS, 14, 38, local=c.local)
    e(f'{p3}:')
    if c.latlate: wread((1, 2))
    gather(e, frag_loads(XF, 3, 12, 37), 10)
    stamp(e, c, 4)
    e('s_waitcnt lgkmcnt(0)')
    for k in range(3):
        for t in range(2): e(f'v_mfma_f32_16x16x32_bf16 {vr(D+4*t)}, {vr(WF+12+12*t+4*k)}, {vr(XF+4*k)}, {vr(D+4*t) if k else 0}')
    b2 = e.label('L_b2')
    e(f's_lshl_b32 s38, s5, 9\ns_mul_i32 s31, s3, 12288\ns_add_u32 s38, s38, s31\ns_lshl_b32 s31, s35, 1\ns_add_u32 s38, s38, s31\ns_add_u32 s38, s38, {AF-12288}')
    e(f's_lshl_b32 s30, s3, 12\nv_add_u32 v8, s30, v12\nds_write_b128 v9, {vr(D)} offset:4096\nds_write_b128 v9, {vr(D+4)} offset:8192\ns_waitcnt lgkmcnt(0)\ns_barrier')
    e(f's_add_u32 s30, s3, 1\ns_and_b32 s30, s30, 2\ns_cbranch_scc0 {b2}')
    for w in range(4): e(f'ds_read_b128 {vr(XF+4*w)}, v8 offset:{1024*w}')
    e('s_waitcnt lgkmcnt(2)')
    for i in range(4): e(f'v_add_f32 v{D+i}, v{XF+i}, v{XF+4+i}')
    e('s_waitcnt lgkmcnt(0)')
    for i in range(4): e(f'v_add_f32 v{XF+8+i}, v{XF+8+i}, v{XF+12+i}')
    for i in range(4): e(f'v_add_f32 v{D+i}, v{D+i}, v{XF+8+i}')
    for i in range(4): e(f'v_mul_f32 v{D+i}, {fx(384**-0.5*LOG2E)}, v{D+i}')
    pack_store(e, D, PS, 14, 38)
    stamp(e, c, 5)
    e(f'{b2}:\ns_waitcnt vmcnt(0)\ns_barrier')
    if c.pro or c.cut in (3, 6, 7): e('s_branch L_fin')
    W1, W2, WC, CS, QR = 128, 176, 224, 248, 252
    load_srds(e, [(40, 'q'), (44, 'out'), (52, 'w1'), (96, 'w2'), (36, 'wo')])
    e('s_lshl_b32 s30, s5, 2\ns_add_u32 s30, s30, s3\ns_mul_i32 s30, s30, 24\nv_add_u32 v4, s30, v0\nv_mul_u32_u24 v5, 0xaaab, v4\nv_lshrrev_b32 v5, 18, v5\nv_mad_u32_u24 v5, v5, 6, v4\nv_lshlrev_b32 v4, 7, v4\nv_lshlrev_b32 v5, 7, v5')
    e('s_mov_b64 exec, 0xffffff\ns_waitcnt lgkmcnt(0)\nbuffer_load_dword v6, v4, s[36:39], 0 offen\nbuffer_load_dword v6, v5, s[8:11], 0 offen offset:768\ns_mov_b64 exec, -1')
    slab32_src(e, 126, 10, 768)
    e('v_mul_u32_u24 v15, 768, v2\nv_lshl_add_u32 v15, v3, 3, v15\ns_lshl_b32 s48, s5, 5\ns_add_u32 s48, s48, s35')
    e(f'buffer_load_dwordx2 {vr(QR,2)}, v15, s[40:43], s48 offen')
    e(f's_lshl_b32 s32, s5, 5\ns_mul_i32 s30, s3, {96*768}\ns_add_u32 s32, s32, s30\ns_mul_i32 s30, s3, 3072\ns_add_u32 m0, s30, 147456\ns_waitcnt vmcnt(0)')
    for k in range(3): e('buffer_load_dwordx4 v126, s[36:39], s32 offen lds\ns_add_u32 m0, m0, 1024\ns_add_u32 s32, s32, 24576')
    slab32_rd(e, 124, 125, 10)
    e('v_add_u32 v4, 147456, v124\nv_add_u32 v5, 147456, v125\ns_waitcnt vmcnt(0)\ns_barrier')
    for ks in range(12):
        e(f'ds_read_b64_tr_b16 {vr(XF+4*ks,2)}, v4 offset:{1024*ks}\nds_read_b64_tr_b16 {vr(XF+4*ks+2,2)}, v5 offset:{1024*ks}')
        if ks % 6 == 5: e('s_waitcnt lgkmcnt(0)')
    e('s_barrier')
    RA = 120
    e('s_mul_i32 s34, s3, 36864\ns_add_u32 s49, s34, 36864')
    def rowstream(srd, stride, ntile, tag):
        for b in range(3):
            e(f'v_add_u32 v8, {64*b}, v0\nv_mul_u32_u24 v10, 1366, v8\nv_lshrrev_b32 v10, 16, v10\nv_mul_u32_u24 v11, 48, v10\nv_sub_u32 v8, v8, v11')
            e(f'v_lshlrev_b32 v11, 2, v10\nv_xor_b32 v8, v8, v11\nv_mul_u32_u24 v10, {stride}, v10\nv_lshl_add_u32 v{4+b}, v8, 4, v10')
        rows_rd(e, RA, 0, 8, 10, 11)
        for b in range(4): e(f'v_add_u32 v{RA+b}, s34, v{RA+b}')
        def issue():
            e('s_mov_b32 m0, s50\ns_mov_b32 s33, s32')
            for q in range(4):
                for b in range(3): e(f'v_xor_b32 v8, {[0,2,3,1][q]*16}, v{4+b}\nbuffer_load_dwordx4 v8, {srd}, s33 offen lds\ns_add_u32 m0, m0, 1024')
                if q < 3: e(f's_add_u32 s33, s33, {8*stride}')
            e(f's_add_u32 s50, s50, 12288\ns_cmp_eq_u32 s50, s49\ns_cselect_b32 s50, s34, s50\ns_xor_b32 s51, s51, 1\ns_cselect_b32 s30, 4, 28\ns_mul_i32 s30, s30, {stride}\ns_add_u32 s32, s32, s30')
        e(f's_mov_b32 s50, s34\ns_mov_b32 s51, 0\ns_mov_b32 s31, -3\ns_mov_b32 s29, 0\ns_branch L_{tag}_i')
        e(f'L_{tag}:\ns_waitcnt vmcnt(24)\ns_cmp_lt_i32 s31, {ntile-2}\ns_cbranch_scc1 L_{tag}_w\ns_waitcnt vmcnt(0)\nL_{tag}_w:')
        for ks in range(12): e(f'ds_read_b128 {vr(WF+4*ks)}, v{RA+(ks&3)} offset:{256*(ks>>2)}')
        e('s_add_u32 s29, s29, 1\ns_cmp_eq_u32 s29, 3\ns_cselect_b32 s29, 0, s29\ns_cselect_b32 s30, -2, 1\ns_mulk_i32 s30, 12288')
        for i in range(0, 22, 2): e(f'v_mov_b64 {vr(WC+i,2)}, {vr(WC+i+2,2)}')
        for ks in range(12):
            e(f's_waitcnt lgkmcnt({11-ks})\nv_mfma_f32_16x16x32_bf16 {vr(D)}, {vr(WF+4*ks)}, {vr(XF+4*ks)}, {vr(D) if ks else 0}')
        for b in range(4): e(f'v_add_u32 v{RA+b}, s30, v{RA+b}')
        e(f's_nop 3\nv_cvt_pk_bf16_f32 v{WC+22}, v{D}, v{D+1}\nv_cvt_pk_bf16_f32 v{WC+23}, v{D+2}, v{D+3}')
        e(f's_cmp_ge_i32 s31, {ntile-3}\ns_cbranch_scc1 L_{tag}_n\nL_{tag}_i:')
        issue()
        e(f'L_{tag}_n:\ns_add_u32 s31, s31, 1\ns_cmp_lt_i32 s31, 0\ns_cbranch_scc1 L_{tag}_i\ns_cmp_lt_i32 s31, {ntile}\ns_cbranch_scc1 L_{tag}')
    e(f's_mul_i32 s32, s3, {96*1536}\ns_add_u32 s32, s32, 768')
    rowstream('s[8:11]', 1536, 6, 'ys')
    e('s_mul_i32 s30, s3, 3072\ns_add_u32 s30, s30, 147456\nv_add_u32 v8, s30, v12\nv_add_u32 v10, 147456, v12')
    for k in range(3): e(f'ds_write_b128 v8, {vr(WC+12+4*k)} offset:{1024*k}')
    e('s_waitcnt lgkmcnt(0)\ns_barrier')
    for ks in range(12): e(f'ds_read_b128 {vr(XF+4*ks)}, v10 offset:{1024*ks}')
    e(f's_cmp_ge_u32 s3, 2\ns_cselect_b32 s12, s24, s12\ns_cselect_b32 s13, s25, s13\ns_and_b32 s32, s3, 1\ns_mul_i32 s32, s32, {192*768}\ns_waitcnt lgkmcnt(0)')
    rowstream('s[12:15]', 768, 12, 'ws')
    e('s_barrier')
    stamp(e, c, 6)
    slab128_src(e, 7, 3072, 10, 11)
    slab128_dma(e, 7, 's[52:55]', 5, 3072, 0)
    e(f's_lshl_b32 s32, s5, 5\ns_mul_i32 s30, s3, {384*768}\ns_add_u32 s32, s32, s30\ns_mul_i32 s33, s3, 12288\ns_add_u32 s33, s33, 49152\ns_mov_b32 m0, s33')
    lp = e.label('L_w2')
    e(f's_mov_b32 s31, 12\n{lp}:\nbuffer_load_dwordx4 v126, s[96:99], s32 offen lds\ns_add_u32 m0, m0, 1024\ns_add_u32 s32, s32, 24576\ns_sub_u32 s31, s31, 1\ns_cmp_lg_u32 s31, 0\ns_cbranch_scc1 {lp}')
    slab128_rd(e, 13, 10, 11)
    e('v_add_u32 v6, s33, v124\nv_add_u32 v7, s33, v125\ns_mov_b32 s30, 0x3f803f80')
    for i in range(4): e(f'v_mov_b32 v{124+i}, s30')
    e('s_lshl_b32 s30, s3, 5\nv_xor_b32 v8, s30, v13\ns_mul_i32 s30, s3, 12288\nv_add_u32 v13, s30, v8')
    e('s_waitcnt vmcnt(12)\ns_barrier')
    for ks in range(12):
        for u in range(2): e(f'ds_read_b64_tr_b16 {vr(WF+4*ks+2*u,2)}, v8 offset:{4096*ks+512*u}')
        if ks % 6 == 5: e('s_waitcnt lgkmcnt(0)')
    for ks in range(12): e(f'v_mfma_f32_16x16x32_bf16 {vr(CS)}, {vr(WF+4*ks)}, v[124:127], {vr(CS) if ks else 0}')
    for t in range(4):
        e(f'v_xor_b32 v10, {32*t}, v13')
        for k in range(3):
            for u in range(2): e(f'ds_read_b64_tr_b16 {vr(W1+12*t+4*k+2*u,2)}, v10 offset:{4096*k+512*u}')
        if t % 2: e('s_waitcnt lgkmcnt(0)')
    e('s_waitcnt vmcnt(0)')
    for ks in range(12):
        e(f'ds_read_b64_tr_b16 {vr(W2+4*ks,2)}, v6 offset:{1024*ks}\nds_read_b64_tr_b16 {vr(W2+4*ks+2,2)}, v7 offset:{1024*ks}')
        if ks % 6 == 5: e('s_waitcnt lgkmcnt(0)')
    late_addr(e, 1); late_load(e, 10, 1); e('s_waitcnt vmcnt(0)'); late_wait(e, 10, 1)
    e('s_barrier')
    e(f's_lshl_b32 s38, s35, 1\ns_mul_i32 s30, s3, 6144\ns_add_u32 s38, s38, s30\ns_add_u32 s38, s38, {UF}'); soffs(e, 38, 2)
    e(f's_lshl_b32 s40, s5, 9\ns_add_u32 s40, s40, s35\ns_add_u32 s40, s40, {HF}')
    e(f's_mul_i32 s43, s3, 3072\ns_add_u32 s43, s43, s35\ns_add_u32 s43, s43, {HF}')
    e(f's_lshl_b32 s49, s5, 2\ns_add_u32 s49, s49, s3\ns_lshl_b32 s49, s49, 9\ns_lshl_b32 s30, s35, 2\ns_add_u32 s49, s49, s30\ns_add_u32 s49, s49, {GF}')
    e(f's_mul_i32 s24, s3, 12288\ns_add_u32 s24, s24, s30\ns_add_u32 s24, s24, {GF}'); soffs(e, 24, 3)
    e('s_lshl_b32 s30, s3, 12\nv_add_u32 v8, s30, v12')
    for t in range(1, 4): e(f'v_xor_b32 v{32+t}, {4096*t}, v8')
    e('v_lshrrev_b32 v11, 2, v2\nv_lshl_add_u32 v11, v11, 4, v2\nv_lshlrev_b32 v11, 4, v11\nv_and_b32 v10, 3, v0')
    for i, r in ((1, 28), (2, 32), (3, 50)): e(f'v_cmp_eq_u32 s[{r}:{r+1}], {i}, v10')
    e(f's_cmp_eq_u32 s3, 0\ns_cselect_b32 s30, -1, 0\nv_and_b32 v{QR}, s30, v{QR}\nv_and_b32 v{QR+1}, s30, v{QR+1}')
    e(f'v_lshlrev_b32 v120, 16, v{QR}\nv_and_b32 v121, 0xffff0000, v{QR}\nv_lshlrev_b32 v122, 16, v{QR+1}\nv_and_b32 v123, 0xffff0000, v{QR+1}')
    c1 = -2 * math.sqrt(2 / math.pi) * LOG2E; c3 = c1 * 0.044715
    e(f'v_mov_b32 v36, {fx(c3)}\nv_mov_b32 v37, {fx(c1)}')
    ld3 = frag_loads(XF, 3, 12, 43)
    early_load(e, 4, 4)
    if c.local:
        for x, _, _ in ld3 + frag_loads(XF, 12, 12, 24) + frag_loads(XF, 6, 12, 38): e(x)
    e('s_waitcnt vmcnt(0)'); local_flag(e, 6)
    stamp(e, c, 7)
    if c.cut: e('s_branch L_fin')
    e(f's_mul_i32 s52, s4, 147456\ns_mul_i32 s30, s5, 6144\ns_add_u32 s52, s52, s30\ns_lshl_b32 s30, s3, 8\ns_add_u32 s52, s52, s30\ns_add_u32 s52, s52, {XU}\ns_add_u32 s53, s52, 4096')
    e(f's_mul_i32 s54, s4, 768\ns_add_u32 s54, s54, {XL}\ns_lshl_b32 s55, s5, 10\ns_add_u32 s55, s55, s30\ns_lshl_b32 s30, s35, 1\ns_add_u32 s55, s55, s30\ns_add_u32 s55, s55, {UF}')
    e('v_lshlrev_b32 v6, 2, v0\nv_lshrrev_b32 v7, 2, v0\nv_lshlrev_b32 v7, 3, v7\nv_lshlrev_b32 v4, 7, v0')
    if c.walk: walk(e, 'Lv', 3, 4)
    e.mark('on_Lv')
    lp = e.label('L_lp')
    e(f's_mov_b64 exec, 63\n{lp}:\nbuffer_load_dword v5, v4, s[16:19], s54 offen sc1\ns_waitcnt vmcnt(0)\nv_cmp_ne_u32 vcc, -1, v5\ns_cbranch_vccnz {lp}_d\ns_sleep 4')
    budget(e, lp)
    e(f'{lp}_d:\ns_mov_b64 exec, -1')
    stamp(e, c, 8)
    XM, XV = 44, 56
    ldx = [(f'buffer_load_dwordx2 {vr(XM+2*g,2)}, v7, s[16:19], s54 offen offset:{128*g} sc1', XM + 2 * g, 2) for g in range(6)]
    ldx += [(f'buffer_load_dword v{XV+2*g}, v6, s[16:19], s{52+g//2} offen offset:{2048*(g%2)} sc1\nbuffer_load_dword v{XV+2*g+1}, v6, s[16:19], s{52+g//2} offen offset:{2048*(g%2)+1024} sc1', XV + 2 * g, 2) for g in range(3)]
    xd = [y for x, _, _ in ldx[6:] for y in x.split('\n')]
    gather(e, ldx[:6], 10, extra=xd if c.xone else ())
    lg = e.label('L_gx')
    if not c.xone:
        for x in xd: e(x)
    e(f'v_max3_f32 v4, v{XM}, v{XM+2}, v{XM+4}\nv_max3_f32 v4, v4, v{XM+6}, v{XM+8}\nv_max_f32 v4, v4, v{XM+10}')
    for g in range(6): e(f'v_sub_f32 v{XM+2*g}, v{XM+2*g}, v4')
    for g in range(6): e(f'v_exp_f32 v{XM+2*g}, v{XM+2*g}')
    e(f'v_mul_f32 v5, v{XM}, v{XM+1}')
    for g in range(1, 6): e(f'v_fmac_f32 v5, v{XM+2*g}, v{XM+2*g+1}')
    e('v_rcp_f32 v5, v5\ns_nop 0')
    for g in range(6): e(f'v_mul_f32 v{XM+2*g}, v{XM+2*g}, v5')
    e(f's_branch {lg}_c\n{lg}:')
    for x, _, _ in ldx[6:]: e(x)
    e(f'{lg}_c:\ns_sub_u32 s61, s61, 1\ns_cmp_gt_i32 s61, 0\ns_cselect_b64 s[62:63], -1, 0\ns_waitcnt vmcnt(0)')
    e(f'v_max3_u32 v10, v{XV}, v{XV+1}, v{XV+2}\nv_max3_u32 v10, v10, v{XV+3}, v{XV+4}\nv_max_u32 v10, v10, v{XV+5}')
    e(f'v_cmp_eq_u32 vcc, -1, v10\ns_and_b64 vcc, vcc, s[62:63]\ns_cbranch_scc1 {lg}')
    stamp(e, c, 15)
    for g in range(6):
        e(f'v_lshlrev_b32 v16, 16, v{XV+g}\nv_and_b32 v17, 0xffff0000, v{XV+g}')
        e(f'v_pk_mul_f32 v[18:19], v[16:17], {vr(XM,2)} op_sel_hi:[1,0]' if g == 0 else f'v_pk_fma_f32 v[18:19], v[16:17], {vr(XM+2*g,2)}, v[18:19] op_sel_hi:[1,0,1]')
    e('v_cvt_pk_bf16_f32 v18, v18, v19\nv_min_u32 v18, -2, v18')
    hstore(e, 'buffer_store_dword v18, v6, s[16:19], s55 offen', c.local)
    def finish(skip):
        e(f's_nop 1\nds_write_b128 v9, {vr(D)}\ns_waitcnt lgkmcnt(0)\ns_barrier\ns_cmp_lg_u32 s3, 0\ns_cbranch_scc1 {skip}')
        for w in range(1, 4): e(f'ds_read_b128 {vr(16+4*w)}, v12 offset:{1024*w}')
        for w in (1, 2, 3):
            e(f's_waitcnt lgkmcnt({3-w})\nv_pk_add_f32 {vr(D,2)}, {vr(D,2)}, {vr(16+4*w,2)}\nv_pk_add_f32 {vr(D+2,2)}, {vr(D+2,2)}, {vr(18+4*w,2)}')
    gather(e, frag_loads(XF, 6, 12, 38), 10, lambda k: e(f'v_mfma_f32_16x16x32_bf16 {vr(D)}, {vr(WC+4*k)}, {vr(XF+4*k)}, {vr(D if k else 120)}'))
    stamp(e, c, 9)
    t3 = e.label('L_t3')
    e('s_nop 0'); finish(t3)
    pack_store(e, D, PS, 14, 40, keep=4, local=c.local)
    e('v_lshlrev_b32 v120, 16, v4\nv_and_b32 v121, 0xffff0000, v4\nv_lshlrev_b32 v122, 16, v5\nv_and_b32 v123, 0xffff0000, v5')
    e(f'{t3}:')
    stamp(e, c, 10)
    DD, GR, S1 = 96, 88, 84
    def mm3(k):
        e(f'v_mfma_f32_16x16x32_bf16 {vr(GR)}, {vr(XF+4*k)}, {vr(XF+4*k)}, {vr(GR) if k else 0}')
        e(f'v_mfma_f32_16x16x32_bf16 {vr(S1)}, v[124:127], {vr(XF+4*k)}, {vr(S1) if k else 0}')
        for t in (1, 2, 3, 0): e(f'v_mfma_f32_16x16x32_bf16 {vr(DD+4*t)}, {vr(W1+12*t+4*k)}, {vr(XF+4*k)}, {vr(DD+4*t) if k else 0}')
    gather(e, ld3, 10, mm3)
    stamp(e, c, 11)
    e(f'v_cndmask_b32 v{S1+1}, v{GR}, v{GR+1}, s[28:29]\nv_cndmask_b32 v{S1+1}, v{S1+1}, v{GR+2}, s[32:33]\nv_cndmask_b32 v{S1+1}, v{S1+1}, v{GR+3}, s[50:51]')
    for t in range(1, 4): e(f'ds_write_b128 v{32+t}, {vr(DD+4*t)} offset:{4096+1024*t}')
    e(f'ds_write_b64 v9, {vr(S1,2)} offset:20480\ns_waitcnt lgkmcnt(0)\ns_barrier')
    SS = 16
    for w in range(4): e(f'ds_read_b64 {vr(SS+2*w,2)}, v11 offset:{20480+1024*w}')
    for t in range(1, 4): e(f'ds_read_b128 {vr(DD+4*t)}, v8 offset:{4096+1024*t}')
    e(f's_waitcnt lgkmcnt(3)\nv_pk_add_f32 {vr(SS,2)}, {vr(SS,2)}, {vr(SS+2,2)}\nv_pk_add_f32 {vr(SS+4,2)}, {vr(SS+4,2)}, {vr(SS+6,2)}\nv_pk_add_f32 {vr(SS,2)}, {vr(SS,2)}, {vr(SS+4,2)}')
    ln_finish(e, SS, SS + 1)
    pk = lambda op, d, *xs, mod='': [e(f'v_pk_{op}_f32 {vr(d+i,2)}, ' + ', '.join(vr(x + i, 2) if isinstance(x, int) else x for x in xs) + mod) for i in (0, 2)]
    e('s_waitcnt lgkmcnt(1)')
    pk('fma', DD, CS, vr(SS, 2), DD, mod=' op_sel_hi:[1,0,1] neg_lo:[0,1,0] neg_hi:[0,1,0]')
    pk('add', DD + 4, DD + 4, DD + 8); pk('add', DD, DD, DD + 4)
    e('s_waitcnt lgkmcnt(0)'); pk('add', DD, DD, DD + 12)
    pk('mul', DD, DD, vr(SS, 2), mod=' op_sel:[0,1] op_sel_hi:[1,1]')
    G = DD + 4
    pk('mul', G, DD, DD)
    pk('fma', G, G, 'v[36:37]', 'v[36:37]', mod=' op_sel:[0,0,1] op_sel_hi:[1,0,1]')
    pk('mul', G, G, DD)
    for i in range(4): e(f'v_exp_f32 v{G+i}, v{G+i}')
    pk('add', G, G, '1.0', mod=' op_sel_hi:[1,0]')
    for i in range(4): e(f'v_rcp_f32 v{G+i}, v{G+i}')
    pk('mul', DD, DD, G)
    pack_store(e, DD, PS, 14, 49, local=c.local)
    stamp(e, c, 12)
    gather(e, frag_loads(XF, 12, 12, 24), 10, lambda k: e(f'v_mfma_f32_16x16x32_bf16 {vr(D)}, {vr(W2+4*k)}, {vr(XF+4*k)}, {vr(D if k else 120)}'))
    stamp(e, c, 13)
    e('s_nop 0'); finish('L_fin')
    e(f'v_cvt_pk_bf16_f32 v4, v{D}, v{D+1}\nv_cvt_pk_bf16_f32 v5, v{D+2}, v{D+3}')
    e('buffer_store_dwordx2 v[4:5], v15, s[44:47], s48 offen')
    stamp(e, c, 14)
    e('s_branch L_fin')
    flush_deferred(e)
```

```python
from gen_v12_roles import *

class Cap:
    def __init__(s): s.g = []
    def __call__(s, t): s.g.append(t)
    def take(s, e, n):
        while s.g and n > 0:
            t = s.g.pop(0); e(t); n -= t.count('\n') + 1

def streamer(e, c):
    fine = c.fine
    def cyc(k):
        if fine is not None: e(f's_memtime s[{84+2*k}:{85+2*k}]')
    def cyc_save():
        if fine is None: return
        lb = e.label('L_fs')
        e(f's_cmp_lg_u32 s25, {fine}\ns_cbranch_scc1 {lb}\ns_waitcnt lgkmcnt(0)')
        for k in range(6): e(f's_mov_b32 s{66+2*k}, s{84+2*k}')
        e(f'{lb}:')
    NS = 192; rd0 = c.rd0; ns = 2 * rd0 + 3; nt = ' nt' if not c.hot else ''; ch = c.chunk; Ks, Kp = c.Ks, c.Kp
    assert ch == 1
    K = Ks + Kp; who = 'p' + c.order; assert len(who) == K and who.count('p') == Kp and 1 <= Kp <= 2
    cus = [(0,) + tuple(v[:K - 1]) for v in c.cu]; assert all(len(v) == K and max(v) < rd0 and list(v) == sorted(set(v)) for v in cus)
    slotof = lambda r: ((2 * r + 3) % NSLOT) * TILE
    def select(pairs):
        t = 's_lshr_b32 s30, s6, 3\ns_and_b32 s30, s30, 3'
        for v, cu in enumerate(cus):
            if v: t += f'\ns_cmp_eq_u32 s30, {v}'
            for reg, fn in pairs: t += f'\ns_mov_b32 s{reg}, {fn(cu)}' if v == 0 else f'\ns_cselect_b32 s{reg}, {fn(cu)}, s{reg}'
        return t
    T0, T1, T2, T3 = 2, 3, 4, 5
    L16, LH2, SW = 6, 7, 10
    e(f's_mul_hi_u32 s30, s35, {-(-(1<<32)//24)}\ns_mul_i32 s30, s30, 24\ns_add_u32 s26, s35, s30\ns_lshl_b32 s26, s26, 1')
    e(f's_and_b32 s4, s3, 1\ns_lshr_b32 s5, s3, 1\ns_mul_i32 s42, s5, 48\ns_add_u32 s42, s42, s4\ns_add_u32 s26, s26, s42\ns_mulk_i32 s26, 6144\nv_lshlrev_b32 v{L16}, 4, v0')
    e(f's_mov_b32 s10, {SZ["feat_hi"]}\ns_mov_b32 s11, 0x20000')
    def common2():
        e(f's_lshl2_add_u32 s27, s35, s3\ns_mulk_i32 s27, 1536\nv_add_u32 v{LH2}, 4096, v{L16}')
        e(f's_mov_b32 s14, {SZ["feat_lo"]}\ns_mov_b32 s15, 0x20000\ns_add_u32 s2, s35, {NH}')
    jump_hi = NS * ch * 12288 + (NS * ch // 24) * 294912 - ch * 12288; jump_lo = (NS - 1) * ch * 6144
    def src_adv():
        if c.hot: return
        if ch == 1: e(f's_add_u32 s26, s26, {12288+jump_hi}\ns_add_u32 s27, s27, {6144+jump_lo}')
        else:
            e(f's_add_u32 s42, s42, 1\ns_cmp_eq_u32 s42, {ch}\ns_cselect_b32 s42, 0, s42\ns_cselect_b32 s30, {jump_hi}, 0\ns_cselect_b32 s43, {jump_lo}, 0')
            e('s_add_u32 s26, s26, 12288\ns_add_u32 s27, s27, 6144\ns_add_u32 s26, s26, s30\ns_add_u32 s27, s27, s43')
    def stage_items(B):
        it = [f'buffer_load_dwordx4 {vr(B+4*j)}, v{L16 if j < 4 else LH2}, s[8:11], s26 offen offset:{1024*(j%4)}{nt}' for j in range(6)]
        it.append(f'buffer_load_dwordx4 {vr(B+24)}, v{L16}, s[12:15], s27 offen{nt}')
        it.append(f's_mov_b32 exec_hi, 0\nbuffer_load_dwordx4 {vr(B+28)}, v{L16}, s[12:15], s27 offen offset:1024{nt}\ns_mov_b32 exec_hi, -1')
        return it
    def setup_sw(e):
        e('s_lshl_b32 s41, s4, 1\ns_lshl_b32 s44, s5, 1\ns_mov_b32 s47, 0x78')
        for b in range(3):
            e(f'v_add_u32 v{T0}, {64*b}, v0\nv_mul_u32_u24 v{T1}, 1366, v{T0}\nv_lshrrev_b32 v{T1}, 16, v{T1}')
            e(f'v_mul_u32_u24 v{T2}, 48, v{T1}\nv_sub_u32 v{T0}, v{T0}, v{T2}\nv_lshlrev_b32 v8, 4, v{T2}')
            if b < 2: e(f'v_add_lshl_u32 v{T2}, v{T1}, s41, 2\nv_or_b32 v{T2}, s44, v{T2}\nv_xor_b32 v{T2}, v{T2}, v{T0}\nv_lshl_add_u32 v{SW+6+b}, v{T2}, 4, v8')
            e(f'v_and_or_b32 v{T3}, v{T1}, 1, s44\nv_lshlrev_b32 v{T3}, 2, v{T3}\nv_xor_b32 v{T0}, v{T0}, v{T3}\nv_and_b32 v{T1}, 2, v{T1}\nv_lshrrev_b32 v{T1}, v{T1}, s47')
            e(f'v_and_b32 v{T2}, 3, v{T1}\nv_xor_b32 v{T2}, v{T2}, v{T0}\nv_lshl_add_u32 v{SW+b}, v{T2}, 4, v8')
            e(f'v_bfe_u32 v{T2}, v{T1}, 4, 2\nv_xor_b32 v{T2}, v{T2}, v{T0}\nv_lshl_add_u32 v{T2}, v{T2}, 4, v8\nv_add_u32 v{SW+3+b}, 3072, v{T2}')
        e(f's_mul_i32 s24, s3, 6144\ns_mul_i32 s34, s3, -4608\ns_add_u32 s34, s34, {24576-5120}\ns_add_u32 s31, s24, {PB}')
    def unstage_items(B, slot, tmp):
        it = [f'v_add_u32 v{tmp+(j&1)}, s43, v{SW+j}\nds_write_b128 v{tmp+(j&1)}, {vr(B+4*j)}' for j in range(7)]
        it[0] = f's_add_u32 s43, s40, {slot}\n' + it[0]; it[6] = f's_add_u32 s43, s41, {slot}\n' + it[6]
        it.append(f'v_add_u32 v{tmp+1}, s43, v{SW+7}\ns_mov_b32 exec_hi, 0\nds_write_b128 v{tmp+1}, {vr(B+28)}\ns_mov_b32 exec_hi, -1')
        return it
    shares = 's_mul_i32 s40, s3, 6144\ns_mul_i32 s41, s3, 1536\ns_add_u32 s41, s41, 24576'
    def check(PFL, t, slow):
        e(f'v_or3_b32 v{t}, v{PFL}, v{PFL+1}, v{PFL+2}\nv_or_b32 v{t}, v{t}, v{PFL+3}\nv_and_b32 v{t}, 0x40004000, v{t}\nv_cmp_ne_u32 vcc, 0, v{t}\ns_or_b64 vcc, vcc, s[28:29]\ns_cbranch_scc1 {slow}')
    def first_look(PFL, t, back, tag):
        e(f's_cmp_eq_u64 s[28:29], 0\ns_cbranch_scc1 L_{tag}_go\nv_cmp_ne_u32 s[56:57], 0, v{t}')
        e(f'v_pk_max_u16 v{t}, v{PFL}, v{PFL+1}\nv_pk_max_u16 v{t+1}, v{PFL+2}, v{PFL+3}\nv_pk_max_u16 v{t}, v{t}, v{t+1}\nv_lshlrev_b32 v{t+1}, 16, v{t}\nv_max_u32 v{t}, v{t}, v{t+1}')
        e(f'v_cmp_gt_u32 vcc, 0x2b800000, v{t}\ns_or_b64 vcc, vcc, s[56:57]\ns_cbranch_scc1 L_{tag}_go\ns_mov_b64 s[28:29], 0\ns_branch {back}\nL_{tag}_go:')
    def quant(r): e(f'v_add_f32 v{r}, 4.0, v{r}\nv_mul_f32 v{r}, {fx(1/16)}, v{r}\nv_ceil_f32 v{r}, v{r}\nv_mul_f32 v{r}, {fx(16.0)}, v{r}')
    grp = f's_bfe_u32 s36, s6, 0x10002\ns_mul_i32 s36, s36, 3\ns_and_b32 s30, s6, 3\ns_add_u32 s36, s36, s30\ns_sub_u32 s36, s36, 1\ns_lshr_b32 s37, s6, 3\ns_mul_i32 s38, s36, {32*PS_}\ns_add_u32 s38, s38, {PART}'
    grp += '\ns_lshr_b32 s39, s36, 1\ns_lshl_b32 s39, s39, 3\ns_and_b32 s30, s36, 1\ns_lshl_b32 s30, s30, 7\ns_add_u32 s39, s39, s30'
    nost = c.iso or c.cut in (1, 3, 4, 5, 6, 7)

    PH, PL, PR, MPV, LSUM, ONES, LA = 18, 24, 27, 28, 29, 30, 31
    TMP, VA, VL, PFL, PF, XG, ACC, STB = 32, 40, 88, 100, 104, 120, 128, 224
    pstage = [VA, STB]
    e('s_cmp_lt_u32 s7, 4\ns_cbranch_scc1 L_sw\ns_waitcnt lgkmcnt(0)')
    stamp(e, c, 1)
    if c.pro == 1: common2(); late_consts(e); e('s_branch L_fin')
    g = Cap(); setup_sw(g); nsw = len(g.g)
    late_consts(g)
    g(f'v_lshrrev_b32 v{T0}, 5, v0\nv_bfe_u32 v{T1}, v0, 2, 2')
    g(f'v_bfe_u32 v{T2}, v0, 4, 1\nv_and_b32 v{T3}, 1, v0\nv_lshl_or_b32 v{T2}, v{T2}, 1, v{T3}\nv_lshl_or_b32 v{T2}, v{T1}, 2, v{T2}')
    g(f'v_bfe_u32 v{T3}, v0, 1, 1\nv_lshlrev_b32 v{T3}, 3, v{T3}')
    Q0 = TMP
    g(f'v_lshl_add_u32 v{Q0+3}, v{T0}, 2, v{T1}\nv_mul_u32_u24 v{Q0+3}, 768, v{Q0+3}\nv_add_u32 v{Q0+3}, v{Q0+3}, v{T3}\nv_add_u32 v{Q0+3}, 24576, v{Q0+3}\nv_lshlrev_b32 v{Q0+7}, 1, v{T0}')
    g(f'v_lshrrev_b32 v{Q0+4}, 1, v{T1}\nv_lshlrev_b32 v{Q0+4}, 4, v{Q0+4}\nv_lshl_add_u32 v{Q0+4}, v{T0}, 2, v{Q0+4}\nv_and_or_b32 v{Q0+4}, v{T1}, 1, v{Q0+4}\nv_mul_u32_u24 v{Q0+4}, 768, v{Q0+4}\nv_add_u32 v{Q0+4}, v{Q0+4}, v{T3}')
    g(f'v_lshlrev_b32 v{Q0+5}, 2, v{T0}\ns_mov_b32 s30, 0x78\nv_lshrrev_b32 v{Q0+5}, v{Q0+5}, s30\nv_bfe_u32 v{Q0+6}, v{Q0+5}, 2, 2\nv_and_b32 v{Q0+5}, 3, v{Q0+5}')
    for t in range(3):
        g(f's_mul_i32 s30, s3, 12\ns_add_u32 s30, s30, {4*t}\nv_xor_b32 v{Q0}, s30, v{T2}\nv_xor_b32 v{Q0+1}, v{Q0}, v{Q0+7}\nv_lshl_add_u32 v{PL+t}, v{Q0+1}, 4, v{Q0+3}')
        g(f'v_xor_b32 v{Q0+1}, v{Q0}, v{Q0+5}\nv_lshl_add_u32 v{PH+2*t}, v{Q0+1}, 4, v{Q0+4}\nv_xor_b32 v{Q0+1}, v{Q0}, v{Q0+6}\nv_lshl_add_u32 v{Q0+1}, v{Q0+1}, 4, v{Q0+4}\nv_add_u32 v{PH+2*t+1}, 1536, v{Q0+1}')
    g(f'v_add_u32 v{PR}, {PB}, v{L16}\nv_lshlrev_b32 v1, 3, v0\nv_lshlrev_b32 v8, 7, v0'); late_addr(g, LA)
    for i in range(0, 96, 2): g(f'v_mov_b64 {vr(ACC+i,2)}, 0')
    g(f'v_mov_b32 v{MPV}, {fx(16.0)}\nv_mov_b32 v{LSUM}, 0\nv_mov_b32 v{ONES}, 0x3f803f80')
    rp = lambda cu: ([r for r, w in zip(cu[1:], who[1:]) if w == 'p'] + [64])[0]
    g(select([(46, lambda cu: sum(1 << r for r in cu) >> 1), (47, lambda cu: sum(1 << r for r in range(1, rd0) if r not in cu)), (44, rp), (42, lambda cu: slotof(rp(cu)))]))
    g(f's_mov_b64 s[28:29], -1\ns_mov_b32 s45, 0\ns_mov_b32 s25, 1\ns_mov_b32 s33, {TILE}\ns_mov_b32 s49, 0\ns_mov_b32 s58, 0\ns_mov_b32 s96, {12288+jump_hi}\ns_mov_b32 s97, {6144+jump_lo}\ns_mul_i32 s98, s5, 48\ns_add_u32 s98, s98, s4\nv_mov_b32 v{T0}, {TKW}')
    g(grp); g(shares)
    g(f's_mul_i32 s52, s37, {PS_}\ns_add_u32 s52, s52, s38\ns_lshl_b32 s30, s3, 8\ns_add_u32 s48, s52, s30\ns_add_u32 s48, s48, 49152')
    g(f's_mul_i32 s30, s3, {PS_//4}\ns_add_u32 s50, s52, s30')
    g(f's_add_u32 s52, s52, s40\ns_add_u32 s53, s52, 4096\ns_add_u32 s54, s52, 24576\ns_add_u32 s55, s52, {24576+4096}')
    g(f's_lshl_b32 s51, s36, 2\ns_add_u32 s51, s51, s3\ns_lshl_b32 s51, s51, 5\ns_add_u32 s51, s51, s37\ns_lshl_b32 s51, s51, 2\ns_add_u32 s51, s51, {FL}')
    def dma_items():
        it = []
        for j in range(6):
            it.append(('s_mov_b32 m0, s24' if j == 0 else 's_add_u32 m0, m0, 1024') + f'\ns_nop 0\nbuffer_load_dwordx4 v{SW+j}, s[8:11], s26 offen{nt} lds')
        it.append(f's_add_u32 m0, m0, s34\ns_nop 0\nbuffer_load_dwordx4 v{SW+6}, s[12:15], s27 offen{nt} lds')
        it.append(f's_add_u32 m0, m0, 1024\ns_mov_b32 exec_hi, 0\nbuffer_load_dwordx4 v{SW+7}, s[12:15], s27 offen{nt} lds\ns_mov_b32 exec_hi, -1')
        return it
    def slot_adv(step=f'{TILE}'): e(f's_add_u32 s24, s24, {step}\ns_cmp_ge_u32 s24, s31\ns_cselect_b32 s30, {PB}, 0\ns_sub_u32 s24, s24, s30')
    total = len(g.g); cnt = 0
    for j in range(Kp + 3):
        if j == Kp:
            while total - len(g.g) < nsw: g.take(e, 1)
            for k in range(Ks): src_adv()
        for i, x in enumerate(stage_items(pstage[j]) if j < Kp else dma_items()):
            if j == 0 and i == 4: common2()
            if cnt == c.jp: e('s_barrier')
            e(x); cnt += 1
            if cnt >= 10: g.take(e, c.weave)
        src_adv()
        if j >= Kp: e(f's_add_u32 s24, s24, {TILE if j < Kp + 2 else 2*TILE}')
    g.take(e, 9999)
    if c.jp == cnt: e('s_barrier')
    assert c.jp <= cnt
    stamp(e, c, 2)
    if c.pro == 2: e('s_waitcnt vmcnt(0)'); stamp(e, c, 3); e('s_branch L_fin')
    rP = [(f'ds_read_b128 {vr(PFL)}, v{PR} offset:4096', 'pfl')] + [(f'ds_read_b128 {vr(PF+4*i)}, v{PR} offset:{1024*i}', ('pf', i)) for i in range(4)]
    trH = lambda tt, t, pg: [f'ds_read_b64_tr_b16 {vr(VA+24*tt+8*t+4*pg+2*u,2)}, v{PH+2*t+u} offset:{6144*pg}' for u in range(2)]
    trL = lambda tt, t: [f'ds_read_b64_tr_b16 {vr(VL+4*t+2*tt,2)}, v{PL+t}']
    mL = lambda t: f'v_mfma_f32_32x32x16_bf16 {vr(ACC+48+16*t,16)}, {vr(VL+4*t)}, {vr(PFL)}, {vr(ACC+48+16*t,16)}'
    mH = lambda tt, t, pg: f'v_mfma_f32_32x32x16_bf16 {vr(ACC+16*t,16)}, {vr(VA+24*tt+8*t+4*pg)}, {vr(PF+8*tt+4*pg)}, {vr(ACC+16*t,16)}'
    sdelta = f's_add_u32 s45, s45, 1\ns_cmp_eq_u32 s45, {NSLOT}\ns_cselect_b32 s32, {-(NSLOT-1)*TILE}, s33\ns_cselect_b32 s45, 0, s45'
    adds = '\n'.join(f'v_add_u32 v{r}, s32, v{r}' for r in range(PH, PL + 3))
    def src_adv2():
        if not c.hot: e('s_add_u32 s26, s26, s96\ns_add_u32 s27, s27, s97')
    lsum = '\n'.join(f'v_dot2c_f32_bf16 v{LSUM}, v{PFL+i}, v{ONES}' for i in range(4))
    def tr(xs):
        for x in xs:
            if len(e.ds) >= 14: e(f's_waitcnt lgkmcnt(8)'); e.ds = e.ds[-8:]
            e.dsop(x, 'tr')
    def all_tr():
        for tt in range(2):
            for t in range(3): tr(trL(tt, t) + trH(tt, t, 0) + trH(tt, t, 1))
            e(sdelta); e(adds)
    steps = [(mL(t), None, trL(0, t)) for t in range(3)]
    steps += [(mH(0, t, pg), ('pf', pg) if t == 0 else None, trH(0, t, pg)) for t in range(3) for pg in range(2)]
    steps += [(mH(1, t, pg), ('pf', 2 + pg) if t == 0 else None, trH(1, t, pg) + (trL(1, t) if pg else [])) for t in range(3) for pg in range(2)]
    e.mark('on_Lw')
    e(f's_setprio {c.pprio}\ns_barrier\ns_waitcnt vmcnt(8)\ns_barrier')
    skip = 's_bitcmp1_b32 s46, %s\ns_cselect_b32 s30, s33, 0\ns_add_u32 s24, s24, s30'
    for x, y in zip(dma_items(), unstage_items(pstage[0], slotof(0), TMP)): e(x); e(y)
    src_adv(); e(skip % '0'); slot_adv()
    e('s_waitcnt lgkmcnt(0)')
    all_tr(); e.dsall()
    if c.tl: e('v_mov_b32 v124, 0\ns_memrealtime s[92:93]')
    e('.p2align 3\nL_p:\ns_waitcnt vmcnt(8)'); cyc(5); e('s_barrier'); cyc(0)
    e(f'ds_read_b32 v{T1}, v{T0}')
    for x, tag in rP: e.dsop(x, tag)
    e(f's_bitcmp1_b32 {(1 << c.hookx) | (0xffffffff & ~((1 << rd0) - 1))}, s25\ns_cbranch_scc1 L_p_x1\nL_p_x1b:')
    dm = dma_items(); dm2 = dma_items()
    for p in c.d1:
        if p < 0: e(dm.pop(0))
    e.dswait('pfl')
    check(PFL, TMP, 'L_p_slow')
    e('L_p_back:'); e.dsall(); e('s_barrier'); cyc(1)
    if c.tl: e('s_waitcnt lgkmcnt(0)\ns_mov_b32 s95, m0\ns_mov_b32 m0, s25\ns_nop 0\nv_writelane_b32 v124, s92, m0\ns_mov_b32 m0, s95')
    un2 = unstage_items(pstage[1], 's42', TMP)
    for i, (m, w, xs) in enumerate(steps):
        if w and w in e.ds: e.dswait(w)
        e(m)
        if i == 9: e(adds)
        tr(xs)
        if i == 7: e(sdelta)
        if i == 13: e(sdelta)
        for _ in range(c.d1.count(i)):
            e(dm.pop(0))
            if not dm:
                src_adv2(); slot_adv()
                e('s_bitcmp1_b32 s47, s25\ns_cselect_b64 vcc, -1, 0')
        if c.d2.count(i):
            assert not dm
            lb = e.label('L_d2'); e(f's_cbranch_vccz {lb}')
            alt = []
            for _ in range(c.d2.count(i)): e(dm2.pop(0)); alt.append(un2.pop(0))
            if not dm2: src_adv2(); slot_adv()
            e(f'{lb}_b:')
            e.deferred.append(f'{lb}:\ns_cmp_lg_u32 s25, s44\ns_cbranch_scc1 {lb}_b\ns_waitcnt lgkmcnt(8)\n' + '\n'.join(alt) + f'\ns_branch {lb}_b')
        if i == 8: cyc(2)
    assert not dm and not dm2
    cyc(3)
    e(adds); e(lsum)
    e(skip % 's25'); slot_adv('0')
    e(f's_cmp_eq_u32 s25, {c.hookx+1}\ns_cbranch_scc1 L_p_x2\nL_p_x2b:')
    if c.tl: e('s_waitcnt lgkmcnt(0)\ns_memrealtime s[92:93]')
    cyc(4); cyc_save()
    e(f's_add_u32 s25, s25, 1\ns_min_u32 s25, s25, 31\ns_cmp_eq_u32 s58, 0' + ('\ns_waitcnt lgkmcnt(0)' if not c.tl else '') + '\ns_cbranch_scc1 L_p'); e.ds = []
    e('s_branch L_p_pen')
    e(f'L_p_x1:\ns_cmp_eq_u32 s25, {c.hookx}\ns_cbranch_scc1 L_p_x0\ns_waitcnt lgkmcnt(5)\nv_readfirstlane_b32 s27, v{T1}\ns_movk_i32 s96, 12288\ns_movk_i32 s97, 6144')
    e('s_lshr_b32 s58, s27, 29\ns_cselect_b32 s47, 0, -1\ns_bitcmp1_b32 s58, 0\ns_cselect_b32 s30, s33, 0\ns_add_u32 s24, s24, s30'); slot_adv('0')
    e('s_lshr_b32 s58, s58, 1\ns_and_b32 s27, s27, 0xffff')
    if c.hot: e('s_mov_b32 s27, s35')
    e(f's_mul_hi_u32 s30, s27, {-(-(1<<32)//24)}\ns_mul_i32 s30, s30, 24\ns_add_u32 s26, s27, s30\ns_lshl1_add_u32 s26, s26, s98\ns_mulk_i32 s26, 6144\ns_lshl2_add_u32 s27, s27, s3\ns_mulk_i32 s27, 1536')
    e('s_branch L_p_x1b')
    flush_deferred(e)
    e('L_p_pen:')
    ntouch = 2 if c.local and not nost else 0
    def touches(pos):
        for k in range(ntouch):
            if c.tpos[k] == pos: e(f's_mov_b32 exec_hi, 0x1ffff\nbuffer_load_dword v9, v8, s[16:19], s50 offen\ns_add_u32 s50, s50, {49*128}\ns_mov_b32 exec_hi, -1')
    touches(0)
    e('s_mov_b32 s49, 1\ns_barrier')
    for x, tag in rP: e.dsop(x, tag)
    e.dswait('pfl')
    check(PFL, TMP, 'L_p_slow')
    e('L_p_back1:')
    for i, (m, w, xs) in enumerate(steps):
        if w: e.dswait(w)
        e(m)
    e(lsum)
    touches(1)
    e(f's_mov_b32 s49, 2\ns_waitcnt vmcnt({sum(p < 2 for p in c.tpos[:ntouch])})\ns_barrier\ns_setprio 0')
    touches(2)
    all_tr(); e.dsall()
    e(f's_setprio {c.pprio}\ns_barrier')
    for x, tag in rP: e.dsop(x, tag)
    e.dswait('pfl')
    check(PFL, TMP, 'L_p_slow')
    e('L_p_back2:')
    pstore = lambda s: f'buffer_store_dwordx4 {vr(ACC+8*s)}, v{L16}, s[16:19], s{52 + 2*(s//6) + (s%6)//4} offen offset:{1024*((s%6)%4)}'
    mlstore = f's_mov_b32 exec_hi, 0\nbuffer_store_dwordx2 {vr(MPV,2)}, v1, s[16:19], s48 offen%s\ns_mov_b32 exec_hi, -1'
    def cvt(s):
        b = ACC + 8 * s
        for i in range(4): e(f'v_cvt_pk_bf16_f32 v{b+i}, v{b+2*i}, v{b+2*i+1}')
        if not nost: e(pstore(s))
    last = [mL(t) for t in range(3)] + [mH(tt, t, pg) for t in range(3) for tt in range(2) for pg in range(2)]
    todo = {4: [6], 5: [7], 6: [8], 7: [9], 8: [10], 9: [11], 10: [0], 11: [1], 14: [2, 3]}
    for i, m in enumerate(last):
        if i == 3: e.dsall()
        e(m)
        if i in (2, 3):
            for j in (2 * (i - 2), 2 * (i - 2) + 1): e(f'v_lshlrev_b32 v{TMP}, 16, v{PFL+j}\nv_and_b32 v{TMP+1}, 0xffff0000, v{PFL+j}\nv_add_f32 v{LSUM}, v{LSUM}, v{TMP}\nv_add_f32 v{LSUM}, v{LSUM}, v{TMP+1}')
        if i == 12: e(f'v_mov_b32 v{TMP}, v{LSUM}\nv_readfirstlane_b32 s57, v{MPV}\ns_nop 0\nv_permlane32_swap_b32 v{LSUM}, v{TMP}\nv_add_f32 v{LSUM}, v{LSUM}, v{TMP}\nv_cmp_neq_f32 vcc, s57, v{MPV}')
        if i == 13 and not nost: e(mlstore % '')
        for s in todo.get(i, []): cvt(s)
    e(f's_cmp_eq_u64 vcc, 0\ns_cselect_b32 s57, s57, -2\nv_mov_b32 v{TMP}, s57\ns_nop 0')
    cvt(4); cvt(5)
    if fine is None: stamp(e, c, 6)
    if c.tl: e(f's_lshl_b32 s30, s35, 2\ns_add_u32 s30, s30, s3\ns_lshl_b32 s30, s30, 8\ns_add_u32 s30, s30, {DG+0x20000}\nv_lshlrev_b32 v125, 2, v0\nbuffer_store_dword v124, v125, s[16:19], s30 offen')
    e('s_cmp_eq_u32 s59, 0\ns_waitcnt vmcnt(0)\ns_cbranch_scc1 L_p_far')
    stamp(e, c, 7)
    if not nost: e(f's_mov_b64 exec, 1\nbuffer_store_dword v{TMP}, off, s[16:19], s51')
    e('s_branch L_fin')
    e('L_p_far:')
    if not nost:
        for s in range(12): e(pstore(s) + ' sc1')
        e(mlstore % ' sc1')
        e(f's_waitcnt vmcnt(0)\ns_mov_b64 exec, 1\nbuffer_store_dword v{TMP}, off, s[16:19], s51 sc1')
    e('s_branch L_fin')
    xgload = f's_mov_b64 exec, 1\nbuffer_load_dwordx2 {vr(XG,2)}, off, s[20:23], s39 offset:32 sc1\ns_mov_b64 exec, -1'
    e('L_p_x0:'); late_load(e, XG + 2, LA); e(xgload); e('s_branch L_p_x1b')
    e('L_p_x2:')
    if not c.iso: late_wait(e, XG + 2, LA)
    e(f'L_xg:\nv_add_u32 v{TMP}, v{XG}, v{XG+1}\ns_nop 0\nv_readfirstlane_b32 s30, v{TMP}\ns_mul_i32 s30, s30, 0x01010101\ns_lshr_b32 s30, s30, 24\ns_cmp_ge_u32 s30, 32\ns_cbranch_scc1 L_xgd')
    e(f's_sleep 8\n{xgload}\ns_waitcnt vmcnt(0)'); budget(e, 'L_xg')
    e('L_xgd:'); local_flag(e, XG, 32)
    if not c.local: e('s_mov_b32 s59, 0')
    e('s_branch L_p_x2b')
    flush_deferred(e)
    e('L_p_slow:'); first_look(PFL, TMP, 'L_p_back', 'pf')
    e(f's_mov_b32 s30, {MXB}\nv_and_b32 v{TMP+2}, 31, v0\nv_lshl_add_u32 v{TMP+2}, v{TMP+2}, 2, s30\ns_waitcnt lgkmcnt(0)\ns_barrier')
    e(f'ds_read2_b32 {vr(TMP,2)}, v{TMP+2} offset0:0 offset1:32\ns_waitcnt lgkmcnt(0)\nv_max_f32 v{TMP}, v{TMP}, v{TMP+1}')
    quant(TMP)
    nf = e.label()
    e(f's_cmp_lg_u64 s[28:29], 0\ns_cbranch_scc1 {nf}')
    e(f'v_max_f32 v{TMP}, 0, v{TMP}\nv_exp_f32 v{TMP+2}, -v{TMP}\ns_nop 0\nv_mul_f32 v{LSUM}, v{LSUM}, v{TMP+2}')
    for i in range(0, 96, 2): e(f'v_pk_mul_f32 {vr(ACC+i,2)}, {vr(ACC+i,2)}, {vr(TMP+2,2)} op_sel_hi:[1,0]')
    e(f'{nf}:\ns_mov_b64 s[28:29], 0\nv_add_f32 v{MPV}, v{MPV}, v{TMP}\ns_barrier')
    for x, _ in rP: e(x)
    e('s_cmp_eq_u32 s49, 1\ns_waitcnt lgkmcnt(0)\ns_cbranch_scc1 L_p_back1\ns_cmp_eq_u32 s49, 0\ns_cbranch_scc1 L_p_back\ns_branch L_p_back2')

    SH, SL, PW, PW2, PR2, MXO, TKA, TK, TA, NEG1 = 18, 22, 26, 27, 28, 29, 30, 31, 9, 8
    NEGM, SLO, S0, S1, PFL, PK, FB, NB, TMP, AQ, STG = 32, 36, 40, 44, 48, 52, 56, 8, 88, 96, 192
    e.mark('off_Lw')
    e('L_sw:'); common2(); late_consts(e)
    if c.touch:
        e('s_cmp_lg_u32 s7, 0\ns_cbranch_scc1 L_snt'); code_touch(e, c); e('L_snt:')
    if c.pro == 1: e('s_waitcnt lgkmcnt(0)\ns_branch L_fin')
    for k in range(Kp): src_adv()
    setup_sw(e)
    e(f'v_and_b32 v{T0}, 15, v0\nv_lshrrev_b32 v{T1}, 4, v0')
    e(f'v_lshrrev_b32 v{T2}, 2, v{T0}\nv_lshlrev_b32 v{T3}, 1, v{T2}\nv_lshrrev_b32 v{TMP+1}, v{T3}, s47\nv_and_b32 v{TMP+1}, 3, v{TMP+1}')
    e(f'v_and_b32 v{TMP}, 3, v{T0}\nv_lshl_or_b32 v{TMP+1}, v{TMP}, 2, v{TMP+1}\nv_xor_b32 v{TMP+1}, v{TMP+1}, v{T1}\nv_lshlrev_b32 v{TMP+1}, 4, v{TMP+1}')
    e(f'v_lshrrev_b32 v{TMP}, 1, v{TMP}\nv_lshl_add_u32 v{T3}, v{TMP}, 4, v{T3}\nv_and_or_b32 v{T3}, v{T0}, 1, v{T3}\nv_mul_u32_u24 v{T3}, 768, v{T3}\ns_mul_i32 s30, s4, {TILE}\nv_add3_u32 v{SH}, v{T3}, v{TMP+1}, s30')
    e(f'v_and_b32 v{TMP}, 1, v0\nv_lshlrev_b32 v{T3}, 1, v{TMP}\nv_lshl_or_b32 v{T3}, v{T2}, 2, v{T3}\nv_xor_b32 v{T3}, v{T3}, v{T1}\nv_lshlrev_b32 v{T3}, 4, v{T3}')
    e(f'v_lshl_add_u32 v{TMP}, v{TMP}, 2, v{T2}\nv_mul_u32_u24 v{TMP}, 768, v{TMP}\ns_add_u32 s30, s30, 24576\nv_add3_u32 v{SL}, v{T3}, v{TMP}, s30')
    for b in range(1, 4): e(f'v_xor_b32 v{SH+b}, {64*b}, v{SH}\nv_xor_b32 v{SL+b}, {64*b}, v{SL}')
    e(f's_lshl_b32 s30, s5, 4\nv_add_u32 v{T3}, s30, v{T0}')
    e(f'v_lshrrev_b32 v{TMP}, 1, v{T1}\nv_lshlrev_b32 v{TMP}, 9, v{TMP}\nv_lshl_add_u32 v{TMP}, v{T3}, 4, v{TMP}\nv_and_b32 v{TMP+1}, 1, v{T1}\nv_lshl_add_u32 v{TMP}, v{TMP+1}, 3, v{TMP}')
    e(f's_lshl_b32 s30, s4, 11\ns_add_u32 s30, s30, {PB}\nv_add_u32 v{PW}, s30, v{TMP}')
    e(f'v_lshlrev_b32 v{TMP}, 4, v{T3}\nv_lshl_add_u32 v{TMP}, v{T1}, 1, v{TMP}\ns_lshl_b32 s30, s4, 3\ns_add_u32 s30, s30, {PB+4096}\nv_add_u32 v{PW2}, s30, v{TMP}')
    e(f'v_lshlrev_b32 v1, 3, v0\nv_add_u32 v{PR2}, {PB+4096}, v{L16}\nv_lshlrev_b32 v{MXO}, 2, v{T3}\nv_add_u32 v{MXO}, {MXB}, v{MXO}\nv_mov_b32 v{TKA}, {TKW}')
    for r in (NEGM, NEGM + 1, NEGM + 2, NEGM + 3, NEG1): e(f'v_mov_b32 v{r}, {fx(-16.0)}')
    if c.diag: e('s_mov_b32 s90, 0')
    rs = lambda cu: [r for r, w in zip(cu, who) if w == 's']
    rsetup = rd0 - 2; assert all(max(rs(cu) + [0]) < rsetup for cu in cus) and c.hookx + 2 <= rsetup
    e(select([(44, lambda cu: 1 | (0xffffffff & ~((1 << rsetup) - 1)) | sum(1 << r for r in rs(cu)))] + [(46 + k, (lambda k: lambda cu: slotof(rs(cu)[k]))(k)) for k in range(Ks)]))
    e('s_mov_b32 s50, 0')
    e(f's_mov_b64 s[28:29], -1\ns_mov_b32 s45, s4\ns_mov_b32 s25, 0\ns_mov_b32 s33, {2*TILE}\ns_mov_b32 s49, 0')
    e(f's_mul_i32 s52, s5, 24576\ns_add_u32 s52, s52, {AF if not c.iso else 0x1000000}'); soffs(e, 52, 6)
    e(grp); e(shares)
    e(f's_and_b32 s48, s37, {c.nshard-1}\ns_lshl_b32 s51, s48, 7\ns_add_u32 s51, s51, {TKC}')
    if c.walk: e('s_waitcnt vmcnt(0)'); walk(e, 'Lw', 3, 4)
    e('s_setprio 2\ns_waitcnt lgkmcnt(0)\ns_barrier')
    e.mark('on_Lw')
    stamp(e, c, 1)
    early_load(e, T0, 5)
    for k in range(Ks):
        for x in stage_items(STG + 32 * k): e(x)
        src_adv()
    e(f's_waitcnt vmcnt({8*Ks})')
    if not c.iso: early_wait(e, T0, (1,))
    stamp(e, c, 2)
    if c.pro == 2: e('s_branch L_fin')
    aload = frag_loads(AQ, 24, L16, 52)
    e(f's_mul_i32 s30, s3, 12288\ns_add_u32 m0, s30, {3*TILE}\ns_mul_i32 s43, s4, 12288\ns_add_u32 s43, s43, s52')
    for k in range(12):
        e(f'buffer_load_dwordx4 v{L16}, s[16:19], s43 offen offset:{1024*(k%4)} sc1 lds')
        if k % 4 == 3 and k < 11: e('s_add_u32 m0, m0, 4096\ns_add_u32 s43, s43, 4096')
    e(f's_mul_i32 s30, s5, 24576\ns_add_u32 s30, s30, {3*TILE}\nv_add_u32 v{T1}, s30, v{L16}\ns_setprio 0\ns_waitcnt vmcnt(0)\ns_barrier')
    for k in range(24):
        e.dsop(f'ds_read_b128 {vr(AQ+4*k)}, v{T1} offset:{1024*k}', ('a', k))
        if k >= 10:
            kk = k - 10; e.dswait(('a', kk))
            e(f'v_max3_u32 v{T0}, v{AQ+4*kk}, v{AQ+4*kk+1}, v{T0 if kk else AQ}\nv_max3_u32 v{T0}, v{T0}, v{AQ+4*kk+2}, v{AQ+4*kk+3}')
    for kk in range(14, 24):
        e.dswait(('a', kk)); e(f'v_max3_u32 v{T0}, v{AQ+4*kk}, v{AQ+4*kk+1}, v{T0}\nv_max3_u32 v{T0}, v{T0}, v{AQ+4*kk+2}, v{AQ+4*kk+3}')
    e(f'v_cmp_eq_u32 vcc, -1, v{T0}\ns_cbranch_vccnz L_aretry\nL_aok:')
    stamp(e, c, 4)
    def sread(k):
        ks = k % 12; base, off = (SL, 0) if k < 12 else (SH, 6144 * (k // 12 - 1))
        e.dsop(f'ds_read_b128 {vr(FB+4*(k%NB))}, v{base+(ks&3)} offset:{off+256*(ks>>2)}', ('s', k))
    def exp_items(S, pg):
        it = [f'v_exp_f32 v{TMP+i}, v{S+i}' for i in range(4)]
        it += [f'v_add_f32 v{TMP+4}, v{TMP}, v{TMP+1}', f'v_add_f32 v{TMP+5}, v{TMP+2}, v{TMP+3}', f'v_cvt_pk_bf16_f32 v{PK}, v{TMP}, v{TMP+1}', f'v_cvt_pk_bf16_f32 v{PK+1}, v{TMP+2}, v{TMP+3}']
        it += [f'v_add_f32 v{TMP+4}, v{TMP+4}, v{TMP+5}', f'ds_write_b64 v{PW}, {vr(PK,2)} offset:{1024*pg}', f'v_cvt_pk_bf16_f32 v{PK+2}, v{TMP+4}, v{TMP+4}', f'ds_write_b16 v{PW2}, v{PK+2} offset:{512*pg}']
        return it
    put = lambda x: e.dsop(x, 'w') if x.startswith('ds_') else e(x)
    stamp(e, c, 3)
    if c.diag: e('s_memtime s[86:87]')
    e('L_s_entry:\ns_lshl_b32 s49, s49, 1\ns_barrier')
    if c.diag and fine is None: e(f's_memrealtime s[{64+2*5}:{65+2*5}]')
    for k in range(NB): sread(k)
    e.ds = []
    e('s_branch L_s_go')
    e('.p2align 3\nL_s:\ns_barrier')
    cyc(0)
    e(f'ds_read_b32 v{TK}, v{TKA}')
    e.dsop(f'ds_read_b128 {vr(PFL)}, v{PR2}', 'pfl')
    for k in range(NB): sread(k)
    e.dswait('pfl')
    check(PFL, TMP, 'L_s_slow')
    e('L_s_back:\ns_barrier')
    e('L_s_go:'); cyc(1)
    fill = {
            9: ['s_add_u32 s45, s45, 2'], 11: [f's_cmp_ge_u32 s45, {NSLOT}\ns_cselect_b32 s32, {-3*TILE}, s33\ns_cselect_b32 s30, {NSLOT}, 0'], 12: ['s_sub_u32 s45, s45, s30']}
    for b in range(4): fill[13 + 2 * b] = [f'v_add_u32 v{SL+b}, s32, v{SL+b}']
    for i in range(4): fill[16 + 2 * i] = [f'v_mov_b32 v{S1+i}, v{SLO+1}']
    it = [f'v_add_f32 v{S0+i}, v{S0+i}, v{SLO}' for i in range(4)] + exp_items(S0, 0)
    for k, cntk in zip(range(27, 36), (1, 3, 2, 2, 2, 2, 2, 2, 0)):
        fill[k] = it[:cntk]; it = it[cntk:]
    assert not it
    for k in range(36):
        if k % c.wstep == 0: e.dswait(('s', min(k + c.wstep - 1, 35)))
        D, C, a = (SLO, vr(NEGM), 12 + k) if k < 12 else ((S0, 0, k - 12) if k < 24 else (S1, vr(S1), k - 24))
        e(f'v_mfma_f32_16x16x32_bf16 {vr(D)}, {vr(FB+4*(k%NB))}, {vr(AQ+4*a)}, {vr(D) if k % 12 else C}')
        if k == 17: cyc(2)
        if k + NB < 36: sread(k + NB)
        for x in fill.get(k, []): put(x)
    cyc(3)
    for b in range(4): e(f'v_add_u32 v{SH+b}, s32, v{SH+b}')
    e('s_nop 3')
    for x in exp_items(S1, 1): e(x)
    cyc(4)
    if fine is not None: e('s_waitcnt lgkmcnt(0)'); cyc(5); cyc_save()
    e('s_bitcmp1_b32 s44, s25\ns_cbranch_scc1 L_s_hook')
    e(f'L_s_next:\ns_add_u32 s25, s25, 1\ns_min_u32 s25, s25, 31\ns_cmp_eq_u32 s49, 0\ns_waitcnt lgkmcnt(0)\ns_cbranch_scc1 L_s')
    e.ds = []
    e(f's_barrier\nds_read_b128 {vr(PFL)}, v{PR2}')
    if fine is None: stamp(e, c, 6)
    if c.diag and fine is None: e('s_memtime s[88:89]')
    X, MLR = AQ, AQ + 64
    SEL, D, VX, VOOB, VF, VFA, VH, VH8, VQ16, VM, U0, U1, VO = 192, 196, 212, 213, 214, 215, 216, 217, 218, 219, 220, 221, 222
    flagload = f's_mov_b32 exec_hi, 0\nbuffer_load_dword v{VF}, v{VFA}, s[16:19], s40 offen sc1\ns_mov_b32 exec_hi, -1'
    def t1_setup():
        e(f'v_lshlrev_b32 v{VFA}, 2, v0\ns_bfe_u32 s41, s37, 0x20002\ns_lshl_b32 s40, s36, 2\ns_add_u32 s40, s40, s41\ns_lshl_b32 s40, s40, 7\ns_add_u32 s40, s40, {FL}')
        e(f'v_lshrrev_b32 v{VH}, 5, v0\nv_and_b32 v{U0}, 31, v0\nv_lshlrev_b32 v{VQ16}, 4, v{U0}\ns_mov_b32 s43, {PS_}\nv_mad_u32_u24 v{VX}, v{VH}, s43, v{VQ16}\nv_lshlrev_b32 v{U0}, 3, v{U0}\nv_mad_u32_u24 v{VM}, v{VH}, s43, v{U0}')
        e(f's_lshl_b32 s41, s41, 8\ns_add_u32 s41, s41, s38\ns_add_u32 s41, s41, 49152')
        e(f's_mul_i32 s42, s37, 3\ns_add_u32 s42, s42, s3\ns_lshl_b32 s27, s42, 9\ns_add_u32 s27, s27, s38\nv_bfrev_b32 v{VOOB}, 1\nv_lshlrev_b32 v{VH8}, 3, v{VH}')
        e(f'v_and_b32 v{U0}, 1, v0\nv_lshlrev_b32 v{U0}, 4, v{U0}\ns_movk_i32 s30, 0x3f80\nv_lshlrev_b32 v{U0}, v{U0}, s30\nv_bfe_u32 v{U1}, v0, 1, 4')
        for d in range(4): e(f'v_cmp_eq_u32 vcc, {(d & 1) + 4 * (d >> 1)}, v{U1}\nv_mov_b64 {vr(D+4*d,2)}, 0\nv_mov_b64 {vr(D+4*d+2,2)}, 0\nv_cndmask_b32 v{SEL+d}, 0, v{U0}, vcc')
        e(f's_lshr_b32 s26, s42, 2\ns_mul_i32 s26, s26, 6\ns_add_u32 s26, s26, s36\ns_lshl_b32 s26, s26, 2\ns_and_b32 s30, s42, 3\ns_add_u32 s26, s26, s30\ns_lshl_b32 s26, s26, 8\ns_add_u32 s26, s26, {XU}')
        e(f'v_bfe_u32 v{VO}, v0, 4, 1\nv_mul_u32_u24 v{VO}, {147456-256}, v{VO}\nv_add_u32 v{VO}, v{VO}, v{VQ16}')
    e('s_waitcnt lgkmcnt(0)')
    check(PFL, TMP, 'L_s_slow')
    e('L_s_last:\ns_cmp_eq_u32 s49, 1\ns_cbranch_scc1 L_s_entry')
    if c.diag: e(f's_sub_u32 s92, s25, s90\ns_add_u32 s92, s92, s25')
    if c.iso or c.cut: e('s_branch L_fin')
    e('s_mov_b32 s44, -1\ns_cmp_eq_u32 s3, 3\ns_cbranch_scc1 L_t1l\ns_branch L_t1')
    mm = lambda r: f'v_mfma_f32_32x32x16_bf16 {vr(D,16)}, {vr(SEL)}, {vr(r)}, {vr(D,16)}'
    e(f'L_t1b:\ns_andn2_b32 s44, s44, s46\nv_lshrrev_b32 v{U1}, v{VH}, s46')
    for i in range(16):
        e(f'v_and_b32 v{U0}, {1 << (2*i)}, v{U1}\nv_cmp_ne_u32 vcc, 0, v{U0}\ns_add_u32 s30, s27, {2*PS_*i}\ns_nop 0\nv_cndmask_b32 v{U0}, v{VOOB}, v{VX}, vcc\nbuffer_load_dwordx4 {vr(X+4*i)}, v{U0}, s[16:19], s30 offen sc1')
    for i in range(16):
        e(f's_waitcnt vmcnt({15-i+(i > c.bsamp)})\n' + mm(X + 4 * i))
        if i == c.bsamp: e(flagload)
    e('s_cmp_eq_u32 s44, 0\ns_cbranch_scc1 L_t1done\ns_branch L_t1w')
    e(f'L_t1s:\ns_sleep {c.t1sleep}\nL_t1:\n{flagload}\ns_sub_u32 s61, s61, 1\ns_cmp_gt_i32 s61, 0\ns_cbranch_scc0 L_t1done')
    e(f'L_t1w:\ns_waitcnt vmcnt(0)\nv_cmp_ne_u32 vcc, -1, v{VF}\ns_and_b32 s46, vcc_lo, s44\ns_cbranch_scc0 L_t1s')
    stamp(e, c, 9)
    if c.diag: e('s_bcnt1_i32_b32 s94, s46')
    e(f's_bcnt1_i32_b32 s30, s46\ns_cmp_gt_u32 s30, {2*c.ndyn}\ns_cbranch_scc1 L_t1b\ns_andn2_b32 s44, s44, s46')
    for r in range(c.ndyn):
        e('s_ff1_i32_b32 s48, s46\ns_bitset0_b32 s46, s48\ns_ff1_i32_b32 s30, s46\ns_lshl_b32 s47, s30, 8\ns_or_b32 s48, s48, s47\ns_lshl_b64 s[56:57], 1, s30\ns_andn2_b32 s46, s46, s56')
        e(f'v_bfe_u32 v{U0}, s48, v{VH8}, 8\nv_cmp_gt_u32 vcc, 32, v{U0}\nv_mad_u32_u24 v{U0}, v{U0}, s43, v{VQ16}\ns_cmp_eq_u32 s46, 0\nv_cndmask_b32 v{U0}, v{VOOB}, v{U0}, vcc')
        e(f'buffer_load_dwordx4 {vr(X+4*r)}, v{U0}, s[16:19], s27 offen sc1')
        if r < c.ndyn - 1: e(f's_cbranch_scc1 L_t1m{r}')
    for r in range(c.ndyn - 1, -1, -1): e(f'L_t1m{r}:\ns_waitcnt vmcnt(0)\n{mm(X+4*r)}')
    e('s_cmp_lg_u32 s44, 0\ns_cbranch_scc1 L_t1\nL_t1done:')
    stamp(e, c, 8)
    uni = f'v_readfirstlane_b32 s47, v{VF}\ns_nop 1\nv_cmp_ne_u32 vcc, s47, v{VF}\ns_cmp_eq_u32 s47, -2\ns_cselect_b32 s30, 1, 0\ns_or_b32 s30, s30, vcc_lo'
    e(f's_waitcnt vmcnt(0)\n{uni}\ns_cbranch_scc1 L_t1gen\ns_nop 1\nL_t1back:')
    for i in range(4): e(f'v_cvt_pk_bf16_f32 v{D+i}, v{D+2*i}, v{D+2*i+1}')
    for i in range(4): e(f'v_min_u32 v{D+i}, -2, v{D+i}')
    e(f's_mov_b32 exec_hi, 0\nbuffer_store_dwordx4 {vr(D)}, v{VO}, s[16:19], s26 offen sc1')
    stamp(e, c, 10)
    e('L_fin:')
    dump(e, c)
    e('L_end:\ns_endpgm')
    mll = [f's_add_u32 s30, s41, {2*PS_*i}\nbuffer_load_dwordx2 {vr(MLR+2*i,2)}, v{VM}, s[16:19], s30 offen sc1' for i in range(16)]
    def weights(M, L):
        e(f'v_max_f32 v{M}, v{MLR}, v{MLR+2}')
        for i in range(2, 16, 2): e(f'v_max3_f32 v{M}, v{M}, v{MLR+2*i}, v{MLR+2*i+2}')
        e(f'v_mov_b32 v{L}, v{M}\ns_nop 1\nv_permlane32_swap_b32 v{M}, v{L}\nv_max_f32 v{M}, v{M}, v{L}')
        for i in range(16): e(f'v_sub_f32 v{MLR+2*i}, v{MLR+2*i}, v{M}')
        for i in range(16): e(f'v_exp_f32 v{MLR+2*i}, v{MLR+2*i}')
    e(f'L_t1l:\ns_cmp_lg_u32 s37, 0\ns_cbranch_scc1 L_fin')
    e(f'v_bfe_u32 v{T0}, v0, 4, 1\nv_mul_u32_u24 v{T0}, {768-128}, v{T0}\nv_add_u32 v{T0}, v{T0}, v1\ns_lshl_b32 s26, s36, 7\ns_add_u32 s26, s26, {XL}')
    e(f'L_t1lw:\n{flagload}\ns_waitcnt vmcnt(0)\nv_cmp_eq_u32 vcc, -1, v{VF}\ns_cmp_eq_u32 vcc_lo, 0\ns_cbranch_scc1 L_t1ld'); budget(e, 'L_t1lw')
    e('L_t1ld:')
    for x in mll: e(x)
    e(f'{uni}\ns_cbranch_scc1 L_t1lg\nv_mov_b32 v{U0}, s47\ns_waitcnt vmcnt(14)\nv_add_f32 v{U1}, v{MLR+1}, v{MLR+3}')
    for i in range(2, 16): e(f's_waitcnt vmcnt({15-i})\nv_add_f32 v{U1}, v{U1}, v{MLR+2*i+1}')
    e(f'L_t1lb:\nv_mov_b32 v{T1}, v{U1}\nv_min_u32 v{U0}, -2, v{U0}\ns_nop 0\nv_permlane32_swap_b32 v{U1}, v{T1}\nv_add_f32 v{U1}, v{U1}, v{T1}\nv_min_u32 v{U1}, -2, v{U1}')
    e(f's_mov_b32 exec_hi, 0\nbuffer_store_dwordx2 {vr(U0,2)}, v{T0}, s[16:19], s26 offen sc1')
    stamp(e, c, 10)
    e('s_branch L_fin')
    e.mark('off_Lw')
    e('L_t1lg:\ns_waitcnt vmcnt(0)')
    weights(U0, U1)
    e(f'v_mul_f32 v{U1}, v{MLR}, v{MLR+1}')
    for i in range(1, 16): e(f'v_fmac_f32 v{U1}, v{MLR+2*i}, v{MLR+2*i+1}')
    e('s_branch L_t1lb')
    e('L_t1gen:')
    for x in mll: e(x)
    for i in range(16): e(f's_add_u32 s30, s27, {2*PS_*i}\nbuffer_load_dwordx4 {vr(X+4*i)}, v{VX}, s[16:19], s30 offen sc1')
    e('s_waitcnt vmcnt(16)')
    weights(U0, U1)
    T = 32
    e('s_waitcnt vmcnt(0)')
    for i in range(16):
        for d in range(4): e(f'v_lshlrev_b32 v{T+2*d}, 16, v{X+4*i+d}\nv_and_b32 v{T+2*d+1}, 0xffff0000, v{X+4*i+d}')
        for d in range(4):
            if i == 0: e(f'v_pk_mul_f32 {vr(D+2*d,2)}, {vr(T+2*d,2)}, {vr(MLR,2)} op_sel_hi:[1,0]')
            else: e(f'v_pk_fma_f32 {vr(D+2*d,2)}, {vr(T+2*d,2)}, {vr(MLR+2*i,2)}, {vr(D+2*d,2)} op_sel_hi:[1,0,1]')
    e('s_nop 1')
    for k in range(8): e(f'v_permlane32_swap_b32 v{D+k}, v{T+k}')
    for k in range(8): e(f'v_add_f32 v{D+k}, v{D+k}, v{T+k}')
    e('s_branch L_t1back')
    e.mark('on_Lw')
    e('L_s_hook:')
    e(f's_cmp_ge_u32 s25, {rsetup}\ns_cbranch_scc1 L_hk\ns_cmp_eq_u32 s25, 0\ns_cbranch_scc1 L_h0')
    for k in range(Ks):
        if k < Ks - 1: e(f's_cmp_lg_u32 s50, {k}\ns_cbranch_scc1 L_hu{k}\ns_mov_b32 s50, {k+1}')
        for x in unstage_items(STG + 32 * k, f's{46+k}', TMP + 6): e(x)
        e(f's_branch L_s_next\nL_hu{k}:')
    per = (4608 - NS * (ns + 1)) // c.nshard; n1 = c.n1; n2 = (per - n1) // 2; assert 2 * n2 + n1 == per
    e(f'L_hk:\ns_cmp_eq_u32 s25, {rsetup}\ns_cbranch_scc1 L_hs\ns_cmp_eq_u32 s25, {rsetup+1}\ns_cbranch_scc1 L_hw')
    e(f'v_readfirstlane_b32 s30, v{TK}\nv_mov_b32 v{TMP+7}, 0xff600000\ns_lshr_b32 s31, s30, 29\ns_and_b32 s31, s31, s4\ns_cselect_b64 vcc, -1, 0')
    if c.diag: e('s_bfe_u32 s31, s30, 0x1001d\ns_add_u32 s90, s90, s31')
    for i in range(4): e(f'v_cndmask_b32 v{NEGM+i}, v{NEG1}, v{TMP+7}, vcc')
    e('s_lshr_b32 s49, s30, 30\ns_cbranch_scc0 L_hw\ns_mov_b32 s44, 0')
    e('s_branch L_s_next\nL_hs:')
    t1_setup()
    e('s_cmp_lg_u32 s3, 0\ns_cbranch_scc1 L_s_next\ns_branch L_draw')
    e('L_hw:\ns_cmp_lg_u32 s3, 0\ns_cbranch_scc1 L_s_next')
    if c.dyn and not c.iso:
        if c.satom: e('s_mov_b32 s30, 1\ns_atomic_add s30, s[16:17], s51 glc\ns_waitcnt lgkmcnt(0)')
        else: e(f's_waitcnt vmcnt(0)\nv_readfirstlane_b32 s30, v{TA}')
        e(f's_add_u32 s30, s30, 1\ns_mul_i32 s31, s30, {c.nshard}\ns_add_u32 s31, s31, s48')
        e(f's_lshl1_add_u32 s56, s31, {NS*ns}\ns_add_u32 s57, s31, {NS*ns + n2*c.nshard + (1<<29)}\ns_cmp_lt_u32 s30, {n2}\ns_cselect_b32 s31, s56, s57\ns_add_u32 s57, s35, {4608-NS+(1<<30)}\ns_cmp_lt_u32 s30, {n2+n1}\ns_cselect_b32 s31, s31, s57')
    else:
        e(f's_sub_u32 s30, s25, {rsetup+1}\ns_mul_i32 s31, s30, {NS}\ns_add_u32 s31, s31, s35\ns_lshl1_add_u32 s56, s31, {NS*ns}\ns_add_u32 s57, s35, {4608-NS+(1<<30)}\ns_cmp_lt_u32 s25, 9\ns_cselect_b32 s31, s56, s57')
    e(f'v_mov_b32 v{TMP+6}, s31\nds_write_b32 v{TKA}, v{TMP+6}\ns_lshr_b32 s31, s31, 30\ns_cbranch_scc1 L_s_next\nL_draw:')
    if c.dyn and not c.iso and not c.satom: e(f'v_mov_b32 v{TA}, 1\ns_mov_b64 exec, 1\nbuffer_atomic_add v{TA}, off, s[16:19], s51 sc0\ns_mov_b64 exec, -1')
    e('s_branch L_s_next')
    e('L_h0:\ns_cmp_lg_u32 s3, 0\ns_cbranch_scc1 L_s_next\ns_getreg_b32 s30, hwreg(HW_REG_XCC_ID, 0, 3)\ns_lshl_b32 s30, s30, 3\ns_lshl_b64 s[56:57], 1, s30')
    e(f'v_mov_b32 v{T0}, s56\nv_mov_b32 v{T1}, s57\ns_mov_b64 exec, 1\nbuffer_atomic_add_x2 {vr(T0,2)}, off, s[20:23], s39 offset:32\ns_mov_b64 exec, -1\ns_branch L_s_next')
    flush_deferred(e)
    e(f'L_aretry:\nv_min_u32 v{T1}, 47, v0\nv_lshlrev_b32 v{T1}, 9, v{T1}\nL_aw:\ns_sub_u32 s61, s61, 1\ns_cmp_gt_i32 s61, 0\ns_cbranch_scc0 L_aok')
    e(f'buffer_load_dword v{T0}, v{T1}, s[16:19], s52 offen sc1\ns_waitcnt vmcnt(0)\nv_cmp_eq_u32 vcc, -1, v{T0}\ns_cbranch_vccz L_aload\ns_sleep 4\ns_branch L_aw')
    e('L_aload:')
    for x, _, _ in aload: e(x)
    validate(e, aload, T0)
    e('s_cbranch_vccnz L_aretry\ns_branch L_aok')
    e('L_s_slow:'); first_look(PFL, TMP, 'L_s_back', 'sf')
    e(f'v_max3_f32 v{TMP}, v{S0}, v{S0+1}, v{S0+2}\nv_max3_f32 v{TMP}, v{TMP}, v{S0+3}, v{S1}\nv_max3_f32 v{TMP}, v{TMP}, v{S1+1}, v{S1+2}\nv_max_f32 v{TMP}, v{TMP}, v{S1+3}')
    xsum16_32(e, TMP, TMP + 1, 'v_max_f32')
    e(f's_lshl_b32 s30, s4, 7\nv_add_u32 v{TMP+3}, s30, v{MXO}')
    e(f'ds_write_b32 v{TMP+3}, v{TMP}\ns_waitcnt lgkmcnt(0)\ns_barrier')
    e(f'ds_read2_b32 {vr(TMP,2)}, v{MXO} offset0:0 offset1:32\ns_waitcnt lgkmcnt(0)\nv_max_f32 v{TMP}, v{TMP}, v{TMP+1}')
    quant(TMP)
    e(f'v_max_f32 v{TMP+1}, 0, v{TMP}\nv_cndmask_b32 v{TMP}, v{TMP+1}, v{TMP}, s[28:29]\ns_mov_b64 s[28:29], 0')
    e(f'v_sub_f32 v{NEG1}, v{NEG1}, v{TMP}')
    for i in range(4): e(f'v_sub_f32 v{NEGM+i}, v{NEGM+i}, v{TMP}\nv_sub_f32 v{S0+i}, v{S0+i}, v{TMP}\nv_sub_f32 v{S1+i}, v{S1+i}, v{TMP}')
    for x in exp_items(S0, 0) + exp_items(S1, 1): e(x)
    e('s_waitcnt lgkmcnt(0)\ns_barrier\ns_cmp_eq_u32 s49, 0\ns_cbranch_scc1 L_s_back\ns_branch L_s_last')

def code_touch(e, c):
    nl = c.code_bytes // 128 // 32; lb = e.label('L_pc')
    e(f's_getpc_b64 s[24:25]\n{lb}:\ns_sub_u32 s24, s24, {lb}-{KNAME}\ns_subb_u32 s25, s25, 0\ns_lshr_b32 s30, s6, 3\ns_mul_i32 s30, s30, {nl*128}')
    e(f'v_lshl_add_u32 v2, v0, 7, s30\ns_mov_b64 exec, {(1<<nl)-1}\nglobal_load_dword v55, v2, s[24:25]\ns_mov_b64 exec, -1')

def helper_extra(e, c):
    e('L_extra:'); late_consts(e); e('s_waitcnt lgkmcnt(0)')
    if c.touch:
        e('s_cmp_lg_u32 s7, 7\ns_cbranch_scc1 L_x6'); code_touch(e, c); e('s_endpgm\nL_x6:')
    e('s_cmp_ge_u32 s2, 48\ns_cbranch_scc1 L_end\ns_cmp_lg_u32 s7, 6\ns_cbranch_scc1 L_end')
    e('s_getreg_b32 s30, hwreg(HW_REG_XCC_ID, 0, 4)\ns_cmp_ge_u32 s30, 8\ns_cbranch_scc1 L_end\ns_lshl_b32 s30, s30, 3\ns_lshl_b64 s[32:33], 1, s30')
    e(f's_and_b32 s30, s2, 1\ns_lshl_b32 s30, s30, 7\nv_mov_b32 v2, s32\nv_mov_b32 v3, s33\ns_mov_b64 exec, 1\nbuffer_atomic_add_x2 v[2:3], off, s[20:23], s30 offset:8\ns_endpgm')

def gen(c):
    e = E()
    nwg = 256
    head = f'; @launch grid=({nwg},1,1) block=(512,1,1) lds={LDS_BYTES}\n.amdgcn_target "amdgcn-amd-amdhsa--gfx950"\n.text\n'
    kstart(e, KNAME)
    stamp(e, c, 0)
    e(f'v_lshrrev_b32 v1, 6, v0\nv_and_b32 v0, 63, v0\nv_readfirstlane_b32 s7, v1')
    for r, nm in ((8, 'feat_hi'), (98, 'q'), (12, 'feat_lo'), (16, 'ws'), (20, 'dbg')): e(f's_load_dwordx2 s[{r}:{r+1}], s[0:1], {KA[nm]}')
    e(f's_cmpk_ge_u32 s2, {nwg}\ns_cbranch_scc1 L_end\ns_mov_b32 s6, s2\ns_and_b32 s3, s7, 3')
    e('s_lshr_b32 s2, s2, 2\ns_and_b32 s33, s6, 3\ns_cbranch_scc0 L_hent')
    e('s_mul_i32 s35, s2, 3\ns_add_u32 s35, s35, s33\ns_sub_u32 s35, s35, 1')
    e(f's_bitcmp1_b32 {c.smask}, s7\ns_cbranch_scc0 L_strm\ns_mov_b32 s31, s7\ns_mov_b32 s30, s35\ns_mov_b32 s32, 12\ns_branch L_tch')
    if c.sptouch: e('L_hent:\ns_bitcmp1_b32 48, s7\ns_cbranch_scc0 L_hq')
    else: e('L_hent:\ns_cmp_ge_u32 s2, 60\ns_cbranch_scc1 L_spare\ns_cmp_lt_u32 s7, 4\ns_cbranch_scc1 L_hq\ns_cmp_gt_u32 s7, 5\ns_cbranch_scc1 L_extra')
    e('s_mov_b32 s31, 2\ns_and_b32 s30, s2, 62\ns_add_u32 s30, s30, s3\ns_mov_b32 s32, 36')
    e('L_tch:\ns_lshl3_add_u32 s34, s31, 24\ns_load_dwordx2 s[96:97], s[0:1], s34')
    e('s_mul_i32 s30, s30, s32\nv_add_u32 v2, s30, v0\nv_mul_u32_u24 v3, 0xaaab, v2\nv_lshrrev_b32 v3, 18, v3')
    e('s_cmp_eq_u32 s31, 3\ns_cselect_b32 s30, 6, 0\nv_mad_u32_u24 v2, v3, s30, v2\nv_lshlrev_b32 v2, 7, v2')
    e('s_bfm_b64 exec, s32, 0\ns_waitcnt lgkmcnt(0)\nglobal_load_dword v55, v2, s[96:97]\ns_mov_b64 exec, -1\ns_cmp_lg_u32 s33, 0\ns_cbranch_scc1 L_strm')
    if not c.sptouch: e('s_endpgm')
    e('L_hq:')
    if c.sptouch: e('s_cmp_ge_u32 s2, 60\ns_cbranch_scc1 L_spare\ns_cmp_ge_u32 s7, 4\ns_cbranch_scc1 L_extra')
    e('s_lshr_b32 s30, s2, 1\ns_lshl2_add_u32 s30, s30, s7\ns_min_u32 s30, s30, 0x5f\ns_bitcmp1_b32 s2, 0\ns_cselect_b32 s31, 0x60, 0\ns_add_u32 s30, s30, s31\ns_lshl_b32 s30, s30, 7\nv_mov_b32 v3, s30')
    e('s_mov_b64 exec, 1\ns_waitcnt lgkmcnt(0)\nglobal_load_dword v255, v3, s[98:99]\ns_mov_b64 exec, -1')
    e('s_cmp_lt_u32 s2, 48\ns_cbranch_scc1 L_tail\ns_branch L_pf\nL_strm:')
    streamer(e, c)
    e.mark('off_Lw')
    role_spare(e, c); helper_extra(e, c); role_pf(e, c); role_tail(e, c)
    if c.walk:
        for nm in ('Lw', 'Lv'): e.place_pads(nm, 4, c.walk)
    e(f'.fill ({c.code_bytes} - (. - {KNAME})) / 4, 4, 0xbf800000\ns_endpgm\ns_endpgm')
    return head + e.text() + '.section .rodata,"a"\n' + kdesc(KNAME, 256, 100, 256)

if __name__ == '__main__':
    c = Cfg()
    for a in sys.argv[2:]:
        k, v = a.split('='); setattr(c, k, eval(v))
    t = gen(c)
    open(sys.argv[1], 'w').write(t)
    print(hazard.check(t), 'hazards')
```

```python
import sys, math
from common import *
import hazard
KNAME = 'standalone__detection_seg_detr_decoder__vision_kernel'
QF, TF, AF = 0x0, 0x6000, 0xC000
UF, HF, ST, GF = 0x18000, 0x24000, 0x2A000, 0x2C000
XU, XL, FL = 0x44000, 0x8C000, 0x8D000
TKC = 0x98000
WCF, YF, DG, PART = 0xA0000, 0x130000, 0x180000, 0x200000
PS_ = 49152 + 1024
LOG2E = 1.4426950408889634
TILE = 30720; NSLOT = 5; PB = TILE * NSLOT
MXB = PB + 5120; TKW = MXB + 256
LDS_BYTES = 159744
NH = 64

class Cfg:
    diag = False; jp = 31; pf = True; touch = True; pflat = True; latlate = False; sptouch = False; xone = False; rot = 0; oflag = ''; ewb = False; pwb = False
    cu = ((1, 4, 7), (2, 6, 4), (3, 7, 1), (0, 5, 2)); rd0 = 9; dyn = True; nshard = 4; satom = True; alat = False
    wstep = 2; xprio = 0; ndefer = 4; nx = (8, 0, 0)
    code_bytes = 0x8000; iso = False; pro = 0; hot = False; cut = 0; fine = None; tl = False; enc = None; walk = 0
    local = True; weave = 16; smask = 15; pnt = ''
    hookx = 5; t1sleep = 0; ndyn = 8; bsamp = 6; osamp = True; pairs = True; tpos = (1, 2)

def stamp(e, c, k):
    if c.diag: e(f's_memrealtime s[{64+2*k}:{65+2*k}]')
def dump(e, c):
    if not c.diag: return
    if c.enc:
        lo, hi, wmask, k = c.enc
        e(f's_waitcnt lgkmcnt(0)\ns_cmp_lt_u32 s2, {lo}\ns_cbranch_scc1 L_end\ns_cmp_ge_u32 s2, {hi}\ns_cbranch_scc1 L_end\ns_bitcmp1_b32 {wmask}, s7\ns_cbranch_scc0 L_end')
        e(f's_sub_u32 s30, s{64+2*k}, s64\ns_min_u32 s30, s30, 5000\ns_lshl_b32 s30, s30, 3\ns_add_u32 s30, s30, 4000')
        e('L_enc:\ns_memrealtime s[32:33]\ns_waitcnt lgkmcnt(0)\ns_sub_u32 s31, s32, s64\ns_cmp_lt_u32 s31, s30\ns_cbranch_scc1 L_enc')
        return
    e('s_waitcnt lgkmcnt(0)\ns_mov_b64 exec, 1')
    e(f's_lshl_b32 s60, s2, 3\ns_add_u32 s60, s60, s7\ns_lshl_b32 s60, s60, 6\ns_add_u32 s60, s60, {DG}\nv_mov_b32 v1, 0')
    for k in range(16): e(f'v_mov_b32 v2, s{64+2*k}\nbuffer_store_dword v2, v1, s[16:19], s60 offen offset:{4*k}')

def late_consts(e):
    e(f's_mov_b32 s18, {SZ["ws"]}\ns_mov_b32 s19, 0x20000\ns_mov_b32 s22, {SZ["dbg"]}\ns_mov_b32 s23, 0x20000\ns_mov_b32 s61, 100000')
def budget(e, lp): e(f's_sub_u32 s61, s61, 1\ns_cmp_gt_i32 s61, 0\ns_cbranch_scc1 {lp}')
def early_load(e, v, sqh):
    e(f's_lshl_b32 s60, s{sqh}, 7\ns_mov_b64 exec, 1\nbuffer_load_dwordx4 {vr(v)}, off, s[20:23], s60 sc1\ns_mov_b64 exec, -1')
def early_wait(e, v, words):
    lp = e.label('L_ew')
    e(f'{lp}:\nv_readfirstlane_b32 s30, v{v+words[0]}')
    if len(words) > 1: e(f'v_readfirstlane_b32 s31, v{v+words[1]}\ns_and_b32 s30, s30, s31')
    e(f's_cmp_lg_u32 s30, 0\ns_cbranch_scc0 {lp}_r\n{lp}_d:')
    e.deferred.append(f'{lp}_r:\ns_sleep 2\ns_mov_b64 exec, 1\nbuffer_load_dwordx4 {vr(v)}, off, s[20:23], s60 sc1\ns_mov_b64 exec, -1\ns_waitcnt vmcnt(0)\ns_sub_u32 s61, s61, 1\ns_cmp_gt_i32 s61, 0\ns_cbranch_scc1 {lp}\ns_branch {lp}_d')
def late_addr(e, va): e(f'v_and_b32 v{va}, 1, v0\nv_lshlrev_b32 v{va}, 7, v{va}')
def late_load(e, v, va): e(f's_mov_b64 exec, 3\nbuffer_load_dwordx2 {vr(v,2)}, v{va}, s[20:23], 0 offen offset:16 sc1\ns_mov_b64 exec, -1')
def late_wait(e, v, va):
    lp = e.label('L_lw')
    e(f'{lp}:\nv_and_b32 v{v}, v{v}, v{v+1}\nv_cmp_eq_u32 vcc, 0, v{v}\ns_and_b32 s30, vcc_lo, 3\ns_cbranch_scc1 {lp}_r\n{lp}_d:')
    e.deferred.append(f'{lp}_r:\ns_sleep 8\ns_mov_b64 exec, 3\nbuffer_load_dwordx2 {vr(v,2)}, v{va}, s[20:23], 0 offen offset:16 sc1\ns_mov_b64 exec, -1\ns_waitcnt vmcnt(0)\ns_sub_u32 s61, s61, 1\ns_cmp_gt_i32 s61, 0\ns_cbranch_scc1 {lp}\ns_branch {lp}_d')
def flag_set(e, base, sidx, t):
    sk = e.label('L_fs')
    e(f's_cmp_lg_u32 s3, 0\ns_cbranch_scc1 {sk}\ns_lshl_b32 s30, s{sidx}, 7\ns_add_u32 s30, s30, {base}\nv_mov_b32 v{t}, 1\ns_mov_b64 exec, 1\nbuffer_store_dword v{t}, off, s[16:19], s30 sc1\ns_mov_b64 exec, -1\n{sk}:')
def flag_wait0(e, base, n, t, late=False):
    sk = e.label('L_fw')
    e(f's_cmp_lg_u32 s3, 0\ns_cbranch_scc1 {sk}')
    if late: late_addr(e, 1); late_load(e, t, 1); e('s_waitcnt vmcnt(0)'); late_wait(e, t, 1)
    e(f'v_min_u32 v1, {n-1}, v0\nv_lshlrev_b32 v1, 7, v1\ns_mov_b32 s30, {base}\n{sk}_l:\nbuffer_load_dword v{t}, v1, s[16:19], s30 offen sc1\ns_waitcnt vmcnt(0)\nv_cmp_eq_u32 vcc, -1, v{t}\ns_cbranch_vccz {sk}\ns_sleep 8')
    budget(e, f'{sk}_l')
    e(f'{sk}:\ns_barrier')

def validate(e, loads, t, younger=0, after=None):
    first = True
    for i, (_, r, n) in enumerate(loads):
        e(f's_waitcnt vmcnt({len(loads)-1-i+younger})')
        if after: after(i)
        rs = list(range(r, r + n))
        if first:
            e(f'v_max_u32 v{t}, v{rs[0]}, v{rs[1]}'); rs = rs[2:]; first = False
        while rs:
            e(f'v_max3_u32 v{t}, v{t}, v{rs[0]}, v{rs[1]}'); rs = rs[2:]
    e(f'v_cmp_eq_u32 vcc, -1, v{t}')
def gather(e, loads, t, after=None, extra=()):
    lp = e.label('L_g')
    e(f'{lp}:')
    for x, _, _ in loads: e(x)
    for x in extra: e(x)
    e('s_sub_u32 s61, s61, 1\ns_cmp_gt_i32 s61, 0\ns_cselect_b64 s[62:63], -1, 0')
    validate(e, loads, t, len(extra), after)
    e(f's_and_b64 vcc, vcc, s[62:63]\ns_cbranch_scc1 {lp}')
def frag_loads(dst, n, voff, sreg0, flags=' sc1'):
    return [(f'buffer_load_dwordx4 {vr(dst+4*k)}, v{voff}, s[16:19], s{sreg0+k//4} offen offset:{1024*(k%4)}{flags}', dst + 4 * k, 4) for k in range(n)]
def soffs(e, s0, n):
    for k in range(1, n): e(f's_add_u32 s{s0+k}, s{s0}, {4096*k}')
def tile_off(e, vo, q, g, t):
    e(f'v_lshrrev_b32 v{vo}, 1, v{g}\nv_lshlrev_b32 v{vo}, 8, v{vo}\nv_lshl_add_u32 v{vo}, v{q}, 4, v{vo}')
def hstore(e, text, local):
    if not local: e(text + ' sc1'); return
    lb = e.label('L_hs')
    e(f's_cmp_lg_u32 s59, 0\ns_cbranch_scc0 {lb}\n{text}\n{lb}_b:')
    e.deferred.append(f'{lb}:\n{text} sc1\ns_branch {lb}_b')
def flush_deferred(e):
    for x in e.deferred: e(x)
    e.deferred = []
def pack_store(e, D, P, voff, soff, keep=None, local=False):
    e(f'v_cvt_pk_bf16_f32 v{P}, v{D}, v{D+1}\nv_cvt_pk_bf16_f32 v{P+1}, v{D+2}, v{D+3}\nv_min_u32 v{P}, -2, v{P}\nv_min_u32 v{P+1}, -2, v{P+1}')
    e(f'v_mov_b64 {vr(keep,2)}, {vr(P,2)}' if keep else 's_nop 0')
    e(f'v_permlane16_swap_b32 v{P}, v{P+2}\nv_permlane16_swap_b32 v{P+1}, v{P+3}')
    e('s_mov_b32 exec_lo, 0xffff\ns_mov_b32 exec_hi, 0xffff')
    hstore(e, f'buffer_store_dwordx4 {vr(P)}, v{voff}, s[16:19], s{soff} offen', local)
    e('s_mov_b64 exec, -1')
def local_flag(e, v, n=24):
    e(f'v_readfirstlane_b32 s56, v{v}\nv_readfirstlane_b32 s57, v{v+1}\ns_getreg_b32 s30, hwreg(HW_REG_XCC_ID, 0, 4)\ns_lshl_b32 s30, s30, 3')
    e(f's_lshr_b64 s[56:57], s[56:57], s30\ns_and_b32 s56, s56, 0xff\ns_cmp_eq_u32 s56, {n}\ns_cselect_b32 s59, 1, 0\ns_cmp_lt_u32 s30, 64\ns_cselect_b32 s59, s59, 0')

def rows_src(e, vo, stride, t0, t1, t2):
    e('s_lshl_b32 s30, s3, 1\ns_lshr_b32 s30, 0x78, s30\ns_and_b32 s30, s30, 3')
    e(f's_mul_i32 s31, s3, {4*stride}')
    for b in range(3):
        e(f'v_add_u32 v{t0}, {64*b}, v0\nv_mul_u32_u24 v{t1}, 1366, v{t0}\nv_lshrrev_b32 v{t1}, 16, v{t1}')
        e(f'v_mul_u32_u24 v{t2}, 48, v{t1}\nv_sub_u32 v{t0}, v{t0}, v{t2}\nv_lshl_or_b32 v{t2}, v{t1}, 2, s30\nv_xor_b32 v{t0}, v{t0}, v{t2}')
        e(f'v_mul_u32_u24 v{t1}, {stride}, v{t1}\nv_lshl_add_u32 v{t0}, v{t0}, 4, v{t1}\nv_add_u32 v{vo+b}, s31, v{t0}')
def rows_dma(e, vo, srd, soff, ldsbase, ntile, stride, fl=''):
    e(f's_mul_i32 s30, s3, 3072\ns_add_u32 m0, s30, {ldsbase}')
    lp = e.label('L_rd')
    if ntile > 1: e(f's_mov_b32 s31, {ntile}\n{lp}:')
    for b in range(3):
        e(f's_nop 0\nbuffer_load_dwordx4 v{vo+b}, {srd}, s{soff} offen{fl} lds\ns_add_u32 m0, m0, {1024 if b < 2 else 12288-2048}')
    if ntile > 1: e(f's_add_u32 s{soff}, s{soff}, {16*stride}\ns_sub_u32 s31, s31, 1\ns_cmp_lg_u32 s31, 0\ns_cbranch_scc1 {lp}')
def rows_rd(e, va, base, t0, t1, t2):
    e(f'v_and_b32 v{t0}, 15, v0\nv_lshrrev_b32 v{t1}, 2, v{t0}\nv_lshlrev_b32 v{t1}, 1, v{t1}\ns_mov_b32 s30, 0x78\nv_lshrrev_b32 v{t1}, v{t1}, s30\nv_and_b32 v{t1}, 3, v{t1}')
    e(f'v_and_b32 v{t2}, 3, v0\nv_lshl_or_b32 v{t1}, v{t2}, 2, v{t1}\nv_lshrrev_b32 v{t2}, 4, v0\nv_xor_b32 v{t1}, v{t1}, v{t2}')
    e(f'v_mul_u32_u24 v{t0}, 768, v{t0}\nv_lshl_add_u32 v{t0}, v{t1}, 4, v{t0}\nv_add_u32 v{va}, {base}, v{t0}')
    for b in range(1, 4): e(f'v_xor_b32 v{va+b}, {64*b}, v{va}')
def rowgemm(e, va, ntile, BF, AFR, D, P, voff, soff):
    lp = e.label('L_rg')
    e(f's_mov_b32 s31, {ntile}\n{lp}:')
    for ks in range(12): e(f'ds_read_b128 {vr(AFR+4*ks)}, v{va+(ks&3)} offset:{256*(ks>>2)}')
    for ks in range(12):
        e(f's_waitcnt lgkmcnt({11-ks})\nv_mfma_f32_16x16x32_bf16 {vr(D)}, {vr(AFR+4*ks)}, {vr(BF+4*ks)}, {vr(D) if ks else 0}')
    for b in range(4): e(f'v_add_u32 v{va+b}, 12288, v{va+b}')
    e('s_nop 3')
    pack_store(e, D, P, voff, soff)
    e(f's_add_u32 s{soff}, s{soff}, 512\ns_sub_u32 s31, s31, 1\ns_cmp_lg_u32 s31, 0\ns_cbranch_scc1 {lp}')
def slab128_src(e, vo, stride, t0, t1):
    e(f'v_lshrrev_b32 v{vo}, 3, v0\nv_mul_u32_u24 v{vo}, {stride}, v{vo}')
    e(f'v_bfe_u32 v{t0}, v0, 4, 1\ns_and_b32 s30, s3, 1\ns_lshl_b32 s30, s30, 1\nv_or_b32 v{t0}, s30, v{t0}\nv_lshlrev_b32 v{t0}, 1, v{t0}')
    e(f'v_and_b32 v{t1}, 7, v0\nv_xor_b32 v{t0}, v{t0}, v{t1}\nv_lshl_add_u32 v{vo}, v{t0}, 4, v{vo}')
def slab128_dma(e, vo, srd, sj, stride, ldsbase, n=12, srow=None):
    e(f's_lshl_b32 s34, s{sj}, 7\ns_mul_i32 s30, s3, {8*stride}\ns_add_u32 s34, s34, s30\ns_lshl_b32 s30, s3, 10\ns_add_u32 m0, s30, {ldsbase}')
    lp = e.label('L_sl')
    if srow: e(f's_add_u32 s34, s34, s{srow}')
    e(f's_mov_b32 s31, {n}\n{lp}:\nbuffer_load_dwordx4 v{vo}, {srd}, s34 offen lds')
    e(f's_add_u32 s34, s34, {32*stride}\ns_add_u32 m0, m0, 4096\ns_sub_u32 s31, s31, 1\ns_cmp_lg_u32 s31, 0\ns_cbranch_scc1 {lp}')
def slab128_rd(e, vo, t0, t1):
    e(f'v_bfe_u32 v{t0}, v0, 2, 2\nv_lshrrev_b32 v{t1}, 4, v0\nv_lshlrev_b32 v{vo}, 10, v{t1}\nv_lshl_add_u32 v{vo}, v{t0}, 7, v{vo}')
    e(f'v_lshrrev_b32 v{t0}, 1, v{t0}\nv_and_b32 v{t1}, 1, v{t1}\nv_lshl_or_b32 v{t0}, v{t1}, 1, v{t0}\nv_lshl_add_u32 v{vo}, v{t0}, 5, v{vo}')
    e(f'v_and_b32 v{t0}, 3, v0\nv_lshl_add_u32 v{vo}, v{t0}, 3, v{vo}')
def slab32_src(e, vout, t, stride):
    e(f'v_lshrrev_b32 v{vout}, 1, v0\nv_bfe_u32 v{t}, v0, 4, 1\nv_lshlrev_b32 v{t}, 2, v{t}\nv_xor_b32 v{vout}, v{vout}, v{t}')
    e(f'v_mul_u32_u24 v{vout}, {stride}, v{vout}\nv_and_b32 v{t}, 1, v0\nv_lshl_add_u32 v{vout}, v{t}, 4, v{vout}')
def slab32_rd(e, v0_, v1_, t):
    e(f'v_lshrrev_b32 v{t}, 4, v0\nv_lshlrev_b32 v{v0_}, 8, v{t}\nv_and_b32 v{t}, 1, v{t}\nv_lshl_add_u32 v{v0_}, v{t}, 7, v{v0_}')
    e(f'v_and_b32 v{t}, 15, v0\nv_lshl_add_u32 v{v0_}, v{t}, 3, v{v0_}\nv_xor_b32 v{v1_}, 128, v{v0_}')
def ln_finish(e, s1, s2):
    e(f'v_mul_f32 v{s1}, {fx(1/384)}, v{s1}\nv_mul_f32 v{s2}, {fx(1/384)}, v{s2}\nv_fma_f32 v{s2}, -v{s1}, v{s1}, v{s2}\nv_max_f32 v{s2}, 0, v{s2}\nv_add_f32 v{s2}, {fx(1e-5)}, v{s2}\nv_rsq_f32 v{s2}, v{s2}')
```

```python
from gen_v14_base import *

def wait_a(e):
    lw = e.label('L_aw')
    e(f's_cmp_lg_u32 s7, 0\ns_cbranch_scc1 {lw}_d\ns_sleep 40'); early_load(e, 12, 4); e('s_waitcnt vmcnt(0)'); early_wait(e, 12, (1,))
    e(f's_mul_i32 s30, s4, 24576\ns_add_u32 s30, s30, {AF}\ns_mov_b64 exec, 1\n{lw}:\ns_sleep 8\nbuffer_load_dword v9, off, s[16:19], s30 offset:256 sc1\ns_waitcnt vmcnt(0)\nv_cmp_ne_u32 vcc, -1, v9\ns_cbranch_vccnz {lw}_x')
    budget(e, lw)
    e(f'{lw}_x:\ns_mov_b64 exec, -1\n{lw}_d:\ns_barrier')

def role_pf(e, c):
    e('L_pf:'); late_consts(e); e('s_waitcnt lgkmcnt(0)')
    if c.iso: e('s_endpgm'); return
    if c.pflat:
        load_srds(e, [(8, 'lat_hi'), (12, 'lat_lo')])
        e('s_sub_u32 s5, s2, 48\ns_lshr_b32 s5, s5, 1\ns_lshl_b32 s5, s5, 1\ns_and_b32 s30, s3, 1\ns_add_u32 s5, s5, s30\ns_mul_i32 s5, s5, 24576\nv_lshlrev_b32 v2, 7, v0')
        e('s_waitcnt lgkmcnt(0) vmcnt(0)\ns_cmp_ge_u32 s3, 2\ns_cselect_b64 s[8:9], s[12:13], s[8:9]')
        for k in range(3): e(f's_add_u32 s30, s5, {8192*k}\nbuffer_load_dword v3, v2, s[8:11], s30 offen')
    if c.cut in (3, 6) or c.pro or not c.pf: e('s_endpgm'); return
    load_srds(e, [(8, 'w1'), (12, 'w2')])
    e('s_and_b32 s4, s2, 1\ns_sub_u32 s5, s2, 48\ns_lshr_b32 s5, s5, 1\ns_lshl_b32 s5, s5, 2\ns_add_u32 s5, s5, s3\ns_mul_i32 s5, s5, 49152\nv_lshlrev_b32 v2, 7, v0')
    wait_a(e)
    e('s_waitcnt lgkmcnt(0)\ns_cmp_eq_u32 s4, 0\ns_cselect_b64 s[24:25], s[8:9], s[12:13]\ns_cselect_b64 s[8:9], s[12:13], s[8:9]')
    for m in range(2):
        for k in range(6): e(f's_add_u32 s30, s5, {8192*k}\nbuffer_load_dword v3, v2, s[8:11], s30 offen')
        if m == 0: e('s_mov_b64 s[8:9], s[24:25]')
    e('s_endpgm')
    flush_deferred(e)

def role_spare(e, c):
    e('L_spare:'); late_consts(e)
    if c.iso: e('s_waitcnt lgkmcnt(0)\ns_branch L_fin')
    e('s_and_b32 s4, s2, 1\ns_bfe_u32 s5, s2, 0x10001')
    e('v_lshlrev_b32 v2, 4, v0\nv_mov_b64 v[4:5], -1\nv_mov_b64 v[6:7], -1\nv_mov_b32 v8, 1')
    e(f's_mul_i32 s36, s4, 12288\ns_lshl_b32 s36, s36, s5\ns_mul_i32 s30, s7, 3072\ns_add_u32 s36, s36, s30')
    e(f's_cmp_ge_u32 s7, 4\ns_cselect_b32 s30, {TF-12288}, 0\ns_cmp_lg_u32 s5, 0\ns_cselect_b32 s30, {AF}, s30\ns_add_u32 s36, s36, s30\ns_waitcnt lgkmcnt(0)')
    for k in range(3): e(f'buffer_store_dwordx4 v[4:7], v2, s[16:19], s36 offen offset:{1024*k} sc1')
    e(f's_lshl3_add_u32 s30, s2, s7\ns_cmp_lg_u32 s30, {62*8+7}\ns_cbranch_scc1 L_ntk\ns_mov_b32 s30, {TKC}\nbuffer_store_dwordx4 v[4:7], v2, s[16:19], s30 offen sc1\nbuffer_store_dwordx4 v[4:7], v2, s[16:19], s30 offen offset:1024 sc1\nL_ntk:')
    e(f's_lshl_b32 s38, s4, 7\ns_lshl_b32 s30, s5, 2\ns_add_u32 s38, s38, s30\ns_and_b32 s36, s2, 3\ns_lshl_b32 s36, s36, 3\ns_add_u32 s36, s36, s7\ns_lshl_b32 s36, s36, 14\ns_add_u32 s36, s36, {UF}')
    for off in (0, 16):
        sk = e.label('L_sp')
        e(f's_waitcnt vmcnt(0)\ns_barrier\ns_cmp_lg_u32 s7, 0\ns_cbranch_scc1 {sk}\ns_mov_b64 exec, 1\nbuffer_store_dword v8, off, s[20:23], s38 offset:{off} sc1\ns_mov_b64 exec, -1\n{sk}:')
        stamp(e, c, 1 + off // 16)
        if off == 0:
            wait_a(e)
            for k in range(16 if c.cut != 6 else 0):
                e(f'buffer_store_dwordx4 v[4:7], v2, s[16:19], s36 offen offset:{1024*(k%4)} sc1')
                if k % 4 == 3: e('s_add_u32 s36, s36, 4096')
    e('s_branch L_fin')
    flush_deferred(e)

def role_tail(e, c):
    e('L_tail:\ns_waitcnt lgkmcnt(0)')
    load_srds(e, [(44, 'q'), (40, 'wq'), (8, 'wkv'), (12, 'lat_hi'), (24, 'lat_lo')])
    e('s_and_b32 s4, s2, 1\ns_lshr_b32 s5, s2, 1\ns_mul_i32 s35, s4, 12288')
    WF, XF, D, PS = 16, 64, 112, 116
    rows_src(e, 4, 768, 8, 9, 10)
    slab32_src(e, 7, 8, 768)
    e(f's_lshl_b32 s36, s5, 5\ns_mul_i32 s30, s3, {96*768}\ns_add_u32 s36, s36, s30\ns_waitcnt lgkmcnt(0)')
    if c.iso: late_consts(e); e('s_branch L_fin')
    rows_dma(e, 4, 's[44:47]', 35, 49152, 1, 768)
    for k in range(3): e('s_nop 0\nbuffer_load_dwordx4 v7, s[40:43], s36 offen lds\ns_add_u32 m0, m0, 1024\ns_add_u32 s36, s36, 24576')
    stamp(e, c, 1)
    e('s_mul_i32 s32, s5, 12288\ns_lshl_b32 s33, s32, 1')
    for b in range(3): e(f'v_add_u32 v8, {64*b}, v0\nv_mul_u32_u24 v8, 1366, v8\nv_lshrrev_b32 v8, 16, v8\nv_mul_u32_u24 v8, 768, v8\nv_add3_u32 v{124+b}, v8, v{4+b}, s31')
    late_consts(e)
    rows_dma(e, 124, 's[8:11]', 33, 12288, 1, 1536, c.pnt)
    def lat_dma():
        rows_dma(e, 136, 's[12:15]', 32, 24576, 1, 768, c.pnt)
        rows_dma(e, 136, 's[24:27]', 32, 36864, 1, 768, c.pnt)
    e('v_mov_b64 v[136:137], v[4:5]\nv_mov_b32 v138, v6')
    if not c.latlate: lat_dma()
    e('v_lshlrev_b32 v12, 4, v0\nv_and_b32 v2, 15, v0\nv_lshrrev_b32 v3, 4, v0'); tile_off(e, 14, 2, 3, 10)
    rows_rd(e, 120, 12288, 8, 9, 10)
    for k in range(3): e(f's_mul_i32 s30, s3, 192\ns_add_u32 s30, s30, {64*k}\ns_and_b32 s31, s30, 0xc0\ns_and_b32 s30, s30, 0x300\nv_xor_b32 v{121+k}, s31, v120\nv_add_u32 v{121+k}, s30, v{121+k}')
    slab32_rd(e, 6, 7, 8)
    e(f's_mul_i32 s30, s3, 3072\ns_add_u32 s36, s35, s30\ns_add_u32 s37, s36, {TF}\ns_add_u32 s36, s36, {QF}\ns_add_u32 s30, s30, 61440\nv_add_u32 v6, s30, v6\nv_add_u32 v7, s30, v7')
    e(f's_lshl_b32 s38, s5, 9\ns_add_u32 s38, s38, s35\ns_add_u32 s38, s38, {QF}')
    e('s_lshl_b32 s30, s3, 10\nv_add_u32 v9, s30, v12\nv_add_u32 v13, 73728, v9\ns_mov_b32 s30, 0x3f803f80\nv_mov_b64 v[140:141], 0')
    for i in range(4): e(f'v_mov_b32 v{124+i}, s30')
    QW, CS = XF + 12, D + 4
    e(f's_waitcnt vmcnt({3 if c.latlate else 9})\ns_barrier')
    stamp(e, c, 2)
    early_load(e, 132, 4)
    for k in range(3): e(f'ds_read_b128 {vr(XF+4*k)}, v{121+k} offset:36864')
    for k in range(3): e(f'ds_read_b64_tr_b16 {vr(QW+4*k,2)}, v6 offset:{1024*k}\nds_read_b64_tr_b16 {vr(QW+4*k+2,2)}, v7 offset:{1024*k}')
    e('s_waitcnt lgkmcnt(6)')
    for i in range(12): e(f'v_dot2c_f32_bf16 v140, v{XF+i}, v124\nv_dot2c_f32_bf16 v141, v{XF+i}, v{XF+i}')
    e('s_waitcnt lgkmcnt(0)')
    for k in range(3):
        e(f'v_mfma_f32_16x16x32_bf16 {vr(D)}, {vr(QW+4*k)}, {vr(XF+4*k)}, {vr(D) if k else 0}')
        e(f'v_mfma_f32_16x16x32_bf16 {vr(CS)}, {vr(QW+4*k)}, v[124:127], {vr(CS) if k else 0}')
    for sw in ('16', '32'):
        e(f'v_mov_b64 v[142:143], v[140:141]\ns_nop 1\nv_permlane{sw}_swap_b32 v140, v142\nv_permlane{sw}_swap_b32 v141, v143\nv_add_f32 v140, v140, v142\nv_add_f32 v141, v141, v143')
    p2 = e.label('L_p2')
    if c.pro: stamp(e, c, 8)
    e(f'ds_write_b128 v13, {vr(D)}\nds_write_b128 v13, {vr(CS)} offset:4096\nds_write_b64 v13, v[140:141] offset:8192\ns_waitcnt vmcnt(1) lgkmcnt(0)\ns_barrier')
    e(f's_cmp_lg_u32 s3, 0\ns_cbranch_scc1 {p2}')
    for w in range(1, 4): e(f'ds_read_b64 {vr(142+2*w,2)}, v13 offset:{8192+1024*w}')
    for w in range(1, 4): e(f'ds_read_b128 {vr(XF+8*w)}, v13 offset:{1024*w}\nds_read_b128 {vr(XF+8*w+4)}, v13 offset:{4096+1024*w}')
    e(f'{p2}:')
    if c.pro: stamp(e, c, 15)
    e('s_waitcnt vmcnt(0)')
    if c.pro: stamp(e, c, 9)
    early_wait(e, 132, (0, 1))
    if c.pro: stamp(e, c, 10)
    local_flag(e, 134)
    e(f's_cmp_lg_u32 s3, 0\ns_cbranch_scc1 {p2}_b\ns_waitcnt lgkmcnt(6)')
    for w in range(1, 4): e(f'v_pk_add_f32 v[140:141], v[140:141], {vr(142+2*w,2)}')
    ln_finish(e, 140, 141)
    for w in range(1, 4):
        e(f's_waitcnt lgkmcnt({2*(3-w)})')
        for i in range(0, 8, 2): e(f'v_pk_add_f32 {vr(D+i,2)}, {vr(D+i,2)}, {vr(XF+8*w+i,2)}')
    for i in range(4): e(f'v_fma_f32 v{D+i}, -v140, v{CS+i}, v{D+i}')
    for i in range(4): e(f'v_mul_f32 v{D+i}, v141, v{D+i}')
    pack_store(e, D, PS, 14, 38, local=c.local)
    stamp(e, c, 5)
    e(f'{p2}_b:\ns_add_u32 s38, s38, {TF-QF}\nv_lshlrev_b32 v10, 7, v0\ns_mov_b64 exec, 15\nbuffer_load_dword v11, v10, s[16:19], s38 offen sc1\ns_mov_b64 exec, -1')
    if c.latlate: lat_dma()
    def wread(ms):
        for m in ms:
            for k in range(3): e(f'ds_read_b128 {vr(WF+12*m+4*k)}, v{121+k} offset:{12288*m}')
    wread((0,) if c.latlate else (0, 1, 2))
    gather(e, frag_loads(XF, 3, 12, 36), 10)
    stamp(e, c, 3)
    e('s_waitcnt lgkmcnt(0)')
    for k in range(3): e(f'v_mfma_f32_16x16x32_bf16 {vr(D)}, {vr(WF+4*k)}, {vr(XF+4*k)}, {vr(D) if k else 0}')
    p3 = e.label('L_p3'); p3b = e.label('L_p3b')
    e('s_nop 7')
    e(f'ds_write_b128 v9, {vr(D)}\ns_waitcnt lgkmcnt(0)\ns_barrier\ns_cmp_lg_u32 s3, 0\ns_cbranch_scc1 {p3}')
    for w in range(1, 4): e(f'ds_read_b128 {vr(XF+4*w)}, v12 offset:{1024*w}')
    for w in (1, 2, 3):
        e(f's_waitcnt lgkmcnt({3-w})')
        for i in range(4): e(f'v_add_f32 v{D+i}, v{D+i}, v{XF+4*w+i}')
    pack_store(e, D, PS, 14, 38, local=c.local)
    e(f'{p3}:')
    if c.latlate: wread((1, 2))
    gather(e, frag_loads(XF, 3, 12, 37), 10)
    stamp(e, c, 4)
    e('s_waitcnt lgkmcnt(0)')
    for k in range(3):
        for t in range(2): e(f'v_mfma_f32_16x16x32_bf16 {vr(D+4*t)}, {vr(WF+12+12*t+4*k)}, {vr(XF+4*k)}, {vr(D+4*t) if k else 0}')
    b2 = e.label('L_b2')
    e(f's_lshl_b32 s38, s5, 9\ns_mul_i32 s31, s3, 12288\ns_add_u32 s38, s38, s31\ns_lshl_b32 s31, s35, 1\ns_add_u32 s38, s38, s31\ns_add_u32 s38, s38, {AF-12288}')
    e(f's_lshl_b32 s30, s3, 12\nv_add_u32 v8, s30, v12\nds_write_b128 v9, {vr(D)} offset:4096\nds_write_b128 v9, {vr(D+4)} offset:8192\ns_waitcnt lgkmcnt(0)\ns_barrier')
    e(f's_add_u32 s30, s3, 1\ns_and_b32 s30, s30, 2\ns_cbranch_scc0 {b2}')
    for w in range(4): e(f'ds_read_b128 {vr(XF+4*w)}, v8 offset:{1024*w}')
    e('s_waitcnt lgkmcnt(2)')
    for i in range(4): e(f'v_add_f32 v{D+i}, v{XF+i}, v{XF+4+i}')
    e('s_waitcnt lgkmcnt(0)')
    for i in range(4): e(f'v_add_f32 v{XF+8+i}, v{XF+8+i}, v{XF+12+i}')
    for i in range(4): e(f'v_add_f32 v{D+i}, v{D+i}, v{XF+8+i}')
    for i in range(4): e(f'v_mul_f32 v{D+i}, {fx(384**-0.5*LOG2E)}, v{D+i}')
    pack_store(e, D, PS, 14, 38)
    stamp(e, c, 5)
    e(f'{b2}:\ns_waitcnt vmcnt(0)\ns_barrier')
    if c.pro or c.cut in (3, 6, 7): e('s_branch L_fin')
    W1, W2, WC, CS, QR = 128, 176, 224, 248, 252
    load_srds(e, [(40, 'q'), (44, 'out'), (52, 'w1'), (96, 'w2'), (36, 'wo')])
    e('s_lshl_b32 s30, s5, 2\ns_add_u32 s30, s30, s3\ns_mul_i32 s30, s30, 24\nv_add_u32 v4, s30, v0\nv_mul_u32_u24 v5, 0xaaab, v4\nv_lshrrev_b32 v5, 18, v5\nv_mad_u32_u24 v5, v5, 6, v4\nv_lshlrev_b32 v4, 7, v4\nv_lshlrev_b32 v5, 7, v5')
    e('s_mov_b64 exec, 0xffffff\ns_waitcnt lgkmcnt(0)\nbuffer_load_dword v6, v4, s[36:39], 0 offen\nbuffer_load_dword v6, v5, s[8:11], 0 offen offset:768\ns_mov_b64 exec, -1')
    slab32_src(e, 126, 10, 768)
    e('v_mul_u32_u24 v15, 768, v2\nv_lshl_add_u32 v15, v3, 3, v15\ns_lshl_b32 s48, s5, 5\ns_add_u32 s48, s48, s35')
    e(f'buffer_load_dwordx2 {vr(QR,2)}, v15, s[40:43], s48 offen')
    e(f's_lshl_b32 s32, s5, 5\ns_mul_i32 s30, s3, {96*768}\ns_add_u32 s32, s32, s30\ns_mul_i32 s30, s3, 3072\ns_add_u32 m0, s30, 147456\ns_waitcnt vmcnt(0)')
    for k in range(3): e('buffer_load_dwordx4 v126, s[36:39], s32 offen lds\ns_add_u32 m0, m0, 1024\ns_add_u32 s32, s32, 24576')
    slab32_rd(e, 124, 125, 10)
    e('v_add_u32 v4, 147456, v124\nv_add_u32 v5, 147456, v125\ns_waitcnt vmcnt(0)\ns_barrier')
    for ks in range(12):
        e(f'ds_read_b64_tr_b16 {vr(XF+4*ks,2)}, v4 offset:{1024*ks}\nds_read_b64_tr_b16 {vr(XF+4*ks+2,2)}, v5 offset:{1024*ks}')
        if ks % 6 == 5: e('s_waitcnt lgkmcnt(0)')
    e('s_barrier')
    RA = 120
    e('s_mul_i32 s34, s3, 36864\ns_add_u32 s49, s34, 36864')
    def rowstream(srd, stride, ntile, tag):
        for b in range(3):
            e(f'v_add_u32 v8, {64*b}, v0\nv_mul_u32_u24 v10, 1366, v8\nv_lshrrev_b32 v10, 16, v10\nv_mul_u32_u24 v11, 48, v10\nv_sub_u32 v8, v8, v11')
            e(f'v_lshlrev_b32 v11, 2, v10\nv_xor_b32 v8, v8, v11\nv_mul_u32_u24 v10, {stride}, v10\nv_lshl_add_u32 v{4+b}, v8, 4, v10')
        rows_rd(e, RA, 0, 8, 10, 11)
        for b in range(4): e(f'v_add_u32 v{RA+b}, s34, v{RA+b}')
        def issue():
            e('s_mov_b32 m0, s50\ns_mov_b32 s33, s32')
            for q in range(4):
                for b in range(3): e(f'v_xor_b32 v8, {[0,2,3,1][q]*16}, v{4+b}\nbuffer_load_dwordx4 v8, {srd}, s33 offen lds\ns_add_u32 m0, m0, 1024')
                if q < 3: e(f's_add_u32 s33, s33, {8*stride}')
            e(f's_add_u32 s50, s50, 12288\ns_cmp_eq_u32 s50, s49\ns_cselect_b32 s50, s34, s50\ns_xor_b32 s51, s51, 1\ns_cselect_b32 s30, 4, 28\ns_mul_i32 s30, s30, {stride}\ns_add_u32 s32, s32, s30')
        e(f's_mov_b32 s50, s34\ns_mov_b32 s51, 0\ns_mov_b32 s31, -3\ns_mov_b32 s29, 0\ns_branch L_{tag}_i')
        e(f'L_{tag}:\ns_waitcnt vmcnt(24)\ns_cmp_lt_i32 s31, {ntile-2}\ns_cbranch_scc1 L_{tag}_w\ns_waitcnt vmcnt(0)\nL_{tag}_w:')
        for ks in range(12): e(f'ds_read_b128 {vr(WF+4*ks)}, v{RA+(ks&3)} offset:{256*(ks>>2)}')
        e('s_add_u32 s29, s29, 1\ns_cmp_eq_u32 s29, 3\ns_cselect_b32 s29, 0, s29\ns_cselect_b32 s30, -2, 1\ns_mulk_i32 s30, 12288')
        for i in range(0, 22, 2): e(f'v_mov_b64 {vr(WC+i,2)}, {vr(WC+i+2,2)}')
        for ks in range(12):
            e(f's_waitcnt lgkmcnt({11-ks})\nv_mfma_f32_16x16x32_bf16 {vr(D)}, {vr(WF+4*ks)}, {vr(XF+4*ks)}, {vr(D) if ks else 0}')
        for b in range(4): e(f'v_add_u32 v{RA+b}, s30, v{RA+b}')
        e(f's_nop 3\nv_cvt_pk_bf16_f32 v{WC+22}, v{D}, v{D+1}\nv_cvt_pk_bf16_f32 v{WC+23}, v{D+2}, v{D+3}')
        e(f's_cmp_ge_i32 s31, {ntile-3}\ns_cbranch_scc1 L_{tag}_n\nL_{tag}_i:')
        issue()
        e(f'L_{tag}_n:\ns_add_u32 s31, s31, 1\ns_cmp_lt_i32 s31, 0\ns_cbranch_scc1 L_{tag}_i\ns_cmp_lt_i32 s31, {ntile}\ns_cbranch_scc1 L_{tag}')
    e(f's_mul_i32 s32, s3, {96*1536}\ns_add_u32 s32, s32, 768')
    rowstream('s[8:11]', 1536, 6, 'ys')
    e('s_mul_i32 s30, s3, 3072\ns_add_u32 s30, s30, 147456\nv_add_u32 v8, s30, v12\nv_add_u32 v10, 147456, v12')
    for k in range(3): e(f'ds_write_b128 v8, {vr(WC+12+4*k)} offset:{1024*k}')
    e('s_waitcnt lgkmcnt(0)\ns_barrier')
    for ks in range(12): e(f'ds_read_b128 {vr(XF+4*ks)}, v10 offset:{1024*ks}')
    e(f's_cmp_ge_u32 s3, 2\ns_cselect_b32 s12, s24, s12\ns_cselect_b32 s13, s25, s13\ns_and_b32 s32, s3, 1\ns_mul_i32 s32, s32, {192*768}\ns_waitcnt lgkmcnt(0)')
    rowstream('s[12:15]', 768, 12, 'ws')
    e('s_barrier')
    stamp(e, c, 6)
    slab128_src(e, 7, 3072, 10, 11)
    slab128_dma(e, 7, 's[52:55]', 5, 3072, 0)
    e(f's_lshl_b32 s32, s5, 5\ns_mul_i32 s30, s3, {384*768}\ns_add_u32 s32, s32, s30\ns_mul_i32 s33, s3, 12288\ns_add_u32 s33, s33, 49152\ns_mov_b32 m0, s33')
    lp = e.label('L_w2')
    e(f's_mov_b32 s31, 12\n{lp}:\nbuffer_load_dwordx4 v126, s[96:99], s32 offen lds\ns_add_u32 m0, m0, 1024\ns_add_u32 s32, s32, 24576\ns_sub_u32 s31, s31, 1\ns_cmp_lg_u32 s31, 0\ns_cbranch_scc1 {lp}')
    slab128_rd(e, 13, 10, 11)
    e('v_add_u32 v6, s33, v124\nv_add_u32 v7, s33, v125\ns_mov_b32 s30, 0x3f803f80')
    for i in range(4): e(f'v_mov_b32 v{124+i}, s30')
    e('s_lshl_b32 s30, s3, 5\nv_xor_b32 v8, s30, v13\ns_mul_i32 s30, s3, 12288\nv_add_u32 v13, s30, v8')
    e('s_waitcnt vmcnt(12)\ns_barrier')
    for ks in range(12):
        for u in range(2): e(f'ds_read_b64_tr_b16 {vr(WF+4*ks+2*u,2)}, v8 offset:{4096*ks+512*u}')
        if ks % 6 == 5: e('s_waitcnt lgkmcnt(0)')
    for ks in range(12): e(f'v_mfma_f32_16x16x32_bf16 {vr(CS)}, {vr(WF+4*ks)}, v[124:127], {vr(CS) if ks else 0}')
    for t in range(4):
        e(f'v_xor_b32 v10, {32*t}, v13')
        for k in range(3):
            for u in range(2): e(f'ds_read_b64_tr_b16 {vr(W1+12*t+4*k+2*u,2)}, v10 offset:{4096*k+512*u}')
        if t % 2: e('s_waitcnt lgkmcnt(0)')
    e('s_waitcnt vmcnt(0)')
    for ks in range(12):
        e(f'ds_read_b64_tr_b16 {vr(W2+4*ks,2)}, v6 offset:{1024*ks}\nds_read_b64_tr_b16 {vr(W2+4*ks+2,2)}, v7 offset:{1024*ks}')
        if ks % 6 == 5: e('s_waitcnt lgkmcnt(0)')
    late_addr(e, 1); late_load(e, 10, 1); e('s_waitcnt vmcnt(0)'); late_wait(e, 10, 1)
    e('s_barrier')
    e(f's_lshl_b32 s38, s35, 1\ns_mul_i32 s30, s3, 6144\ns_add_u32 s38, s38, s30\ns_add_u32 s38, s38, {UF}'); soffs(e, 38, 2)
    e(f's_lshl_b32 s40, s5, 9\ns_add_u32 s40, s40, s35\ns_add_u32 s40, s40, {HF}')
    e(f's_mul_i32 s43, s3, 3072\ns_add_u32 s43, s43, s35\ns_add_u32 s43, s43, {HF}')
    e(f's_lshl_b32 s49, s5, 2\ns_add_u32 s49, s49, s3\ns_lshl_b32 s49, s49, 9\ns_lshl_b32 s30, s35, 2\ns_add_u32 s49, s49, s30\ns_add_u32 s49, s49, {GF}')
    e(f's_mul_i32 s24, s3, 12288\ns_add_u32 s24, s24, s30\ns_add_u32 s24, s24, {GF}'); soffs(e, 24, 3)
    e('s_lshl_b32 s30, s3, 12\nv_add_u32 v8, s30, v12')
    for t in range(1, 4): e(f'v_xor_b32 v{32+t}, {4096*t}, v8')
    e('v_lshrrev_b32 v11, 2, v2\nv_lshl_add_u32 v11, v11, 4, v2\nv_lshlrev_b32 v11, 4, v11\nv_and_b32 v10, 3, v0')
    for i, r in ((1, 28), (2, 32), (3, 50)): e(f'v_cmp_eq_u32 s[{r}:{r+1}], {i}, v10')
    e(f's_cmp_eq_u32 s3, 0\ns_cselect_b32 s30, -1, 0\nv_and_b32 v{QR}, s30, v{QR}\nv_and_b32 v{QR+1}, s30, v{QR+1}')
    e(f'v_lshlrev_b32 v120, 16, v{QR}\nv_and_b32 v121, 0xffff0000, v{QR}\nv_lshlrev_b32 v122, 16, v{QR+1}\nv_and_b32 v123, 0xffff0000, v{QR+1}')
    c1 = -2 * math.sqrt(2 / math.pi) * LOG2E; c3 = c1 * 0.044715
    e(f'v_mov_b32 v36, {fx(c3)}\nv_mov_b32 v37, {fx(c1)}')
    ld3 = frag_loads(XF, 3, 12, 43)
    early_load(e, 4, 4)
    if c.local:
        for x, _, _ in ld3 + frag_loads(XF, 12, 12, 24) + frag_loads(XF, 6, 12, 38): e(x)
    e('s_waitcnt vmcnt(0)'); local_flag(e, 6)
    stamp(e, c, 7)
    if c.cut: e('s_branch L_fin')
    e(f's_mul_i32 s52, s4, 147456\ns_mul_i32 s30, s5, 6144\ns_add_u32 s52, s52, s30\ns_lshl_b32 s30, s3, 8\ns_add_u32 s52, s52, s30\ns_add_u32 s52, s52, {XU}\ns_add_u32 s53, s52, 4096')
    e(f's_mul_i32 s54, s4, 768\ns_add_u32 s54, s54, {XL}\ns_lshl_b32 s55, s5, 10\ns_add_u32 s55, s55, s30\ns_lshl_b32 s30, s35, 1\ns_add_u32 s55, s55, s30\ns_add_u32 s55, s55, {UF}')
    e('v_lshlrev_b32 v6, 2, v0\nv_lshrrev_b32 v7, 2, v0\nv_lshlrev_b32 v7, 3, v7\nv_lshlrev_b32 v4, 7, v0')
    if c.walk: walk(e, 'Lv', 3, 4)
    e.mark('on_Lv')
    lp = e.label('L_lp')
    e(f's_mov_b64 exec, 63\n{lp}:\nbuffer_load_dword v5, v4, s[16:19], s54 offen sc1\ns_waitcnt vmcnt(0)\nv_cmp_ne_u32 vcc, -1, v5\ns_cbranch_vccnz {lp}_d\ns_sleep 4')
    budget(e, lp)
    e(f'{lp}_d:\ns_mov_b64 exec, -1')
    stamp(e, c, 8)
    XM, XV = 44, 56
    ldx = [(f'buffer_load_dwordx2 {vr(XM+2*g,2)}, v7, s[16:19], s54 offen offset:{128*g} sc1', XM + 2 * g, 2) for g in range(6)]
    ldx += [(f'buffer_load_dword v{XV+2*g}, v6, s[16:19], s{52+g//2} offen offset:{2048*(g%2)} sc1\nbuffer_load_dword v{XV+2*g+1}, v6, s[16:19], s{52+g//2} offen offset:{2048*(g%2)+1024} sc1', XV + 2 * g, 2) for g in range(3)]
    xd = [y for x, _, _ in ldx[6:] for y in x.split('\n')]
    gather(e, ldx[:6], 10, extra=xd if c.xone else ())
    lg = e.label('L_gx')
    if not c.xone:
        for x in xd: e(x)
    e(f'v_max3_f32 v4, v{XM}, v{XM+2}, v{XM+4}\nv_max3_f32 v4, v4, v{XM+6}, v{XM+8}\nv_max_f32 v4, v4, v{XM+10}')
    for g in range(6): e(f'v_sub_f32 v{XM+2*g}, v{XM+2*g}, v4')
    for g in range(6): e(f'v_exp_f32 v{XM+2*g}, v{XM+2*g}')
    e(f'v_mul_f32 v5, v{XM}, v{XM+1}')
    for g in range(1, 6): e(f'v_fmac_f32 v5, v{XM+2*g}, v{XM+2*g+1}')
    e('v_rcp_f32 v5, v5\ns_nop 0')
    for g in range(6): e(f'v_mul_f32 v{XM+2*g}, v{XM+2*g}, v5')
    e(f's_branch {lg}_c\n{lg}:')
    for x, _, _ in ldx[6:]: e(x)
    e(f'{lg}_c:\ns_sub_u32 s61, s61, 1\ns_cmp_gt_i32 s61, 0\ns_cselect_b64 s[62:63], -1, 0\ns_waitcnt vmcnt(0)')
    e(f'v_max3_u32 v10, v{XV}, v{XV+1}, v{XV+2}\nv_max3_u32 v10, v10, v{XV+3}, v{XV+4}\nv_max_u32 v10, v10, v{XV+5}')
    e(f'v_cmp_eq_u32 vcc, -1, v10\ns_and_b64 vcc, vcc, s[62:63]\ns_cbranch_scc1 {lg}')
    stamp(e, c, 15)
    for g in range(6):
        e(f'v_lshlrev_b32 v16, 16, v{XV+g}\nv_and_b32 v17, 0xffff0000, v{XV+g}')
        e(f'v_pk_mul_f32 v[18:19], v[16:17], {vr(XM,2)} op_sel_hi:[1,0]' if g == 0 else f'v_pk_fma_f32 v[18:19], v[16:17], {vr(XM+2*g,2)}, v[18:19] op_sel_hi:[1,0,1]')
    e('v_cvt_pk_bf16_f32 v18, v18, v19\nv_min_u32 v18, -2, v18')
    hstore(e, 'buffer_store_dword v18, v6, s[16:19], s55 offen', c.local)
    def finish(skip):
        e(f's_nop 1\nds_write_b128 v9, {vr(D)}\ns_waitcnt lgkmcnt(0)\ns_barrier\ns_cmp_lg_u32 s3, 0\ns_cbranch_scc1 {skip}')
        for w in range(1, 4): e(f'ds_read_b128 {vr(16+4*w)}, v12 offset:{1024*w}')
        for w in (1, 2, 3):
            e(f's_waitcnt lgkmcnt({3-w})\nv_pk_add_f32 {vr(D,2)}, {vr(D,2)}, {vr(16+4*w,2)}\nv_pk_add_f32 {vr(D+2,2)}, {vr(D+2,2)}, {vr(18+4*w,2)}')
    gather(e, frag_loads(XF, 6, 12, 38), 10, lambda k: e(f'v_mfma_f32_16x16x32_bf16 {vr(D)}, {vr(WC+4*k)}, {vr(XF+4*k)}, {vr(D if k else 120)}'))
    stamp(e, c, 9)
    t3 = e.label('L_t3')
    e('s_nop 0'); finish(t3)
    pack_store(e, D, PS, 14, 40, keep=4, local=c.local)
    e('v_lshlrev_b32 v120, 16, v4\nv_and_b32 v121, 0xffff0000, v4\nv_lshlrev_b32 v122, 16, v5\nv_and_b32 v123, 0xffff0000, v5')
    e(f'{t3}:')
    stamp(e, c, 10)
    DD, GR, S1 = 96, 88, 84
    def mm3(k):
        e(f'v_mfma_f32_16x16x32_bf16 {vr(GR)}, {vr(XF+4*k)}, {vr(XF+4*k)}, {vr(GR) if k else 0}')
        e(f'v_mfma_f32_16x16x32_bf16 {vr(S1)}, v[124:127], {vr(XF+4*k)}, {vr(S1) if k else 0}')
        for t in (1, 2, 3, 0): e(f'v_mfma_f32_16x16x32_bf16 {vr(DD+4*t)}, {vr(W1+12*t+4*k)}, {vr(XF+4*k)}, {vr(DD+4*t) if k else 0}')
    gather(e, ld3, 10, mm3)
    stamp(e, c, 11)
    e(f'v_cndmask_b32 v{S1+1}, v{GR}, v{GR+1}, s[28:29]\nv_cndmask_b32 v{S1+1}, v{S1+1}, v{GR+2}, s[32:33]\nv_cndmask_b32 v{S1+1}, v{S1+1}, v{GR+3}, s[50:51]')
    for t in range(1, 4): e(f'ds_write_b128 v{32+t}, {vr(DD+4*t)} offset:{4096+1024*t}')
    e(f'ds_write_b64 v9, {vr(S1,2)} offset:20480\ns_waitcnt lgkmcnt(0)\ns_barrier')
    SS = 16
    for w in range(4): e(f'ds_read_b64 {vr(SS+2*w,2)}, v11 offset:{20480+1024*w}')
    for t in range(1, 4): e(f'ds_read_b128 {vr(DD+4*t)}, v8 offset:{4096+1024*t}')
    e(f's_waitcnt lgkmcnt(3)\nv_pk_add_f32 {vr(SS,2)}, {vr(SS,2)}, {vr(SS+2,2)}\nv_pk_add_f32 {vr(SS+4,2)}, {vr(SS+4,2)}, {vr(SS+6,2)}\nv_pk_add_f32 {vr(SS,2)}, {vr(SS,2)}, {vr(SS+4,2)}')
    ln_finish(e, SS, SS + 1)
    pk = lambda op, d, *xs, mod='': [e(f'v_pk_{op}_f32 {vr(d+i,2)}, ' + ', '.join(vr(x + i, 2) if isinstance(x, int) else x for x in xs) + mod) for i in (0, 2)]
    e('s_waitcnt lgkmcnt(1)')
    pk('fma', DD, CS, vr(SS, 2), DD, mod=' op_sel_hi:[1,0,1] neg_lo:[0,1,0] neg_hi:[0,1,0]')
    pk('add', DD + 4, DD + 4, DD + 8); pk('add', DD, DD, DD + 4)
    e('s_waitcnt lgkmcnt(0)'); pk('add', DD, DD, DD + 12)
    pk('mul', DD, DD, vr(SS, 2), mod=' op_sel:[0,1] op_sel_hi:[1,1]')
    G = DD + 4
    pk('mul', G, DD, DD)
    pk('fma', G, G, 'v[36:37]', 'v[36:37]', mod=' op_sel:[0,0,1] op_sel_hi:[1,0,1]')
    pk('mul', G, G, DD)
    for i in range(4): e(f'v_exp_f32 v{G+i}, v{G+i}')
    pk('add', G, G, '1.0', mod=' op_sel_hi:[1,0]')
    for i in range(4): e(f'v_rcp_f32 v{G+i}, v{G+i}')
    pk('mul', DD, DD, G)
    pack_store(e, DD, PS, 14, 49, local=c.local)
    stamp(e, c, 12)
    gather(e, frag_loads(XF, 12, 12, 24), 10, lambda k: e(f'v_mfma_f32_16x16x32_bf16 {vr(D)}, {vr(W2+4*k)}, {vr(XF+4*k)}, {vr(D if k else 120)}'))
    stamp(e, c, 13)
    e('s_nop 0'); finish('L_fin')
    e(f'v_cvt_pk_bf16_f32 v4, v{D}, v{D+1}\nv_cvt_pk_bf16_f32 v5, v{D+2}, v{D+3}')
    e('buffer_store_dwordx2 v[4:5], v15, s[44:47], s48 offen')
    stamp(e, c, 14)
    e('s_branch L_fin')
    flush_deferred(e)
```

```python
from gen_v14_roles import *

class Cap:
    def __init__(s): s.g = []
    def __call__(s, t): s.g.append(t)
    def take(s, e, n):
        while s.g and n > 0:
            t = s.g.pop(0); e(t); n -= t.count('\n') + 1

def streamer(e, c):
    fine = c.fine
    def cyc(k):
        if fine is not None: e(f's_memtime s[{84+2*k}:{85+2*k}]')
    def cyc_save():
        if fine is None: return
        lb = e.label('L_fs')
        e(f's_cmp_lg_u32 s25, {fine}\ns_cbranch_scc1 {lb}\ns_waitcnt lgkmcnt(0)')
        for k in range(6): e(f's_mov_b32 s{66+2*k}, s{84+2*k}')
        e(f'{lb}:')
    NS = 192; rd0 = c.rd0; ns = 2 * rd0 + 4; nt = ' nt' if not c.hot else ''; ch = 1; Ks = Kp = 2
    cus = c.cu; assert all(v[0] < v[1] < rd0 and 0 < v[2] < rd0 for v in cus) and c.hookx < rd0 and c.nshard <= 8
    def select(pairs):
        t = 's_lshr_b32 s30, s6, 3\ns_and_b32 s30, s30, 3'
        for v, cu in enumerate(cus):
            if v: t += f'\ns_cmp_eq_u32 s30, {v}'
            for reg, fn in pairs: t += f'\ns_mov_b32 s{reg}, {fn(cu)}' if v == 0 else f'\ns_cselect_b32 s{reg}, {fn(cu)}, s{reg}'
        return t
    T0, T1, T2, T3 = 2, 3, 4, 5
    L16, LH2, SW = 6, 7, 10
    e(f's_mul_hi_u32 s30, s35, {-(-(1<<32)//24)}\ns_mul_i32 s30, s30, 24\ns_add_u32 s26, s35, s30\ns_lshl_b32 s26, s26, 1')
    e(f's_and_b32 s4, s3, 1\ns_lshr_b32 s5, s3, 1\ns_mul_i32 s42, s5, 48\ns_add_u32 s42, s42, s4\ns_add_u32 s26, s26, s42\ns_mulk_i32 s26, 6144\nv_lshlrev_b32 v{L16}, 4, v0')
    e(f's_mov_b32 s10, {SZ["feat_hi"]}\ns_mov_b32 s11, 0x20000')
    def common2():
        e(f's_lshl2_add_u32 s27, s35, s3\ns_mulk_i32 s27, 1536\nv_add_u32 v{LH2}, 4096, v{L16}')
        e(f's_mov_b32 s14, {SZ["feat_lo"]}\ns_mov_b32 s15, 0x20000\ns_add_u32 s2, s35, {NH}')
    jump_hi = NS * ch * 12288 + (NS * ch // 24) * 294912 - ch * 12288; jump_lo = (NS - 1) * ch * 6144
    def src_adv(k=1):
        if not c.hot: e(f's_add_u32 s26, s26, {k*(12288+jump_hi)}\ns_add_u32 s27, s27, {k*(6144+jump_lo)}')
    def stage_items(B):
        it = [f'buffer_load_dwordx4 {vr(B+4*j)}, v{L16 if j < 4 else LH2}, s[8:11], s26 offen offset:{1024*(j%4)}{nt}' for j in range(6)]
        it.append(f'buffer_load_dwordx4 {vr(B+24)}, v{L16}, s[12:15], s27 offen{nt}')
        it.append(f's_mov_b32 exec_hi, 0\nbuffer_load_dwordx4 {vr(B+28)}, v{L16}, s[12:15], s27 offen offset:1024{nt}\ns_mov_b32 exec_hi, -1')
        return it
    def setup_sw(e):
        e('s_lshl_b32 s41, s4, 1\ns_lshl_b32 s44, s5, 1\ns_mov_b32 s47, 0x78')
        for b in range(3):
            e(f'v_add_u32 v{T0}, {64*b}, v0\nv_mul_u32_u24 v{T1}, 1366, v{T0}\nv_lshrrev_b32 v{T1}, 16, v{T1}')
            e(f'v_mul_u32_u24 v{T2}, 48, v{T1}\nv_sub_u32 v{T0}, v{T0}, v{T2}\nv_lshlrev_b32 v8, 4, v{T2}')
            if b < 2: e(f'v_add_lshl_u32 v{T2}, v{T1}, s41, 2\nv_or_b32 v{T2}, s44, v{T2}\nv_xor_b32 v{T2}, v{T2}, v{T0}\nv_lshl_add_u32 v{SW+6+b}, v{T2}, 4, v8')
            e(f'v_and_or_b32 v{T3}, v{T1}, 1, s44\nv_lshlrev_b32 v{T3}, 2, v{T3}\nv_xor_b32 v{T0}, v{T0}, v{T3}\nv_and_b32 v{T1}, 2, v{T1}\nv_lshrrev_b32 v{T1}, v{T1}, s47')
            e(f'v_and_b32 v{T2}, 3, v{T1}\nv_xor_b32 v{T2}, v{T2}, v{T0}\nv_lshl_add_u32 v{SW+b}, v{T2}, 4, v8')
            e(f'v_bfe_u32 v{T2}, v{T1}, 4, 2\nv_xor_b32 v{T2}, v{T2}, v{T0}\nv_lshl_add_u32 v{T2}, v{T2}, 4, v8\nv_add_u32 v{SW+3+b}, 3072, v{T2}')
        e(f's_mul_i32 s24, s3, 6144\ns_mul_i32 s34, s3, -4608\ns_add_u32 s34, s34, {24576-5120}\ns_add_u32 s31, s24, {PB}')
    def unstage_items(B, slot, tmp):
        it = [f'v_add_u32 v{tmp+(j&1)}, s{slot if j < 6 else 43}, v{SW+j}\nds_write_b128 v{tmp+(j&1)}, {vr(B+4*j)}' for j in range(7)]
        it[6] = f's_add_u32 s43, s{slot}, s34\ns_add_u32 s43, s43, 5120\n' + it[6]
        it.append(f'v_add_u32 v{tmp+1}, s43, v{SW+7}\ns_mov_b32 exec_hi, 0\nds_write_b128 v{tmp+1}, {vr(B+28)}\ns_mov_b32 exec_hi, -1')
        return it
    def dma_items():
        it = []
        for j in range(6):
            it.append(('s_mov_b32 m0, s24' if j == 0 else 's_add_u32 m0, m0, 1024') + f'\ns_nop 0\nbuffer_load_dwordx4 v{SW+j}, s[8:11], s26 offen{nt} lds')
        it.append(f's_add_u32 m0, m0, s34\ns_nop 0\nbuffer_load_dwordx4 v{SW+6}, s[12:15], s27 offen{nt} lds')
        it.append(f's_add_u32 m0, m0, 1024\ns_mov_b32 exec_hi, 0\nbuffer_load_dwordx4 v{SW+7}, s[12:15], s27 offen{nt} lds\ns_mov_b32 exec_hi, -1')
        return it
    def slot_adv(): e(f's_add_u32 s24, s24, {2*TILE}\ns_cmp_ge_u32 s24, s31\ns_cselect_b32 s30, {PB}, 0\ns_sub_u32 s24, s24, s30')
    def decode(odd):
        if c.hot: e('s_mov_b32 s27, s35')
        elif odd: e('s_add_u32 s27, s27, 1')
        e(f's_mul_hi_u32 s30, s27, {-(-(1<<32)//24)}\ns_mul_i32 s30, s30, 24\ns_add_u32 s26, s27, s30\ns_lshl1_add_u32 s26, s26, s42\ns_mulk_i32 s26, 6144\ns_lshl2_add_u32 s27, s27, s3\ns_mulk_i32 s27, 1536')
    def check(PFL, t, slow):
        e(f'v_or3_b32 v{t}, v{PFL}, v{PFL+1}, v{PFL+2}\nv_or_b32 v{t}, v{t}, v{PFL+3}\nv_and_b32 v{t}, 0x40004000, v{t}\nv_cmp_ne_u32 vcc, 0, v{t}\ns_or_b64 vcc, vcc, s[28:29]\ns_cbranch_scc1 {slow}')
    def first_look(PFL, t, back, tag):
        e(f's_cmp_eq_u64 s[28:29], 0\ns_cbranch_scc1 L_{tag}_go\nv_cmp_ne_u32 s[56:57], 0, v{t}')
        e(f'v_pk_max_u16 v{t}, v{PFL}, v{PFL+1}\nv_pk_max_u16 v{t+1}, v{PFL+2}, v{PFL+3}\nv_pk_max_u16 v{t}, v{t}, v{t+1}\nv_lshlrev_b32 v{t+1}, 16, v{t}\nv_max_u32 v{t}, v{t}, v{t+1}')
        e(f'v_cmp_gt_u32 vcc, 0x2b800000, v{t}\ns_or_b64 vcc, vcc, s[56:57]\ns_cbranch_scc1 L_{tag}_go\ns_mov_b64 s[28:29], 0\ns_branch {back}\nL_{tag}_go:')
    def quant(r): e(f'v_add_f32 v{r}, 4.0, v{r}\nv_mul_f32 v{r}, {fx(1/16)}, v{r}\nv_ceil_f32 v{r}, v{r}\nv_mul_f32 v{r}, {fx(16.0)}, v{r}')
    grp = f's_bfe_u32 s36, s6, 0x10002\ns_mul_i32 s36, s36, 3\ns_and_b32 s30, s6, 3\ns_add_u32 s36, s36, s30\ns_sub_u32 s36, s36, 1\ns_lshr_b32 s37, s6, 3\ns_mul_i32 s38, s36, {32*PS_}\ns_add_u32 s38, s38, {PART}'
    grp += f'\ns_lshl_b32 s39, s36, 7\ns_add_u32 s39, s39, {TKC+1024}'
    nost = c.iso or c.cut in (1, 3, 4, 5, 6, 7)

    PH, PL, PR, MPV, LSUM, ONES, LA = 18, 24, 27, 28, 29, 30, 31
    TMP, VA, VL, PFL, PF, XG, ACC, STB = 32, 40, 88, 100, 104, 120, 128, 224
    A2 = [124, 125, 126, 127, 4, 5, 7, 9, 39]
    pa = lambda tt, i: PH + i if tt == 0 else A2[i]
    pstage = [VA, STB]
    e('s_cmp_lt_u32 s7, 4\ns_cbranch_scc1 L_sw\ns_waitcnt lgkmcnt(0)')
    stamp(e, c, 1)
    if c.pro == 1: common2(); late_consts(e); e('s_branch L_fin')
    g = Cap(); setup_sw(g); nsw = len(g.g)
    late_consts(g)
    g(f'v_lshrrev_b32 v{T0}, 5, v0\nv_bfe_u32 v{T1}, v0, 2, 2')
    g(f'v_bfe_u32 v{T2}, v0, 4, 1\nv_and_b32 v{T3}, 1, v0\nv_lshl_or_b32 v{T2}, v{T2}, 1, v{T3}\nv_lshl_or_b32 v{T2}, v{T1}, 2, v{T2}')
    g(f'v_bfe_u32 v{T3}, v0, 1, 1\nv_lshlrev_b32 v{T3}, 3, v{T3}')
    Q0 = TMP
    g(f'v_lshl_add_u32 v{Q0+3}, v{T0}, 2, v{T1}\nv_mul_u32_u24 v{Q0+3}, 768, v{Q0+3}\nv_add_u32 v{Q0+3}, v{Q0+3}, v{T3}\nv_add_u32 v{Q0+3}, 24576, v{Q0+3}\nv_lshlrev_b32 v{Q0+7}, 1, v{T0}')
    g(f'v_lshrrev_b32 v{Q0+4}, 1, v{T1}\nv_lshlrev_b32 v{Q0+4}, 4, v{Q0+4}\nv_lshl_add_u32 v{Q0+4}, v{T0}, 2, v{Q0+4}\nv_and_or_b32 v{Q0+4}, v{T1}, 1, v{Q0+4}\nv_mul_u32_u24 v{Q0+4}, 768, v{Q0+4}\nv_add_u32 v{Q0+4}, v{Q0+4}, v{T3}')
    g(f'v_lshlrev_b32 v{Q0+5}, 2, v{T0}\ns_mov_b32 s30, 0x78\nv_lshrrev_b32 v{Q0+5}, v{Q0+5}, s30\nv_bfe_u32 v{Q0+6}, v{Q0+5}, 2, 2\nv_and_b32 v{Q0+5}, 3, v{Q0+5}')
    for t in range(3):
        g(f's_mul_i32 s30, s3, 12\ns_add_u32 s30, s30, {4*t}\nv_xor_b32 v{Q0}, s30, v{T2}\nv_xor_b32 v{Q0+1}, v{Q0}, v{Q0+7}\nv_lshl_add_u32 v{PL+t}, v{Q0+1}, 4, v{Q0+3}')
        g(f'v_xor_b32 v{Q0+1}, v{Q0}, v{Q0+5}\nv_lshl_add_u32 v{PH+2*t}, v{Q0+1}, 4, v{Q0+4}\nv_xor_b32 v{Q0+1}, v{Q0}, v{Q0+6}\nv_lshl_add_u32 v{Q0+1}, v{Q0+1}, 4, v{Q0+4}\nv_add_u32 v{PH+2*t+1}, 1536, v{Q0+1}')
    g(f'v_add_u32 v{PR}, {PB}, v{L16}\nv_lshlrev_b32 v1, 3, v0\nv_lshlrev_b32 v8, 7, v0'); late_addr(g, LA)
    for i in range(0, 96, 2): g(f'v_mov_b64 {vr(ACC+i,2)}, 0')
    g(f'v_mov_b32 v{MPV}, {fx(16.0)}\nv_mov_b32 v{LSUM}, 0\nv_mov_b32 v{ONES}, 0x3f803f80')
    g(select([(44, lambda cu: cu[2])]))
    g(f's_mov_b64 s[28:29], -1\ns_mov_b32 s45, 0\ns_mov_b32 s25, 0\ns_mov_b32 s33, {2*TILE}\ns_mov_b32 s49, 0\ns_mov_b32 s58, 2\nv_mov_b32 v{T0}, {TKW}')
    g(grp)
    g(f's_mul_i32 s52, s37, {PS_}\ns_add_u32 s52, s52, s38\ns_lshl_b32 s30, s3, 8\ns_add_u32 s48, s52, s30\ns_add_u32 s48, s48, 49152')
    g(f's_mul_i32 s30, s3, {PS_//4}\ns_add_u32 s50, s52, s30')
    g(f's_mul_i32 s30, s3, 6144\ns_add_u32 s52, s52, s30\ns_add_u32 s53, s52, 4096\ns_add_u32 s54, s52, 24576\ns_add_u32 s55, s52, {24576+4096}')
    g(f's_lshl_b32 s51, s36, 2\ns_add_u32 s51, s51, s3\ns_lshl_b32 s51, s51, 5\ns_add_u32 s51, s51, s37\ns_lshl_b32 s51, s51, 2\ns_add_u32 s51, s51, {FL}')
    total = len(g.g); cnt = 0
    for j in range(Kp + 3):
        if j == Kp:
            while total - len(g.g) < nsw: g.take(e, 1)
        for i, x in enumerate(stage_items(pstage[j]) if j < Kp else dma_items()):
            if j == 0 and i == 4: common2()
            if cnt == c.jp: e('s_barrier')
            e(x); cnt += 1
            if cnt >= 10: g.take(e, c.weave)
        src_adv(1 if j < Kp + 2 else 3)
        if j >= Kp: e(f's_add_u32 s24, s24, {TILE if j < Kp + 2 else 2*TILE}')
    g.take(e, 9999)
    if c.jp == cnt: e('s_barrier')
    assert c.jp <= cnt
    stamp(e, c, 2)
    if c.pro == 2: e('s_waitcnt vmcnt(0)'); stamp(e, c, 3); e('s_branch L_fin')
    rP = [(f'ds_read_b128 {vr(PFL)}, v{PR} offset:4096', 'pfl')] + [(f'ds_read_b128 {vr(PF+4*i)}, v{PR} offset:{1024*i}', ('pf', i)) for i in range(4)]
    trH = lambda tt, t, pg: [f'ds_read_b64_tr_b16 {vr(VA+24*tt+8*t+4*pg+2*u,2)}, v{pa(tt,2*t+u)} offset:{6144*pg}' for u in range(2)]
    trL = lambda tt, t: [f'ds_read_b64_tr_b16 {vr(VL+4*t+2*tt,2)}, v{pa(tt,6+t)}']
    mL = lambda t: f'v_mfma_f32_32x32x16_bf16 {vr(ACC+48+16*t,16)}, {vr(VL+4*t)}, {vr(PFL)}, {vr(ACC+48+16*t,16)}'
    mH = lambda tt, t, pg: f'v_mfma_f32_32x32x16_bf16 {vr(ACC+16*t,16)}, {vr(VA+24*tt+8*t+4*pg)}, {vr(PF+8*tt+4*pg)}, {vr(ACC+16*t,16)}'
    sdelta = f's_cmp_ge_u32 s45, 3\ns_cselect_b32 s32, {-3*TILE}, s33\ns_cselect_b32 s30, -3, 2\ns_bitcmp1_b32 12, s45\ns_cselect_b32 s41, {-3*TILE}, s33\ns_add_u32 s45, s45, s30'
    lsum = '\n'.join(f'v_dot2c_f32_bf16 v{LSUM}, v{PFL+i}, v{ONES}' for i in range(4))
    def tr(xs):
        for x in xs:
            if len(e.ds) >= 14: e(f's_waitcnt lgkmcnt(8)'); e.ds = e.ds[-8:]
            e.dsop(x, 'tr')
    tcnt = lambda pos: c.tpos.count(pos) if c.local and not nost else 0
    touch1 = f's_bfm_b64 exec, {-(-98//len(c.tpos))}, 0\nbuffer_load_dword v38, v8, s[16:19], s50 offen\ns_add_u32 s50, s50, {-(-98//len(c.tpos))*128}\ns_mov_b64 exec, -1'
    xgload = f's_mov_b64 exec, 1\nbuffer_load_dwordx2 {vr(XG,2)}, off, s[16:19], s39 sc1\ns_mov_b64 exec, -1'
    e.mark('on_Lw')
    for i in range(9): e(f'v_add_u32 v{A2[i]}, {TILE}, v{PH+i}')
    for k in range(tcnt(0)): e(touch1)
    e(f's_sub_u32 s40, s24, {TILE}\ns_setprio 1\ns_barrier\ns_waitcnt vmcnt({8+tcnt(0)})\ns_barrier')
    for x, y in zip(dma_items(), unstage_items(pstage[0], 40, TMP)): e(x); e(y)
    src_adv(2)
    if c.tl: e('v_mov_b32 v37, 0')
    e('s_mov_b64 vcc, 0\ns_waitcnt lgkmcnt(0)\ns_branch L_p_rd')
    steps = [(mL(t), None) for t in range(3)] + [(mH(tt, t, pg), ('pf', 2 * tt + pg) if t == 0 else None) for tt in range(2) for t in range(3) for pg in range(2)]
    nd = c.ndefer; assert nd <= 4
    e(f'.p2align 3\nL_p:\ns_waitcnt vmcnt(8)\ns_cmp_eq_u32 s58, 2\ns_cbranch_scc0 L_p_w\nL_p_wb:'); cyc(5); e('s_barrier'); cyc(0)
    e.deferred.append(f'L_p_w:\ns_waitcnt vmcnt({tcnt(1)})\ns_cmp_eq_u32 s58, 1\ns_cbranch_scc1 L_p_wb\ns_waitcnt vmcnt(0)\ns_branch L_p_wb')
    e(f'ds_read_b32 v{T1}, v{T0}\ns_mov_b64 vcc, 0')
    for m, _ in steps[15 - nd:]: e(m)
    e(f's_bitcmp1_b32 {(1 << c.hookx) | (0xffffffff & ~((1 << rd0) - 1))}, s25\ns_cbranch_scc1 L_p_x1\nL_p_go:')
    e('s_cmp_lg_u32 s25, s44\ns_cselect_b32 s58, 2, 0\ns_cbranch_scc0 L_p_rd\ns_mov_b64 vcc, -1')
    dm = dma_items()
    for x in dm[:c.nx[0]]: e(x)
    dm = dm[c.nx[0]:]
    if not dm: src_adv(2)
    e(f'L_p_rd:\ns_setprio {c.xprio}')
    e.ds = ['tk']
    for tt in range(2):
        for t in range(3): tr(trL(tt, t) + trH(tt, t, 0) + trH(tt, t, 1))
        if c.nx[1 + tt]:
            e(f's_cbranch_vccz L_nx{tt}')
            for x in dm[:c.nx[1 + tt]]: e(x)
            dm = dm[c.nx[1 + tt]:]
            if not dm: src_adv(2)
            e(f'L_nx{tt}:')
    assert not dm
    e(sdelta)
    if c.tl: e('s_memrealtime s[92:93]')
    cyc(1)
    e('s_setprio 1'); e.dsall(); e('s_barrier'); cyc(2)
    for x, tag in rP: e.dsop(x, tag)
    if c.tl: e('s_mov_b32 m0, s25\ns_nop 0\nv_writelane_b32 v37, s92, m0')
    e.dswait('pfl')
    check(PFL, TMP, 'L_p_slow')
    e('L_p_back:\ns_cmp_eq_u32 s49, 2\ns_cbranch_scc1 L_p_last'); cyc(3)
    saved = list(e.ds)
    adds = [f'v_add_u32 v{pa(tt,i)}, s{32 if tt == 0 else 41}, v{pa(tt,i)}' for tt in range(2) for i in range(9)]
    un2 = unstage_items(pstage[1], 24, TMP)
    e(lsum)
    e('s_cmp_eq_u32 s25, s44\ns_cselect_b64 vcc, -1, 0')
    for i, (m, w) in enumerate(steps[:15 - nd]):
        if w: e.dswait(w)
        e(m)
        for _ in range(2):
            if adds: e(adds.pop(0))
        if i % 2 == 1 and un2:
            lb = e.label('L_un'); e(f's_cbranch_vccnz {lb}\n{lb}_b:')
            e.deferred.append(f'{lb}:\n{un2.pop(0)}\n{un2.pop(0)}\ns_branch {lb}_b')
    assert not adds and not un2
    slot_adv()
    cyc(4); cyc_save()
    e('s_add_u32 s25, s25, 1\ns_min_u32 s25, s25, 31\ns_branch L_p')
    e(f'L_p_x1:\ns_cmp_eq_u32 s25, {c.hookx}\ns_cbranch_scc1 L_p_x0\ns_cmp_lg_u32 s49, 0\ns_cbranch_scc1 L_p_dry2\ns_waitcnt lgkmcnt(0)\nv_readfirstlane_b32 s27, v{T1}\ns_cmp_lt_i32 s27, 0\ns_cbranch_scc1 L_p_dry')
    decode(0)
    e('s_branch L_p_go')
    e('L_p_dry:')
    for k in range(tcnt(1)): e(touch1)
    if not c.iso: late_wait(e, XG + 2, LA)
    e(f'L_xg:\nv_lshl_add_u64 {vr(XG,2)}, {vr(XG,2)}, 0, 1\nv_add_u32 v{TMP}, v{XG}, v{XG+1}\ns_nop 0\nv_readfirstlane_b32 s30, v{TMP}\ns_mul_i32 s30, s30, 0x01010101\ns_lshr_b32 s30, s30, 24\ns_cmp_ge_u32 s30, 32\ns_cbranch_scc0 L_xgr\nL_xgd:')
    e.deferred.append(f'L_xgr:\ns_sleep 8\n{xgload}\ns_waitcnt vmcnt(0)\ns_sub_u32 s61, s61, 1\ns_cmp_gt_i32 s61, 0\ns_cbranch_scc1 L_xg\ns_branch L_xgd')
    local_flag(e, XG, 32)
    if not c.local: e('s_mov_b32 s59, 0')
    e('s_mov_b32 s49, 1\ns_mov_b32 s58, 1\ns_mov_b64 vcc, 0\ns_branch L_p_rd')
    e('L_p_dry2:')
    for k in range(tcnt(2)): e(touch1)
    e('s_mov_b32 s49, 2\ns_branch L_p_rd')
    e('L_p_x0:'); late_load(e, XG + 2, LA); e(xgload); e('s_branch L_p_go')
    flush_deferred(e)
    e('L_p_last:'); e.ds = saved
    pstore = lambda s: f'buffer_store_dwordx4 {vr(ACC+8*s)}, v{L16}, s[16:19], s{52 + 2*(s//6) + (s%6)//4} offen offset:{1024*((s%6)%4)}'
    mlstore = f's_mov_b32 exec_hi, 0\nbuffer_store_dwordx2 {vr(MPV,2)}, v1, s[16:19], s48 offen%s\ns_mov_b32 exec_hi, -1'
    def cvt(s):
        b = ACC + 8 * s
        for i in range(4): e(f'v_cvt_pk_bf16_f32 v{b+i}, v{b+2*i}, v{b+2*i+1}')
        if not nost: e(pstore(s))
    last = [mL(t) for t in range(3)] + [mH(tt, t, pg) for t in range(3) for tt in range(2) for pg in range(2)]
    todo = {4: [6], 5: [7], 6: [8], 7: [9], 8: [10], 9: [11], 10: [0], 11: [1], 14: [2, 3]}
    for i, m in enumerate(last):
        if i == 3: e.dsall()
        e(m)
        if i in (2, 3):
            for j in (2 * (i - 2), 2 * (i - 2) + 1): e(f'v_lshlrev_b32 v{TMP}, 16, v{PFL+j}\nv_and_b32 v{TMP+1}, 0xffff0000, v{PFL+j}\nv_add_f32 v{LSUM}, v{LSUM}, v{TMP}\nv_add_f32 v{LSUM}, v{LSUM}, v{TMP+1}')
        if i == 12: e(f'v_mov_b32 v{TMP}, v{LSUM}\nv_readfirstlane_b32 s57, v{MPV}\ns_nop 0\nv_permlane32_swap_b32 v{LSUM}, v{TMP}\nv_add_f32 v{LSUM}, v{LSUM}, v{TMP}\nv_cmp_neq_f32 vcc, s57, v{MPV}')
        if i == 13 and not nost: e(mlstore % '')
        for s in todo.get(i, []): cvt(s)
    e(f's_cmp_eq_u64 vcc, 0\ns_cselect_b32 s57, s57, -2\nv_mov_b32 v{TMP}, s57\ns_nop 0')
    cvt(4); cvt(5)
    if fine is None: stamp(e, c, 6)
    if c.tl: e(f's_lshl_b32 s30, s35, 2\ns_add_u32 s30, s30, s3\ns_lshl_b32 s30, s30, 8\ns_add_u32 s30, s30, {DG+0x20000}\nv_lshlrev_b32 v125, 2, v0\nbuffer_store_dword v37, v125, s[16:19], s30 offen')
    e('s_cmp_eq_u32 s59, 0\ns_waitcnt vmcnt(0)\ns_cbranch_scc1 L_p_far')
    stamp(e, c, 7)
    if not nost: e(f's_mov_b64 exec, 1\nbuffer_store_dword v{TMP}, off, s[16:19], s51')
    e('s_branch L_fin')
    e('L_p_far:')
    if not nost:
        for s in range(12): e(pstore(s) + ' sc1')
        e(mlstore % ' sc1')
        e(f's_waitcnt vmcnt(0)\ns_mov_b64 exec, 1\nbuffer_store_dword v{TMP}, off, s[16:19], s51 sc1')
    e('s_branch L_fin')
    e('L_p_slow:'); first_look(PFL, TMP, 'L_p_back', 'pf')
    e(f's_mov_b32 s30, {MXB}\nv_and_b32 v{TMP+2}, 31, v0\nv_lshl_add_u32 v{TMP+2}, v{TMP+2}, 2, s30\ns_waitcnt lgkmcnt(0)\ns_barrier')
    e(f'ds_read2_b32 {vr(TMP,2)}, v{TMP+2} offset0:0 offset1:32\ns_waitcnt lgkmcnt(0)\nv_max_f32 v{TMP}, v{TMP}, v{TMP+1}')
    quant(TMP)
    nf = e.label()
    e(f's_cmp_lg_u64 s[28:29], 0\ns_cbranch_scc1 {nf}')
    e(f'v_max_f32 v{TMP}, 0, v{TMP}\nv_exp_f32 v{TMP+2}, -v{TMP}\ns_nop 0\nv_mul_f32 v{LSUM}, v{LSUM}, v{TMP+2}')
    for i in range(0, 96, 2): e(f'v_pk_mul_f32 {vr(ACC+i,2)}, {vr(ACC+i,2)}, {vr(TMP+2,2)} op_sel_hi:[1,0]')
    e(f'{nf}:\ns_mov_b64 s[28:29], 0\nv_add_f32 v{MPV}, v{MPV}, v{TMP}\ns_barrier')
    for x, _ in rP: e(x)
    e('s_waitcnt lgkmcnt(0)\ns_branch L_p_back')

    SH, SL, PW, PW2, PR2, MXO, TKA, TK, TA = 18, 22, 26, 27, 28, 29, 30, 31, 9
    NEGM, SLO, S0, S1, PFL, PK, FB, NB, TMP, AQ, STG = 32, 36, 40, 44, 48, 52, 56, 8, 88, 96, 192
    e.mark('off_Lw')
    e('L_sw:'); common2(); late_consts(e)
    if c.touch:
        e('s_cmp_lg_u32 s7, 0\ns_cbranch_scc1 L_snt'); code_touch(e, c); e('L_snt:')
    if c.pro == 1: e('s_waitcnt lgkmcnt(0)\ns_branch L_fin')
    src_adv(5)
    setup_sw(e)
    e(f'v_and_b32 v{T0}, 15, v0\nv_lshrrev_b32 v{T1}, 4, v0')
    e(f'v_lshrrev_b32 v{T2}, 2, v{T0}\nv_lshlrev_b32 v{T3}, 1, v{T2}\nv_lshrrev_b32 v{TMP+1}, v{T3}, s47\nv_and_b32 v{TMP+1}, 3, v{TMP+1}')
    e(f'v_and_b32 v{TMP}, 3, v{T0}\nv_lshl_or_b32 v{TMP+1}, v{TMP}, 2, v{TMP+1}\nv_xor_b32 v{TMP+1}, v{TMP+1}, v{T1}\nv_lshlrev_b32 v{TMP+1}, 4, v{TMP+1}')
    e(f'v_lshrrev_b32 v{TMP}, 1, v{TMP}\nv_lshl_add_u32 v{T3}, v{TMP}, 4, v{T3}\nv_and_or_b32 v{T3}, v{T0}, 1, v{T3}\nv_mul_u32_u24 v{T3}, 768, v{T3}\ns_mul_i32 s30, s4, {TILE}\nv_add3_u32 v{SH}, v{T3}, v{TMP+1}, s30')
    e(f'v_and_b32 v{TMP}, 1, v0\nv_lshlrev_b32 v{T3}, 1, v{TMP}\nv_lshl_or_b32 v{T3}, v{T2}, 2, v{T3}\nv_xor_b32 v{T3}, v{T3}, v{T1}\nv_lshlrev_b32 v{T3}, 4, v{T3}')
    e(f'v_lshl_add_u32 v{TMP}, v{TMP}, 2, v{T2}\nv_mul_u32_u24 v{TMP}, 768, v{TMP}\ns_add_u32 s30, s30, 24576\nv_add3_u32 v{SL}, v{T3}, v{TMP}, s30')
    for b in range(1, 4): e(f'v_xor_b32 v{SH+b}, {64*b}, v{SH}\nv_xor_b32 v{SL+b}, {64*b}, v{SL}')
    e(f's_lshl_b32 s30, s5, 4\nv_add_u32 v{T3}, s30, v{T0}')
    e(f'v_lshrrev_b32 v{TMP}, 1, v{T1}\nv_lshlrev_b32 v{TMP}, 9, v{TMP}\nv_lshl_add_u32 v{TMP}, v{T3}, 4, v{TMP}\nv_and_b32 v{TMP+1}, 1, v{T1}\nv_lshl_add_u32 v{TMP}, v{TMP+1}, 3, v{TMP}')
    e(f's_lshl_b32 s30, s4, 11\ns_add_u32 s30, s30, {PB}\nv_add_u32 v{PW}, s30, v{TMP}')
    e(f'v_lshlrev_b32 v{TMP}, 4, v{T3}\nv_lshl_add_u32 v{TMP}, v{T1}, 1, v{TMP}\ns_lshl_b32 s30, s4, 3\ns_add_u32 s30, s30, {PB+4096}\nv_add_u32 v{PW2}, s30, v{TMP}')
    e(f'v_lshlrev_b32 v1, 3, v0\nv_add_u32 v{PR2}, {PB+4096}, v{L16}\nv_lshlrev_b32 v{MXO}, 2, v{T3}\nv_add_u32 v{MXO}, {MXB}, v{MXO}\nv_mov_b32 v{TKA}, {TKW}')
    for i in range(4): e(f'v_mov_b32 v{NEGM+i}, {fx(-16.0)}')
    e(select([(44, lambda cu: (1 << cu[0]) | (1 << cu[1]) | (0xffffffff & ~((1 << (rd0 - 1)) - 1))), (46, lambda cu: cu[0]), (47, lambda cu: cu[1])]))
    e(f's_mov_b64 s[28:29], -1\ns_mov_b32 s45, s4\ns_mov_b32 s25, 0\ns_mov_b32 s33, {2*TILE}\ns_mov_b32 s49, 0')
    e(f's_mul_i32 s52, s5, 24576\ns_add_u32 s52, s52, {AF if not c.iso else 0x1000000}'); soffs(e, 52, 6)
    e(grp)
    e(f's_and_b32 s48, s37, {c.nshard-1}\ns_lshl_b32 s51, s48, 7\ns_add_u32 s51, s51, {TKC}\ns_cmp_eq_u32 s3, 0\ns_cselect_b32 s58, {rd0-2+c.satom}, 64')
    if c.walk: e('s_waitcnt vmcnt(0)'); walk(e, 'Lw', 3, 4)
    e('s_setprio 2\ns_waitcnt lgkmcnt(0)\ns_barrier')
    e.mark('on_Lw')
    stamp(e, c, 1)
    early_load(e, T0, 5)
    for k in range(Ks):
        for x in stage_items(STG + 32 * k): e(x)
        src_adv(1 + k)
    e(f's_waitcnt vmcnt({8*Ks})')
    if not c.iso: early_wait(e, T0, (1,))
    stamp(e, c, 2)
    if c.pro == 2: e('s_branch L_fin')
    aload = frag_loads(AQ, 24, L16, 52)
    e(f's_mul_i32 s30, s3, 12288\ns_add_u32 m0, s30, {3*TILE}\ns_mul_i32 s43, s4, 12288\ns_add_u32 s43, s43, s52')
    for k in range(12):
        e(f'buffer_load_dwordx4 v{L16}, s[16:19], s43 offen offset:{1024*(k%4)} sc1 lds')
        if k % 4 == 3 and k < 11: e('s_add_u32 m0, m0, 4096\ns_add_u32 s43, s43, 4096')
    e(f's_mul_i32 s30, s5, 24576\ns_add_u32 s30, s30, {3*TILE}\nv_add_u32 v{T1}, s30, v{L16}\ns_setprio 0\ns_waitcnt vmcnt(0)\ns_barrier')
    e('s_cmp_lg_u32 s3, 0\ns_cbranch_scc1 L_nxg\ns_getreg_b32 s30, hwreg(HW_REG_XCC_ID, 0, 3)\ns_lshl_b32 s30, s30, 3\ns_lshl_b64 s[40:41], 1, s30')
    e(f'v_mov_b32 v{TMP}, s40\nv_mov_b32 v{TMP+1}, s41\ns_mov_b64 exec, 1\nbuffer_atomic_add_x2 {vr(TMP,2)}, off, s[16:19], s39\ns_mov_b64 exec, -1')
    e('L_nxg:')
    for k in range(24):
        e.dsop(f'ds_read_b128 {vr(AQ+4*k)}, v{T1} offset:{1024*k}', ('a', k))
        if k >= 10:
            kk = k - 10; e.dswait(('a', kk))
            e(f'v_max3_u32 v{T0}, v{AQ+4*kk}, v{AQ+4*kk+1}, v{T0 if kk else AQ}\nv_max3_u32 v{T0}, v{T0}, v{AQ+4*kk+2}, v{AQ+4*kk+3}')
    for kk in range(14, 24):
        e.dswait(('a', kk)); e(f'v_max3_u32 v{T0}, v{AQ+4*kk}, v{AQ+4*kk+1}, v{T0}\nv_max3_u32 v{T0}, v{T0}, v{AQ+4*kk+2}, v{AQ+4*kk+3}')
    e(f'v_cmp_eq_u32 vcc, -1, v{T0}\ns_cbranch_vccnz L_aretry\nL_aok:')
    stamp(e, c, 4)
    def sread(k):
        ks = k % 12; base, off = (SL, 0) if k < 12 else (SH, 6144 * (k // 12 - 1))
        e.dsop(f'ds_read_b128 {vr(FB+4*(k%NB))}, v{base+(ks&3)} offset:{off+256*(ks>>2)}', ('s', k))
    def exp_items(S, pg):
        it = [f'v_exp_f32 v{TMP+i}, v{S+i}' for i in range(4)]
        it += [f'v_add_f32 v{TMP+4}, v{TMP}, v{TMP+1}', f'v_add_f32 v{TMP+5}, v{TMP+2}, v{TMP+3}', f'v_cvt_pk_bf16_f32 v{PK}, v{TMP}, v{TMP+1}', f'v_cvt_pk_bf16_f32 v{PK+1}, v{TMP+2}, v{TMP+3}']
        it += [f'v_add_f32 v{TMP+4}, v{TMP+4}, v{TMP+5}', f'ds_write_b64 v{PW}, {vr(PK,2)} offset:{1024*pg}', f'v_cvt_pk_bf16_f32 v{PK+2}, v{TMP+4}, v{TMP+4}', f'ds_write_b16 v{PW2}, v{PK+2} offset:{512*pg}']
        return it
    put = lambda x: e.dsop(x, 'w') if x.startswith('ds_') else e(x)
    stamp(e, c, 3)
    if c.diag: e('s_memtime s[86:87]')
    e('.p2align 3\nL_s:\ns_barrier')
    if c.diag and fine is None: e(f's_memrealtime s[{64+2*5}:{65+2*5}]')
    cyc(0)
    for k in range(NB): sread(k)
    e.dsop(f'ds_read_b32 v{TK}, v{TKA}', 'tk')
    fill = {
            9: ['s_add_u32 s45, s45, 2'], 11: [f's_cmp_ge_u32 s45, {NSLOT}\ns_cselect_b32 s32, {-3*TILE}, s33\ns_cselect_b32 s30, {NSLOT}, 0'], 12: ['s_sub_u32 s45, s45, s30']}
    for b in range(4): fill[13 + 2 * b] = [f'v_add_u32 v{SL+b}, s32, v{SL+b}']
    for i in range(4): fill[16 + 2 * i] = [f'v_mov_b32 v{S1+i}, v{SLO+1}']
    it = [f'v_add_f32 v{S0+i}, v{S0+i}, v{SLO}' for i in range(4)] + exp_items(S0, 0)
    for k, cntk in zip(range(27, 36), (1, 3, 2, 2, 2, 2, 2, 2, 0)):
        fill[k] = it[:cntk]; it = it[cntk:]
    assert not it
    for k in range(36):
        if k % c.wstep == 0: e.dswait(('s', min(k + c.wstep - 1, 35)))
        D, C, a = (SLO, vr(NEGM), 12 + k) if k < 12 else ((S0, 0, k - 12) if k < 24 else (S1, vr(S1), k - 24))
        e(f'v_mfma_f32_16x16x32_bf16 {vr(D)}, {vr(FB+4*(k%NB))}, {vr(AQ+4*a)}, {vr(D) if k % 12 else C}')
        if k == 17: cyc(2)
        if k + NB < 36: sread(k + NB)
        for x in fill.get(k, []): put(x)
    cyc(3)
    for b in range(4): e(f'v_add_u32 v{SH+b}, s32, v{SH+b}')
    e('s_nop 3')
    for x in exp_items(S1, 1): e(x)
    cyc(4)
    e.dsall()
    e(f's_barrier\nds_read_b128 {vr(PFL)}, v{PR2}')
    if fine is None: stamp(e, c, 6)
    if c.diag and fine is None: e('s_memtime s[88:89]')
    X, MLR = AQ, AQ + 64
    SEL, D, VX, VOOB, VF, VFA, VH, VH8, VQ16, VM, U0, U1, VO = 192, 196, 212, 213, 214, 215, 216, 217, 218, 219, 220, 221, 222
    flagload = f's_mov_b32 exec_hi, 0\nbuffer_load_dword v{VF}, v{VFA}, s[16:19], s40 offen sc1\ns_mov_b32 exec_hi, -1'
    def t1_setup():
        e(f'v_lshlrev_b32 v{VFA}, 2, v0\ns_bfe_u32 s41, s37, 0x20002\ns_lshl_b32 s40, s36, 2\ns_add_u32 s40, s40, s41\ns_lshl_b32 s40, s40, 7\ns_add_u32 s40, s40, {FL}')
        e(f'v_lshrrev_b32 v{VH}, 5, v0\nv_and_b32 v{U0}, 31, v0\nv_lshlrev_b32 v{VQ16}, 4, v{U0}\ns_mov_b32 s43, {PS_}\nv_mad_u32_u24 v{VX}, v{VH}, s43, v{VQ16}\nv_lshlrev_b32 v{U0}, 3, v{U0}\nv_mad_u32_u24 v{VM}, v{VH}, s43, v{U0}')
        e(f's_lshl_b32 s41, s41, 8\ns_add_u32 s41, s41, s38\ns_add_u32 s41, s41, 49152')
        e(f's_mul_i32 s42, s37, 3\ns_add_u32 s42, s42, s3\ns_lshl_b32 s27, s42, 9\ns_add_u32 s27, s27, s38\nv_bfrev_b32 v{VOOB}, 1\nv_lshlrev_b32 v{VH8}, 3, v{VH}')
        e(f'v_and_b32 v{U0}, 1, v0\nv_lshlrev_b32 v{U0}, 4, v{U0}\ns_movk_i32 s30, 0x3f80\nv_lshlrev_b32 v{U0}, v{U0}, s30\nv_bfe_u32 v{U1}, v0, 1, 4')
        for d in range(4): e(f'v_cmp_eq_u32 vcc, {(d & 1) + 4 * (d >> 1)}, v{U1}\nv_mov_b64 {vr(D+4*d,2)}, 0\nv_mov_b64 {vr(D+4*d+2,2)}, 0\nv_cndmask_b32 v{SEL+d}, 0, v{U0}, vcc')
        e(f's_lshr_b32 s26, s42, 2\ns_mul_i32 s26, s26, 6\ns_add_u32 s26, s26, s36\ns_lshl_b32 s26, s26, 2\ns_and_b32 s30, s42, 3\ns_add_u32 s26, s26, s30\ns_lshl_b32 s26, s26, 8\ns_add_u32 s26, s26, {XU}')
        e(f'v_bfe_u32 v{VO}, v0, 4, 1\nv_mul_u32_u24 v{VO}, {147456-256}, v{VO}\nv_add_u32 v{VO}, v{VO}, v{VQ16}')
    e('s_waitcnt lgkmcnt(0)')
    check(PFL, TMP, 'L_s_slow')
    e('L_s_back:\ns_bitcmp1_b32 s44, s25\ns_cbranch_scc1 L_s_hook\nL_s_dma:')
    for x in dma_items(): e(x)
    src_adv(2)
    e(f's_waitcnt vmcnt(8)\nL_s_next:'); slot_adv()
    e(f's_cmp_ge_u32 s25, s58\ns_cbranch_scc1 L_s_post\nL_s_postb:'); cyc(5); cyc_save()
    e('s_add_u32 s25, s25, 1\ns_min_u32 s25, s25, 31\ns_branch L_s')
    e('L_s_last:')
    if c.diag: e('s_add_u32 s92, s25, 1\ns_lshl_b32 s92, s92, 1')
    if c.iso or c.cut: e('s_branch L_fin')
    e('s_mov_b32 s44, -1\ns_cmp_eq_u32 s3, 3\ns_cbranch_scc1 L_t1l\ns_branch L_t1')
    mm = lambda r: f'v_mfma_f32_32x32x16_bf16 {vr(D,16)}, {vr(SEL)}, {vr(r)}, {vr(D,16)}'
    e(f'L_t1b:\ns_andn2_b32 s44, s44, s46\nv_lshrrev_b32 v{U1}, v{VH}, s46')
    for i in range(16):
        e(f'v_and_b32 v{U0}, {1 << (2*i)}, v{U1}\nv_cmp_ne_u32 vcc, 0, v{U0}\ns_add_u32 s30, s27, {2*PS_*i}\ns_nop 0\nv_cndmask_b32 v{U0}, v{VOOB}, v{VX}, vcc\nbuffer_load_dwordx4 {vr(X+4*i)}, v{U0}, s[16:19], s30 offen sc1')
    for i in range(16):
        e(f's_waitcnt vmcnt({15-i+(i > c.bsamp)})\n' + mm(X + 4 * i))
        if i == c.bsamp: e(flagload)
    e('s_cmp_eq_u32 s44, 0\ns_cbranch_scc1 L_t1done\ns_branch L_t1w')
    e(f'L_t1s:\ns_sleep {c.t1sleep}\nL_t1:\n{flagload}\ns_sub_u32 s61, s61, 1\ns_cmp_gt_i32 s61, 0\ns_cbranch_scc0 L_t1done')
    e(f'L_t1w:\ns_waitcnt vmcnt(0)\nv_cmp_ne_u32 vcc, -1, v{VF}\ns_and_b32 s46, vcc_lo, s44\ns_cbranch_scc0 L_t1s')
    stamp(e, c, 9)
    if c.diag: e('s_bcnt1_i32_b32 s94, s46')
    e(f's_bcnt1_i32_b32 s30, s46\ns_cmp_gt_u32 s30, {2*c.ndyn}\ns_cbranch_scc1 L_t1b\ns_andn2_b32 s44, s44, s46')
    for r in range(c.ndyn):
        e('s_ff1_i32_b32 s48, s46\ns_bitset0_b32 s46, s48\ns_ff1_i32_b32 s30, s46\ns_lshl_b32 s47, s30, 8\ns_or_b32 s48, s48, s47\ns_lshl_b64 s[56:57], 1, s30\ns_andn2_b32 s46, s46, s56')
        e(f'v_bfe_u32 v{U0}, s48, v{VH8}, 8\nv_cmp_gt_u32 vcc, 32, v{U0}\nv_mad_u32_u24 v{U0}, v{U0}, s43, v{VQ16}\ns_cmp_eq_u32 s46, 0\nv_cndmask_b32 v{U0}, v{VOOB}, v{U0}, vcc')
        e(f'buffer_load_dwordx4 {vr(X+4*r)}, v{U0}, s[16:19], s27 offen sc1')
        if r < c.ndyn - 1: e(f's_cbranch_scc1 L_t1m{r}')
    for r in range(c.ndyn - 1, -1, -1): e(f'L_t1m{r}:\ns_waitcnt vmcnt(0)\n{mm(X+4*r)}')
    e('s_cmp_lg_u32 s44, 0\ns_cbranch_scc1 L_t1\nL_t1done:')
    stamp(e, c, 8)
    uni = f'v_readfirstlane_b32 s47, v{VF}\ns_nop 1\nv_cmp_ne_u32 vcc, s47, v{VF}\ns_cmp_eq_u32 s47, -2\ns_cselect_b32 s30, 1, 0\ns_or_b32 s30, s30, vcc_lo'
    e(f's_waitcnt vmcnt(0)\n{uni}\ns_cbranch_scc1 L_t1gen\ns_nop 1\nL_t1back:')
    for i in range(4): e(f'v_cvt_pk_bf16_f32 v{D+i}, v{D+2*i}, v{D+2*i+1}')
    for i in range(4): e(f'v_min_u32 v{D+i}, -2, v{D+i}')
    e(f's_mov_b32 exec_hi, 0\nbuffer_store_dwordx4 {vr(D)}, v{VO}, s[16:19], s26 offen sc1')
    stamp(e, c, 10)
    e('L_fin:')
    dump(e, c)
    e('L_end:\ns_endpgm')
    mll = [f's_add_u32 s30, s41, {2*PS_*i}\nbuffer_load_dwordx2 {vr(MLR+2*i,2)}, v{VM}, s[16:19], s30 offen sc1' for i in range(16)]
    def weights(M, L):
        e(f'v_max_f32 v{M}, v{MLR}, v{MLR+2}')
        for i in range(2, 16, 2): e(f'v_max3_f32 v{M}, v{M}, v{MLR+2*i}, v{MLR+2*i+2}')
        e(f'v_mov_b32 v{L}, v{M}\ns_nop 1\nv_permlane32_swap_b32 v{M}, v{L}\nv_max_f32 v{M}, v{M}, v{L}')
        for i in range(16): e(f'v_sub_f32 v{MLR+2*i}, v{MLR+2*i}, v{M}')
        for i in range(16): e(f'v_exp_f32 v{MLR+2*i}, v{MLR+2*i}')
    e(f'L_t1l:\ns_cmp_lg_u32 s37, 0\ns_cbranch_scc1 L_fin')
    e(f'v_bfe_u32 v{T0}, v0, 4, 1\nv_mul_u32_u24 v{T0}, {768-128}, v{T0}\nv_add_u32 v{T0}, v{T0}, v1\ns_lshl_b32 s26, s36, 7\ns_add_u32 s26, s26, {XL}')
    e(f'L_t1lw:\n{flagload}\ns_waitcnt vmcnt(0)\nv_cmp_eq_u32 vcc, -1, v{VF}\ns_cmp_eq_u32 vcc_lo, 0\ns_cbranch_scc1 L_t1ld'); budget(e, 'L_t1lw')
    e('L_t1ld:')
    for x in mll: e(x)
    e(f'{uni}\ns_cbranch_scc1 L_t1lg\nv_mov_b32 v{U0}, s47\ns_waitcnt vmcnt(14)\nv_add_f32 v{U1}, v{MLR+1}, v{MLR+3}')
    for i in range(2, 16): e(f's_waitcnt vmcnt({15-i})\nv_add_f32 v{U1}, v{U1}, v{MLR+2*i+1}')
    e(f'L_t1lb:\nv_mov_b32 v{T1}, v{U1}\nv_min_u32 v{U0}, -2, v{U0}\ns_nop 0\nv_permlane32_swap_b32 v{U1}, v{T1}\nv_add_f32 v{U1}, v{U1}, v{T1}\nv_min_u32 v{U1}, -2, v{U1}')
    e(f's_mov_b32 exec_hi, 0\nbuffer_store_dwordx2 {vr(U0,2)}, v{T0}, s[16:19], s26 offen sc1')
    stamp(e, c, 10)
    e('s_branch L_fin')
    e.mark('off_Lw')
    e('L_t1lg:\ns_waitcnt vmcnt(0)')
    weights(U0, U1)
    e(f'v_mul_f32 v{U1}, v{MLR}, v{MLR+1}')
    for i in range(1, 16): e(f'v_fmac_f32 v{U1}, v{MLR+2*i}, v{MLR+2*i+1}')
    e('s_branch L_t1lb')
    e('L_t1gen:')
    for x in mll: e(x)
    for i in range(16): e(f's_add_u32 s30, s27, {2*PS_*i}\nbuffer_load_dwordx4 {vr(X+4*i)}, v{VX}, s[16:19], s30 offen sc1')
    e('s_waitcnt vmcnt(16)')
    weights(U0, U1)
    T = 32
    e('s_waitcnt vmcnt(0)')
    for i in range(16):
        for d in range(4): e(f'v_lshlrev_b32 v{T+2*d}, 16, v{X+4*i+d}\nv_and_b32 v{T+2*d+1}, 0xffff0000, v{X+4*i+d}')
        for d in range(4):
            if i == 0: e(f'v_pk_mul_f32 {vr(D+2*d,2)}, {vr(T+2*d,2)}, {vr(MLR,2)} op_sel_hi:[1,0]')
            else: e(f'v_pk_fma_f32 {vr(D+2*d,2)}, {vr(T+2*d,2)}, {vr(MLR+2*i,2)}, {vr(D+2*d,2)} op_sel_hi:[1,0,1]')
    e('s_nop 1')
    for k in range(8): e(f'v_permlane32_swap_b32 v{D+k}, v{T+k}')
    for k in range(8): e(f'v_add_f32 v{D+k}, v{D+k}, v{T+k}')
    e('s_branch L_t1back')
    e.mark('on_Lw')
    npair = (4608 - NS * ns) // c.nshard // 2
    dyn = c.dyn and not c.iso
    sat = c.satom and dyn
    e(f'L_s_hook:\ns_cmp_lt_u32 s25, {rd0}\ns_cbranch_scc1 L_hd\ns_cmp_lg_u32 s49, 0\ns_cbranch_scc1 L_s_last')
    e(f'v_readfirstlane_b32 s27, v{TK}\ns_cmp_lt_i32 s27, 0\ns_cbranch_scc1 L_s_dry')
    decode(1)
    e('L_hd:')
    if sat: e('s_cmp_lt_u32 s25, s58\ns_cbranch_scc1 L_h1\ns_mov_b32 s50, 1')
    if sat and c.alat: e('s_memrealtime s[78:79]\ns_waitcnt lgkmcnt(0)\ns_atomic_add s50, s[16:17], s51 glc\ns_waitcnt lgkmcnt(0)\ns_memrealtime s[90:91]')
    elif sat: e('s_atomic_add s50, s[16:17], s51 glc')
    e('L_h1:')
    for k in range(Ks):
        e(f's_cmp_lg_u32 s25, s{46+k}\ns_cbranch_scc1 ' + (f'L_hu{k}' if k < Ks - 1 else 'L_s_dma'))
        for x in unstage_items(STG + 32 * k, 24, TMP + 6): e(x)
        e(f's_waitcnt vmcnt(0) lgkmcnt(0)\ns_branch L_s_next\nL_hu{k}:')
    e('L_s_dry:\ns_mov_b32 s49, 1\ns_mov_b32 s58, 64')
    t1_setup()
    e('s_waitcnt vmcnt(0)\ns_branch L_s_next')
    e(f'L_s_post:\ns_cmp_eq_u32 s25, {rd0-2}\ns_cbranch_scc1 L_draw')
    if dyn: e(('s_waitcnt lgkmcnt(0)\ns_mov_b32 s30, s50' if sat else f'v_readfirstlane_b32 s30, v{TA}') + f'\ns_add_u32 s30, s30, 1\ns_mul_i32 s56, s30, {c.nshard}\ns_add_u32 s56, s56, s48\ns_lshl1_add_u32 s56, s56, {NS*ns}\ns_cmp_lt_u32 s30, {npair}\ns_cselect_b32 s56, s56, -1')
    else: e(f's_sub_u32 s30, s25, {rd0-1}\ns_mul_i32 s56, s30, {NS}\ns_add_u32 s56, s56, s35\ns_lshl1_add_u32 s56, s56, {NS*ns}\ns_cmp_lt_u32 s25, 9\ns_cselect_b32 s56, s56, -1')
    e(f'v_mov_b32 v{TMP+6}, s56\nds_write_b32 v{TKA}, v{TMP+6}\ns_waitcnt lgkmcnt(0)\ns_cbranch_scc0 L_s_postb\nL_draw:')
    if dyn and not sat: e(f'v_mov_b32 v{TA}, 1\ns_mov_b64 exec, 1\nbuffer_atomic_add v{TA}, off, s[16:19], s51 sc0\ns_mov_b64 exec, -1')
    e('s_branch L_s_postb')
    flush_deferred(e)
    e(f'L_aretry:\nv_min_u32 v{T1}, 47, v0\nv_lshlrev_b32 v{T1}, 9, v{T1}\nL_aw:\ns_sub_u32 s61, s61, 1\ns_cmp_gt_i32 s61, 0\ns_cbranch_scc0 L_aok')
    e(f'buffer_load_dword v{T0}, v{T1}, s[16:19], s52 offen sc1\ns_waitcnt vmcnt(0)\nv_cmp_eq_u32 vcc, -1, v{T0}\ns_cbranch_vccz L_aload\ns_sleep 4\ns_branch L_aw')
    e('L_aload:')
    for x, _, _ in aload: e(x)
    validate(e, aload, T0)
    e('s_cbranch_vccnz L_aretry\ns_branch L_aok')
    e('L_s_slow:'); first_look(PFL, TMP, 'L_s_back', 'sf')
    e(f'v_max3_f32 v{TMP}, v{S0}, v{S0+1}, v{S0+2}\nv_max3_f32 v{TMP}, v{TMP}, v{S0+3}, v{S1}\nv_max3_f32 v{TMP}, v{TMP}, v{S1+1}, v{S1+2}\nv_max_f32 v{TMP}, v{TMP}, v{S1+3}')
    xsum16_32(e, TMP, TMP + 1, 'v_max_f32')
    e(f's_lshl_b32 s30, s4, 7\nv_add_u32 v{TMP+3}, s30, v{MXO}')
    e(f'ds_write_b32 v{TMP+3}, v{TMP}\ns_waitcnt lgkmcnt(0)\ns_barrier')
    e(f'ds_read2_b32 {vr(TMP,2)}, v{MXO} offset0:0 offset1:32\ns_waitcnt lgkmcnt(0)\nv_max_f32 v{TMP}, v{TMP}, v{TMP+1}')
    quant(TMP)
    e(f'v_max_f32 v{TMP+1}, 0, v{TMP}\nv_cndmask_b32 v{TMP}, v{TMP+1}, v{TMP}, s[28:29]\ns_mov_b64 s[28:29], 0')
    for i in range(4): e(f'v_sub_f32 v{NEGM+i}, v{NEGM+i}, v{TMP}\nv_sub_f32 v{S0+i}, v{S0+i}, v{TMP}\nv_sub_f32 v{S1+i}, v{S1+i}, v{TMP}')
    for x in exp_items(S0, 0) + exp_items(S1, 1): e(x)
    e('s_waitcnt lgkmcnt(0)\ns_barrier\ns_branch L_s_back')

def code_touch(e, c):
    nl = c.code_bytes // 128 // 32; lb = e.label('L_pc')
    e(f's_getpc_b64 s[24:25]\n{lb}:\ns_sub_u32 s24, s24, {lb}-{KNAME}\ns_subb_u32 s25, s25, 0\ns_lshr_b32 s30, s6, 3\ns_mul_i32 s30, s30, {nl*128}')
    e(f'v_lshl_add_u32 v2, v0, 7, s30\ns_mov_b64 exec, {(1<<nl)-1}\nglobal_load_dword v55, v2, s[24:25]\ns_mov_b64 exec, -1')

def helper_extra(e, c):
    e('L_extra:'); late_consts(e); e('s_waitcnt lgkmcnt(0)')
    if c.touch:
        e('s_cmp_lg_u32 s7, 7\ns_cbranch_scc1 L_x6'); code_touch(e, c); e('s_endpgm\nL_x6:')
    e('s_cmp_ge_u32 s2, 48\ns_cbranch_scc1 L_end\ns_cmp_lg_u32 s7, 6\ns_cbranch_scc1 L_end')
    e('s_getreg_b32 s30, hwreg(HW_REG_XCC_ID, 0, 4)\ns_cmp_ge_u32 s30, 8\ns_cbranch_scc1 L_end\ns_lshl_b32 s30, s30, 3\ns_lshl_b64 s[32:33], 1, s30')
    e(f's_and_b32 s30, s2, 1\ns_lshl_b32 s30, s30, 7\nv_mov_b32 v2, s32\nv_mov_b32 v3, s33\ns_mov_b64 exec, 1\nbuffer_atomic_add_x2 v[2:3], off, s[20:23], s30 offset:8\ns_endpgm')

def gen(c):
    e = E()
    nwg = 256
    head = f'; @launch grid=({nwg},1,1) block=(512,1,1) lds={LDS_BYTES}\n.amdgcn_target "amdgcn-amd-amdhsa--gfx950"\n.text\n'
    kstart(e, KNAME)
    stamp(e, c, 0)
    e(f'v_lshrrev_b32 v1, 6, v0\nv_and_b32 v0, 63, v0\nv_readfirstlane_b32 s7, v1')
    for r, nm in ((8, 'feat_hi'), (98, 'q'), (12, 'feat_lo'), (16, 'ws'), (20, 'dbg')): e(f's_load_dwordx2 s[{r}:{r+1}], s[0:1], {KA[nm]}')
    e(f's_cmpk_ge_u32 s2, {nwg}\ns_cbranch_scc1 L_end')
    if c.rot: e(f's_xor_b32 s2, s2, {c.rot}')
    e('s_mov_b32 s6, s2\ns_and_b32 s3, s7, 3')
    e('s_lshr_b32 s2, s2, 2\ns_and_b32 s33, s6, 3\ns_cbranch_scc0 L_hent')
    e('s_mul_i32 s35, s2, 3\ns_add_u32 s35, s35, s33\ns_sub_u32 s35, s35, 1')
    e(f's_bitcmp1_b32 {c.smask}, s7\ns_cbranch_scc0 L_strm\ns_mov_b32 s31, s7\ns_mov_b32 s30, s35\ns_mov_b32 s32, 12\ns_branch L_tch')
    if c.sptouch: e('L_hent:\ns_bitcmp1_b32 48, s7\ns_cbranch_scc0 L_hq')
    else: e('L_hent:\ns_cmp_ge_u32 s2, 60\ns_cbranch_scc1 L_spare\ns_cmp_lt_u32 s7, 4\ns_cbranch_scc1 L_hq\ns_cmp_gt_u32 s7, 5\ns_cbranch_scc1 L_extra')
    e('s_mov_b32 s31, 2\ns_and_b32 s30, s2, 62\ns_add_u32 s30, s30, s3\ns_mov_b32 s32, 36')
    e('L_tch:\ns_lshl3_add_u32 s34, s31, 24\ns_load_dwordx2 s[96:97], s[0:1], s34')
    e('s_mul_i32 s30, s30, s32\nv_add_u32 v2, s30, v0\nv_mul_u32_u24 v3, 0xaaab, v2\nv_lshrrev_b32 v3, 18, v3')
    e('s_cmp_eq_u32 s31, 3\ns_cselect_b32 s30, 6, 0\nv_mad_u32_u24 v2, v3, s30, v2\nv_lshlrev_b32 v2, 7, v2')
    e('s_bfm_b64 exec, s32, 0\ns_waitcnt lgkmcnt(0)\nglobal_load_dword v55, v2, s[96:97]\ns_mov_b64 exec, -1\ns_cmp_lg_u32 s33, 0\ns_cbranch_scc1 L_strm')
    if not c.sptouch: e('s_endpgm')
    e('L_hq:')
    if c.sptouch: e('s_cmp_ge_u32 s2, 60\ns_cbranch_scc1 L_spare\ns_cmp_ge_u32 s7, 4\ns_cbranch_scc1 L_extra')
    e('s_lshr_b32 s30, s2, 1\ns_lshl2_add_u32 s30, s30, s7\ns_min_u32 s30, s30, 0x5f\ns_bitcmp1_b32 s2, 0\ns_cselect_b32 s31, 0x60, 0\ns_add_u32 s30, s30, s31\ns_lshl_b32 s30, s30, 7\nv_mov_b32 v3, s30')
    e('s_mov_b64 exec, 1\ns_waitcnt lgkmcnt(0)\nglobal_load_dword v255, v3, s[98:99]\ns_mov_b64 exec, -1')
    e('s_cmp_lt_u32 s2, 48\ns_cbranch_scc1 L_tail\ns_branch L_pf\nL_strm:')
    streamer(e, c)
    e.mark('off_Lw')
    role_spare(e, c); helper_extra(e, c); role_pf(e, c); role_tail(e, c)
    if c.walk:
        for nm in ('Lw', 'Lv'): e.place_pads(nm, 4, c.walk)
    e(f'.fill ({c.code_bytes} - (. - {KNAME})) / 4, 4, 0xbf800000\ns_endpgm\ns_endpgm')
    return head + e.text() + '.section .rodata,"a"\n' + kdesc(KNAME, 256, 100, 256)

if __name__ == '__main__':
    c = Cfg()
    for a in sys.argv[2:]:
        k, v = a.split('='); setattr(c, k, eval(v))
    t = gen(c)
    open(sys.argv[1], 'w').write(t)
    print(hazard.check(t), 'hazards')
```

```python
from gen_v14_base import *

def wait_a(e):
    lw = e.label('L_aw')
    e(f's_cmp_lg_u32 s7, 0\ns_cbranch_scc1 {lw}_d\ns_sleep 40'); early_load(e, 12, 4); e('s_waitcnt vmcnt(0)'); early_wait(e, 12, (1,))
    e(f's_mul_i32 s30, s4, 24576\ns_add_u32 s30, s30, {AF}\ns_mov_b64 exec, 1\n{lw}:\ns_sleep 8\nbuffer_load_dword v9, off, s[16:19], s30 offset:256 sc1\ns_waitcnt vmcnt(0)\nv_cmp_ne_u32 vcc, -1, v9\ns_cbranch_vccnz {lw}_x')
    budget(e, lw)
    e(f'{lw}_x:\ns_mov_b64 exec, -1\n{lw}_d:\ns_barrier')

def role_pf(e, c):
    e('L_pf:'); late_consts(e); e('s_waitcnt lgkmcnt(0)')
    if c.iso: e('s_endpgm'); return
    if c.pflat:
        load_srds(e, [(8, 'lat_hi'), (12, 'lat_lo')])
        e('s_sub_u32 s5, s2, 48\ns_lshr_b32 s5, s5, 1\ns_lshl_b32 s5, s5, 1\ns_and_b32 s30, s3, 1\ns_add_u32 s5, s5, s30\ns_mul_i32 s5, s5, 24576\nv_lshlrev_b32 v2, 7, v0')
        e('s_waitcnt lgkmcnt(0) vmcnt(0)\ns_cmp_ge_u32 s3, 2\ns_cselect_b64 s[8:9], s[12:13], s[8:9]')
        for k in range(3): e(f's_add_u32 s30, s5, {8192*k}\nbuffer_load_dword v3, v2, s[8:11], s30 offen')
    if c.cut in (3, 6) or c.pro or not c.pf: e('s_endpgm'); return
    load_srds(e, [(8, 'w1'), (12, 'w2')])
    e('s_and_b32 s4, s2, 1\ns_sub_u32 s5, s2, 48\ns_lshr_b32 s5, s5, 1\ns_lshl_b32 s5, s5, 2\ns_add_u32 s5, s5, s3\ns_mul_i32 s5, s5, 49152\nv_lshlrev_b32 v2, 7, v0')
    wait_a(e)
    e('s_waitcnt lgkmcnt(0)\ns_cmp_eq_u32 s4, 0\ns_cselect_b64 s[24:25], s[8:9], s[12:13]\ns_cselect_b64 s[8:9], s[12:13], s[8:9]')
    for m in range(2):
        for k in range(6): e(f's_add_u32 s30, s5, {8192*k}\nbuffer_load_dword v3, v2, s[8:11], s30 offen')
        if m == 0: e('s_mov_b64 s[8:9], s[24:25]')
    e('s_endpgm')
    flush_deferred(e)

def role_spare(e, c):
    e('L_spare:'); late_consts(e)
    if c.iso: e('s_waitcnt lgkmcnt(0)\ns_branch L_fin')
    e('s_and_b32 s4, s2, 1\ns_bfe_u32 s5, s2, 0x10001')
    e('v_lshlrev_b32 v2, 4, v0\nv_mov_b64 v[4:5], -1\nv_mov_b64 v[6:7], -1\nv_mov_b32 v8, 1')
    e(f's_mul_i32 s36, s4, 12288\ns_lshl_b32 s36, s36, s5\ns_mul_i32 s30, s7, 3072\ns_add_u32 s36, s36, s30')
    e(f's_cmp_ge_u32 s7, 4\ns_cselect_b32 s30, {TF-12288}, 0\ns_cmp_lg_u32 s5, 0\ns_cselect_b32 s30, {AF}, s30\ns_add_u32 s36, s36, s30\ns_waitcnt lgkmcnt(0)')
    for k in range(3): e(f'buffer_store_dwordx4 v[4:7], v2, s[16:19], s36 offen offset:{1024*k} sc1')
    e(f's_lshl3_add_u32 s30, s2, s7\ns_cmp_lg_u32 s30, {62*8+7}\ns_cbranch_scc1 L_ntk\ns_mov_b32 s30, {TKC}\nbuffer_store_dwordx4 v[4:7], v2, s[16:19], s30 offen sc1\nbuffer_store_dwordx4 v[4:7], v2, s[16:19], s30 offen offset:1024 sc1\nL_ntk:')
    e(f's_lshl_b32 s38, s4, 7\ns_lshl_b32 s30, s5, 2\ns_add_u32 s38, s38, s30\ns_and_b32 s36, s2, 3\ns_lshl_b32 s36, s36, 3\ns_add_u32 s36, s36, s7\ns_lshl_b32 s36, s36, 14\ns_add_u32 s36, s36, {UF}')
    for off in (0, 16):
        sk = e.label('L_sp')
        e(f's_waitcnt vmcnt(0)\ns_barrier\ns_cmp_lg_u32 s7, 0\ns_cbranch_scc1 {sk}\ns_mov_b64 exec, 1\nbuffer_store_dword v8, off, s[20:23], s38 offset:{off} sc1\ns_mov_b64 exec, -1\n{sk}:')
        stamp(e, c, 1 + off // 16)
        if off == 0:
            wait_a(e)
            for k in range(16 if c.cut != 6 else 0):
                e(f'buffer_store_dwordx4 v[4:7], v2, s[16:19], s36 offen offset:{1024*(k%4)} sc1')
                if k % 4 == 3: e('s_add_u32 s36, s36, 4096')
    e('s_branch L_fin')
    flush_deferred(e)

def role_tail(e, c):
    e('L_tail:\ns_waitcnt lgkmcnt(0)')
    load_srds(e, [(44, 'q'), (40, 'wq'), (8, 'wkv'), (12, 'lat_hi'), (24, 'lat_lo')])
    e('s_and_b32 s4, s2, 1\ns_lshr_b32 s5, s2, 1\ns_mul_i32 s35, s4, 12288')
    WF, XF, D, PS = 16, 64, 112, 116
    rows_src(e, 4, 768, 8, 9, 10)
    slab32_src(e, 7, 8, 768)
    e(f's_lshl_b32 s36, s5, 5\ns_mul_i32 s30, s3, {96*768}\ns_add_u32 s36, s36, s30\ns_waitcnt lgkmcnt(0)')
    if c.iso: late_consts(e); e('s_branch L_fin')
    rows_dma(e, 4, 's[44:47]', 35, 49152, 1, 768)
    for k in range(3): e('s_nop 0\nbuffer_load_dwordx4 v7, s[40:43], s36 offen lds\ns_add_u32 m0, m0, 1024\ns_add_u32 s36, s36, 24576')
    stamp(e, c, 1)
    e('s_mul_i32 s32, s5, 12288\ns_lshl_b32 s33, s32, 1')
    for b in range(3): e(f'v_add_u32 v8, {64*b}, v0\nv_mul_u32_u24 v8, 1366, v8\nv_lshrrev_b32 v8, 16, v8\nv_mul_u32_u24 v8, 768, v8\nv_add3_u32 v{124+b}, v8, v{4+b}, s31')
    late_consts(e)
    rows_dma(e, 124, 's[8:11]', 33, 12288, 1, 1536, c.pnt)
    def lat_dma():
        rows_dma(e, 136, 's[12:15]', 32, 24576, 1, 768, c.pnt)
        rows_dma(e, 136, 's[24:27]', 32, 36864, 1, 768, c.pnt)
    e('v_mov_b64 v[136:137], v[4:5]\nv_mov_b32 v138, v6')
    if not c.latlate: lat_dma()
    e('v_lshlrev_b32 v12, 4, v0\nv_and_b32 v2, 15, v0\nv_lshrrev_b32 v3, 4, v0'); tile_off(e, 14, 2, 3, 10)
    rows_rd(e, 120, 12288, 8, 9, 10)
    for k in range(3): e(f's_mul_i32 s30, s3, 192\ns_add_u32 s30, s30, {64*k}\ns_and_b32 s31, s30, 0xc0\ns_and_b32 s30, s30, 0x300\nv_xor_b32 v{121+k}, s31, v120\nv_add_u32 v{121+k}, s30, v{121+k}')
    slab32_rd(e, 6, 7, 8)
    e(f's_mul_i32 s30, s3, 3072\ns_add_u32 s36, s35, s30\ns_add_u32 s37, s36, {TF}\ns_add_u32 s36, s36, {QF}\ns_add_u32 s30, s30, 61440\nv_add_u32 v6, s30, v6\nv_add_u32 v7, s30, v7')
    e(f's_lshl_b32 s38, s5, 9\ns_add_u32 s38, s38, s35\ns_add_u32 s38, s38, {QF}')
    e('s_lshl_b32 s30, s3, 10\nv_add_u32 v9, s30, v12\nv_add_u32 v13, 73728, v9\ns_mov_b32 s30, 0x3f803f80\nv_mov_b64 v[140:141], 0')
    for i in range(4): e(f'v_mov_b32 v{124+i}, s30')
    QW, CS = XF + 12, D + 4
    e(f's_waitcnt vmcnt({3 if c.latlate else 9})\ns_barrier')
    stamp(e, c, 2)
    early_load(e, 132, 4)
    for k in range(3): e(f'ds_read_b128 {vr(XF+4*k)}, v{121+k} offset:36864')
    for k in range(3): e(f'ds_read_b64_tr_b16 {vr(QW+4*k,2)}, v6 offset:{1024*k}\nds_read_b64_tr_b16 {vr(QW+4*k+2,2)}, v7 offset:{1024*k}')
    e('s_waitcnt lgkmcnt(6)')
    for i in range(12): e(f'v_dot2c_f32_bf16 v140, v{XF+i}, v124\nv_dot2c_f32_bf16 v141, v{XF+i}, v{XF+i}')
    e('s_waitcnt lgkmcnt(0)')
    for k in range(3):
        e(f'v_mfma_f32_16x16x32_bf16 {vr(D)}, {vr(QW+4*k)}, {vr(XF+4*k)}, {vr(D) if k else 0}')
        e(f'v_mfma_f32_16x16x32_bf16 {vr(CS)}, {vr(QW+4*k)}, v[124:127], {vr(CS) if k else 0}')
    for sw in ('16', '32'):
        e(f'v_mov_b64 v[142:143], v[140:141]\ns_nop 1\nv_permlane{sw}_swap_b32 v140, v142\nv_permlane{sw}_swap_b32 v141, v143\nv_add_f32 v140, v140, v142\nv_add_f32 v141, v141, v143')
    p2 = e.label('L_p2')
    if c.pro: stamp(e, c, 8)
    e(f'ds_write_b128 v13, {vr(D)}\nds_write_b128 v13, {vr(CS)} offset:4096\nds_write_b64 v13, v[140:141] offset:8192\ns_waitcnt vmcnt(1) lgkmcnt(0)\ns_barrier')
    e(f's_cmp_lg_u32 s3, 0\ns_cbranch_scc1 {p2}')
    for w in range(1, 4): e(f'ds_read_b64 {vr(142+2*w,2)}, v13 offset:{8192+1024*w}')
    for w in range(1, 4): e(f'ds_read_b128 {vr(XF+8*w)}, v13 offset:{1024*w}\nds_read_b128 {vr(XF+8*w+4)}, v13 offset:{4096+1024*w}')
    e(f'{p2}:')
    if c.pro: stamp(e, c, 15)
    e('s_waitcnt vmcnt(0)')
    if c.pro: stamp(e, c, 9)
    early_wait(e, 132, (0, 1))
    if c.pro: stamp(e, c, 10)
    local_flag(e, 134)
    e(f's_cmp_lg_u32 s3, 0\ns_cbranch_scc1 {p2}_b\ns_waitcnt lgkmcnt(6)')
    for w in range(1, 4): e(f'v_pk_add_f32 v[140:141], v[140:141], {vr(142+2*w,2)}')
    ln_finish(e, 140, 141)
    for w in range(1, 4):
        e(f's_waitcnt lgkmcnt({2*(3-w)})')
        for i in range(0, 8, 2): e(f'v_pk_add_f32 {vr(D+i,2)}, {vr(D+i,2)}, {vr(XF+8*w+i,2)}')
    for i in range(4): e(f'v_fma_f32 v{D+i}, -v140, v{CS+i}, v{D+i}')
    for i in range(4): e(f'v_mul_f32 v{D+i}, v141, v{D+i}')
    pack_store(e, D, PS, 14, 38, local=c.local)
    stamp(e, c, 5)
    e(f'{p2}_b:\ns_add_u32 s38, s38, {TF-QF}\nv_lshlrev_b32 v10, 7, v0\ns_mov_b64 exec, 15\nbuffer_load_dword v11, v10, s[16:19], s38 offen sc1\ns_mov_b64 exec, -1')
    if c.latlate: lat_dma()
    def wread(ms):
        for m in ms:
            for k in range(3): e(f'ds_read_b128 {vr(WF+12*m+4*k)}, v{121+k} offset:{12288*m}')
    wread((0,) if c.latlate else (0, 1, 2))
    gather(e, frag_loads(XF, 3, 12, 36), 10)
    stamp(e, c, 3)
    e('s_waitcnt lgkmcnt(0)')
    for k in range(3): e(f'v_mfma_f32_16x16x32_bf16 {vr(D)}, {vr(WF+4*k)}, {vr(XF+4*k)}, {vr(D) if k else 0}')
    p3 = e.label('L_p3'); p3b = e.label('L_p3b')
    e('s_nop 7')
    e(f'ds_write_b128 v9, {vr(D)}\ns_waitcnt lgkmcnt(0)\ns_barrier\ns_cmp_lg_u32 s3, 0\ns_cbranch_scc1 {p3}')
    for w in range(1, 4): e(f'ds_read_b128 {vr(XF+4*w)}, v12 offset:{1024*w}')
    for w in (1, 2, 3):
        e(f's_waitcnt lgkmcnt({3-w})')
        for i in range(4): e(f'v_add_f32 v{D+i}, v{D+i}, v{XF+4*w+i}')
    pack_store(e, D, PS, 14, 38, local=c.local)
    e(f'{p3}:')
    if c.latlate: wread((1, 2))
    gather(e, frag_loads(XF, 3, 12, 37), 10)
    stamp(e, c, 4)
    e('s_waitcnt lgkmcnt(0)')
    for k in range(3):
        for t in range(2): e(f'v_mfma_f32_16x16x32_bf16 {vr(D+4*t)}, {vr(WF+12+12*t+4*k)}, {vr(XF+4*k)}, {vr(D+4*t) if k else 0}')
    b2 = e.label('L_b2')
    e(f's_lshl_b32 s38, s5, 9\ns_mul_i32 s31, s3, 12288\ns_add_u32 s38, s38, s31\ns_lshl_b32 s31, s35, 1\ns_add_u32 s38, s38, s31\ns_add_u32 s38, s38, {AF-12288}')
    e(f's_lshl_b32 s30, s3, 12\nv_add_u32 v8, s30, v12\nds_write_b128 v9, {vr(D)} offset:4096\nds_write_b128 v9, {vr(D+4)} offset:8192\ns_waitcnt lgkmcnt(0)\ns_barrier')
    e(f's_add_u32 s30, s3, 1\ns_and_b32 s30, s30, 2\ns_cbranch_scc0 {b2}')
    for w in range(4): e(f'ds_read_b128 {vr(XF+4*w)}, v8 offset:{1024*w}')
    e('s_waitcnt lgkmcnt(2)')
    for i in range(4): e(f'v_add_f32 v{D+i}, v{XF+i}, v{XF+4+i}')
    e('s_waitcnt lgkmcnt(0)')
    for i in range(4): e(f'v_add_f32 v{XF+8+i}, v{XF+8+i}, v{XF+12+i}')
    for i in range(4): e(f'v_add_f32 v{D+i}, v{D+i}, v{XF+8+i}')
    for i in range(4): e(f'v_mul_f32 v{D+i}, {fx(384**-0.5*LOG2E)}, v{D+i}')
    pack_store(e, D, PS, 14, 38)
    stamp(e, c, 5)
    e(f'{b2}:\ns_waitcnt vmcnt(0)\ns_barrier')
    if c.pro or c.cut in (3, 6, 7): e('s_branch L_fin')
    W1, W2, WC, CS, QR = 128, 176, 224, 248, 252
    load_srds(e, [(40, 'q'), (44, 'out'), (52, 'w1'), (96, 'w2'), (36, 'wo')])
    e('s_lshl_b32 s30, s5, 2\ns_add_u32 s30, s30, s3\ns_mul_i32 s30, s30, 24\nv_add_u32 v4, s30, v0\nv_mul_u32_u24 v5, 0xaaab, v4\nv_lshrrev_b32 v5, 18, v5\nv_mad_u32_u24 v5, v5, 6, v4\nv_lshlrev_b32 v4, 7, v4\nv_lshlrev_b32 v5, 7, v5')
    e('s_mov_b64 exec, 0xffffff\ns_waitcnt lgkmcnt(0)\nbuffer_load_dword v6, v4, s[36:39], 0 offen\nbuffer_load_dword v6, v5, s[8:11], 0 offen offset:768\ns_mov_b64 exec, -1')
    slab32_src(e, 126, 10, 768)
    e('v_mul_u32_u24 v15, 768, v2\nv_lshl_add_u32 v15, v3, 3, v15\ns_lshl_b32 s48, s5, 5\ns_add_u32 s48, s48, s35')
    e(f'buffer_load_dwordx2 {vr(QR,2)}, v15, s[40:43], s48 offen')
    e(f's_lshl_b32 s32, s5, 5\ns_mul_i32 s30, s3, {96*768}\ns_add_u32 s32, s32, s30\ns_mul_i32 s30, s3, 3072\ns_add_u32 m0, s30, 147456\ns_waitcnt vmcnt(0)')
    for k in range(3): e('buffer_load_dwordx4 v126, s[36:39], s32 offen lds\ns_add_u32 m0, m0, 1024\ns_add_u32 s32, s32, 24576')
    slab32_rd(e, 124, 125, 10)
    e('v_add_u32 v4, 147456, v124\nv_add_u32 v5, 147456, v125\ns_waitcnt vmcnt(0)\ns_barrier')
    for ks in range(12):
        e(f'ds_read_b64_tr_b16 {vr(XF+4*ks,2)}, v4 offset:{1024*ks}\nds_read_b64_tr_b16 {vr(XF+4*ks+2,2)}, v5 offset:{1024*ks}')
        if ks % 6 == 5: e('s_waitcnt lgkmcnt(0)')
    e('s_barrier')
    RA = 120
    e('s_mul_i32 s34, s3, 36864\ns_add_u32 s49, s34, 36864')
    def rowstream(srd, stride, ntile, tag):
        for b in range(3):
            e(f'v_add_u32 v8, {64*b}, v0\nv_mul_u32_u24 v10, 1366, v8\nv_lshrrev_b32 v10, 16, v10\nv_mul_u32_u24 v11, 48, v10\nv_sub_u32 v8, v8, v11')
            e(f'v_lshlrev_b32 v11, 2, v10\nv_xor_b32 v8, v8, v11\nv_mul_u32_u24 v10, {stride}, v10\nv_lshl_add_u32 v{4+b}, v8, 4, v10')
        rows_rd(e, RA, 0, 8, 10, 11)
        for b in range(4): e(f'v_add_u32 v{RA+b}, s34, v{RA+b}')
        def issue():
            e('s_mov_b32 m0, s50\ns_mov_b32 s33, s32')
            for q in range(4):
                for b in range(3): e(f'v_xor_b32 v8, {[0,2,3,1][q]*16}, v{4+b}\nbuffer_load_dwordx4 v8, {srd}, s33 offen lds\ns_add_u32 m0, m0, 1024')
                if q < 3: e(f's_add_u32 s33, s33, {8*stride}')
            e(f's_add_u32 s50, s50, 12288\ns_cmp_eq_u32 s50, s49\ns_cselect_b32 s50, s34, s50\ns_xor_b32 s51, s51, 1\ns_cselect_b32 s30, 4, 28\ns_mul_i32 s30, s30, {stride}\ns_add_u32 s32, s32, s30')
        e(f's_mov_b32 s50, s34\ns_mov_b32 s51, 0\ns_mov_b32 s31, -3\ns_mov_b32 s29, 0\ns_branch L_{tag}_i')
        e(f'L_{tag}:\ns_waitcnt vmcnt(24)\ns_cmp_lt_i32 s31, {ntile-2}\ns_cbranch_scc1 L_{tag}_w\ns_waitcnt vmcnt(0)\nL_{tag}_w:')
        for ks in range(12): e(f'ds_read_b128 {vr(WF+4*ks)}, v{RA+(ks&3)} offset:{256*(ks>>2)}')
        e('s_add_u32 s29, s29, 1\ns_cmp_eq_u32 s29, 3\ns_cselect_b32 s29, 0, s29\ns_cselect_b32 s30, -2, 1\ns_mulk_i32 s30, 12288')
        for i in range(0, 22, 2): e(f'v_mov_b64 {vr(WC+i,2)}, {vr(WC+i+2,2)}')
        for ks in range(12):
            e(f's_waitcnt lgkmcnt({11-ks})\nv_mfma_f32_16x16x32_bf16 {vr(D)}, {vr(WF+4*ks)}, {vr(XF+4*ks)}, {vr(D) if ks else 0}')
        for b in range(4): e(f'v_add_u32 v{RA+b}, s30, v{RA+b}')
        e(f's_nop 3\nv_cvt_pk_bf16_f32 v{WC+22}, v{D}, v{D+1}\nv_cvt_pk_bf16_f32 v{WC+23}, v{D+2}, v{D+3}')
        e(f's_cmp_ge_i32 s31, {ntile-3}\ns_cbranch_scc1 L_{tag}_n\nL_{tag}_i:')
        issue()
        e(f'L_{tag}_n:\ns_add_u32 s31, s31, 1\ns_cmp_lt_i32 s31, 0\ns_cbranch_scc1 L_{tag}_i\ns_cmp_lt_i32 s31, {ntile}\ns_cbranch_scc1 L_{tag}')
    e(f's_mul_i32 s32, s3, {96*1536}\ns_add_u32 s32, s32, 768')
    rowstream('s[8:11]', 1536, 6, 'ys')
    e('s_mul_i32 s30, s3, 3072\ns_add_u32 s30, s30, 147456\nv_add_u32 v8, s30, v12\nv_add_u32 v10, 147456, v12')
    for k in range(3): e(f'ds_write_b128 v8, {vr(WC+12+4*k)} offset:{1024*k}')
    e('s_waitcnt lgkmcnt(0)\ns_barrier')
    for ks in range(12): e(f'ds_read_b128 {vr(XF+4*ks)}, v10 offset:{1024*ks}')
    e(f's_cmp_ge_u32 s3, 2\ns_cselect_b32 s12, s24, s12\ns_cselect_b32 s13, s25, s13\ns_and_b32 s32, s3, 1\ns_mul_i32 s32, s32, {192*768}\ns_waitcnt lgkmcnt(0)')
    rowstream('s[12:15]', 768, 12, 'ws')
    e('s_barrier')
    stamp(e, c, 6)
    slab128_src(e, 7, 3072, 10, 11)
    slab128_dma(e, 7, 's[52:55]', 5, 3072, 0)
    e(f's_lshl_b32 s32, s5, 5\ns_mul_i32 s30, s3, {384*768}\ns_add_u32 s32, s32, s30\ns_mul_i32 s33, s3, 12288\ns_add_u32 s33, s33, 49152\ns_mov_b32 m0, s33')
    lp = e.label('L_w2')
    e(f's_mov_b32 s31, 12\n{lp}:\nbuffer_load_dwordx4 v126, s[96:99], s32 offen lds\ns_add_u32 m0, m0, 1024\ns_add_u32 s32, s32, 24576\ns_sub_u32 s31, s31, 1\ns_cmp_lg_u32 s31, 0\ns_cbranch_scc1 {lp}')
    slab128_rd(e, 13, 10, 11)
    e('v_add_u32 v6, s33, v124\nv_add_u32 v7, s33, v125\ns_mov_b32 s30, 0x3f803f80')
    for i in range(4): e(f'v_mov_b32 v{124+i}, s30')
    e('s_lshl_b32 s30, s3, 5\nv_xor_b32 v8, s30, v13\ns_mul_i32 s30, s3, 12288\nv_add_u32 v13, s30, v8')
    e('s_waitcnt vmcnt(12)\ns_barrier')
    for ks in range(12):
        for u in range(2): e(f'ds_read_b64_tr_b16 {vr(WF+4*ks+2*u,2)}, v8 offset:{4096*ks+512*u}')
        if ks % 6 == 5: e('s_waitcnt lgkmcnt(0)')
    for ks in range(12): e(f'v_mfma_f32_16x16x32_bf16 {vr(CS)}, {vr(WF+4*ks)}, v[124:127], {vr(CS) if ks else 0}')
    for t in range(4):
        e(f'v_xor_b32 v10, {32*t}, v13')
        for k in range(3):
            for u in range(2): e(f'ds_read_b64_tr_b16 {vr(W1+12*t+4*k+2*u,2)}, v10 offset:{4096*k+512*u}')
        if t % 2: e('s_waitcnt lgkmcnt(0)')
    e('s_waitcnt vmcnt(0)')
    for ks in range(12):
        e(f'ds_read_b64_tr_b16 {vr(W2+4*ks,2)}, v6 offset:{1024*ks}\nds_read_b64_tr_b16 {vr(W2+4*ks+2,2)}, v7 offset:{1024*ks}')
        if ks % 6 == 5: e('s_waitcnt lgkmcnt(0)')
    late_addr(e, 1); late_load(e, 10, 1); e('s_waitcnt vmcnt(0)'); late_wait(e, 10, 1)
    e('s_barrier')
    e(f's_lshl_b32 s38, s35, 1\ns_mul_i32 s30, s3, 6144\ns_add_u32 s38, s38, s30\ns_add_u32 s38, s38, {UF}'); soffs(e, 38, 2)
    e(f's_lshl_b32 s40, s5, 9\ns_add_u32 s40, s40, s35\ns_add_u32 s40, s40, {HF}')
    e(f's_mul_i32 s43, s3, 3072\ns_add_u32 s43, s43, s35\ns_add_u32 s43, s43, {HF}')
    e(f's_lshl_b32 s49, s5, 2\ns_add_u32 s49, s49, s3\ns_lshl_b32 s49, s49, 9\ns_lshl_b32 s30, s35, 2\ns_add_u32 s49, s49, s30\ns_add_u32 s49, s49, {GF}')
    e(f's_mul_i32 s24, s3, 12288\ns_add_u32 s24, s24, s30\ns_add_u32 s24, s24, {GF}'); soffs(e, 24, 3)
    e('s_lshl_b32 s30, s3, 12\nv_add_u32 v8, s30, v12')
    for t in range(1, 4): e(f'v_xor_b32 v{32+t}, {4096*t}, v8')
    e('v_lshrrev_b32 v11, 2, v2\nv_lshl_add_u32 v11, v11, 4, v2\nv_lshlrev_b32 v11, 4, v11\nv_and_b32 v10, 3, v0')
    for i, r in ((1, 28), (2, 32), (3, 50)): e(f'v_cmp_eq_u32 s[{r}:{r+1}], {i}, v10')
    e(f's_cmp_eq_u32 s3, 0\ns_cselect_b32 s30, -1, 0\nv_and_b32 v{QR}, s30, v{QR}\nv_and_b32 v{QR+1}, s30, v{QR+1}')
    e(f'v_lshlrev_b32 v120, 16, v{QR}\nv_and_b32 v121, 0xffff0000, v{QR}\nv_lshlrev_b32 v122, 16, v{QR+1}\nv_and_b32 v123, 0xffff0000, v{QR+1}')
    c1 = -2 * math.sqrt(2 / math.pi) * LOG2E; c3 = c1 * 0.044715
    e(f'v_mov_b32 v36, {fx(c3)}\nv_mov_b32 v37, {fx(c1)}')
    ld3 = frag_loads(XF, 3, 12, 43)
    early_load(e, 4, 4)
    if c.local:
        for x, _, _ in ld3 + frag_loads(XF, 12, 12, 24) + frag_loads(XF, 6, 12, 38): e(x)
    e('s_waitcnt vmcnt(0)'); local_flag(e, 6)
    stamp(e, c, 7)
    if c.pwb: e('s_or_b32 s30, s3, s5\ns_cbranch_scc1 L_npwb\nbuffer_wbl2 sc1\ns_waitcnt vmcnt(0)\nL_npwb:')
    if c.cut: e('s_branch L_fin')
    e(f's_mul_i32 s52, s4, 147456\ns_mul_i32 s30, s5, 6144\ns_add_u32 s52, s52, s30\ns_lshl_b32 s30, s3, 8\ns_add_u32 s52, s52, s30\ns_add_u32 s52, s52, {XU}\ns_add_u32 s53, s52, 4096')
    e(f's_mul_i32 s54, s4, 768\ns_add_u32 s54, s54, {XL}\ns_lshl_b32 s55, s5, 10\ns_add_u32 s55, s55, s30\ns_lshl_b32 s30, s35, 1\ns_add_u32 s55, s55, s30\ns_add_u32 s55, s55, {UF}')
    e('v_lshlrev_b32 v6, 2, v0\nv_lshrrev_b32 v7, 2, v0\nv_lshlrev_b32 v7, 3, v7\nv_lshlrev_b32 v4, 7, v0')
    if c.walk: walk(e, 'Lv', 3, 4)
    e.mark('on_Lv')
    lp = e.label('L_lp')
    e(f's_mov_b64 exec, 63\n{lp}:\nbuffer_load_dword v5, v4, s[16:19], s54 offen sc1\ns_waitcnt vmcnt(0)\nv_cmp_ne_u32 vcc, -1, v5\ns_cbranch_vccnz {lp}_d\ns_sleep 4')
    budget(e, lp)
    e(f'{lp}_d:\ns_mov_b64 exec, -1')
    stamp(e, c, 8)
    XM, XV = 44, 56
    ldx = [(f'buffer_load_dwordx2 {vr(XM+2*g,2)}, v7, s[16:19], s54 offen offset:{128*g} sc1', XM + 2 * g, 2) for g in range(6)]
    ldx += [(f'buffer_load_dword v{XV+2*g}, v6, s[16:19], s{52+g//2} offen offset:{2048*(g%2)} sc1\nbuffer_load_dword v{XV+2*g+1}, v6, s[16:19], s{52+g//2} offen offset:{2048*(g%2)+1024} sc1', XV + 2 * g, 2) for g in range(3)]
    xd = [y for x, _, _ in ldx[6:] for y in x.split('\n')]
    gather(e, ldx[:6], 10, extra=xd if c.xone else ())
    lg = e.label('L_gx')
    if not c.xone:
        for x in xd: e(x)
    e(f'v_max3_f32 v4, v{XM}, v{XM+2}, v{XM+4}\nv_max3_f32 v4, v4, v{XM+6}, v{XM+8}\nv_max_f32 v4, v4, v{XM+10}')
    for g in range(6): e(f'v_sub_f32 v{XM+2*g}, v{XM+2*g}, v4')
    for g in range(6): e(f'v_exp_f32 v{XM+2*g}, v{XM+2*g}')
    e(f'v_mul_f32 v5, v{XM}, v{XM+1}')
    for g in range(1, 6): e(f'v_fmac_f32 v5, v{XM+2*g}, v{XM+2*g+1}')
    e('v_rcp_f32 v5, v5\ns_nop 0')
    for g in range(6): e(f'v_mul_f32 v{XM+2*g}, v{XM+2*g}, v5')
    e(f's_branch {lg}_c\n{lg}:')
    for x, _, _ in ldx[6:]: e(x)
    e(f'{lg}_c:\ns_sub_u32 s61, s61, 1\ns_cmp_gt_i32 s61, 0\ns_cselect_b64 s[62:63], -1, 0\ns_waitcnt vmcnt(0)')
    e(f'v_max3_u32 v10, v{XV}, v{XV+1}, v{XV+2}\nv_max3_u32 v10, v10, v{XV+3}, v{XV+4}\nv_max_u32 v10, v10, v{XV+5}')
    e(f'v_cmp_eq_u32 vcc, -1, v10\ns_and_b64 vcc, vcc, s[62:63]\ns_cbranch_scc1 {lg}')
    stamp(e, c, 15)
    for g in range(6):
        e(f'v_lshlrev_b32 v16, 16, v{XV+g}\nv_and_b32 v17, 0xffff0000, v{XV+g}')
        e(f'v_pk_mul_f32 v[18:19], v[16:17], {vr(XM,2)} op_sel_hi:[1,0]' if g == 0 else f'v_pk_fma_f32 v[18:19], v[16:17], {vr(XM+2*g,2)}, v[18:19] op_sel_hi:[1,0,1]')
    e('v_cvt_pk_bf16_f32 v18, v18, v19\nv_min_u32 v18, -2, v18')
    hstore(e, 'buffer_store_dword v18, v6, s[16:19], s55 offen', c.local)
    def finish(skip):
        e(f's_nop 1\nds_write_b128 v9, {vr(D)}\ns_waitcnt lgkmcnt(0)\ns_barrier\ns_cmp_lg_u32 s3, 0\ns_cbranch_scc1 {skip}')
        for w in range(1, 4): e(f'ds_read_b128 {vr(16+4*w)}, v12 offset:{1024*w}')
        for w in (1, 2, 3):
            e(f's_waitcnt lgkmcnt({3-w})\nv_pk_add_f32 {vr(D,2)}, {vr(D,2)}, {vr(16+4*w,2)}\nv_pk_add_f32 {vr(D+2,2)}, {vr(D+2,2)}, {vr(18+4*w,2)}')
    gather(e, frag_loads(XF, 6, 12, 38), 10, lambda k: e(f'v_mfma_f32_16x16x32_bf16 {vr(D)}, {vr(WC+4*k)}, {vr(XF+4*k)}, {vr(D if k else 120)}'))
    stamp(e, c, 9)
    t3 = e.label('L_t3')
    e('s_nop 0'); finish(t3)
    pack_store(e, D, PS, 14, 40, keep=4, local=c.local)
    e('v_lshlrev_b32 v120, 16, v4\nv_and_b32 v121, 0xffff0000, v4\nv_lshlrev_b32 v122, 16, v5\nv_and_b32 v123, 0xffff0000, v5')
    e(f'{t3}:')
    stamp(e, c, 10)
    DD, GR, S1 = 96, 88, 84
    def mm3(k):
        e(f'v_mfma_f32_16x16x32_bf16 {vr(GR)}, {vr(XF+4*k)}, {vr(XF+4*k)}, {vr(GR) if k else 0}')
        e(f'v_mfma_f32_16x16x32_bf16 {vr(S1)}, v[124:127], {vr(XF+4*k)}, {vr(S1) if k else 0}')
        for t in (1, 2, 3, 0): e(f'v_mfma_f32_16x16x32_bf16 {vr(DD+4*t)}, {vr(W1+12*t+4*k)}, {vr(XF+4*k)}, {vr(DD+4*t) if k else 0}')
    gather(e, ld3, 10, mm3)
    stamp(e, c, 11)
    e(f'v_cndmask_b32 v{S1+1}, v{GR}, v{GR+1}, s[28:29]\nv_cndmask_b32 v{S1+1}, v{S1+1}, v{GR+2}, s[32:33]\nv_cndmask_b32 v{S1+1}, v{S1+1}, v{GR+3}, s[50:51]')
    for t in range(1, 4): e(f'ds_write_b128 v{32+t}, {vr(DD+4*t)} offset:{4096+1024*t}')
    e(f'ds_write_b64 v9, {vr(S1,2)} offset:20480\ns_waitcnt lgkmcnt(0)\ns_barrier')
    SS = 16
    for w in range(4): e(f'ds_read_b64 {vr(SS+2*w,2)}, v11 offset:{20480+1024*w}')
    for t in range(1, 4): e(f'ds_read_b128 {vr(DD+4*t)}, v8 offset:{4096+1024*t}')
    e(f's_waitcnt lgkmcnt(3)\nv_pk_add_f32 {vr(SS,2)}, {vr(SS,2)}, {vr(SS+2,2)}\nv_pk_add_f32 {vr(SS+4,2)}, {vr(SS+4,2)}, {vr(SS+6,2)}\nv_pk_add_f32 {vr(SS,2)}, {vr(SS,2)}, {vr(SS+4,2)}')
    ln_finish(e, SS, SS + 1)
    pk = lambda op, d, *xs, mod='': [e(f'v_pk_{op}_f32 {vr(d+i,2)}, ' + ', '.join(vr(x + i, 2) if isinstance(x, int) else x for x in xs) + mod) for i in (0, 2)]
    e('s_waitcnt lgkmcnt(1)')
    pk('fma', DD, CS, vr(SS, 2), DD, mod=' op_sel_hi:[1,0,1] neg_lo:[0,1,0] neg_hi:[0,1,0]')
    pk('add', DD + 4, DD + 4, DD + 8); pk('add', DD, DD, DD + 4)
    e('s_waitcnt lgkmcnt(0)'); pk('add', DD, DD, DD + 12)
    pk('mul', DD, DD, vr(SS, 2), mod=' op_sel:[0,1] op_sel_hi:[1,1]')
    G = DD + 4
    pk('mul', G, DD, DD)
    pk('fma', G, G, 'v[36:37]', 'v[36:37]', mod=' op_sel:[0,0,1] op_sel_hi:[1,0,1]')
    pk('mul', G, G, DD)
    for i in range(4): e(f'v_exp_f32 v{G+i}, v{G+i}')
    pk('add', G, G, '1.0', mod=' op_sel_hi:[1,0]')
    for i in range(4): e(f'v_rcp_f32 v{G+i}, v{G+i}')
    pk('mul', DD, DD, G)
    pack_store(e, DD, PS, 14, 49, local=c.local)
    stamp(e, c, 12)
    gather(e, frag_loads(XF, 12, 12, 24), 10, lambda k: e(f'v_mfma_f32_16x16x32_bf16 {vr(D)}, {vr(W2+4*k)}, {vr(XF+4*k)}, {vr(D if k else 120)}'))
    stamp(e, c, 13)
    e('s_nop 0'); finish('L_fin' if not c.ewb else 'L_ewb')
    if c.ewb: e.deferred.append('L_ewb:\ns_xor_b32 s30, s3, 1\ns_or_b32 s30, s30, s5\ns_cbranch_scc1 L_fin\nbuffer_wbl2 sc1\ns_branch L_fin')
    e(f'v_cvt_pk_bf16_f32 v4, v{D}, v{D+1}\nv_cvt_pk_bf16_f32 v5, v{D+2}, v{D+3}')
    e('buffer_store_dwordx2 v[4:5], v15, s[44:47], s48 offen' + c.oflag)
    stamp(e, c, 14)
    e('s_branch L_fin')
    flush_deferred(e)
```

```python
from gen_v14_roles import *

class Cap:
    def __init__(s): s.g = []
    def __call__(s, t): s.g.append(t)
    def take(s, e, n):
        while s.g and n > 0:
            t = s.g.pop(0); e(t); n -= t.count('\n') + 1

def streamer(e, c):
    fine = c.fine
    def cyc(k):
        if fine is not None: e(f's_memtime s[{84+2*k}:{85+2*k}]')
    def cyc_save():
        if fine is None: return
        lb = e.label('L_fs')
        e(f's_cmp_lg_u32 s25, {fine}\ns_cbranch_scc1 {lb}\ns_waitcnt lgkmcnt(0)')
        for k in range(6): e(f's_mov_b32 s{66+2*k}, s{84+2*k}')
        e(f'{lb}:')
    NS = 192; rd0 = c.rd0; ns = 2 * rd0 + 4; nt = ' nt' if not c.hot else ''; ch = 1; Ks = Kp = 2
    cus = c.cu; assert all(v[0] < v[1] < rd0 and 0 < v[2] < rd0 for v in cus) and c.hookx < rd0 and c.nshard <= 8
    def select(pairs):
        t = 's_lshr_b32 s30, s6, 3\ns_and_b32 s30, s30, 3'
        for v, cu in enumerate(cus):
            if v: t += f'\ns_cmp_eq_u32 s30, {v}'
            for reg, fn in pairs: t += f'\ns_mov_b32 s{reg}, {fn(cu)}' if v == 0 else f'\ns_cselect_b32 s{reg}, {fn(cu)}, s{reg}'
        return t
    T0, T1, T2, T3 = 2, 3, 4, 5
    L16, LH2, SW = 6, 7, 10
    e(f's_mul_hi_u32 s30, s35, {-(-(1<<32)//24)}\ns_mul_i32 s30, s30, 24\ns_add_u32 s26, s35, s30\ns_lshl_b32 s26, s26, 1')
    e(f's_and_b32 s4, s3, 1\ns_lshr_b32 s5, s3, 1\ns_mul_i32 s42, s5, 48\ns_add_u32 s42, s42, s4\ns_add_u32 s26, s26, s42\ns_mulk_i32 s26, 6144\nv_lshlrev_b32 v{L16}, 4, v0')
    e(f's_mov_b32 s10, {SZ["feat_hi"]}\ns_mov_b32 s11, 0x20000')
    def common2():
        e(f's_lshl2_add_u32 s27, s35, s3\ns_mulk_i32 s27, 1536\nv_add_u32 v{LH2}, 4096, v{L16}')
        e(f's_mov_b32 s14, {SZ["feat_lo"]}\ns_mov_b32 s15, 0x20000\ns_add_u32 s2, s35, {NH}')
    jump_hi = NS * ch * 12288 + (NS * ch // 24) * 294912 - ch * 12288; jump_lo = (NS - 1) * ch * 6144
    def src_adv(k=1):
        if not c.hot: e(f's_add_u32 s26, s26, {k*(12288+jump_hi)}\ns_add_u32 s27, s27, {k*(6144+jump_lo)}')
    def stage_items(B):
        it = [f'buffer_load_dwordx4 {vr(B+4*j)}, v{L16 if j < 4 else LH2}, s[8:11], s26 offen offset:{1024*(j%4)}{nt}' for j in range(6)]
        it.append(f'buffer_load_dwordx4 {vr(B+24)}, v{L16}, s[12:15], s27 offen{nt}')
        it.append(f's_mov_b32 exec_hi, 0\nbuffer_load_dwordx4 {vr(B+28)}, v{L16}, s[12:15], s27 offen offset:1024{nt}\ns_mov_b32 exec_hi, -1')
        return it
    def setup_sw(e):
        e('s_lshl_b32 s41, s4, 1\ns_lshl_b32 s44, s5, 1\ns_mov_b32 s47, 0x78')
        for b in range(3):
            e(f'v_add_u32 v{T0}, {64*b}, v0\nv_mul_u32_u24 v{T1}, 1366, v{T0}\nv_lshrrev_b32 v{T1}, 16, v{T1}')
            e(f'v_mul_u32_u24 v{T2}, 48, v{T1}\nv_sub_u32 v{T0}, v{T0}, v{T2}\nv_lshlrev_b32 v8, 4, v{T2}')
            if b < 2: e(f'v_add_lshl_u32 v{T2}, v{T1}, s41, 2\nv_or_b32 v{T2}, s44, v{T2}\nv_xor_b32 v{T2}, v{T2}, v{T0}\nv_lshl_add_u32 v{SW+6+b}, v{T2}, 4, v8')
            e(f'v_and_or_b32 v{T3}, v{T1}, 1, s44\nv_lshlrev_b32 v{T3}, 2, v{T3}\nv_xor_b32 v{T0}, v{T0}, v{T3}\nv_and_b32 v{T1}, 2, v{T1}\nv_lshrrev_b32 v{T1}, v{T1}, s47')
            e(f'v_and_b32 v{T2}, 3, v{T1}\nv_xor_b32 v{T2}, v{T2}, v{T0}\nv_lshl_add_u32 v{SW+b}, v{T2}, 4, v8')
            e(f'v_bfe_u32 v{T2}, v{T1}, 4, 2\nv_xor_b32 v{T2}, v{T2}, v{T0}\nv_lshl_add_u32 v{T2}, v{T2}, 4, v8\nv_add_u32 v{SW+3+b}, 3072, v{T2}')
        e(f's_mul_i32 s24, s3, 6144\ns_mul_i32 s34, s3, -4608\ns_add_u32 s34, s34, {24576-5120}\ns_add_u32 s31, s24, {PB}')
    def unstage_items(B, slot, tmp):
        it = [f'v_add_u32 v{tmp+(j&1)}, s{slot if j < 6 else 43}, v{SW+j}\nds_write_b128 v{tmp+(j&1)}, {vr(B+4*j)}' for j in range(7)]
        it[6] = f's_add_u32 s43, s{slot}, s34\ns_add_u32 s43, s43, 5120\n' + it[6]
        it.append(f'v_add_u32 v{tmp+1}, s43, v{SW+7}\ns_mov_b32 exec_hi, 0\nds_write_b128 v{tmp+1}, {vr(B+28)}\ns_mov_b32 exec_hi, -1')
        return it
    def dma_items():
        it = []
        for j in range(6):
            it.append(('s_mov_b32 m0, s24' if j == 0 else 's_add_u32 m0, m0, 1024') + f'\ns_nop 0\nbuffer_load_dwordx4 v{SW+j}, s[8:11], s26 offen{nt} lds')
        it.append(f's_add_u32 m0, m0, s34\ns_nop 0\nbuffer_load_dwordx4 v{SW+6}, s[12:15], s27 offen{nt} lds')
        it.append(f's_add_u32 m0, m0, 1024\ns_mov_b32 exec_hi, 0\nbuffer_load_dwordx4 v{SW+7}, s[12:15], s27 offen{nt} lds\ns_mov_b32 exec_hi, -1')
        return it
    def slot_adv(): e(f's_add_u32 s24, s24, {2*TILE}\ns_cmp_ge_u32 s24, s31\ns_cselect_b32 s30, {PB}, 0\ns_sub_u32 s24, s24, s30')
    def decode(odd):
        if c.hot: e('s_mov_b32 s27, s35')
        elif odd: e('s_add_u32 s27, s27, 1')
        e(f's_mul_hi_u32 s30, s27, {-(-(1<<32)//24)}\ns_mul_i32 s30, s30, 24\ns_add_u32 s26, s27, s30\ns_lshl1_add_u32 s26, s26, s42\ns_mulk_i32 s26, 6144\ns_lshl2_add_u32 s27, s27, s3\ns_mulk_i32 s27, 1536')
    def check(PFL, t, slow):
        e(f'v_or3_b32 v{t}, v{PFL}, v{PFL+1}, v{PFL+2}\nv_or_b32 v{t}, v{t}, v{PFL+3}\nv_and_b32 v{t}, 0x40004000, v{t}\nv_cmp_ne_u32 vcc, 0, v{t}\ns_or_b64 vcc, vcc, s[28:29]\ns_cbranch_scc1 {slow}')
    def first_look(PFL, t, back, tag):
        e(f's_cmp_eq_u64 s[28:29], 0\ns_cbranch_scc1 L_{tag}_go\nv_cmp_ne_u32 s[56:57], 0, v{t}')
        e(f'v_pk_max_u16 v{t}, v{PFL}, v{PFL+1}\nv_pk_max_u16 v{t+1}, v{PFL+2}, v{PFL+3}\nv_pk_max_u16 v{t}, v{t}, v{t+1}\nv_lshlrev_b32 v{t+1}, 16, v{t}\nv_max_u32 v{t}, v{t}, v{t+1}')
        e(f'v_cmp_gt_u32 vcc, 0x2b800000, v{t}\ns_or_b64 vcc, vcc, s[56:57]\ns_cbranch_scc1 L_{tag}_go\ns_mov_b64 s[28:29], 0\ns_branch {back}\nL_{tag}_go:')
    def quant(r): e(f'v_add_f32 v{r}, 4.0, v{r}\nv_mul_f32 v{r}, {fx(1/16)}, v{r}\nv_ceil_f32 v{r}, v{r}\nv_mul_f32 v{r}, {fx(16.0)}, v{r}')
    grp = f's_bfe_u32 s36, s6, 0x10002\ns_mul_i32 s36, s36, 3\ns_and_b32 s30, s6, 3\ns_add_u32 s36, s36, s30\ns_sub_u32 s36, s36, 1\ns_lshr_b32 s37, s6, 3\ns_mul_i32 s38, s36, {32*PS_}\ns_add_u32 s38, s38, {PART}'
    grp += f'\ns_lshl_b32 s39, s36, 7\ns_add_u32 s39, s39, {TKC+1024}'
    nost = c.iso or c.cut in (1, 3, 4, 5, 6, 7)

    PH, PL, PR, MPV, LSUM, ONES, LA = 18, 24, 27, 28, 29, 30, 31
    TMP, VA, VL, PFL, PF, XG, ACC, STB = 32, 40, 88, 100, 104, 120, 128, 224
    A2 = [124, 125, 126, 127, 4, 5, 7, 9, 39]
    pa = lambda tt, i: PH + i if tt == 0 else A2[i]
    pstage = [VA, STB]
    e('s_cmp_lt_u32 s7, 4\ns_cbranch_scc1 L_sw\ns_waitcnt lgkmcnt(0)')
    stamp(e, c, 1)
    if c.pro == 1: common2(); late_consts(e); e('s_branch L_fin')
    g = Cap(); setup_sw(g); nsw = len(g.g)
    late_consts(g)
    g(f'v_lshrrev_b32 v{T0}, 5, v0\nv_bfe_u32 v{T1}, v0, 2, 2')
    g(f'v_bfe_u32 v{T2}, v0, 4, 1\nv_and_b32 v{T3}, 1, v0\nv_lshl_or_b32 v{T2}, v{T2}, 1, v{T3}\nv_lshl_or_b32 v{T2}, v{T1}, 2, v{T2}')
    g(f'v_bfe_u32 v{T3}, v0, 1, 1\nv_lshlrev_b32 v{T3}, 3, v{T3}')
    Q0 = TMP
    g(f'v_lshl_add_u32 v{Q0+3}, v{T0}, 2, v{T1}\nv_mul_u32_u24 v{Q0+3}, 768, v{Q0+3}\nv_add_u32 v{Q0+3}, v{Q0+3}, v{T3}\nv_add_u32 v{Q0+3}, 24576, v{Q0+3}\nv_lshlrev_b32 v{Q0+7}, 1, v{T0}')
    g(f'v_lshrrev_b32 v{Q0+4}, 1, v{T1}\nv_lshlrev_b32 v{Q0+4}, 4, v{Q0+4}\nv_lshl_add_u32 v{Q0+4}, v{T0}, 2, v{Q0+4}\nv_and_or_b32 v{Q0+4}, v{T1}, 1, v{Q0+4}\nv_mul_u32_u24 v{Q0+4}, 768, v{Q0+4}\nv_add_u32 v{Q0+4}, v{Q0+4}, v{T3}')
    g(f'v_lshlrev_b32 v{Q0+5}, 2, v{T0}\ns_mov_b32 s30, 0x78\nv_lshrrev_b32 v{Q0+5}, v{Q0+5}, s30\nv_bfe_u32 v{Q0+6}, v{Q0+5}, 2, 2\nv_and_b32 v{Q0+5}, 3, v{Q0+5}')
    for t in range(3):
        g(f's_mul_i32 s30, s3, 12\ns_add_u32 s30, s30, {4*t}\nv_xor_b32 v{Q0}, s30, v{T2}\nv_xor_b32 v{Q0+1}, v{Q0}, v{Q0+7}\nv_lshl_add_u32 v{PL+t}, v{Q0+1}, 4, v{Q0+3}')
        g(f'v_xor_b32 v{Q0+1}, v{Q0}, v{Q0+5}\nv_lshl_add_u32 v{PH+2*t}, v{Q0+1}, 4, v{Q0+4}\nv_xor_b32 v{Q0+1}, v{Q0}, v{Q0+6}\nv_lshl_add_u32 v{Q0+1}, v{Q0+1}, 4, v{Q0+4}\nv_add_u32 v{PH+2*t+1}, 1536, v{Q0+1}')
    g(f'v_add_u32 v{PR}, {PB}, v{L16}\nv_lshlrev_b32 v1, 3, v0\nv_lshlrev_b32 v8, 7, v0'); late_addr(g, LA)
    for i in range(0, 96, 2): g(f'v_mov_b64 {vr(ACC+i,2)}, 0')
    g(f'v_mov_b32 v{MPV}, {fx(16.0)}\nv_mov_b32 v{LSUM}, 0\nv_mov_b32 v{ONES}, 0x3f803f80')
    g(select([(44, lambda cu: cu[2])]))
    g(f's_mov_b64 s[28:29], -1\ns_mov_b32 s45, 0\ns_mov_b32 s25, 0\ns_mov_b32 s33, {2*TILE}\ns_mov_b32 s49, 0\ns_mov_b32 s58, 2\nv_mov_b32 v{T0}, {TKW}')
    g(grp)
    g(f's_mul_i32 s52, s37, {PS_}\ns_add_u32 s52, s52, s38\ns_lshl_b32 s30, s3, 8\ns_add_u32 s48, s52, s30\ns_add_u32 s48, s48, 49152')
    g(f's_mul_i32 s30, s3, {PS_//4}\ns_add_u32 s50, s52, s30')
    g(f's_mul_i32 s30, s3, 6144\ns_add_u32 s52, s52, s30\ns_add_u32 s53, s52, 4096\ns_add_u32 s54, s52, 24576\ns_add_u32 s55, s52, {24576+4096}')
    g(f's_lshl_b32 s51, s36, 2\ns_add_u32 s51, s51, s3\ns_lshl_b32 s51, s51, 5\ns_add_u32 s51, s51, s37\ns_lshl_b32 s51, s51, 2\ns_add_u32 s51, s51, {FL}')
    total = len(g.g); cnt = 0
    for j in range(Kp + 3):
        if j == Kp:
            while total - len(g.g) < nsw: g.take(e, 1)
        for i, x in enumerate(stage_items(pstage[j]) if j < Kp else dma_items()):
            if j == 0 and i == 4: common2()
            if cnt == c.jp: e('s_barrier')
            e(x); cnt += 1
            if cnt >= 10: g.take(e, c.weave)
        if not c.pairs: src_adv(1 if j < Kp + 2 else 3)
        elif j < 3: src_adv(1)
        elif j == 3: e('s_lshl1_add_u32 s27, s35, 768'); decode(0)
        else: src_adv(2)
        if j >= Kp: e(f's_add_u32 s24, s24, {TILE if j < Kp + 2 else 2*TILE}')
    g.take(e, 9999)
    if c.jp == cnt: e('s_barrier')
    assert c.jp <= cnt
    stamp(e, c, 2)
    if c.pro == 2: e('s_waitcnt vmcnt(0)'); stamp(e, c, 3); e('s_branch L_fin')
    rP = [(f'ds_read_b128 {vr(PFL)}, v{PR} offset:4096', 'pfl')] + [(f'ds_read_b128 {vr(PF+4*i)}, v{PR} offset:{1024*i}', ('pf', i)) for i in range(4)]
    trH = lambda tt, t, pg: [f'ds_read_b64_tr_b16 {vr(VA+24*tt+8*t+4*pg+2*u,2)}, v{pa(tt,2*t+u)} offset:{6144*pg}' for u in range(2)]
    trL = lambda tt, t: [f'ds_read_b64_tr_b16 {vr(VL+4*t+2*tt,2)}, v{pa(tt,6+t)}']
    mL = lambda t: f'v_mfma_f32_32x32x16_bf16 {vr(ACC+48+16*t,16)}, {vr(VL+4*t)}, {vr(PFL)}, {vr(ACC+48+16*t,16)}'
    mH = lambda tt, t, pg: f'v_mfma_f32_32x32x16_bf16 {vr(ACC+16*t,16)}, {vr(VA+24*tt+8*t+4*pg)}, {vr(PF+8*tt+4*pg)}, {vr(ACC+16*t,16)}'
    sdelta = f's_cmp_ge_u32 s45, 3\ns_cselect_b32 s32, {-3*TILE}, s33\ns_cselect_b32 s30, -3, 2\ns_bitcmp1_b32 12, s45\ns_cselect_b32 s41, {-3*TILE}, s33\ns_add_u32 s45, s45, s30'
    lsum = '\n'.join(f'v_dot2c_f32_bf16 v{LSUM}, v{PFL+i}, v{ONES}' for i in range(4))
    def tr(xs):
        for x in xs:
            if len(e.ds) >= 14: e(f's_waitcnt lgkmcnt(8)'); e.ds = e.ds[-8:]
            e.dsop(x, 'tr')
    tcnt = lambda pos: c.tpos.count(pos) if c.local and not nost else 0
    touch1 = f's_bfm_b64 exec, {-(-98//len(c.tpos))}, 0\nbuffer_load_dword v38, v8, s[16:19], s50 offen\ns_add_u32 s50, s50, {-(-98//len(c.tpos))*128}\ns_mov_b64 exec, -1'
    xgload = f's_mov_b64 exec, 1\nbuffer_load_dwordx2 {vr(XG,2)}, off, s[16:19], s39 sc1\ns_mov_b64 exec, -1'
    e.mark('on_Lw')
    for i in range(9): e(f'v_add_u32 v{A2[i]}, {TILE}, v{PH+i}')
    for k in range(tcnt(0)): e(touch1)
    e(f's_sub_u32 s40, s24, {TILE}\ns_setprio 1\ns_barrier\ns_waitcnt vmcnt({8+tcnt(0)})\ns_barrier')
    for x, y in zip(dma_items(), unstage_items(pstage[0], 40, TMP)): e(x); e(y)
    src_adv(2)
    if c.tl: e('v_mov_b32 v37, 0')
    e('s_mov_b64 vcc, 0\ns_waitcnt lgkmcnt(0)\ns_branch L_p_rd')
    steps = [(mL(t), None) for t in range(3)] + [(mH(tt, t, pg), ('pf', 2 * tt + pg) if t == 0 else None) for tt in range(2) for t in range(3) for pg in range(2)]
    nd = c.ndefer; assert nd <= 4
    e(f'.p2align 3\nL_p:\ns_waitcnt vmcnt(8)\ns_cmp_eq_u32 s58, 2\ns_cbranch_scc0 L_p_w\nL_p_wb:'); cyc(5); e('s_barrier'); cyc(0)
    e.deferred.append(f'L_p_w:\ns_waitcnt vmcnt({tcnt(1)})\ns_cmp_eq_u32 s58, 1\ns_cbranch_scc1 L_p_wb\ns_waitcnt vmcnt(0)\ns_branch L_p_wb')
    e(f'ds_read_b32 v{T1}, v{T0}\ns_mov_b64 vcc, 0')
    for m, _ in steps[15 - nd:]: e(m)
    e(f's_bitcmp1_b32 {(1 << c.hookx) | (0xffffffff & ~((1 << rd0) - 1))}, s25\ns_cbranch_scc1 L_p_x1\nL_p_go:')
    e('s_cmp_lg_u32 s25, s44\ns_cselect_b32 s58, 2, 0\ns_cbranch_scc0 L_p_rd\ns_mov_b64 vcc, -1')
    dm = dma_items()
    for x in dm[:c.nx[0]]: e(x)
    dm = dm[c.nx[0]:]
    if not dm: src_adv(2)
    e(f'L_p_rd:\ns_setprio {c.xprio}')
    e.ds = ['tk']
    for tt in range(2):
        for t in range(3): tr(trL(tt, t) + trH(tt, t, 0) + trH(tt, t, 1))
        if c.nx[1 + tt]:
            e(f's_cbranch_vccz L_nx{tt}')
            for x in dm[:c.nx[1 + tt]]: e(x)
            dm = dm[c.nx[1 + tt]:]
            if not dm: src_adv(2)
            e(f'L_nx{tt}:')
    assert not dm
    e(sdelta)
    if c.tl: e('s_memrealtime s[92:93]')
    cyc(1)
    e('s_setprio 1'); e.dsall(); e('s_barrier'); cyc(2)
    for x, tag in rP: e.dsop(x, tag)
    if c.tl: e('s_mov_b32 m0, s25\ns_nop 0\nv_writelane_b32 v37, s92, m0')
    e.dswait('pfl')
    check(PFL, TMP, 'L_p_slow')
    e('L_p_back:\ns_cmp_eq_u32 s49, 2\ns_cbranch_scc1 L_p_last'); cyc(3)
    saved = list(e.ds)
    adds = [f'v_add_u32 v{pa(tt,i)}, s{32 if tt == 0 else 41}, v{pa(tt,i)}' for tt in range(2) for i in range(9)]
    un2 = unstage_items(pstage[1], 24, TMP)
    e(lsum)
    e('s_cmp_eq_u32 s25, s44\ns_cselect_b64 vcc, -1, 0')
    for i, (m, w) in enumerate(steps[:15 - nd]):
        if w: e.dswait(w)
        e(m)
        for _ in range(2):
            if adds: e(adds.pop(0))
        if i % 2 == 1 and un2:
            lb = e.label('L_un'); e(f's_cbranch_vccnz {lb}\n{lb}_b:')
            e.deferred.append(f'{lb}:\n{un2.pop(0)}\n{un2.pop(0)}\ns_branch {lb}_b')
    assert not adds and not un2
    slot_adv()
    cyc(4); cyc_save()
    e('s_add_u32 s25, s25, 1\ns_min_u32 s25, s25, 31\ns_branch L_p')
    e(f'L_p_x1:\ns_cmp_eq_u32 s25, {c.hookx}\ns_cbranch_scc1 L_p_x0\ns_cmp_lg_u32 s49, 0\ns_cbranch_scc1 L_p_dry2\ns_waitcnt lgkmcnt(0)\nv_readfirstlane_b32 s27, v{T1}\ns_cmp_lt_i32 s27, 0\ns_cbranch_scc1 L_p_dry')
    decode(0)
    e('s_branch L_p_go')
    e('L_p_dry:')
    for k in range(tcnt(1)): e(touch1)
    if not c.iso: late_wait(e, XG + 2, LA)
    e(f'L_xg:\nv_lshl_add_u64 {vr(XG,2)}, {vr(XG,2)}, 0, 1\nv_add_u32 v{TMP}, v{XG}, v{XG+1}\ns_nop 0\nv_readfirstlane_b32 s30, v{TMP}\ns_mul_i32 s30, s30, 0x01010101\ns_lshr_b32 s30, s30, 24\ns_cmp_ge_u32 s30, 32\ns_cbranch_scc0 L_xgr\nL_xgd:')
    e.deferred.append(f'L_xgr:\ns_sleep 8\n{xgload}\ns_waitcnt vmcnt(0)\ns_sub_u32 s61, s61, 1\ns_cmp_gt_i32 s61, 0\ns_cbranch_scc1 L_xg\ns_branch L_xgd')
    local_flag(e, XG, 32)
    if not c.local: e('s_mov_b32 s59, 0')
    e('s_mov_b32 s49, 1\ns_mov_b32 s58, 1\ns_mov_b64 vcc, 0\ns_branch L_p_rd')
    e('L_p_dry2:')
    for k in range(tcnt(2)): e(touch1)
    e('s_mov_b32 s49, 2\ns_branch L_p_rd')
    e('L_p_x0:'); late_load(e, XG + 2, LA); e(xgload); e('s_branch L_p_go')
    flush_deferred(e)
    e('L_p_last:'); e.ds = saved
    pstore = lambda s: f'buffer_store_dwordx4 {vr(ACC+8*s)}, v{L16}, s[16:19], s{52 + 2*(s//6) + (s%6)//4} offen offset:{1024*((s%6)%4)}'
    mlstore = f's_mov_b32 exec_hi, 0\nbuffer_store_dwordx2 {vr(MPV,2)}, v1, s[16:19], s48 offen%s\ns_mov_b32 exec_hi, -1'
    def cvt(s):
        b = ACC + 8 * s
        for i in range(4): e(f'v_cvt_pk_bf16_f32 v{b+i}, v{b+2*i}, v{b+2*i+1}')
        if not nost: e(pstore(s))
    last = [mL(t) for t in range(3)] + [mH(tt, t, pg) for t in range(3) for tt in range(2) for pg in range(2)]
    todo = {4: [6], 5: [7], 6: [8], 7: [9], 8: [10], 9: [11], 10: [0], 11: [1], 14: [2, 3]}
    for i, m in enumerate(last):
        if i == 3: e.dsall()
        e(m)
        if i in (2, 3):
            for j in (2 * (i - 2), 2 * (i - 2) + 1): e(f'v_lshlrev_b32 v{TMP}, 16, v{PFL+j}\nv_and_b32 v{TMP+1}, 0xffff0000, v{PFL+j}\nv_add_f32 v{LSUM}, v{LSUM}, v{TMP}\nv_add_f32 v{LSUM}, v{LSUM}, v{TMP+1}')
        if i == 12: e(f'v_mov_b32 v{TMP}, v{LSUM}\nv_readfirstlane_b32 s57, v{MPV}\ns_nop 0\nv_permlane32_swap_b32 v{LSUM}, v{TMP}\nv_add_f32 v{LSUM}, v{LSUM}, v{TMP}\nv_cmp_neq_f32 vcc, s57, v{MPV}')
        if i == 13 and not nost: e(mlstore % '')
        for s in todo.get(i, []): cvt(s)
    e(f's_cmp_eq_u64 vcc, 0\ns_cselect_b32 s57, s57, -2\nv_mov_b32 v{TMP}, s57\ns_nop 0')
    cvt(4); cvt(5)
    if fine is None: stamp(e, c, 6)
    if c.tl: e(f's_lshl_b32 s30, s35, 2\ns_add_u32 s30, s30, s3\ns_lshl_b32 s30, s30, 8\ns_add_u32 s30, s30, {DG+0x20000}\nv_lshlrev_b32 v125, 2, v0\nbuffer_store_dword v37, v125, s[16:19], s30 offen')
    e('s_cmp_eq_u32 s59, 0\ns_waitcnt vmcnt(0)\ns_cbranch_scc1 L_p_far')
    stamp(e, c, 7)
    if not nost: e(f's_mov_b64 exec, 1\nbuffer_store_dword v{TMP}, off, s[16:19], s51')
    e('s_branch L_fin')
    e('L_p_far:')
    if not nost:
        for s in range(12): e(pstore(s) + ' sc1')
        e(mlstore % ' sc1')
        e(f's_waitcnt vmcnt(0)\ns_mov_b64 exec, 1\nbuffer_store_dword v{TMP}, off, s[16:19], s51 sc1')
    e('s_branch L_fin')
    e('L_p_slow:'); first_look(PFL, TMP, 'L_p_back', 'pf')
    e(f's_mov_b32 s30, {MXB}\nv_and_b32 v{TMP+2}, 31, v0\nv_lshl_add_u32 v{TMP+2}, v{TMP+2}, 2, s30\ns_waitcnt lgkmcnt(0)\ns_barrier')
    e(f'ds_read2_b32 {vr(TMP,2)}, v{TMP+2} offset0:0 offset1:32\ns_waitcnt lgkmcnt(0)\nv_max_f32 v{TMP}, v{TMP}, v{TMP+1}')
    quant(TMP)
    nf = e.label()
    e(f's_cmp_lg_u64 s[28:29], 0\ns_cbranch_scc1 {nf}')
    e(f'v_max_f32 v{TMP}, 0, v{TMP}\nv_exp_f32 v{TMP+2}, -v{TMP}\ns_nop 0\nv_mul_f32 v{LSUM}, v{LSUM}, v{TMP+2}')
    for i in range(0, 96, 2): e(f'v_pk_mul_f32 {vr(ACC+i,2)}, {vr(ACC+i,2)}, {vr(TMP+2,2)} op_sel_hi:[1,0]')
    e(f'{nf}:\ns_mov_b64 s[28:29], 0\nv_add_f32 v{MPV}, v{MPV}, v{TMP}\ns_barrier')
    for x, _ in rP: e(x)
    e('s_waitcnt lgkmcnt(0)\ns_branch L_p_back')

    SH, SL, PW, PW2, PR2, MXO, TKA, TK, TA = 18, 22, 26, 27, 28, 29, 30, 31, 9
    NEGM, SLO, S0, S1, PFL, PK, FB, NB, TMP, AQ, STG = 32, 36, 40, 44, 48, 52, 56, 8, 88, 96, 192
    e.mark('off_Lw')
    e('L_sw:'); common2(); late_consts(e)
    if c.touch:
        e('s_cmp_lg_u32 s7, 0\ns_cbranch_scc1 L_snt'); code_touch(e, c); e('L_snt:')
    if c.pro == 1: e('s_waitcnt lgkmcnt(0)\ns_branch L_fin')
    if c.pairs: e('s_lshl1_add_u32 s27, s35, 768'); decode(1)
    else: src_adv(5)
    setup_sw(e)
    e(f'v_and_b32 v{T0}, 15, v0\nv_lshrrev_b32 v{T1}, 4, v0')
    e(f'v_lshrrev_b32 v{T2}, 2, v{T0}\nv_lshlrev_b32 v{T3}, 1, v{T2}\nv_lshrrev_b32 v{TMP+1}, v{T3}, s47\nv_and_b32 v{TMP+1}, 3, v{TMP+1}')
    e(f'v_and_b32 v{TMP}, 3, v{T0}\nv_lshl_or_b32 v{TMP+1}, v{TMP}, 2, v{TMP+1}\nv_xor_b32 v{TMP+1}, v{TMP+1}, v{T1}\nv_lshlrev_b32 v{TMP+1}, 4, v{TMP+1}')
    e(f'v_lshrrev_b32 v{TMP}, 1, v{TMP}\nv_lshl_add_u32 v{T3}, v{TMP}, 4, v{T3}\nv_and_or_b32 v{T3}, v{T0}, 1, v{T3}\nv_mul_u32_u24 v{T3}, 768, v{T3}\ns_mul_i32 s30, s4, {TILE}\nv_add3_u32 v{SH}, v{T3}, v{TMP+1}, s30')
    e(f'v_and_b32 v{TMP}, 1, v0\nv_lshlrev_b32 v{T3}, 1, v{TMP}\nv_lshl_or_b32 v{T3}, v{T2}, 2, v{T3}\nv_xor_b32 v{T3}, v{T3}, v{T1}\nv_lshlrev_b32 v{T3}, 4, v{T3}')
    e(f'v_lshl_add_u32 v{TMP}, v{TMP}, 2, v{T2}\nv_mul_u32_u24 v{TMP}, 768, v{TMP}\ns_add_u32 s30, s30, 24576\nv_add3_u32 v{SL}, v{T3}, v{TMP}, s30')
    for b in range(1, 4): e(f'v_xor_b32 v{SH+b}, {64*b}, v{SH}\nv_xor_b32 v{SL+b}, {64*b}, v{SL}')
    e(f's_lshl_b32 s30, s5, 4\nv_add_u32 v{T3}, s30, v{T0}')
    e(f'v_lshrrev_b32 v{TMP}, 1, v{T1}\nv_lshlrev_b32 v{TMP}, 9, v{TMP}\nv_lshl_add_u32 v{TMP}, v{T3}, 4, v{TMP}\nv_and_b32 v{TMP+1}, 1, v{T1}\nv_lshl_add_u32 v{TMP}, v{TMP+1}, 3, v{TMP}')
    e(f's_lshl_b32 s30, s4, 11\ns_add_u32 s30, s30, {PB}\nv_add_u32 v{PW}, s30, v{TMP}')
    e(f'v_lshlrev_b32 v{TMP}, 4, v{T3}\nv_lshl_add_u32 v{TMP}, v{T1}, 1, v{TMP}\ns_lshl_b32 s30, s4, 3\ns_add_u32 s30, s30, {PB+4096}\nv_add_u32 v{PW2}, s30, v{TMP}')
    e(f'v_lshlrev_b32 v1, 3, v0\nv_add_u32 v{PR2}, {PB+4096}, v{L16}\nv_lshlrev_b32 v{MXO}, 2, v{T3}\nv_add_u32 v{MXO}, {MXB}, v{MXO}\nv_mov_b32 v{TKA}, {TKW}')
    for i in range(4): e(f'v_mov_b32 v{NEGM+i}, {fx(-16.0)}')
    e(select([(44, lambda cu: (1 << cu[0]) | (1 << cu[1]) | (0xffffffff & ~((1 << (rd0 - 1)) - 1))), (46, lambda cu: cu[0]), (47, lambda cu: cu[1])]))
    e(f's_mov_b64 s[28:29], -1\ns_mov_b32 s45, s4\ns_mov_b32 s25, 0\ns_mov_b32 s33, {2*TILE}\ns_mov_b32 s49, 0')
    e(f's_mul_i32 s52, s5, 24576\ns_add_u32 s52, s52, {AF if not c.iso else 0x1000000}'); soffs(e, 52, 6)
    e(grp)
    e(f's_and_b32 s48, s37, {c.nshard-1}\ns_lshl_b32 s51, s48, 7\ns_add_u32 s51, s51, {TKC}\ns_cmp_eq_u32 s3, 0\ns_cselect_b32 s58, {rd0-2+c.satom}, 64')
    if c.walk: e('s_waitcnt vmcnt(0)'); walk(e, 'Lw', 3, 4)
    e('s_setprio 2\ns_waitcnt lgkmcnt(0)\ns_barrier')
    e.mark('on_Lw')
    stamp(e, c, 1)
    early_load(e, T0, 5)
    for k in range(Ks):
        for x in stage_items(STG + 32 * k): e(x)
        src_adv(2 if c.pairs else 1 + k)
    e(f's_waitcnt vmcnt({8*Ks})')
    if not c.iso: early_wait(e, T0, (1,))
    stamp(e, c, 2)
    if c.pro == 2: e('s_branch L_fin')
    aload = frag_loads(AQ, 24, L16, 52)
    e(f's_mul_i32 s30, s3, 12288\ns_add_u32 m0, s30, {3*TILE}\ns_mul_i32 s43, s4, 12288\ns_add_u32 s43, s43, s52')
    for k in range(12):
        e(f'buffer_load_dwordx4 v{L16}, s[16:19], s43 offen offset:{1024*(k%4)} sc1 lds')
        if k % 4 == 3 and k < 11: e('s_add_u32 m0, m0, 4096\ns_add_u32 s43, s43, 4096')
    e(f's_mul_i32 s30, s5, 24576\ns_add_u32 s30, s30, {3*TILE}\nv_add_u32 v{T1}, s30, v{L16}\ns_setprio 0\ns_waitcnt vmcnt(0)\ns_barrier')
    e('s_cmp_lg_u32 s3, 0\ns_cbranch_scc1 L_nxg\ns_getreg_b32 s30, hwreg(HW_REG_XCC_ID, 0, 3)\ns_lshl_b32 s30, s30, 3\ns_lshl_b64 s[40:41], 1, s30')
    e(f'v_mov_b32 v{TMP}, s40\nv_mov_b32 v{TMP+1}, s41\ns_mov_b64 exec, 1\nbuffer_atomic_add_x2 {vr(TMP,2)}, off, s[16:19], s39\ns_mov_b64 exec, -1')
    e('L_nxg:')
    for k in range(24):
        e.dsop(f'ds_read_b128 {vr(AQ+4*k)}, v{T1} offset:{1024*k}', ('a', k))
        if k >= 10:
            kk = k - 10; e.dswait(('a', kk))
            e(f'v_max3_u32 v{T0}, v{AQ+4*kk}, v{AQ+4*kk+1}, v{T0 if kk else AQ}\nv_max3_u32 v{T0}, v{T0}, v{AQ+4*kk+2}, v{AQ+4*kk+3}')
    for kk in range(14, 24):
        e.dswait(('a', kk)); e(f'v_max3_u32 v{T0}, v{AQ+4*kk}, v{AQ+4*kk+1}, v{T0}\nv_max3_u32 v{T0}, v{T0}, v{AQ+4*kk+2}, v{AQ+4*kk+3}')
    e(f'v_cmp_eq_u32 vcc, -1, v{T0}\ns_cbranch_vccnz L_aretry\nL_aok:')
    stamp(e, c, 4)
    def sread(k):
        ks = k % 12; base, off = (SL, 0) if k < 12 else (SH, 6144 * (k // 12 - 1))
        e.dsop(f'ds_read_b128 {vr(FB+4*(k%NB))}, v{base+(ks&3)} offset:{off+256*(ks>>2)}', ('s', k))
    def exp_items(S, pg):
        it = [f'v_exp_f32 v{TMP+i}, v{S+i}' for i in range(4)]
        it += [f'v_add_f32 v{TMP+4}, v{TMP}, v{TMP+1}', f'v_add_f32 v{TMP+5}, v{TMP+2}, v{TMP+3}', f'v_cvt_pk_bf16_f32 v{PK}, v{TMP}, v{TMP+1}', f'v_cvt_pk_bf16_f32 v{PK+1}, v{TMP+2}, v{TMP+3}']
        it += [f'v_add_f32 v{TMP+4}, v{TMP+4}, v{TMP+5}', f'ds_write_b64 v{PW}, {vr(PK,2)} offset:{1024*pg}', f'v_cvt_pk_bf16_f32 v{PK+2}, v{TMP+4}, v{TMP+4}', f'ds_write_b16 v{PW2}, v{PK+2} offset:{512*pg}']
        return it
    put = lambda x: e.dsop(x, 'w') if x.startswith('ds_') else e(x)
    stamp(e, c, 3)
    if c.diag: e('s_memtime s[86:87]')
    e('.p2align 3\nL_s:\ns_barrier')
    if c.diag and fine is None: e(f's_memrealtime s[{64+2*5}:{65+2*5}]')
    cyc(0)
    for k in range(NB): sread(k)
    e.dsop(f'ds_read_b32 v{TK}, v{TKA}', 'tk')
    fill = {
            9: ['s_add_u32 s45, s45, 2'], 11: [f's_cmp_ge_u32 s45, {NSLOT}\ns_cselect_b32 s32, {-3*TILE}, s33\ns_cselect_b32 s30, {NSLOT}, 0'], 12: ['s_sub_u32 s45, s45, s30']}
    for b in range(4): fill[13 + 2 * b] = [f'v_add_u32 v{SL+b}, s32, v{SL+b}']
    for i in range(4): fill[16 + 2 * i] = [f'v_mov_b32 v{S1+i}, v{SLO+1}']
    it = [f'v_add_f32 v{S0+i}, v{S0+i}, v{SLO}' for i in range(4)] + exp_items(S0, 0)
    for k, cntk in zip(range(27, 36), (1, 3, 2, 2, 2, 2, 2, 2, 0)):
        fill[k] = it[:cntk]; it = it[cntk:]
    assert not it
    for k in range(36):
        if k % c.wstep == 0: e.dswait(('s', min(k + c.wstep - 1, 35)))
        D, C, a = (SLO, vr(NEGM), 12 + k) if k < 12 else ((S0, 0, k - 12) if k < 24 else (S1, vr(S1), k - 24))
        e(f'v_mfma_f32_16x16x32_bf16 {vr(D)}, {vr(FB+4*(k%NB))}, {vr(AQ+4*a)}, {vr(D) if k % 12 else C}')
        if k == 17: cyc(2)
        if k + NB < 36: sread(k + NB)
        for x in fill.get(k, []): put(x)
    cyc(3)
    for b in range(4): e(f'v_add_u32 v{SH+b}, s32, v{SH+b}')
    e('s_nop 3')
    for x in exp_items(S1, 1): e(x)
    cyc(4)
    e.dsall()
    e(f's_barrier\nds_read_b128 {vr(PFL)}, v{PR2}')
    if fine is None: stamp(e, c, 6)
    if c.diag and fine is None: e('s_memtime s[88:89]')
    X, MLR = AQ, AQ + 64
    SEL, D, VX, VOOB, VF, VFA, VH, VH8, VQ16, VM, U0, U1, VO = 192, 196, 212, 213, 214, 215, 216, 217, 218, 219, 220, 221, 222
    flagload = f's_mov_b32 exec_hi, 0\nbuffer_load_dword v{VF}, v{VFA}, s[16:19], s40 offen sc1\ns_mov_b32 exec_hi, -1'
    def t1_setup():
        e(f'v_lshlrev_b32 v{VFA}, 2, v0\ns_bfe_u32 s41, s37, 0x20002\ns_lshl_b32 s40, s36, 2\ns_add_u32 s40, s40, s41\ns_lshl_b32 s40, s40, 7\ns_add_u32 s40, s40, {FL}')
        e(f'v_lshrrev_b32 v{VH}, 5, v0\nv_and_b32 v{U0}, 31, v0\nv_lshlrev_b32 v{VQ16}, 4, v{U0}\ns_mov_b32 s43, {PS_}\nv_mad_u32_u24 v{VX}, v{VH}, s43, v{VQ16}\nv_lshlrev_b32 v{U0}, 3, v{U0}\nv_mad_u32_u24 v{VM}, v{VH}, s43, v{U0}')
        e(f's_lshl_b32 s41, s41, 8\ns_add_u32 s41, s41, s38\ns_add_u32 s41, s41, 49152')
        e(f's_mul_i32 s42, s37, 3\ns_add_u32 s42, s42, s3\ns_lshl_b32 s27, s42, 9\ns_add_u32 s27, s27, s38\nv_bfrev_b32 v{VOOB}, 1\nv_lshlrev_b32 v{VH8}, 3, v{VH}')
        e(f'v_and_b32 v{U0}, 1, v0\nv_lshlrev_b32 v{U0}, 4, v{U0}\ns_movk_i32 s30, 0x3f80\nv_lshlrev_b32 v{U0}, v{U0}, s30\nv_bfe_u32 v{U1}, v0, 1, 4')
        for d in range(4): e(f'v_cmp_eq_u32 vcc, {(d & 1) + 4 * (d >> 1)}, v{U1}\nv_mov_b64 {vr(D+4*d,2)}, 0\nv_mov_b64 {vr(D+4*d+2,2)}, 0\nv_cndmask_b32 v{SEL+d}, 0, v{U0}, vcc')
        e(f's_lshr_b32 s26, s42, 2\ns_mul_i32 s26, s26, 6\ns_add_u32 s26, s26, s36\ns_lshl_b32 s26, s26, 2\ns_and_b32 s30, s42, 3\ns_add_u32 s26, s26, s30\ns_lshl_b32 s26, s26, 8\ns_add_u32 s26, s26, {XU}')
        e(f'v_bfe_u32 v{VO}, v0, 4, 1\nv_mul_u32_u24 v{VO}, {147456-256}, v{VO}\nv_add_u32 v{VO}, v{VO}, v{VQ16}')
    e('s_waitcnt lgkmcnt(0)')
    check(PFL, TMP, 'L_s_slow')
    e('L_s_back:\ns_bitcmp1_b32 s44, s25\ns_cbranch_scc1 L_s_hook\nL_s_dma:')
    for x in dma_items(): e(x)
    src_adv(2)
    e(f's_waitcnt vmcnt(8)\nL_s_next:'); slot_adv()
    e(f's_cmp_ge_u32 s25, s58\ns_cbranch_scc1 L_s_post\nL_s_postb:'); cyc(5); cyc_save()
    e('s_add_u32 s25, s25, 1\ns_min_u32 s25, s25, 31\ns_branch L_s')
    e('L_s_last:')
    if c.diag: e('s_add_u32 s92, s25, 1\ns_lshl_b32 s92, s92, 1')
    if c.iso or c.cut: e('s_branch L_fin')
    e('s_mov_b32 s44, -1\ns_cmp_eq_u32 s3, 3\ns_cbranch_scc1 L_t1l\ns_branch L_t1')
    mm = lambda r: f'v_mfma_f32_32x32x16_bf16 {vr(D,16)}, {vr(SEL)}, {vr(r)}, {vr(D,16)}'
    e(f'L_t1b:\ns_andn2_b32 s44, s44, s46\nv_lshrrev_b32 v{U1}, v{VH}, s46')
    for i in range(16):
        e(f'v_and_b32 v{U0}, {1 << (2*i)}, v{U1}\nv_cmp_ne_u32 vcc, 0, v{U0}\ns_add_u32 s30, s27, {2*PS_*i}\ns_nop 0\nv_cndmask_b32 v{U0}, v{VOOB}, v{VX}, vcc\nbuffer_load_dwordx4 {vr(X+4*i)}, v{U0}, s[16:19], s30 offen sc1')
    for i in range(16):
        e(f's_waitcnt vmcnt({15-i+(i > c.bsamp)})\n' + mm(X + 4 * i))
        if i == c.bsamp: e(flagload)
    e('s_cmp_eq_u32 s44, 0\ns_cbranch_scc1 L_t1done\ns_branch L_t1w')
    e(f'L_t1s:\ns_sleep {c.t1sleep}\nL_t1:\n{flagload}\ns_sub_u32 s61, s61, 1\ns_cmp_gt_i32 s61, 0\ns_cbranch_scc0 L_t1done')
    e(f'L_t1w:\ns_waitcnt vmcnt(0)\nv_cmp_ne_u32 vcc, -1, v{VF}\ns_and_b32 s46, vcc_lo, s44\ns_cbranch_scc0 L_t1s')
    stamp(e, c, 9)
    if c.diag: e('s_bcnt1_i32_b32 s94, s46')
    e(f's_bcnt1_i32_b32 s30, s46\ns_cmp_gt_u32 s30, {2*c.ndyn}\ns_cbranch_scc1 L_t1b\ns_andn2_b32 s44, s44, s46')
    for r in range(c.ndyn):
        e('s_ff1_i32_b32 s48, s46\ns_bitset0_b32 s46, s48\ns_ff1_i32_b32 s30, s46\ns_lshl_b32 s47, s30, 8\ns_or_b32 s48, s48, s47\ns_lshl_b64 s[56:57], 1, s30\ns_andn2_b32 s46, s46, s56')
        e(f'v_bfe_u32 v{U0}, s48, v{VH8}, 8\nv_cmp_gt_u32 vcc, 32, v{U0}\nv_mad_u32_u24 v{U0}, v{U0}, s43, v{VQ16}\ns_cmp_eq_u32 s46, 0\nv_cndmask_b32 v{U0}, v{VOOB}, v{U0}, vcc')
        e(f'buffer_load_dwordx4 {vr(X+4*r)}, v{U0}, s[16:19], s27 offen sc1')
        if r < c.ndyn - 1: e(f's_cbranch_scc1 L_t1m{r}')
    stubs = []
    if c.osamp:
        e(flagload + '\ns_waitcnt vmcnt(1)')
        for r in range(c.ndyn - 1, -1, -1):
            e(f'L_t1n{r}:\n' + mm(X + 4 * r))
            if r < c.ndyn - 1: stubs.append(f'L_t1m{r}:\n{flagload}\ns_waitcnt vmcnt(1)\ns_branch L_t1n{r}')
        e('s_cmp_lg_u32 s44, 0\ns_cbranch_scc1 L_t1w\nL_t1done:')
    else:
        for r in range(c.ndyn - 1, -1, -1): e(f'L_t1m{r}:\ns_waitcnt vmcnt(0)\n{mm(X+4*r)}')
        e('s_cmp_lg_u32 s44, 0\ns_cbranch_scc1 L_t1\nL_t1done:')
    stamp(e, c, 8)
    uni = f'v_readfirstlane_b32 s47, v{VF}\ns_nop 1\nv_cmp_ne_u32 vcc, s47, v{VF}\ns_cmp_eq_u32 s47, -2\ns_cselect_b32 s30, 1, 0\ns_or_b32 s30, s30, vcc_lo'
    e(f'{uni}\ns_cbranch_scc1 L_t1gen\ns_nop 2\nL_t1back:')
    for i in range(4): e(f'v_cvt_pk_bf16_f32 v{D+i}, v{D+2*i}, v{D+2*i+1}')
    for i in range(4): e(f'v_min_u32 v{D+i}, -2, v{D+i}')
    e(f's_mov_b32 exec_hi, 0\nbuffer_store_dwordx4 {vr(D)}, v{VO}, s[16:19], s26 offen sc1')
    stamp(e, c, 10)
    e('L_fin:')
    dump(e, c)
    e('L_end:\ns_endpgm')
    for x in stubs: e(x)
    mll = [f's_add_u32 s30, s41, {2*PS_*i}\nbuffer_load_dwordx2 {vr(MLR+2*i,2)}, v{VM}, s[16:19], s30 offen sc1' for i in range(16)]
    def weights(M, L):
        e(f'v_max_f32 v{M}, v{MLR}, v{MLR+2}')
        for i in range(2, 16, 2): e(f'v_max3_f32 v{M}, v{M}, v{MLR+2*i}, v{MLR+2*i+2}')
        e(f'v_mov_b32 v{L}, v{M}\ns_nop 1\nv_permlane32_swap_b32 v{M}, v{L}\nv_max_f32 v{M}, v{M}, v{L}')
        for i in range(16): e(f'v_sub_f32 v{MLR+2*i}, v{MLR+2*i}, v{M}')
        for i in range(16): e(f'v_exp_f32 v{MLR+2*i}, v{MLR+2*i}')
    e(f'L_t1l:\ns_cmp_lg_u32 s37, 0\ns_cbranch_scc1 L_fin')
    e(f'v_bfe_u32 v{T0}, v0, 4, 1\nv_mul_u32_u24 v{T0}, {768-128}, v{T0}\nv_add_u32 v{T0}, v{T0}, v1\ns_lshl_b32 s26, s36, 7\ns_add_u32 s26, s26, {XL}')
    e(f'L_t1lw:\n{flagload}\ns_waitcnt vmcnt(0)\nv_cmp_eq_u32 vcc, -1, v{VF}\ns_cmp_eq_u32 vcc_lo, 0\ns_cbranch_scc1 L_t1ld'); budget(e, 'L_t1lw')
    e('L_t1ld:')
    for x in mll: e(x)
    e(f'{uni}\ns_cbranch_scc1 L_t1lg\nv_mov_b32 v{U0}, s47\ns_waitcnt vmcnt(14)\nv_add_f32 v{U1}, v{MLR+1}, v{MLR+3}')
    for i in range(2, 16): e(f's_waitcnt vmcnt({15-i})\nv_add_f32 v{U1}, v{U1}, v{MLR+2*i+1}')
    e(f'L_t1lb:\nv_mov_b32 v{T1}, v{U1}\nv_min_u32 v{U0}, -2, v{U0}\ns_nop 0\nv_permlane32_swap_b32 v{U1}, v{T1}\nv_add_f32 v{U1}, v{U1}, v{T1}\nv_min_u32 v{U1}, -2, v{U1}')
    e(f's_mov_b32 exec_hi, 0\nbuffer_store_dwordx2 {vr(U0,2)}, v{T0}, s[16:19], s26 offen sc1')
    stamp(e, c, 10)
    e('s_branch L_fin')
    e.mark('off_Lw')
    e('L_t1lg:\ns_waitcnt vmcnt(0)')
    weights(U0, U1)
    e(f'v_mul_f32 v{U1}, v{MLR}, v{MLR+1}')
    for i in range(1, 16): e(f'v_fmac_f32 v{U1}, v{MLR+2*i}, v{MLR+2*i+1}')
    e('s_branch L_t1lb')
    e('L_t1gen:')
    for x in mll: e(x)
    for i in range(16): e(f's_add_u32 s30, s27, {2*PS_*i}\nbuffer_load_dwordx4 {vr(X+4*i)}, v{VX}, s[16:19], s30 offen sc1')
    e('s_waitcnt vmcnt(16)')
    weights(U0, U1)
    T = 32
    e('s_waitcnt vmcnt(0)')
    for i in range(16):
        for d in range(4): e(f'v_lshlrev_b32 v{T+2*d}, 16, v{X+4*i+d}\nv_and_b32 v{T+2*d+1}, 0xffff0000, v{X+4*i+d}')
        for d in range(4):
            if i == 0: e(f'v_pk_mul_f32 {vr(D+2*d,2)}, {vr(T+2*d,2)}, {vr(MLR,2)} op_sel_hi:[1,0]')
            else: e(f'v_pk_fma_f32 {vr(D+2*d,2)}, {vr(T+2*d,2)}, {vr(MLR+2*i,2)}, {vr(D+2*d,2)} op_sel_hi:[1,0,1]')
    e('s_nop 1')
    for k in range(8): e(f'v_permlane32_swap_b32 v{D+k}, v{T+k}')
    for k in range(8): e(f'v_add_f32 v{D+k}, v{D+k}, v{T+k}')
    e('s_branch L_t1back')
    e.mark('on_Lw')
    npair = (4608 - NS * ns) // c.nshard // 2
    dyn = c.dyn and not c.iso
    sat = c.satom and dyn
    e(f'L_s_hook:\ns_cmp_lt_u32 s25, {rd0}\ns_cbranch_scc1 L_hd\ns_cmp_lg_u32 s49, 0\ns_cbranch_scc1 L_s_last')
    e(f'v_readfirstlane_b32 s27, v{TK}\ns_cmp_lt_i32 s27, 0\ns_cbranch_scc1 L_s_dry')
    decode(1)
    e('L_hd:')
    if sat: e('s_cmp_lt_u32 s25, s58\ns_cbranch_scc1 L_h1\ns_mov_b32 s50, 1')
    if sat and c.alat: e('s_memrealtime s[78:79]\ns_waitcnt lgkmcnt(0)\ns_atomic_add s50, s[16:17], s51 glc\ns_waitcnt lgkmcnt(0)\ns_memrealtime s[90:91]')
    elif sat: e('s_atomic_add s50, s[16:17], s51 glc')
    e('L_h1:')
    for k in range(Ks):
        e(f's_cmp_lg_u32 s25, s{46+k}\ns_cbranch_scc1 ' + (f'L_hu{k}' if k < Ks - 1 else 'L_s_dma'))
        for x in unstage_items(STG + 32 * k, 24, TMP + 6): e(x)
        e(f's_waitcnt vmcnt(0) lgkmcnt(0)\ns_branch L_s_next\nL_hu{k}:')
    e('L_s_dry:\ns_mov_b32 s49, 1\ns_mov_b32 s58, 64')
    t1_setup()
    e('s_waitcnt vmcnt(0)\ns_branch L_s_next')
    e(f'L_s_post:\ns_cmp_eq_u32 s25, {rd0-2}\ns_cbranch_scc1 L_draw')
    if dyn: e(('s_waitcnt lgkmcnt(0)\ns_mov_b32 s30, s50' if sat else f'v_readfirstlane_b32 s30, v{TA}') + f'\ns_add_u32 s30, s30, 1\ns_mul_i32 s56, s30, {c.nshard}\ns_add_u32 s56, s56, s48\ns_lshl1_add_u32 s56, s56, {NS*ns}\ns_cmp_lt_u32 s30, {npair}\ns_cselect_b32 s56, s56, -1')
    else: e(f's_sub_u32 s30, s25, {rd0-1}\ns_mul_i32 s56, s30, {NS}\ns_add_u32 s56, s56, s35\ns_lshl1_add_u32 s56, s56, {NS*ns}\ns_cmp_lt_u32 s25, 9\ns_cselect_b32 s56, s56, -1')
    e(f'v_mov_b32 v{TMP+6}, s56\nds_write_b32 v{TKA}, v{TMP+6}\ns_waitcnt lgkmcnt(0)\ns_cbranch_scc0 L_s_postb\nL_draw:')
    if dyn and not sat: e(f'v_mov_b32 v{TA}, 1\ns_mov_b64 exec, 1\nbuffer_atomic_add v{TA}, off, s[16:19], s51 sc0\ns_mov_b64 exec, -1')
    e('s_branch L_s_postb')
    flush_deferred(e)
    e(f'L_aretry:\nv_min_u32 v{T1}, 47, v0\nv_lshlrev_b32 v{T1}, 9, v{T1}\nL_aw:\ns_sub_u32 s61, s61, 1\ns_cmp_gt_i32 s61, 0\ns_cbranch_scc0 L_aok')
    e(f'buffer_load_dword v{T0}, v{T1}, s[16:19], s52 offen sc1\ns_waitcnt vmcnt(0)\nv_cmp_eq_u32 vcc, -1, v{T0}\ns_cbranch_vccz L_aload\ns_sleep 4\ns_branch L_aw')
    e('L_aload:')
    for x, _, _ in aload: e(x)
    validate(e, aload, T0)
    e('s_cbranch_vccnz L_aretry\ns_branch L_aok')
    e('L_s_slow:'); first_look(PFL, TMP, 'L_s_back', 'sf')
    e(f'v_max3_f32 v{TMP}, v{S0}, v{S0+1}, v{S0+2}\nv_max3_f32 v{TMP}, v{TMP}, v{S0+3}, v{S1}\nv_max3_f32 v{TMP}, v{TMP}, v{S1+1}, v{S1+2}\nv_max_f32 v{TMP}, v{TMP}, v{S1+3}')
    xsum16_32(e, TMP, TMP + 1, 'v_max_f32')
    e(f's_lshl_b32 s30, s4, 7\nv_add_u32 v{TMP+3}, s30, v{MXO}')
    e(f'ds_write_b32 v{TMP+3}, v{TMP}\ns_waitcnt lgkmcnt(0)\ns_barrier')
    e(f'ds_read2_b32 {vr(TMP,2)}, v{MXO} offset0:0 offset1:32\ns_waitcnt lgkmcnt(0)\nv_max_f32 v{TMP}, v{TMP}, v{TMP+1}')
    quant(TMP)
    e(f'v_max_f32 v{TMP+1}, 0, v{TMP}\nv_cndmask_b32 v{TMP}, v{TMP+1}, v{TMP}, s[28:29]\ns_mov_b64 s[28:29], 0')
    for i in range(4): e(f'v_sub_f32 v{NEGM+i}, v{NEGM+i}, v{TMP}\nv_sub_f32 v{S0+i}, v{S0+i}, v{TMP}\nv_sub_f32 v{S1+i}, v{S1+i}, v{TMP}')
    for x in exp_items(S0, 0) + exp_items(S1, 1): e(x)
    e('s_waitcnt lgkmcnt(0)\ns_barrier\ns_branch L_s_back')

def code_touch(e, c):
    nl = c.code_bytes // 128 // 32; lb = e.label('L_pc')
    e(f's_getpc_b64 s[24:25]\n{lb}:\ns_sub_u32 s24, s24, {lb}-{KNAME}\ns_subb_u32 s25, s25, 0\ns_lshr_b32 s30, s6, 3\ns_mul_i32 s30, s30, {nl*128}')
    e(f'v_lshl_add_u32 v2, v0, 7, s30\ns_mov_b64 exec, {(1<<nl)-1}\nglobal_load_dword v55, v2, s[24:25]\ns_mov_b64 exec, -1')

def helper_extra(e, c):
    e('L_extra:'); late_consts(e); e('s_waitcnt lgkmcnt(0)')
    if c.touch:
        e('s_cmp_lg_u32 s7, 7\ns_cbranch_scc1 L_x6'); code_touch(e, c); e('s_endpgm\nL_x6:')
    e('s_cmp_ge_u32 s2, 48\ns_cbranch_scc1 L_end\ns_cmp_lg_u32 s7, 6\ns_cbranch_scc1 L_end')
    e('s_getreg_b32 s30, hwreg(HW_REG_XCC_ID, 0, 4)\ns_cmp_ge_u32 s30, 8\ns_cbranch_scc1 L_end\ns_lshl_b32 s30, s30, 3\ns_lshl_b64 s[32:33], 1, s30')
    e(f's_and_b32 s30, s2, 1\ns_lshl_b32 s30, s30, 7\nv_mov_b32 v2, s32\nv_mov_b32 v3, s33\ns_mov_b64 exec, 1\nbuffer_atomic_add_x2 v[2:3], off, s[20:23], s30 offset:8\ns_endpgm')

def gen(c):
    e = E()
    nwg = 256
    head = f'; @launch grid=({nwg},1,1) block=(512,1,1) lds={LDS_BYTES}\n.amdgcn_target "amdgcn-amd-amdhsa--gfx950"\n.text\n'
    kstart(e, KNAME)
    stamp(e, c, 0)
    e(f'v_lshrrev_b32 v1, 6, v0\nv_and_b32 v0, 63, v0\nv_readfirstlane_b32 s7, v1')
    for r, nm in ((8, 'feat_hi'), (98, 'q'), (12, 'feat_lo'), (16, 'ws'), (20, 'dbg')): e(f's_load_dwordx2 s[{r}:{r+1}], s[0:1], {KA[nm]}')
    e(f's_cmpk_ge_u32 s2, {nwg}\ns_cbranch_scc1 L_end')
    if c.rot: e(f's_xor_b32 s2, s2, {c.rot}')
    e('s_mov_b32 s6, s2\ns_and_b32 s3, s7, 3')
    e('s_lshr_b32 s2, s2, 2\ns_and_b32 s33, s6, 3\ns_cbranch_scc0 L_hent')
    e('s_mul_i32 s35, s2, 3\ns_add_u32 s35, s35, s33\ns_sub_u32 s35, s35, 1')
    e(f's_bitcmp1_b32 {c.smask}, s7\ns_cbranch_scc0 L_strm\ns_mov_b32 s31, s7\ns_mov_b32 s30, s35\ns_mov_b32 s32, 12\ns_branch L_tch')
    if c.sptouch: e('L_hent:\ns_bitcmp1_b32 48, s7\ns_cbranch_scc0 L_hq')
    else: e('L_hent:\ns_cmp_ge_u32 s2, 60\ns_cbranch_scc1 L_spare\ns_cmp_lt_u32 s7, 4\ns_cbranch_scc1 L_hq\ns_cmp_gt_u32 s7, 5\ns_cbranch_scc1 L_extra')
    e('s_mov_b32 s31, 2\ns_and_b32 s30, s2, 62\ns_add_u32 s30, s30, s3\ns_mov_b32 s32, 36')
    e('L_tch:\ns_lshl3_add_u32 s34, s31, 24\ns_load_dwordx2 s[96:97], s[0:1], s34')
    e('s_mul_i32 s30, s30, s32\nv_add_u32 v2, s30, v0\nv_mul_u32_u24 v3, 0xaaab, v2\nv_lshrrev_b32 v3, 18, v3')
    e('s_cmp_eq_u32 s31, 3\ns_cselect_b32 s30, 6, 0\nv_mad_u32_u24 v2, v3, s30, v2\nv_lshlrev_b32 v2, 7, v2')
    e('s_bfm_b64 exec, s32, 0\ns_waitcnt lgkmcnt(0)\nglobal_load_dword v55, v2, s[96:97]\ns_mov_b64 exec, -1\ns_cmp_lg_u32 s33, 0\ns_cbranch_scc1 L_strm')
    if not c.sptouch: e('s_endpgm')
    e('L_hq:')
    if c.sptouch: e('s_cmp_ge_u32 s2, 60\ns_cbranch_scc1 L_spare\ns_cmp_ge_u32 s7, 4\ns_cbranch_scc1 L_extra')
    e('s_lshr_b32 s30, s2, 1\ns_lshl2_add_u32 s30, s30, s7\ns_min_u32 s30, s30, 0x5f\ns_bitcmp1_b32 s2, 0\ns_cselect_b32 s31, 0x60, 0\ns_add_u32 s30, s30, s31\ns_lshl_b32 s30, s30, 7\nv_mov_b32 v3, s30')
    e('s_mov_b64 exec, 1\ns_waitcnt lgkmcnt(0)\nglobal_load_dword v255, v3, s[98:99]\ns_mov_b64 exec, -1')
    e('s_cmp_lt_u32 s2, 48\ns_cbranch_scc1 L_tail\ns_branch L_pf\nL_strm:')
    streamer(e, c)
    e.mark('off_Lw')
    role_spare(e, c); helper_extra(e, c); role_pf(e, c); role_tail(e, c)
    if c.walk:
        for nm in ('Lw', 'Lv'): e.place_pads(nm, 4, c.walk)
    e(f'.fill ({c.code_bytes} - (. - {KNAME})) / 4, 4, 0xbf800000\ns_endpgm\ns_endpgm')
    return head + e.text() + '.section .rodata,"a"\n' + kdesc(KNAME, 256, 100, 256)

if __name__ == '__main__':
    c = Cfg()
    for a in sys.argv[2:]:
        k, v = a.split('='); setattr(c, k, eval(v))
    t = gen(c)
    open(sys.argv[1], 'w').write(t)
    print(hazard.check(t), 'hazards')
```

```python
import sys, math
from common import *
import hazard
KNAME = 'standalone__detection_seg_detr_decoder__vision_kernel'
QF, TF, AF = 0x0, 0x6000, 0xC000
UF, HF, ST, GF = 0x18000, 0x24000, 0x2A000, 0x2C000
XU, XL, FL = 0x44000, 0x8C000, 0x8D000
TKC = 0x98000
WCF, YF, DG, PART = 0xA0000, 0x130000, 0x180000, 0x200000
PS_ = 49152 + 1024
LOG2E = 1.4426950408889634
TILE = 30720; NSLOT = 5; PB = TILE * NSLOT
MXB = PB + 5120; TKW = MXB + 256
LDS_BYTES = 159744
NH = 64
BUDGET = 2000000

class Cfg:
    diag = False; jp = 31; pf = True; touch = 's'; xcearly = True; pflat = True; latlate = False; sptouch = False; xone = False; rot = 0; oflag = ''; ewb = False; pwb = False
    cu = ((1, 4, 7), (2, 6, 4), (3, 7, 1), (0, 5, 2)); rd0 = 9; dyn = True; nshard = 4; satom = True; alat = False; edraw = 0; barx = 11; late1 = True; n1 = 24; tfl = ''; tlbw = 0; tfull = False; sprio = 0
    wstep = 2; xprio = 0; ndefer = 4; nx = (8, 0, 0)
    code_bytes = 0x7000; iso = False; pro = 0; hot = False; cut = 0; fine = None; tl = False; enc = None; walk = 100
    local = True; weave = 16; smask = 15; pnt = ''
    hookx = 5; t1sleep = 0; ndyn = 8; bsamp = 6; osamp = True; pairs = True; tpos = (1, 2)

def stamp(e, c, k):
    if c.diag: e(f's_memrealtime s[{64+2*k}:{65+2*k}]')
def dump(e, c):
    if not c.diag: return
    if c.enc:
        lo, hi, wmask, k = c.enc
        e(f's_waitcnt lgkmcnt(0)\ns_cmp_lt_u32 s2, {lo}\ns_cbranch_scc1 L_end\ns_cmp_ge_u32 s2, {hi}\ns_cbranch_scc1 L_end\ns_bitcmp1_b32 {wmask}, s7\ns_cbranch_scc0 L_end')
        e(f's_sub_u32 s30, s{64+2*k}, s64\ns_min_u32 s30, s30, 5000\ns_lshl_b32 s30, s30, 3\ns_add_u32 s30, s30, 4000')
        e('L_enc:\ns_memrealtime s[32:33]\ns_waitcnt lgkmcnt(0)\ns_sub_u32 s31, s32, s64\ns_cmp_lt_u32 s31, s30\ns_cbranch_scc1 L_enc')
        return
    e('s_waitcnt lgkmcnt(0)\ns_mov_b64 exec, 1')
    e(f's_lshl_b32 s60, s2, 3\ns_add_u32 s60, s60, s7\ns_lshl_b32 s60, s60, 6\ns_add_u32 s60, s60, {DG}\nv_mov_b32 v1, 0')
    for k in range(16): e(f'v_mov_b32 v2, s{64+2*k}\nbuffer_store_dword v2, v1, s[16:19], s60 offen offset:{4*k}')

def late_consts(e):
    e(f's_mov_b32 s18, {SZ["ws"]}\ns_mov_b32 s19, 0x20000\ns_mov_b32 s22, {SZ["dbg"]}\ns_mov_b32 s23, 0x20000\ns_mov_b32 s61, {BUDGET}')
def budget(e, lp): e(f's_sub_u32 s61, s61, 1\ns_cmp_gt_i32 s61, 0\ns_cbranch_scc1 {lp}')
def early_load(e, v, sqh):
    e(f's_lshl_b32 s60, s{sqh}, 7\ns_mov_b64 exec, 1\nbuffer_load_dwordx4 {vr(v)}, off, s[20:23], s60 sc1\ns_mov_b64 exec, -1')
def early_wait(e, v, words):
    lp = e.label('L_ew')
    e(f'{lp}:\nv_readfirstlane_b32 s30, v{v+words[0]}')
    if len(words) > 1: e(f'v_readfirstlane_b32 s31, v{v+words[1]}\ns_and_b32 s30, s30, s31')
    e(f's_cmp_lg_u32 s30, 0\ns_cbranch_scc0 {lp}_r\n{lp}_d:')
    e.deferred.append(f'{lp}_r:\ns_sleep 2\ns_mov_b64 exec, 1\nbuffer_load_dwordx4 {vr(v)}, off, s[20:23], s60 sc1\ns_mov_b64 exec, -1\ns_waitcnt vmcnt(0)\ns_sub_u32 s61, s61, 1\ns_cmp_gt_i32 s61, 0\ns_cbranch_scc1 {lp}\ns_branch {lp}_d')
def late_addr(e, va): e(f'v_and_b32 v{va}, 1, v0\nv_lshlrev_b32 v{va}, 7, v{va}')
def late_load(e, v, va): e(f's_mov_b64 exec, 3\nbuffer_load_dwordx2 {vr(v,2)}, v{va}, s[20:23], 0 offen offset:16 sc1\ns_mov_b64 exec, -1')
def late_wait(e, v, va):
    lp = e.label('L_lw')
    e(f'{lp}:\nv_and_b32 v{v}, v{v}, v{v+1}\nv_cmp_eq_u32 vcc, 0, v{v}\ns_and_b32 s30, vcc_lo, 3\ns_cbranch_scc1 {lp}_r\n{lp}_d:')
    e.deferred.append(f'{lp}_r:\ns_sleep 8\ns_mov_b64 exec, 3\nbuffer_load_dwordx2 {vr(v,2)}, v{va}, s[20:23], 0 offen offset:16 sc1\ns_mov_b64 exec, -1\ns_waitcnt vmcnt(0)\ns_sub_u32 s61, s61, 1\ns_cmp_gt_i32 s61, 0\ns_cbranch_scc1 {lp}\ns_branch {lp}_d')
def flag_set(e, base, sidx, t):
    sk = e.label('L_fs')
    e(f's_cmp_lg_u32 s3, 0\ns_cbranch_scc1 {sk}\ns_lshl_b32 s30, s{sidx}, 7\ns_add_u32 s30, s30, {base}\nv_mov_b32 v{t}, 1\ns_mov_b64 exec, 1\nbuffer_store_dword v{t}, off, s[16:19], s30 sc1\ns_mov_b64 exec, -1\n{sk}:')
def flag_wait0(e, base, n, t, late=False):
    sk = e.label('L_fw')
    e(f's_cmp_lg_u32 s3, 0\ns_cbranch_scc1 {sk}')
    if late: late_addr(e, 1); late_load(e, t, 1); e('s_waitcnt vmcnt(0)'); late_wait(e, t, 1)
    e(f'v_min_u32 v1, {n-1}, v0\nv_lshlrev_b32 v1, 7, v1\ns_mov_b32 s30, {base}\n{sk}_l:\nbuffer_load_dword v{t}, v1, s[16:19], s30 offen sc1\ns_waitcnt vmcnt(0)\nv_cmp_eq_u32 vcc, -1, v{t}\ns_cbranch_vccz {sk}\ns_sleep 8')
    budget(e, f'{sk}_l')
    e(f'{sk}:\ns_barrier')

def validate(e, loads, t, younger=0, after=None):
    first = True
    for i, (_, r, n) in enumerate(loads):
        e(f's_waitcnt vmcnt({len(loads)-1-i+younger})')
        if after: after(i)
        rs = list(range(r, r + n))
        if first:
            e(f'v_max_u32 v{t}, v{rs[0]}, v{rs[1]}'); rs = rs[2:]; first = False
        while rs:
            e(f'v_max3_u32 v{t}, v{t}, v{rs[0]}, v{rs[1]}'); rs = rs[2:]
    e(f'v_cmp_eq_u32 vcc, -1, v{t}')
def gather(e, loads, t, after=None, extra=()):
    lp = e.label('L_g')
    e(f'{lp}:')
    for x, _, _ in loads: e(x)
    for x in extra: e(x)
    e('s_sub_u32 s61, s61, 1\ns_cmp_gt_i32 s61, 0\ns_cselect_b64 s[62:63], -1, 0')
    validate(e, loads, t, len(extra), after)
    e(f's_and_b64 vcc, vcc, s[62:63]\ns_cbranch_scc1 {lp}')
def frag_loads(dst, n, voff, sreg0, flags=' sc1'):
    return [(f'buffer_load_dwordx4 {vr(dst+4*k)}, v{voff}, s[16:19], s{sreg0+k//4} offen offset:{1024*(k%4)}{flags}', dst + 4 * k, 4) for k in range(n)]
def soffs(e, s0, n):
    for k in range(1, n): e(f's_add_u32 s{s0+k}, s{s0}, {4096*k}')
def tile_off(e, vo, q, g, t):
    e(f'v_lshrrev_b32 v{vo}, 1, v{g}\nv_lshlrev_b32 v{vo}, 8, v{vo}\nv_lshl_add_u32 v{vo}, v{q}, 4, v{vo}')
def hstore(e, text, local):
    if not local: e(text + ' sc1'); return
    lb = e.label('L_hs')
    e(f's_cmp_lg_u32 s59, 0\ns_cbranch_scc0 {lb}\n{text}\n{lb}_b:')
    e.deferred.append(f'{lb}:\n{text} sc1\ns_branch {lb}_b')
def flush_deferred(e):
    for x in e.deferred: e(x)
    e.deferred = []
def pack_store(e, D, P, voff, soff, keep=None, local=False):
    e(f'v_cvt_pk_bf16_f32 v{P}, v{D}, v{D+1}\nv_cvt_pk_bf16_f32 v{P+1}, v{D+2}, v{D+3}\nv_min_u32 v{P}, -2, v{P}\nv_min_u32 v{P+1}, -2, v{P+1}')
    e(f'v_mov_b64 {vr(keep,2)}, {vr(P,2)}' if keep else 's_nop 0')
    e(f'v_permlane16_swap_b32 v{P}, v{P+2}\nv_permlane16_swap_b32 v{P+1}, v{P+3}')
    e('s_mov_b32 exec_lo, 0xffff\ns_mov_b32 exec_hi, 0xffff')
    hstore(e, f'buffer_store_dwordx4 {vr(P)}, v{voff}, s[16:19], s{soff} offen', local)
    e('s_mov_b64 exec, -1')
def local_flag(e, v, n=24):
    e(f'v_readfirstlane_b32 s56, v{v}\nv_readfirstlane_b32 s57, v{v+1}\ns_getreg_b32 s30, hwreg(HW_REG_XCC_ID, 0, 4)\ns_lshl_b32 s30, s30, 3')
    e(f's_lshr_b64 s[56:57], s[56:57], s30\ns_and_b32 s56, s56, 0xff\ns_cmp_eq_u32 s56, {n}\ns_cselect_b32 s59, 1, 0\ns_cmp_lt_u32 s30, 64\ns_cselect_b32 s59, s59, 0')

def rows_src(e, vo, stride, t0, t1, t2):
    e('s_lshl_b32 s30, s3, 1\ns_lshr_b32 s30, 0x78, s30\ns_and_b32 s30, s30, 3')
    e(f's_mul_i32 s31, s3, {4*stride}')
    for b in range(3):
        e(f'v_add_u32 v{t0}, {64*b}, v0\nv_mul_u32_u24 v{t1}, 1366, v{t0}\nv_lshrrev_b32 v{t1}, 16, v{t1}')
        e(f'v_mul_u32_u24 v{t2}, 48, v{t1}\nv_sub_u32 v{t0}, v{t0}, v{t2}\nv_lshl_or_b32 v{t2}, v{t1}, 2, s30\nv_xor_b32 v{t0}, v{t0}, v{t2}')
        e(f'v_mul_u32_u24 v{t1}, {stride}, v{t1}\nv_lshl_add_u32 v{t0}, v{t0}, 4, v{t1}\nv_add_u32 v{vo+b}, s31, v{t0}')
def rows_dma(e, vo, srd, soff, ldsbase, ntile, stride, fl=''):
    e(f's_mul_i32 s30, s3, 3072\ns_add_u32 m0, s30, {ldsbase}')
    lp = e.label('L_rd')
    if ntile > 1: e(f's_mov_b32 s31, {ntile}\n{lp}:')
    for b in range(3):
        e(f's_nop 0\nbuffer_load_dwordx4 v{vo+b}, {srd}, s{soff} offen{fl} lds\ns_add_u32 m0, m0, {1024 if b < 2 else 12288-2048}')
    if ntile > 1: e(f's_add_u32 s{soff}, s{soff}, {16*stride}\ns_sub_u32 s31, s31, 1\ns_cmp_lg_u32 s31, 0\ns_cbranch_scc1 {lp}')
def rows_rd(e, va, base, t0, t1, t2):
    e(f'v_and_b32 v{t0}, 15, v0\nv_lshrrev_b32 v{t1}, 2, v{t0}\nv_lshlrev_b32 v{t1}, 1, v{t1}\ns_mov_b32 s30, 0x78\nv_lshrrev_b32 v{t1}, v{t1}, s30\nv_and_b32 v{t1}, 3, v{t1}')
    e(f'v_and_b32 v{t2}, 3, v0\nv_lshl_or_b32 v{t1}, v{t2}, 2, v{t1}\nv_lshrrev_b32 v{t2}, 4, v0\nv_xor_b32 v{t1}, v{t1}, v{t2}')
    e(f'v_mul_u32_u24 v{t0}, 768, v{t0}\nv_lshl_add_u32 v{t0}, v{t1}, 4, v{t0}\nv_add_u32 v{va}, {base}, v{t0}')
    for b in range(1, 4): e(f'v_xor_b32 v{va+b}, {64*b}, v{va}')
def rowgemm(e, va, ntile, BF, AFR, D, P, voff, soff):
    lp = e.label('L_rg')
    e(f's_mov_b32 s31, {ntile}\n{lp}:')
    for ks in range(12): e(f'ds_read_b128 {vr(AFR+4*ks)}, v{va+(ks&3)} offset:{256*(ks>>2)}')
    for ks in range(12):
        e(f's_waitcnt lgkmcnt({11-ks})\nv_mfma_f32_16x16x32_bf16 {vr(D)}, {vr(AFR+4*ks)}, {vr(BF+4*ks)}, {vr(D) if ks else 0}')
    for b in range(4): e(f'v_add_u32 v{va+b}, 12288, v{va+b}')
    e('s_nop 3')
    pack_store(e, D, P, voff, soff)
    e(f's_add_u32 s{soff}, s{soff}, 512\ns_sub_u32 s31, s31, 1\ns_cmp_lg_u32 s31, 0\ns_cbranch_scc1 {lp}')
def slab128_src(e, vo, stride, t0, t1):
    e(f'v_lshrrev_b32 v{vo}, 3, v0\nv_mul_u32_u24 v{vo}, {stride}, v{vo}')
    e(f'v_bfe_u32 v{t0}, v0, 4, 1\ns_and_b32 s30, s3, 1\ns_lshl_b32 s30, s30, 1\nv_or_b32 v{t0}, s30, v{t0}\nv_lshlrev_b32 v{t0}, 1, v{t0}')
    e(f'v_and_b32 v{t1}, 7, v0\nv_xor_b32 v{t0}, v{t0}, v{t1}\nv_lshl_add_u32 v{vo}, v{t0}, 4, v{vo}')
def slab128_dma(e, vo, srd, sj, stride, ldsbase, n=12, srow=None):
    e(f's_lshl_b32 s34, s{sj}, 7\ns_mul_i32 s30, s3, {8*stride}\ns_add_u32 s34, s34, s30\ns_lshl_b32 s30, s3, 10\ns_add_u32 m0, s30, {ldsbase}')
    lp = e.label('L_sl')
    if srow: e(f's_add_u32 s34, s34, s{srow}')
    e(f's_mov_b32 s31, {n}\n{lp}:\nbuffer_load_dwordx4 v{vo}, {srd}, s34 offen lds')
    e(f's_add_u32 s34, s34, {32*stride}\ns_add_u32 m0, m0, 4096\ns_sub_u32 s31, s31, 1\ns_cmp_lg_u32 s31, 0\ns_cbranch_scc1 {lp}')
def slab128_rd(e, vo, t0, t1):
    e(f'v_bfe_u32 v{t0}, v0, 2, 2\nv_lshrrev_b32 v{t1}, 4, v0\nv_lshlrev_b32 v{vo}, 10, v{t1}\nv_lshl_add_u32 v{vo}, v{t0}, 7, v{vo}')
    e(f'v_lshrrev_b32 v{t0}, 1, v{t0}\nv_and_b32 v{t1}, 1, v{t1}\nv_lshl_or_b32 v{t0}, v{t1}, 1, v{t0}\nv_lshl_add_u32 v{vo}, v{t0}, 5, v{vo}')
    e(f'v_and_b32 v{t0}, 3, v0\nv_lshl_add_u32 v{vo}, v{t0}, 3, v{vo}')
def slab32_src(e, vout, t, stride):
    e(f'v_lshrrev_b32 v{vout}, 1, v0\nv_bfe_u32 v{t}, v0, 4, 1\nv_lshlrev_b32 v{t}, 2, v{t}\nv_xor_b32 v{vout}, v{vout}, v{t}')
    e(f'v_mul_u32_u24 v{vout}, {stride}, v{vout}\nv_and_b32 v{t}, 1, v0\nv_lshl_add_u32 v{vout}, v{t}, 4, v{vout}')
def slab32_rd(e, v0_, v1_, t):
    e(f'v_lshrrev_b32 v{t}, 4, v0\nv_lshlrev_b32 v{v0_}, 8, v{t}\nv_and_b32 v{t}, 1, v{t}\nv_lshl_add_u32 v{v0_}, v{t}, 7, v{v0_}')
    e(f'v_and_b32 v{t}, 15, v0\nv_lshl_add_u32 v{v0_}, v{t}, 3, v{v0_}\nv_xor_b32 v{v1_}, 128, v{v0_}')
def ln_finish(e, s1, s2):
    e(f'v_mul_f32 v{s1}, {fx(1/384)}, v{s1}\nv_mul_f32 v{s2}, {fx(1/384)}, v{s2}\nv_fma_f32 v{s2}, -v{s1}, v{s1}, v{s2}\nv_max_f32 v{s2}, 0, v{s2}\nv_add_f32 v{s2}, {fx(1e-5)}, v{s2}\nv_rsq_f32 v{s2}, v{s2}')
```

```python
from gen_v14_base import *

def wait_a(e):
    lw = e.label('L_aw')
    e.c('bulk traffic stays away from the Q -> T -> A chain: wave 0 polls (with back-off) until A is marked, then until a word of it is there')
    e(f's_cmp_lg_u32 s7, 0\ns_cbranch_scc1 {lw}_d\n{lw}_f:\ns_sleep {32}'); early_load(e, 12, 4)
    e(f's_waitcnt vmcnt(0)\nv_readfirstlane_b32 s30, v13\ns_cmp_lg_u32 s30, 0\ns_cbranch_scc1 {lw}_g'); budget(e, f'{lw}_f'); e(f'{lw}_g:')
    e(f's_mul_i32 s30, s4, 24576\ns_add_u32 s30, s30, {AF}\ns_mov_b64 exec, 1\n{lw}:\ns_sleep 8\nbuffer_load_dword v9, off, s[16:19], s30 offset:256 sc1\ns_waitcnt vmcnt(0)\nv_cmp_ne_u32 vcc, -1, v9\ns_cbranch_vccnz {lw}_x')
    budget(e, lw)
    e(f'{lw}_x:\ns_mov_b64 exec, -1\n{lw}_d:\ns_barrier')

def role_pf(e, c):
    e.c('==== helpers 48..59: pull lat, later w1 / w2, into this die\'s L2 (speed only)')
    e('L_pf:'); late_consts(e); e('s_waitcnt lgkmcnt(0)')
    if c.iso: e('s_endpgm'); return
    if c.pflat:
        load_srds(e, [(8, 'lat_hi'), (12, 'lat_lo')])
        e('s_sub_u32 s5, s2, 48\ns_lshr_b32 s5, s5, 1\ns_lshl_b32 s5, s5, 1\ns_and_b32 s30, s3, 1\ns_add_u32 s5, s5, s30\ns_mul_i32 s5, s5, 24576\nv_lshlrev_b32 v2, 7, v0')
        e('s_waitcnt lgkmcnt(0) vmcnt(0)\ns_cmp_ge_u32 s3, 2\ns_cselect_b64 s[8:9], s[12:13], s[8:9]')
        for k in range(3): e(f's_add_u32 s30, s5, {8192*k}\nbuffer_load_dword v3, v2, s[8:11], s30 offen')
    if c.cut in (3, 6) or c.pro or not c.pf: e('s_endpgm'); return
    load_srds(e, [(8, 'w1'), (12, 'w2')])
    e('s_and_b32 s4, s2, 1\ns_sub_u32 s5, s2, 48\ns_lshr_b32 s5, s5, 1\ns_lshl_b32 s5, s5, 2\ns_add_u32 s5, s5, s3\ns_mul_i32 s5, s5, 49152\nv_lshlrev_b32 v2, 7, v0')
    wait_a(e)
    e('s_waitcnt lgkmcnt(0)\ns_cmp_eq_u32 s4, 0\ns_cselect_b64 s[24:25], s[8:9], s[12:13]\ns_cselect_b64 s[8:9], s[12:13], s[8:9]')
    for m in range(2):
        for k in range(6): e(f's_add_u32 s30, s5, {8192*k}\nbuffer_load_dword v3, v2, s[8:11], s30 offen')
        if m == 0: e('s_mov_b64 s[8:9], s[24:25]')
    e('s_endpgm')
    flush_deferred(e)

def role_spare(e, c):
    e.c('==== helpers 60..63: fill the hand-off buffers with the EMPTY word, then raise a flag in d_debug')
    e('L_spare:'); late_consts(e)
    if c.iso: e('s_waitcnt lgkmcnt(0)\ns_branch L_fin')
    e('s_and_b32 s4, s2, 1\ns_bfe_u32 s5, s2, 0x10001')
    e('v_lshlrev_b32 v2, 4, v0\nv_mov_b64 v[4:5], -1\nv_mov_b64 v[6:7], -1\nv_mov_b32 v8, 1')
    e(f's_mul_i32 s36, s4, 12288\ns_lshl_b32 s36, s36, s5\ns_mul_i32 s30, s7, 3072\ns_add_u32 s36, s36, s30')
    e(f's_cmp_ge_u32 s7, 4\ns_cselect_b32 s30, {TF-12288}, 0\ns_cmp_lg_u32 s5, 0\ns_cselect_b32 s30, {AF}, s30\ns_add_u32 s36, s36, s30\ns_waitcnt lgkmcnt(0)')
    for k in range(3): e(f'buffer_store_dwordx4 v[4:7], v2, s[16:19], s36 offen offset:{1024*k} sc1')
    e(f's_lshl3_add_u32 s30, s2, s7\ns_cmp_lg_u32 s30, {62*8+7}\ns_cbranch_scc1 L_ntk\ns_mov_b32 s30, {TKC}\nbuffer_store_dwordx4 v[4:7], v2, s[16:19], s30 offen sc1\nbuffer_store_dwordx4 v[4:7], v2, s[16:19], s30 offen offset:1024 sc1\nL_ntk:')
    e(f's_lshl_b32 s38, s4, 7\ns_lshl_b32 s30, s5, 2\ns_add_u32 s38, s38, s30\ns_and_b32 s36, s2, 3\ns_lshl_b32 s36, s36, 3\ns_add_u32 s36, s36, s7\ns_lshl_b32 s36, s36, 14\ns_add_u32 s36, s36, {UF}')
    for off in (0, 16):
        sk = e.label('L_sp')
        e(f's_waitcnt vmcnt(0)\ns_barrier\ns_cmp_lg_u32 s7, 0\ns_cbranch_scc1 {sk}\ns_mov_b64 exec, 1\nbuffer_store_dword v8, off, s[20:23], s38 offset:{off} sc1\ns_mov_b64 exec, -1\n{sk}:')
        stamp(e, c, 1 + off // 16)
        if off == 0:
            wait_a(e)
            for k in range(16 if c.cut != 6 else 0):
                e(f'buffer_store_dwordx4 v[4:7], v2, s[16:19], s36 offen offset:{1024*(k%4)} sc1')
                if k % 4 == 3: e('s_add_u32 s36, s36, 4096')
    e('s_branch L_fin')
    flush_deferred(e)

def role_tail(e, c):
    e.c('==== helpers 0..47 (query half, 16-column tile): Q, T, A; weights for the tail; U, h, gelu, out')
    e('L_tail:\ns_waitcnt lgkmcnt(0)')
    load_srds(e, [(44, 'q'), (40, 'wq'), (8, 'wkv'), (12, 'lat_hi'), (24, 'lat_lo')])
    e('s_and_b32 s4, s2, 1\ns_lshr_b32 s5, s2, 1\ns_mul_i32 s35, s4, 12288')
    WF, XF, D, PS = 16, 64, 112, 116
    rows_src(e, 4, 768, 8, 9, 10)
    slab32_src(e, 7, 8, 768)
    e(f's_lshl_b32 s36, s5, 5\ns_mul_i32 s30, s3, {96*768}\ns_add_u32 s36, s36, s30\ns_waitcnt lgkmcnt(0)')
    if c.iso: late_consts(e); e('s_branch L_fin')
    rows_dma(e, 4, 's[44:47]', 35, 49152, 1, 768)
    for k in range(3): e('s_nop 0\nbuffer_load_dwordx4 v7, s[40:43], s36 offen lds\ns_add_u32 m0, m0, 1024\ns_add_u32 s36, s36, 24576')
    stamp(e, c, 1)
    e('s_mul_i32 s32, s5, 12288\ns_lshl_b32 s33, s32, 1')
    for b in range(3): e(f'v_add_u32 v8, {64*b}, v0\nv_mul_u32_u24 v8, 1366, v8\nv_lshrrev_b32 v8, 16, v8\nv_mul_u32_u24 v8, 768, v8\nv_add3_u32 v{124+b}, v8, v{4+b}, s31')
    late_consts(e)
    rows_dma(e, 124, 's[8:11]', 33, 12288, 1, 1536, c.pnt)
    def lat_dma():
        rows_dma(e, 136, 's[12:15]', 32, 24576, 1, 768, c.pnt)
        rows_dma(e, 136, 's[24:27]', 32, 36864, 1, 768, c.pnt)
    e('v_mov_b64 v[136:137], v[4:5]\nv_mov_b32 v138, v6')
    if not c.latlate: lat_dma()
    e('v_lshlrev_b32 v12, 4, v0\nv_and_b32 v2, 15, v0\nv_lshrrev_b32 v3, 4, v0'); tile_off(e, 14, 2, 3, 10)
    rows_rd(e, 120, 12288, 8, 9, 10)
    for k in range(3): e(f's_mul_i32 s30, s3, 192\ns_add_u32 s30, s30, {64*k}\ns_and_b32 s31, s30, 0xc0\ns_and_b32 s30, s30, 0x300\nv_xor_b32 v{121+k}, s31, v120\nv_add_u32 v{121+k}, s30, v{121+k}')
    slab32_rd(e, 6, 7, 8)
    e(f's_mul_i32 s30, s3, 3072\ns_add_u32 s36, s35, s30\ns_add_u32 s37, s36, {TF}\ns_add_u32 s36, s36, {QF}\ns_add_u32 s30, s30, 61440\nv_add_u32 v6, s30, v6\nv_add_u32 v7, s30, v7')
    e(f's_lshl_b32 s38, s5, 9\ns_add_u32 s38, s38, s35\ns_add_u32 s38, s38, {QF}')
    e('s_lshl_b32 s30, s3, 10\nv_add_u32 v9, s30, v12\nv_add_u32 v13, 73728, v9\ns_mov_b32 s30, 0x3f803f80\nv_mov_b64 v[140:141], 0')
    for i in range(4): e(f'v_mov_b32 v{124+i}, s30')
    QW, CS = XF + 12, D + 4
    e.c('---- Q tile = LN(q) @ wq, LN folded: rstd * (q @ wq - mean * colsum(wq)); k split over the four waves')
    e(f's_waitcnt vmcnt({3 if c.latlate else 9})\ns_barrier')
    stamp(e, c, 2)
    early_load(e, 132, 4)
    for k in range(3): e(f'ds_read_b128 {vr(XF+4*k)}, v{121+k} offset:36864')
    for k in range(3): e(f'ds_read_b64_tr_b16 {vr(QW+4*k,2)}, v6 offset:{1024*k}\nds_read_b64_tr_b16 {vr(QW+4*k+2,2)}, v7 offset:{1024*k}')
    e('s_waitcnt lgkmcnt(6)')
    for i in range(12): e(f'v_dot2c_f32_bf16 v140, v{XF+i}, v124\nv_dot2c_f32_bf16 v141, v{XF+i}, v{XF+i}')
    e('s_waitcnt lgkmcnt(0)')
    for k in range(3):
        e(f'v_mfma_f32_16x16x32_bf16 {vr(D)}, {vr(QW+4*k)}, {vr(XF+4*k)}, {vr(D) if k else 0}')
        e(f'v_mfma_f32_16x16x32_bf16 {vr(CS)}, {vr(QW+4*k)}, v[124:127], {vr(CS) if k else 0}')
    for sw in ('16', '32'):
        e(f'v_mov_b64 v[142:143], v[140:141]\ns_nop 1\nv_permlane{sw}_swap_b32 v140, v142\nv_permlane{sw}_swap_b32 v141, v143\nv_add_f32 v140, v140, v142\nv_add_f32 v141, v141, v143')
    p2 = e.label('L_p2')
    if c.pro: stamp(e, c, 8)
    e(f'ds_write_b128 v13, {vr(D)}\nds_write_b128 v13, {vr(CS)} offset:4096\nds_write_b64 v13, v[140:141] offset:8192\ns_waitcnt vmcnt(1) lgkmcnt(0)\ns_barrier')
    e(f's_cmp_lg_u32 s3, 0\ns_cbranch_scc1 {p2}')
    for w in range(1, 4): e(f'ds_read_b64 {vr(142+2*w,2)}, v13 offset:{8192+1024*w}')
    for w in range(1, 4): e(f'ds_read_b128 {vr(XF+8*w)}, v13 offset:{1024*w}\nds_read_b128 {vr(XF+8*w+4)}, v13 offset:{4096+1024*w}')
    e(f'{p2}:')
    if c.pro: stamp(e, c, 15)
    e('s_waitcnt vmcnt(0)')
    if c.pro: stamp(e, c, 9)
    early_wait(e, 132, (0, 1))
    if c.pro: stamp(e, c, 10)
    local_flag(e, 134)
    e(f's_cmp_lg_u32 s3, 0\ns_cbranch_scc1 {p2}_b\ns_waitcnt lgkmcnt(6)')
    for w in range(1, 4): e(f'v_pk_add_f32 v[140:141], v[140:141], {vr(142+2*w,2)}')
    ln_finish(e, 140, 141)
    for w in range(1, 4):
        e(f's_waitcnt lgkmcnt({2*(3-w)})')
        for i in range(0, 8, 2): e(f'v_pk_add_f32 {vr(D+i,2)}, {vr(D+i,2)}, {vr(XF+8*w+i,2)}')
    for i in range(4): e(f'v_fma_f32 v{D+i}, -v140, v{CS+i}, v{D+i}')
    for i in range(4): e(f'v_mul_f32 v{D+i}, v141, v{D+i}')
    pack_store(e, D, PS, 14, 38, local=c.local)
    stamp(e, c, 5)
    e(f'{p2}_b:\ns_add_u32 s38, s38, {TF-QF}\nv_lshlrev_b32 v10, 7, v0\ns_mov_b64 exec, 15\nbuffer_load_dword v11, v10, s[16:19], s38 offen sc1\ns_mov_b64 exec, -1')
    if c.latlate: lat_dma()
    def wread(ms):
        for m in ms:
            for k in range(3): e(f'ds_read_b128 {vr(WF+12*m+4*k)}, v{121+k} offset:{12288*m}')
    wread((0,) if c.latlate else (0, 1, 2))
    e.c('---- T tile = Q @ Wk^T')
    gather(e, frag_loads(XF, 3, 12, 36), 10)
    stamp(e, c, 3)
    e('s_waitcnt lgkmcnt(0)')
    for k in range(3): e(f'v_mfma_f32_16x16x32_bf16 {vr(D)}, {vr(WF+4*k)}, {vr(XF+4*k)}, {vr(D) if k else 0}')
    p3 = e.label('L_p3'); p3b = e.label('L_p3b')
    e('s_nop 7')
    e(f'ds_write_b128 v9, {vr(D)}\ns_waitcnt lgkmcnt(0)\ns_barrier\ns_cmp_lg_u32 s3, 0\ns_cbranch_scc1 {p3}')
    for w in range(1, 4): e(f'ds_read_b128 {vr(XF+4*w)}, v12 offset:{1024*w}')
    for w in (1, 2, 3):
        e(f's_waitcnt lgkmcnt({3-w})')
        for i in range(4): e(f'v_add_f32 v{D+i}, v{D+i}, v{XF+4*w+i}')
    pack_store(e, D, PS, 14, 38, local=c.local)
    e(f'{p3}:')
    if c.latlate: wread((1, 2))
    e.c('---- A tiles = T @ lat^T * scale * log2(e)')
    gather(e, frag_loads(XF, 3, 12, 37), 10)
    stamp(e, c, 4)
    e('s_waitcnt lgkmcnt(0)')
    for k in range(3):
        for t in range(2): e(f'v_mfma_f32_16x16x32_bf16 {vr(D+4*t)}, {vr(WF+12+12*t+4*k)}, {vr(XF+4*k)}, {vr(D+4*t) if k else 0}')
    b2 = e.label('L_b2')
    e(f's_lshl_b32 s38, s5, 9\ns_mul_i32 s31, s3, 12288\ns_add_u32 s38, s38, s31\ns_lshl_b32 s31, s35, 1\ns_add_u32 s38, s38, s31\ns_add_u32 s38, s38, {AF-12288}')
    e(f's_lshl_b32 s30, s3, 12\nv_add_u32 v8, s30, v12\nds_write_b128 v9, {vr(D)} offset:4096\nds_write_b128 v9, {vr(D+4)} offset:8192\ns_waitcnt lgkmcnt(0)\ns_barrier')
    e(f's_add_u32 s30, s3, 1\ns_and_b32 s30, s30, 2\ns_cbranch_scc0 {b2}')
    for w in range(4): e(f'ds_read_b128 {vr(XF+4*w)}, v8 offset:{1024*w}')
    e('s_waitcnt lgkmcnt(2)')
    for i in range(4): e(f'v_add_f32 v{D+i}, v{XF+i}, v{XF+4+i}')
    e('s_waitcnt lgkmcnt(0)')
    for i in range(4): e(f'v_add_f32 v{XF+8+i}, v{XF+8+i}, v{XF+12+i}')
    for i in range(4): e(f'v_add_f32 v{D+i}, v{D+i}, v{XF+8+i}')
    for i in range(4): e(f'v_mul_f32 v{D+i}, {fx(384**-0.5*LOG2E)}, v{D+i}')
    pack_store(e, D, PS, 14, 38)
    stamp(e, c, 5)
    e(f'{b2}:\ns_waitcnt vmcnt(0)\ns_barrier')
    if c.pro or c.cut in (3, 6, 7): e('s_branch L_fin')
    e.c('---- Wc[:, tile] = lat @ (Wv @ wo[:, tile]); w1 / w2 fragments; column sums of w1')
    W1, W2, WC, CS, QR = 128, 176, 224, 248, 252
    load_srds(e, [(40, 'q'), (44, 'out'), (52, 'w1'), (96, 'w2'), (36, 'wo')])
    e('s_lshl_b32 s30, s5, 2\ns_add_u32 s30, s30, s3\ns_mul_i32 s30, s30, 24\nv_add_u32 v4, s30, v0\nv_mul_u32_u24 v5, 0xaaab, v4\nv_lshrrev_b32 v5, 18, v5\nv_mad_u32_u24 v5, v5, 6, v4\nv_lshlrev_b32 v4, 7, v4\nv_lshlrev_b32 v5, 7, v5')
    e('s_mov_b64 exec, 0xffffff\ns_waitcnt lgkmcnt(0)\nbuffer_load_dword v6, v4, s[36:39], 0 offen\nbuffer_load_dword v6, v5, s[8:11], 0 offen offset:768\ns_mov_b64 exec, -1')
    slab32_src(e, 126, 10, 768)
    e('v_mul_u32_u24 v15, 768, v2\nv_lshl_add_u32 v15, v3, 3, v15\ns_lshl_b32 s48, s5, 5\ns_add_u32 s48, s48, s35')
    e(f'buffer_load_dwordx2 {vr(QR,2)}, v15, s[40:43], s48 offen')
    e(f's_lshl_b32 s32, s5, 5\ns_mul_i32 s30, s3, {96*768}\ns_add_u32 s32, s32, s30\ns_mul_i32 s30, s3, 3072\ns_add_u32 m0, s30, 147456\ns_waitcnt vmcnt(0)')
    for k in range(3): e('buffer_load_dwordx4 v126, s[36:39], s32 offen lds\ns_add_u32 m0, m0, 1024\ns_add_u32 s32, s32, 24576')
    slab32_rd(e, 124, 125, 10)
    e('v_add_u32 v4, 147456, v124\nv_add_u32 v5, 147456, v125\ns_waitcnt vmcnt(0)\ns_barrier')
    for ks in range(12):
        e(f'ds_read_b64_tr_b16 {vr(XF+4*ks,2)}, v4 offset:{1024*ks}\nds_read_b64_tr_b16 {vr(XF+4*ks+2,2)}, v5 offset:{1024*ks}')
        if ks % 6 == 5: e('s_waitcnt lgkmcnt(0)')
    e('s_barrier')
    RA = 120
    e('s_mul_i32 s34, s3, 36864\ns_add_u32 s49, s34, 36864')
    def rowstream(srd, stride, ntile, tag):
        for b in range(3):
            e(f'v_add_u32 v8, {64*b}, v0\nv_mul_u32_u24 v10, 1366, v8\nv_lshrrev_b32 v10, 16, v10\nv_mul_u32_u24 v11, 48, v10\nv_sub_u32 v8, v8, v11')
            e(f'v_lshlrev_b32 v11, 2, v10\nv_xor_b32 v8, v8, v11\nv_mul_u32_u24 v10, {stride}, v10\nv_lshl_add_u32 v{4+b}, v8, 4, v10')
        rows_rd(e, RA, 0, 8, 10, 11)
        for b in range(4): e(f'v_add_u32 v{RA+b}, s34, v{RA+b}')
        def issue():
            e('s_mov_b32 m0, s50\ns_mov_b32 s33, s32')
            for q in range(4):
                for b in range(3): e(f'v_xor_b32 v8, {[0,2,3,1][q]*16}, v{4+b}\nbuffer_load_dwordx4 v8, {srd}, s33 offen lds\ns_add_u32 m0, m0, 1024')
                if q < 3: e(f's_add_u32 s33, s33, {8*stride}')
            e(f's_add_u32 s50, s50, 12288\ns_cmp_eq_u32 s50, s49\ns_cselect_b32 s50, s34, s50\ns_xor_b32 s51, s51, 1\ns_cselect_b32 s30, 4, 28\ns_mul_i32 s30, s30, {stride}\ns_add_u32 s32, s32, s30')
        e(f's_mov_b32 s50, s34\ns_mov_b32 s51, 0\ns_mov_b32 s31, -3\ns_mov_b32 s29, 0\ns_branch L_{tag}_i')
        e(f'L_{tag}:\ns_waitcnt vmcnt(24)\ns_cmp_lt_i32 s31, {ntile-2}\ns_cbranch_scc1 L_{tag}_w\ns_waitcnt vmcnt(0)\nL_{tag}_w:')
        for ks in range(12): e(f'ds_read_b128 {vr(WF+4*ks)}, v{RA+(ks&3)} offset:{256*(ks>>2)}')
        e('s_add_u32 s29, s29, 1\ns_cmp_eq_u32 s29, 3\ns_cselect_b32 s29, 0, s29\ns_cselect_b32 s30, -2, 1\ns_mulk_i32 s30, 12288')
        for i in range(0, 22, 2): e(f'v_mov_b64 {vr(WC+i,2)}, {vr(WC+i+2,2)}')
        for ks in range(12):
            e(f's_waitcnt lgkmcnt({11-ks})\nv_mfma_f32_16x16x32_bf16 {vr(D)}, {vr(WF+4*ks)}, {vr(XF+4*ks)}, {vr(D) if ks else 0}')
        for b in range(4): e(f'v_add_u32 v{RA+b}, s30, v{RA+b}')
        e(f's_nop 3\nv_cvt_pk_bf16_f32 v{WC+22}, v{D}, v{D+1}\nv_cvt_pk_bf16_f32 v{WC+23}, v{D+2}, v{D+3}')
        e(f's_cmp_ge_i32 s31, {ntile-3}\ns_cbranch_scc1 L_{tag}_n\nL_{tag}_i:')
        issue()
        e(f'L_{tag}_n:\ns_add_u32 s31, s31, 1\ns_cmp_lt_i32 s31, 0\ns_cbranch_scc1 L_{tag}_i\ns_cmp_lt_i32 s31, {ntile}\ns_cbranch_scc1 L_{tag}')
    e(f's_mul_i32 s32, s3, {96*1536}\ns_add_u32 s32, s32, 768')
    rowstream('s[8:11]', 1536, 6, 'ys')
    e('s_mul_i32 s30, s3, 3072\ns_add_u32 s30, s30, 147456\nv_add_u32 v8, s30, v12\nv_add_u32 v10, 147456, v12')
    for k in range(3): e(f'ds_write_b128 v8, {vr(WC+12+4*k)} offset:{1024*k}')
    e('s_waitcnt lgkmcnt(0)\ns_barrier')
    for ks in range(12): e(f'ds_read_b128 {vr(XF+4*ks)}, v10 offset:{1024*ks}')
    e(f's_cmp_ge_u32 s3, 2\ns_cselect_b32 s12, s24, s12\ns_cselect_b32 s13, s25, s13\ns_and_b32 s32, s3, 1\ns_mul_i32 s32, s32, {192*768}\ns_waitcnt lgkmcnt(0)')
    rowstream('s[12:15]', 768, 12, 'ws')
    e('s_barrier')
    stamp(e, c, 6)
    slab128_src(e, 7, 3072, 10, 11)
    slab128_dma(e, 7, 's[52:55]', 5, 3072, 0)
    e(f's_lshl_b32 s32, s5, 5\ns_mul_i32 s30, s3, {384*768}\ns_add_u32 s32, s32, s30\ns_mul_i32 s33, s3, 12288\ns_add_u32 s33, s33, 49152\ns_mov_b32 m0, s33')
    lp = e.label('L_w2')
    e(f's_mov_b32 s31, 12\n{lp}:\nbuffer_load_dwordx4 v126, s[96:99], s32 offen lds\ns_add_u32 m0, m0, 1024\ns_add_u32 s32, s32, 24576\ns_sub_u32 s31, s31, 1\ns_cmp_lg_u32 s31, 0\ns_cbranch_scc1 {lp}')
    slab128_rd(e, 13, 10, 11)
    e('v_add_u32 v6, s33, v124\nv_add_u32 v7, s33, v125\ns_mov_b32 s30, 0x3f803f80')
    for i in range(4): e(f'v_mov_b32 v{124+i}, s30')
    e('s_lshl_b32 s30, s3, 5\nv_xor_b32 v8, s30, v13\ns_mul_i32 s30, s3, 12288\nv_add_u32 v13, s30, v8')
    e('s_waitcnt vmcnt(12)\ns_barrier')
    for ks in range(12):
        for u in range(2): e(f'ds_read_b64_tr_b16 {vr(WF+4*ks+2*u,2)}, v8 offset:{4096*ks+512*u}')
        if ks % 6 == 5: e('s_waitcnt lgkmcnt(0)')
    for ks in range(12): e(f'v_mfma_f32_16x16x32_bf16 {vr(CS)}, {vr(WF+4*ks)}, v[124:127], {vr(CS) if ks else 0}')
    for t in range(4):
        e(f'v_xor_b32 v10, {32*t}, v13')
        for k in range(3):
            for u in range(2): e(f'ds_read_b64_tr_b16 {vr(W1+12*t+4*k+2*u,2)}, v10 offset:{4096*k+512*u}')
        if t % 2: e('s_waitcnt lgkmcnt(0)')
    e('s_waitcnt vmcnt(0)')
    for ks in range(12):
        e(f'ds_read_b64_tr_b16 {vr(W2+4*ks,2)}, v6 offset:{1024*ks}\nds_read_b64_tr_b16 {vr(W2+4*ks+2,2)}, v7 offset:{1024*ks}')
        if ks % 6 == 5: e('s_waitcnt lgkmcnt(0)')
    late_addr(e, 1); late_load(e, 10, 1); e('s_waitcnt vmcnt(0)'); late_wait(e, 10, 1)
    e('s_barrier')
    e(f's_lshl_b32 s38, s35, 1\ns_mul_i32 s30, s3, 6144\ns_add_u32 s38, s38, s30\ns_add_u32 s38, s38, {UF}'); soffs(e, 38, 2)
    e(f's_lshl_b32 s40, s5, 9\ns_add_u32 s40, s40, s35\ns_add_u32 s40, s40, {HF}')
    e(f's_mul_i32 s43, s3, 3072\ns_add_u32 s43, s43, s35\ns_add_u32 s43, s43, {HF}')
    e(f's_lshl_b32 s49, s5, 2\ns_add_u32 s49, s49, s3\ns_lshl_b32 s49, s49, 9\ns_lshl_b32 s30, s35, 2\ns_add_u32 s49, s49, s30\ns_add_u32 s49, s49, {GF}')
    e(f's_mul_i32 s24, s3, 12288\ns_add_u32 s24, s24, s30\ns_add_u32 s24, s24, {GF}'); soffs(e, 24, 3)
    e('s_lshl_b32 s30, s3, 12\nv_add_u32 v8, s30, v12')
    for t in range(1, 4): e(f'v_xor_b32 v{32+t}, {4096*t}, v8')
    e('v_lshrrev_b32 v11, 2, v2\nv_lshl_add_u32 v11, v11, 4, v2\nv_lshlrev_b32 v11, 4, v11\nv_and_b32 v10, 3, v0')
    for i, r in ((1, 28), (2, 32), (3, 50)): e(f'v_cmp_eq_u32 s[{r}:{r+1}], {i}, v10')
    e(f's_cmp_eq_u32 s3, 0\ns_cselect_b32 s30, -1, 0\nv_and_b32 v{QR}, s30, v{QR}\nv_and_b32 v{QR+1}, s30, v{QR+1}')
    e(f'v_lshlrev_b32 v120, 16, v{QR}\nv_and_b32 v121, 0xffff0000, v{QR}\nv_lshlrev_b32 v122, 16, v{QR+1}\nv_and_b32 v123, 0xffff0000, v{QR+1}')
    c1 = -2 * math.sqrt(2 / math.pi) * LOG2E; c3 = c1 * 0.044715
    e(f'v_mov_b32 v36, {fx(c3)}\nv_mov_b32 v37, {fx(c1)}')
    ld3 = frag_loads(XF, 3, 12, 43)
    early_load(e, 4, 4)
    if c.local:
        for x, _, _ in ld3 + frag_loads(XF, 12, 12, 24) + frag_loads(XF, 6, 12, 38): e(x)
    e('s_waitcnt vmcnt(0)'); local_flag(e, 6)
    stamp(e, c, 7)
    if c.pwb: e('s_or_b32 s30, s3, s5\ns_cbranch_scc1 L_npwb\nbuffer_wbl2 sc1\ns_waitcnt vmcnt(0)\nL_npwb:')
    if c.cut: e('s_branch L_fin')
    e.c('---- U block = sum of the six group sums, weighted by 2^(m_g - max m) / l')
    e(f's_mul_i32 s52, s4, 147456\ns_mul_i32 s30, s5, 6144\ns_add_u32 s52, s52, s30\ns_lshl_b32 s30, s3, 8\ns_add_u32 s52, s52, s30\ns_add_u32 s52, s52, {XU}\ns_add_u32 s53, s52, 4096')
    e(f's_mul_i32 s54, s4, 768\ns_add_u32 s54, s54, {XL}\ns_lshl_b32 s55, s5, 10\ns_add_u32 s55, s55, s30\ns_lshl_b32 s30, s35, 1\ns_add_u32 s55, s55, s30\ns_add_u32 s55, s55, {UF}')
    e('v_lshlrev_b32 v6, 2, v0\nv_lshrrev_b32 v7, 2, v0\nv_lshlrev_b32 v7, 3, v7\nv_lshlrev_b32 v4, 7, v0')
    if c.walk: walk(e, 'Lv', 3, 4)
    e.mark('on_Lv')
    lp = e.label('L_lp')
    e(f's_mov_b64 exec, 63\n{lp}:\nbuffer_load_dword v5, v4, s[16:19], s54 offen sc1\ns_waitcnt vmcnt(0)\nv_cmp_ne_u32 vcc, -1, v5\ns_cbranch_vccnz {lp}_d\ns_sleep 4')
    budget(e, lp)
    e(f'{lp}_d:\ns_mov_b64 exec, -1')
    stamp(e, c, 8)
    XM, XV = 44, 56
    ldx = [(f'buffer_load_dwordx2 {vr(XM+2*g,2)}, v7, s[16:19], s54 offen offset:{128*g} sc1', XM + 2 * g, 2) for g in range(6)]
    ldx += [(f'buffer_load_dword v{XV+2*g}, v6, s[16:19], s{52+g//2} offen offset:{2048*(g%2)} sc1\nbuffer_load_dword v{XV+2*g+1}, v6, s[16:19], s{52+g//2} offen offset:{2048*(g%2)+1024} sc1', XV + 2 * g, 2) for g in range(3)]
    xd = [y for x, _, _ in ldx[6:] for y in x.split('\n')]
    gather(e, ldx[:6], 10, extra=xd if c.xone else ())
    lg = e.label('L_gx')
    if not c.xone:
        for x in xd: e(x)
    e(f'v_max3_f32 v4, v{XM}, v{XM+2}, v{XM+4}\nv_max3_f32 v4, v4, v{XM+6}, v{XM+8}\nv_max_f32 v4, v4, v{XM+10}')
    for g in range(6): e(f'v_sub_f32 v{XM+2*g}, v{XM+2*g}, v4')
    for g in range(6): e(f'v_exp_f32 v{XM+2*g}, v{XM+2*g}')
    e(f'v_mul_f32 v5, v{XM}, v{XM+1}')
    for g in range(1, 6): e(f'v_fmac_f32 v5, v{XM+2*g}, v{XM+2*g+1}')
    e('v_rcp_f32 v5, v5\ns_nop 0')
    for g in range(6): e(f'v_mul_f32 v{XM+2*g}, v{XM+2*g}, v5')
    e(f's_branch {lg}_c\n{lg}:')
    for x, _, _ in ldx[6:]: e(x)
    e(f'{lg}_c:\ns_sub_u32 s61, s61, 1\ns_cmp_gt_i32 s61, 0\ns_cselect_b64 s[62:63], -1, 0\ns_waitcnt vmcnt(0)')
    e(f'v_max3_u32 v10, v{XV}, v{XV+1}, v{XV+2}\nv_max3_u32 v10, v10, v{XV+3}, v{XV+4}\nv_max_u32 v10, v10, v{XV+5}')
    e(f'v_cmp_eq_u32 vcc, -1, v10\ns_and_b64 vcc, vcc, s[62:63]\ns_cbranch_scc1 {lg}')
    stamp(e, c, 15)
    for g in range(6):
        e(f'v_lshlrev_b32 v16, 16, v{XV+g}\nv_and_b32 v17, 0xffff0000, v{XV+g}')
        e(f'v_pk_mul_f32 v[18:19], v[16:17], {vr(XM,2)} op_sel_hi:[1,0]' if g == 0 else f'v_pk_fma_f32 v[18:19], v[16:17], {vr(XM+2*g,2)}, v[18:19] op_sel_hi:[1,0,1]')
    e('v_cvt_pk_bf16_f32 v18, v18, v19\nv_min_u32 v18, -2, v18')
    hstore(e, 'buffer_store_dword v18, v6, s[16:19], s55 offen', c.local)
    def finish(skip):
        e(f's_nop 1\nds_write_b128 v9, {vr(D)}\ns_waitcnt lgkmcnt(0)\ns_barrier\ns_cmp_lg_u32 s3, 0\ns_cbranch_scc1 {skip}')
        for w in range(1, 4): e(f'ds_read_b128 {vr(16+4*w)}, v12 offset:{1024*w}')
        for w in (1, 2, 3):
            e(f's_waitcnt lgkmcnt({3-w})\nv_pk_add_f32 {vr(D,2)}, {vr(D,2)}, {vr(16+4*w,2)}\nv_pk_add_f32 {vr(D+2,2)}, {vr(D+2,2)}, {vr(18+4*w,2)}')
    e.c('---- h tile = q + U @ Wc')
    gather(e, frag_loads(XF, 6, 12, 38), 10, lambda k: e(f'v_mfma_f32_16x16x32_bf16 {vr(D)}, {vr(WC+4*k)}, {vr(XF+4*k)}, {vr(D if k else 120)}'))
    stamp(e, c, 9)
    t3 = e.label('L_t3')
    e('s_nop 0'); finish(t3)
    pack_store(e, D, PS, 14, 40, keep=4, local=c.local)
    e('v_lshlrev_b32 v120, 16, v4\nv_and_b32 v121, 0xffff0000, v4\nv_lshlrev_b32 v122, 16, v5\nv_and_b32 v123, 0xffff0000, v5')
    e(f'{t3}:')
    stamp(e, c, 10)
    e.c('---- g = gelu(LN(h) @ w1), LN folded: rstd * (h @ w1 - mean * colsum(w1))')
    DD, GR, S1 = 96, 88, 84
    def mm3(k):
        e(f'v_mfma_f32_16x16x32_bf16 {vr(GR)}, {vr(XF+4*k)}, {vr(XF+4*k)}, {vr(GR) if k else 0}')
        e(f'v_mfma_f32_16x16x32_bf16 {vr(S1)}, v[124:127], {vr(XF+4*k)}, {vr(S1) if k else 0}')
        for t in (1, 2, 3, 0): e(f'v_mfma_f32_16x16x32_bf16 {vr(DD+4*t)}, {vr(W1+12*t+4*k)}, {vr(XF+4*k)}, {vr(DD+4*t) if k else 0}')
    gather(e, ld3, 10, mm3)
    stamp(e, c, 11)
    e(f'v_cndmask_b32 v{S1+1}, v{GR}, v{GR+1}, s[28:29]\nv_cndmask_b32 v{S1+1}, v{S1+1}, v{GR+2}, s[32:33]\nv_cndmask_b32 v{S1+1}, v{S1+1}, v{GR+3}, s[50:51]')
    for t in range(1, 4): e(f'ds_write_b128 v{32+t}, {vr(DD+4*t)} offset:{4096+1024*t}')
    e(f'ds_write_b64 v9, {vr(S1,2)} offset:20480\ns_waitcnt lgkmcnt(0)\ns_barrier')
    SS = 16
    for w in range(4): e(f'ds_read_b64 {vr(SS+2*w,2)}, v11 offset:{20480+1024*w}')
    for t in range(1, 4): e(f'ds_read_b128 {vr(DD+4*t)}, v8 offset:{4096+1024*t}')
    e(f's_waitcnt lgkmcnt(3)\nv_pk_add_f32 {vr(SS,2)}, {vr(SS,2)}, {vr(SS+2,2)}\nv_pk_add_f32 {vr(SS+4,2)}, {vr(SS+4,2)}, {vr(SS+6,2)}\nv_pk_add_f32 {vr(SS,2)}, {vr(SS,2)}, {vr(SS+4,2)}')
    ln_finish(e, SS, SS + 1)
    pk = lambda op, d, *xs, mod='': [e(f'v_pk_{op}_f32 {vr(d+i,2)}, ' + ', '.join(vr(x + i, 2) if isinstance(x, int) else x for x in xs) + mod) for i in (0, 2)]
    e('s_waitcnt lgkmcnt(1)')
    pk('fma', DD, CS, vr(SS, 2), DD, mod=' op_sel_hi:[1,0,1] neg_lo:[0,1,0] neg_hi:[0,1,0]')
    pk('add', DD + 4, DD + 4, DD + 8); pk('add', DD, DD, DD + 4)
    e('s_waitcnt lgkmcnt(0)'); pk('add', DD, DD, DD + 12)
    pk('mul', DD, DD, vr(SS, 2), mod=' op_sel:[0,1] op_sel_hi:[1,1]')
    G = DD + 4
    pk('mul', G, DD, DD)
    pk('fma', G, G, 'v[36:37]', 'v[36:37]', mod=' op_sel:[0,0,1] op_sel_hi:[1,0,1]')
    pk('mul', G, G, DD)
    for i in range(4): e(f'v_exp_f32 v{G+i}, v{G+i}')
    pk('add', G, G, '1.0', mod=' op_sel_hi:[1,0]')
    for i in range(4): e(f'v_rcp_f32 v{G+i}, v{G+i}')
    pk('mul', DD, DD, G)
    pack_store(e, DD, PS, 14, 49, local=c.local)
    stamp(e, c, 12)
    e.c('---- out tile = h + g @ w2')
    gather(e, frag_loads(XF, 12, 12, 24), 10, lambda k: e(f'v_mfma_f32_16x16x32_bf16 {vr(D)}, {vr(W2+4*k)}, {vr(XF+4*k)}, {vr(D if k else 120)}'))
    stamp(e, c, 13)
    e('s_nop 0'); finish('L_fin' if not c.ewb else 'L_ewb')
    if c.ewb: e.deferred.append('L_ewb:\ns_xor_b32 s30, s3, 1\ns_or_b32 s30, s30, s5\ns_cbranch_scc1 L_fin\nbuffer_wbl2 sc1\ns_branch L_fin')
    e(f'v_cvt_pk_bf16_f32 v4, v{D}, v{D+1}\nv_cvt_pk_bf16_f32 v5, v{D+2}, v{D+3}')
    e('buffer_store_dwordx2 v[4:5], v15, s[44:47], s48 offen' + c.oflag)
    stamp(e, c, 14)
    e('s_branch L_fin')
    flush_deferred(e)
```

```python
from gen_v14_roles import *

class Cap:
    def __init__(s): s.g = []
    def __call__(s, t): s.g.append(t)
    def take(s, e, n):
        while s.g and n > 0:
            t = s.g.pop(0); e(t); n -= t.count('\n') + 1

def streamer(e, c):
    fine = c.fine
    def cyc(k):
        if fine is not None: e(f's_memtime s[{84+2*k}:{85+2*k}]')
    def cyc_save():
        if fine is None: return
        lb = e.label('L_fs')
        e(f's_cmp_lg_u32 s25, {fine}\ns_cbranch_scc1 {lb}\ns_waitcnt lgkmcnt(0)')
        for k in range(6): e(f's_mov_b32 s{66+2*k}, s{84+2*k}')
        e(f'{lb}:')
    NS = 192; rd0 = c.rd0; ns = 2 * rd0 + 4; nt = ' nt' if not c.hot else ''; ch = 1; Ks = Kp = 2
    cus = c.cu; assert all(v[0] < v[1] < rd0 and 0 < v[2] < rd0 for v in cus) and c.hookx < rd0 and c.nshard <= 8
    def select(pairs):
        t = 's_lshr_b32 s30, s6, 3\ns_and_b32 s30, s30, 3'
        for v, cu in enumerate(cus):
            if v: t += f'\ns_cmp_eq_u32 s30, {v}'
            for reg, fn in pairs: t += f'\ns_mov_b32 s{reg}, {fn(cu)}' if v == 0 else f'\ns_cselect_b32 s{reg}, {fn(cu)}, s{reg}'
        return t
    T0, T1, T2, T3 = 2, 3, 4, 5
    L16, LH2, SW = 6, 7, 10
    e(f's_mul_hi_u32 s30, s35, {-(-(1<<32)//24)}\ns_mul_i32 s30, s30, 24\ns_add_u32 s26, s35, s30\ns_lshl_b32 s26, s26, 1')
    e(f's_and_b32 s4, s3, 1\ns_lshr_b32 s5, s3, 1\ns_mul_i32 s42, s5, 48\ns_add_u32 s42, s42, s4\ns_add_u32 s26, s26, s42\ns_mulk_i32 s26, 6144\nv_lshlrev_b32 v{L16}, 4, v0')
    e(f's_mov_b32 s10, {SZ["feat_hi"]}\ns_mov_b32 s11, 0x20000')
    def common2():
        e(f's_lshl2_add_u32 s27, s35, s3\ns_mulk_i32 s27, 1536\nv_add_u32 v{LH2}, 4096, v{L16}')
        e(f's_mov_b32 s14, {SZ["feat_lo"]}\ns_mov_b32 s15, 0x20000\ns_add_u32 s2, s35, {NH}')
    jump_hi = NS * ch * 12288 + (NS * ch // 24) * 294912 - ch * 12288; jump_lo = (NS - 1) * ch * 6144
    def src_adv(k=1):
        if not c.hot: e(f's_add_u32 s26, s26, {k*(12288+jump_hi)}\ns_add_u32 s27, s27, {k*(6144+jump_lo)}')
    def stage_items(B):
        it = [f'buffer_load_dwordx4 {vr(B+4*j)}, v{L16 if j < 4 else LH2}, s[8:11], s26 offen offset:{1024*(j%4)}{nt}' for j in range(6)]
        it.append(f'buffer_load_dwordx4 {vr(B+24)}, v{L16}, s[12:15], s27 offen{nt}')
        it.append(f's_mov_b32 exec_hi, 0\nbuffer_load_dwordx4 {vr(B+28)}, v{L16}, s[12:15], s27 offen offset:1024{nt}\ns_mov_b32 exec_hi, -1')
        return it
    def setup_sw(e):
        e('s_lshl_b32 s41, s4, 1\ns_lshl_b32 s44, s5, 1\ns_mov_b32 s47, 0x78')
        for b in range(3):
            e(f'v_add_u32 v{T0}, {64*b}, v0\nv_mul_u32_u24 v{T1}, 1366, v{T0}\nv_lshrrev_b32 v{T1}, 16, v{T1}')
            e(f'v_mul_u32_u24 v{T2}, 48, v{T1}\nv_sub_u32 v{T0}, v{T0}, v{T2}\nv_lshlrev_b32 v8, 4, v{T2}')
            if b < 2: e(f'v_add_lshl_u32 v{T2}, v{T1}, s41, 2\nv_or_b32 v{T2}, s44, v{T2}\nv_xor_b32 v{T2}, v{T2}, v{T0}\nv_lshl_add_u32 v{SW+6+b}, v{T2}, 4, v8')
            e(f'v_and_or_b32 v{T3}, v{T1}, 1, s44\nv_lshlrev_b32 v{T3}, 2, v{T3}\nv_xor_b32 v{T0}, v{T0}, v{T3}\nv_and_b32 v{T1}, 2, v{T1}\nv_lshrrev_b32 v{T1}, v{T1}, s47')
            e(f'v_and_b32 v{T2}, 3, v{T1}\nv_xor_b32 v{T2}, v{T2}, v{T0}\nv_lshl_add_u32 v{SW+b}, v{T2}, 4, v8')
            e(f'v_bfe_u32 v{T2}, v{T1}, 4, 2\nv_xor_b32 v{T2}, v{T2}, v{T0}\nv_lshl_add_u32 v{T2}, v{T2}, 4, v8\nv_add_u32 v{SW+3+b}, 3072, v{T2}')
        e(f's_mul_i32 s24, s3, 6144\ns_mul_i32 s34, s3, -4608\ns_add_u32 s34, s34, {24576-5120}\ns_add_u32 s31, s24, {PB}')
    def unstage_items(B, slot, tmp):
        it = [f'v_add_u32 v{tmp+(j&1)}, s{slot if j < 6 else 43}, v{SW+j}\nds_write_b128 v{tmp+(j&1)}, {vr(B+4*j)}' for j in range(7)]
        it[6] = f's_add_u32 s43, s{slot}, s34\ns_add_u32 s43, s43, 5120\n' + it[6]
        it.append(f'v_add_u32 v{tmp+1}, s43, v{SW+7}\ns_mov_b32 exec_hi, 0\nds_write_b128 v{tmp+1}, {vr(B+28)}\ns_mov_b32 exec_hi, -1')
        return it
    def dma_items():
        it = []
        for j in range(6):
            it.append(('s_mov_b32 m0, s24' if j == 0 else 's_add_u32 m0, m0, 1024') + f'\ns_nop 0\nbuffer_load_dwordx4 v{SW+j}, s[8:11], s26 offen{nt} lds')
        it.append(f's_add_u32 m0, m0, s34\ns_nop 0\nbuffer_load_dwordx4 v{SW+6}, s[12:15], s27 offen{nt} lds')
        it.append(f's_add_u32 m0, m0, 1024\ns_mov_b32 exec_hi, 0\nbuffer_load_dwordx4 v{SW+7}, s[12:15], s27 offen{nt} lds\ns_mov_b32 exec_hi, -1')
        return it
    def slot_adv(): e(f's_add_u32 s24, s24, {2*TILE}\ns_cmp_ge_u32 s24, s31\ns_cselect_b32 s30, {PB}, 0\ns_sub_u32 s24, s24, s30')
    def decode(odd):
        if c.hot: e('s_mov_b32 s27, s35')
        elif odd: e('s_add_u32 s27, s27, 1')
        e(f's_mul_hi_u32 s30, s27, {-(-(1<<32)//24)}\ns_mul_i32 s30, s30, 24\ns_add_u32 s26, s27, s30\ns_lshl1_add_u32 s26, s26, s42\ns_mulk_i32 s26, 6144\ns_lshl2_add_u32 s27, s27, s3\ns_mulk_i32 s27, 1536')
    def check(PFL, t, slow):
        e(f'v_or3_b32 v{t}, v{PFL}, v{PFL+1}, v{PFL+2}\nv_or_b32 v{t}, v{t}, v{PFL+3}\nv_and_b32 v{t}, 0x40004000, v{t}\nv_cmp_ne_u32 vcc, 0, v{t}\ns_or_b64 vcc, vcc, s[28:29]\ns_cbranch_scc1 {slow}')
    def first_look(PFL, t, back, tag):
        e(f's_cmp_eq_u64 s[28:29], 0\ns_cbranch_scc1 L_{tag}_go\nv_cmp_ne_u32 s[56:57], 0, v{t}')
        e(f'v_pk_max_u16 v{t}, v{PFL}, v{PFL+1}\nv_pk_max_u16 v{t+1}, v{PFL+2}, v{PFL+3}\nv_pk_max_u16 v{t}, v{t}, v{t+1}\nv_lshlrev_b32 v{t+1}, 16, v{t}\nv_max_u32 v{t}, v{t}, v{t+1}')
        e(f'v_cmp_gt_u32 vcc, 0x2b800000, v{t}\ns_or_b64 vcc, vcc, s[56:57]\ns_cbranch_scc1 L_{tag}_go\ns_mov_b64 s[28:29], 0\ns_branch {back}\nL_{tag}_go:')
    def quant(r): e(f'v_add_f32 v{r}, 4.0, v{r}\nv_mul_f32 v{r}, {fx(1/16)}, v{r}\nv_ceil_f32 v{r}, v{r}\nv_mul_f32 v{r}, {fx(16.0)}, v{r}')
    grp = f's_bfe_u32 s36, s6, 0x10002\ns_mul_i32 s36, s36, 3\ns_and_b32 s30, s6, 3\ns_add_u32 s36, s36, s30\ns_sub_u32 s36, s36, 1\ns_lshr_b32 s37, s6, 3\ns_mul_i32 s38, s36, {32*PS_}\ns_add_u32 s38, s38, {PART}'
    grp += f'\ns_lshl_b32 s39, s36, 7\ns_add_u32 s39, s39, {TKC+1024}'
    nost = c.iso or c.cut in (1, 3, 4, 5, 6, 7)

    PH, PL, PR, MPV, LSUM, ONES, LA = 18, 24, 27, 28, 29, 30, 31
    TMP, VA, VL, PFL, PF, XG, ACC, STB = 32, 40, 88, 100, 104, 120, 128, 224
    A2 = [124, 125, 126, 127, 4, 5, 7, 9, 39]
    pa = lambda tt, i: PH + i if tt == 0 else A2[i]
    pstage = [VA, STB]
    e.c('==== streamer waves 4..7: prefetch (two tiles into registers, three into LDS) with the address set-up woven in')
    e('s_cmp_lt_u32 s7, 4\ns_cbranch_scc1 L_sw\ns_waitcnt lgkmcnt(0)')
    stamp(e, c, 1)
    if c.pro == 1: common2(); late_consts(e); e('s_branch L_fin')
    g = Cap(); setup_sw(g); nsw = len(g.g)
    late_consts(g)
    g(f'v_lshrrev_b32 v{T0}, 5, v0\nv_bfe_u32 v{T1}, v0, 2, 2')
    g(f'v_bfe_u32 v{T2}, v0, 4, 1\nv_and_b32 v{T3}, 1, v0\nv_lshl_or_b32 v{T2}, v{T2}, 1, v{T3}\nv_lshl_or_b32 v{T2}, v{T1}, 2, v{T2}')
    g(f'v_bfe_u32 v{T3}, v0, 1, 1\nv_lshlrev_b32 v{T3}, 3, v{T3}')
    Q0 = TMP
    g(f'v_lshl_add_u32 v{Q0+3}, v{T0}, 2, v{T1}\nv_mul_u32_u24 v{Q0+3}, 768, v{Q0+3}\nv_add_u32 v{Q0+3}, v{Q0+3}, v{T3}\nv_add_u32 v{Q0+3}, 24576, v{Q0+3}\nv_lshlrev_b32 v{Q0+7}, 1, v{T0}')
    g(f'v_lshrrev_b32 v{Q0+4}, 1, v{T1}\nv_lshlrev_b32 v{Q0+4}, 4, v{Q0+4}\nv_lshl_add_u32 v{Q0+4}, v{T0}, 2, v{Q0+4}\nv_and_or_b32 v{Q0+4}, v{T1}, 1, v{Q0+4}\nv_mul_u32_u24 v{Q0+4}, 768, v{Q0+4}\nv_add_u32 v{Q0+4}, v{Q0+4}, v{T3}')
    g(f'v_lshlrev_b32 v{Q0+5}, 2, v{T0}\ns_mov_b32 s30, 0x78\nv_lshrrev_b32 v{Q0+5}, v{Q0+5}, s30\nv_bfe_u32 v{Q0+6}, v{Q0+5}, 2, 2\nv_and_b32 v{Q0+5}, 3, v{Q0+5}')
    for t in range(3):
        g(f's_mul_i32 s30, s3, 12\ns_add_u32 s30, s30, {4*t}\nv_xor_b32 v{Q0}, s30, v{T2}\nv_xor_b32 v{Q0+1}, v{Q0}, v{Q0+7}\nv_lshl_add_u32 v{PL+t}, v{Q0+1}, 4, v{Q0+3}')
        g(f'v_xor_b32 v{Q0+1}, v{Q0}, v{Q0+5}\nv_lshl_add_u32 v{PH+2*t}, v{Q0+1}, 4, v{Q0+4}\nv_xor_b32 v{Q0+1}, v{Q0}, v{Q0+6}\nv_lshl_add_u32 v{Q0+1}, v{Q0+1}, 4, v{Q0+4}\nv_add_u32 v{PH+2*t+1}, 1536, v{Q0+1}')
    g(f'v_add_u32 v{PR}, {PB}, v{L16}\nv_lshlrev_b32 v1, 3, v0\nv_lshlrev_b32 v8, 7, v0'); late_addr(g, LA)
    for i in range(0, 96, 2): g(f'v_mov_b64 {vr(ACC+i,2)}, 0')
    g(f'v_mov_b32 v{MPV}, {fx(16.0)}\nv_mov_b32 v{LSUM}, 0\nv_mov_b32 v{ONES}, 0x3f803f80')
    g(select([(44, lambda cu: cu[2])]))
    g(f's_mov_b64 s[28:29], -1\ns_mov_b32 s45, 0\ns_mov_b32 s25, 0\ns_mov_b32 s33, {2*TILE}\ns_mov_b32 s49, 0\ns_mov_b32 s58, 2\nv_mov_b32 v{T0}, {TKW}')
    g(grp)
    g(f's_mul_i32 s52, s37, {PS_}\ns_add_u32 s52, s52, s38\ns_lshl_b32 s30, s3, 8\ns_add_u32 s48, s52, s30\ns_add_u32 s48, s48, 49152')
    g(f's_mul_i32 s30, s3, {PS_//4}\ns_add_u32 s50, s52, s30')
    g(f's_mul_i32 s30, s3, 6144\ns_add_u32 s52, s52, s30\ns_add_u32 s53, s52, 4096\ns_add_u32 s54, s52, 24576\ns_add_u32 s55, s52, {24576+4096}')
    g(f's_lshl_b32 s51, s36, 2\ns_add_u32 s51, s51, s3\ns_lshl_b32 s51, s51, 5\ns_add_u32 s51, s51, s37\ns_lshl_b32 s51, s51, 2\ns_add_u32 s51, s51, {FL}')
    total = len(g.g); cnt = 0
    for j in range(Kp + 3):
        if j == Kp:
            while total - len(g.g) < nsw: g.take(e, 1)
        for i, x in enumerate(stage_items(pstage[j]) if j < Kp else dma_items()):
            if j == 0 and i == 4: common2()
            if cnt == c.jp: e('s_barrier')
            e(x); cnt += 1
            if cnt >= 10: g.take(e, c.weave)
        if not c.pairs: src_adv(1 if j < Kp + 2 else 3)
        elif j < 3: src_adv(1)
        elif j == 3: e('s_lshl1_add_u32 s27, s35, 768'); decode(0)
        else: src_adv(2)
        if j >= Kp: e(f's_add_u32 s24, s24, {TILE if j < Kp + 2 else 2*TILE}')
    g.take(e, 9999)
    if c.jp == cnt: e('s_barrier')
    assert c.jp <= cnt
    stamp(e, c, 2)
    if c.pro == 2: e('s_waitcnt vmcnt(0)'); stamp(e, c, 3); e('s_branch L_fin')
    rP = [(f'ds_read_b128 {vr(PFL)}, v{PR} offset:4096', 'pfl')] + [(f'ds_read_b128 {vr(PF+4*i)}, v{PR} offset:{1024*i}', ('pf', i)) for i in range(4)]
    trH = lambda tt, t, pg: [f'ds_read_b64_tr_b16 {vr(VA+24*tt+8*t+4*pg+2*u,2)}, v{pa(tt,2*t+u)} offset:{6144*pg}' for u in range(2)]
    trL = lambda tt, t: [f'ds_read_b64_tr_b16 {vr(VL+4*t+2*tt,2)}, v{pa(tt,6+t)}']
    mL = lambda t: f'v_mfma_f32_32x32x16_bf16 {vr(ACC+48+16*t,16)}, {vr(VL+4*t)}, {vr(PFL)}, {vr(ACC+48+16*t,16)}'
    mH = lambda tt, t, pg: f'v_mfma_f32_32x32x16_bf16 {vr(ACC+16*t,16)}, {vr(VA+24*tt+8*t+4*pg)}, {vr(PF+8*tt+4*pg)}, {vr(ACC+16*t,16)}'
    sdelta = f's_cmp_ge_u32 s45, 3\ns_cselect_b32 s32, {-3*TILE}, s33\ns_cselect_b32 s30, -3, 2\ns_bitcmp1_b32 12, s45\ns_cselect_b32 s41, {-3*TILE}, s33\ns_add_u32 s45, s45, s30'
    lsum = '\n'.join(f'v_dot2c_f32_bf16 v{LSUM}, v{PFL+i}, v{ONES}' for i in range(4))
    def tr(xs):
        for x in xs:
            if len(e.ds) >= 14: e(f's_waitcnt lgkmcnt(8)'); e.ds = e.ds[-8:]
            e.dsop(x, 'tr')
    tcnt = lambda pos: c.tpos.count(pos) if c.local and not nost else 0
    touch1 = f's_bfm_b64 exec, {-(-98//len(c.tpos))}, 0\nbuffer_load_dword v38, v8, s[16:19], s50 offen{c.tfl}\ns_add_u32 s50, s50, {-(-98//len(c.tpos))*128}\ns_mov_b64 exec, -1'
    if c.tfull:
        per = -(-13 // len(c.tpos)); tc0 = tcnt; tcnt = lambda pos: tc0(pos) * per
        touch1 = f'buffer_load_dwordx4 {vr(STB)}, v{L16}, s[16:19], s50 offen{c.tfl}\ns_add_u32 s50, s50, 1024'
    xgload = f's_mov_b64 exec, 1\nbuffer_load_dwordx2 {vr(XG,2)}, off, s[16:19], s39 sc1\ns_mov_b64 exec, -1'
    e.mark('on_Lw')
    e.c('---- round 0: the first staged tile leaves the operand registers')
    for i in range(9): e(f'v_add_u32 v{A2[i]}, {TILE}, v{PH+i}')
    for k in range(tcnt(0)): e(touch1)
    if c.tlbw: e('s_mov_b64 exec, 1\nbuffer_load_dword v38, v8, s[16:19], s50 offen\ns_mov_b64 exec, -1')
    e(f's_sub_u32 s40, s24, {TILE}\ns_setprio 1\ns_barrier\ns_waitcnt vmcnt({8+tcnt(0)+c.tlbw})\ns_barrier')
    for x, y in zip(dma_items(), unstage_items(pstage[0], 40, TMP)): e(x); e(y)
    src_adv(2)
    if c.tl: e('v_mov_b32 v37, 0')
    e('s_mov_b64 vcc, 0\ns_waitcnt lgkmcnt(0)\ns_branch L_p_rd')
    steps = [(mL(t), None) for t in range(3)] + [(mH(tt, t, pg), ('pf', 2 * tt + pg) if t == 0 else None) for tt in range(2) for t in range(3) for pg in range(2)]
    nd = c.ndefer; assert nd <= 4
    e.c('---- round: stream one tile, transposed operand reads | barrier | check, P @ feat')
    e(f'.p2align 3\nL_p:\ns_waitcnt vmcnt(8)\ns_cmp_eq_u32 s58, 2\ns_cbranch_scc0 L_p_w\nL_p_wb:'); cyc(5); e('s_barrier'); cyc(0)
    e.deferred.append(f'L_p_w:\ns_waitcnt vmcnt({tcnt(1)})\ns_cmp_eq_u32 s58, 1\ns_cbranch_scc1 L_p_wb\ns_waitcnt vmcnt(0)\ns_branch L_p_wb')
    e(f'ds_read_b32 v{T1}, v{T0}\ns_mov_b64 vcc, 0')
    for m, _ in steps[15 - nd:]: e(m)
    e(f's_bitcmp1_b32 {(1 << c.hookx) | (0xffffffff & ~((1 << rd0) - 1))}, s25\ns_cbranch_scc1 L_p_x1\nL_p_go:')
    e('s_cmp_lg_u32 s25, s44\ns_cselect_b32 s58, 2, 0\ns_cbranch_scc0 L_p_cu\ns_mov_b64 vcc, -1')
    e.deferred.append('L_p_cu:\n' + (touch1 + '\n') * tcnt(4) + 's_branch L_p_rd')
    dm = dma_items()
    for x in dm[:c.nx[0]]: e(x)
    dm = dm[c.nx[0]:]
    if not dm: src_adv(2)
    e(f'L_p_rd:\ns_setprio {c.xprio}')
    e.ds = ['tk']
    for tt in range(2):
        for t in range(3): tr(trL(tt, t) + (trH(tt, t, 0) + trH(tt, t, 1) if tt == 0 or not c.late1 else []))
        if c.nx[1 + tt]:
            e(f's_cbranch_vccz L_nx{tt}')
            for x in dm[:c.nx[1 + tt]]: e(x)
            dm = dm[c.nx[1 + tt]:]
            if not dm: src_adv(2)
            e(f'L_nx{tt}:')
    assert not dm
    e(sdelta)
    if c.tl: e('s_memrealtime s[92:93]')
    cyc(1)
    e('s_setprio 1'); e.dsall(); e('s_barrier'); cyc(2)
    for x, tag in rP: e.dsop(x, tag)
    late = [(x, ('h1', t, pg)) for t in range(3) for pg in range(2) for x in trH(1, t, pg)] if c.late1 else []
    if c.tl: e('s_mov_b32 m0, s25\ns_nop 0\nv_writelane_b32 v37, s92, m0')
    e.dswait('pfl')
    check(PFL, TMP, 'L_p_slow')
    e('L_p_back:')
    e('s_cmp_eq_u32 s49, 2\ns_cbranch_scc1 L_p_last'); cyc(3)
    saved = list(e.ds)
    adds = [f'v_add_u32 v{pa(tt,i)}, s{32 if tt == 0 else 41}, v{pa(tt,i)}' for tt in range(2) for i in range(9)]
    un2 = unstage_items(pstage[1], 24, TMP)
    e(lsum)
    e('s_cmp_eq_u32 s25, s44\ns_cselect_b64 vcc, -1, 0')
    for i, (m, w) in enumerate(steps[:15 - nd]):
        if late and i == 9: e.dsall()
        if w and w in e.ds: e.dswait(w)
        e(m)
        for x, tag in late[2 * i:2 * i + 2]: e.dsop(x, tag)
        for _ in range(2):
            if adds and (len(adds) > 9 or i >= 6 or not late): e(adds.pop(0))
        if i % 2 == 1 and un2:
            lb = e.label('L_un'); e(f's_cbranch_vccnz {lb}\n{lb}_b:')
            e.deferred.append(f'{lb}:\ns_waitcnt lgkmcnt(8)\n{un2.pop(0)}\n{un2.pop(0)}\ns_branch {lb}_b')
    assert not adds and not un2
    slot_adv()
    cyc(4); cyc_save()
    e('s_add_u32 s25, s25, 1\ns_min_u32 s25, s25, 31\ns_branch L_p')
    e.c('---- late rounds: the tiles come from a shared pool (ticket posted by wave 0)')
    e(f'L_p_x1:\ns_cmp_eq_u32 s25, {c.hookx}\ns_cbranch_scc1 L_p_x0\ns_cmp_lg_u32 s49, 0\ns_cbranch_scc1 L_p_dry2\ns_waitcnt lgkmcnt(0)\nv_readfirstlane_b32 s27, v{T1}\ns_cmp_lt_i32 s27, 0\ns_cbranch_scc1 L_p_dry\ns_bitset0_b32 s27, 30')
    decode(0)
    e('s_branch L_p_go')
    e('L_p_dry:')
    for k in range(tcnt(1)): e(touch1)
    if not c.iso: late_wait(e, XG + 2, LA)
    e(f'L_xg:\nv_lshl_add_u64 {vr(XG,2)}, {vr(XG,2)}, 0, 1\nv_add_u32 v{TMP}, v{XG}, v{XG+1}\ns_nop 0\nv_readfirstlane_b32 s30, v{TMP}\ns_mul_i32 s30, s30, 0x01010101\ns_lshr_b32 s30, s30, 24\ns_cmp_ge_u32 s30, 32\ns_cbranch_scc0 L_xgr\nL_xgd:')
    e.deferred.append(f'L_xgr:\ns_sleep 8\n{xgload}\ns_waitcnt vmcnt(0)\ns_sub_u32 s61, s61, 1\ns_cmp_gt_i32 s61, 0\ns_cbranch_scc1 L_xg\ns_branch L_xgd')
    local_flag(e, XG, 32)
    if not c.local: e('s_mov_b32 s59, 0')
    e('s_mov_b32 s49, 1\ns_mov_b32 s58, 1\ns_mov_b64 vcc, 0\ns_branch L_p_rd')
    e('L_p_dry2:')
    for k in range(tcnt(2)): e(touch1)
    e('s_mov_b32 s49, 2\ns_branch L_p_rd')
    e('L_p_x0:'); late_load(e, XG + 2, LA); e(xgload); e('s_branch L_p_go')
    flush_deferred(e)
    e.c('---- last round: finish the sums, hand them to the group, raise the flag')
    e('L_p_last:'); e.ds = saved
    pstore = lambda s: f'buffer_store_dwordx4 {vr(ACC+8*s)}, v{L16}, s[16:19], s{52 + 2*(s//6) + (s%6)//4} offen offset:{1024*((s%6)%4)}'
    mlstore = f's_mov_b32 exec_hi, 0\nbuffer_store_dwordx2 {vr(MPV,2)}, v1, s[16:19], s48 offen%s\ns_mov_b32 exec_hi, -1'
    def cvt(s):
        b = ACC + 8 * s
        for i in range(4): e(f'v_cvt_pk_bf16_f32 v{b+i}, v{b+2*i}, v{b+2*i+1}')
        if not nost: e(pstore(s))
    last = [mL(t) for t in range(3)] + [mH(tt, t, pg) for t in range(3) for tt in range(2) for pg in range(2)]
    todo = {4: [6], 5: [7], 6: [8], 7: [9], 8: [10], 9: [11], 10: [0], 11: [1], 14: [2, 3]}
    for i, m in enumerate(last):
        if i == 3: e.dswait(('pf', 3))
        if i == 5 and late: e.dsall()
        e(m)
        if i < 4:
            for x, tag in late[3 * i:3 * i + 3]: e.dsop(x, tag)
        if i in (2, 3):
            for j in (2 * (i - 2), 2 * (i - 2) + 1): e(f'v_lshlrev_b32 v{TMP}, 16, v{PFL+j}\nv_and_b32 v{TMP+1}, 0xffff0000, v{PFL+j}\nv_add_f32 v{LSUM}, v{LSUM}, v{TMP}\nv_add_f32 v{LSUM}, v{LSUM}, v{TMP+1}')
        if i == 12: e(f'v_mov_b32 v{TMP}, v{LSUM}\nv_readfirstlane_b32 s57, v{MPV}\ns_nop 0\nv_permlane32_swap_b32 v{LSUM}, v{TMP}\nv_add_f32 v{LSUM}, v{LSUM}, v{TMP}\nv_cmp_neq_f32 vcc, s57, v{MPV}')
        if i == 13 and not nost: e(mlstore % '')
        for s in todo.get(i, []): cvt(s)
        if i == c.barx: e('s_barrier')
    e(f's_cmp_eq_u64 vcc, 0\ns_cselect_b32 s57, s57, -2\nv_mov_b32 v{TMP}, s57\ns_nop 0')
    cvt(4); cvt(5)
    if c.barx == 15: e('s_barrier')
    if fine is None: stamp(e, c, 6)
    if c.tl: e(f's_lshl_b32 s30, s35, 2\ns_add_u32 s30, s30, s3\ns_lshl_b32 s30, s30, 8\ns_add_u32 s30, s30, {DG+0x20000}\nv_lshlrev_b32 v125, 2, v0\nbuffer_store_dword v37, v125, s[16:19], s30 offen')
    e('s_cmp_eq_u32 s59, 0\ns_waitcnt vmcnt(0)\ns_cbranch_scc1 L_p_far')
    stamp(e, c, 7)
    if not nost: e(f's_mov_b64 exec, 1\nbuffer_store_dword v{TMP}, off, s[16:19], s51')
    e('s_branch L_fin')
    e('L_p_far:')
    if not nost:
        for s in range(12): e(pstore(s) + ' sc1')
        e(mlstore % ' sc1')
        e(f's_waitcnt vmcnt(0)\ns_mov_b64 exec, 1\nbuffer_store_dword v{TMP}, off, s[16:19], s51 sc1')
    e('s_branch L_fin')
    e.c('---- rare: the reference max moves, rescale the sums')
    e('L_p_slow:'); first_look(PFL, TMP, 'L_p_back', 'pf')
    e(f's_mov_b32 s30, {MXB}\nv_and_b32 v{TMP+2}, 31, v0\nv_lshl_add_u32 v{TMP+2}, v{TMP+2}, 2, s30\ns_waitcnt lgkmcnt(0)\ns_barrier')
    e(f'ds_read2_b32 {vr(TMP,2)}, v{TMP+2} offset0:0 offset1:32\ns_waitcnt lgkmcnt(0)\nv_max_f32 v{TMP}, v{TMP}, v{TMP+1}')
    quant(TMP)
    nf = e.label()
    e(f's_cmp_lg_u64 s[28:29], 0\ns_cbranch_scc1 {nf}')
    e(f'v_max_f32 v{TMP}, 0, v{TMP}\nv_exp_f32 v{TMP+2}, -v{TMP}\ns_nop 0\nv_mul_f32 v{LSUM}, v{LSUM}, v{TMP+2}')
    for i in range(0, 96, 2): e(f'v_pk_mul_f32 {vr(ACC+i,2)}, {vr(ACC+i,2)}, {vr(TMP+2,2)} op_sel_hi:[1,0]')
    e(f'{nf}:\ns_mov_b64 s[28:29], 0\nv_add_f32 v{MPV}, v{MPV}, v{TMP}\ns_barrier')
    for x, _ in rP: e(x)
    e('s_waitcnt lgkmcnt(0)\ns_branch L_p_back')

    SH, SL, PW, PW2, PR2, MXO, TKA, TK, TA = 18, 22, 26, 27, 28, 29, 30, 31, 9
    NEGM, SLO, S0, S1, PFL, PK, FB, NB, TMP, AQ, STG = 32, 36, 40, 44, 48, 52, 56, 8, 88, 96, 192
    e.mark('off_Lw')
    e.c('==== streamer waves 0..3: set-up, two staged tiles, A through LDS')
    e('L_sw:'); common2(); late_consts(e)
    if c.touch:
        e('s_cmp_lg_u32 s7, 0\ns_cbranch_scc1 L_snt'); code_touch(e, c); e('L_snt:')
    if c.pro == 1: e('s_waitcnt lgkmcnt(0)\ns_branch L_fin')
    if c.pairs: e('s_lshl1_add_u32 s27, s35, 768'); decode(1)
    else: src_adv(5)
    setup_sw(e)
    e(f'v_and_b32 v{T0}, 15, v0\nv_lshrrev_b32 v{T1}, 4, v0')
    e(f'v_lshrrev_b32 v{T2}, 2, v{T0}\nv_lshlrev_b32 v{T3}, 1, v{T2}\nv_lshrrev_b32 v{TMP+1}, v{T3}, s47\nv_and_b32 v{TMP+1}, 3, v{TMP+1}')
    e(f'v_and_b32 v{TMP}, 3, v{T0}\nv_lshl_or_b32 v{TMP+1}, v{TMP}, 2, v{TMP+1}\nv_xor_b32 v{TMP+1}, v{TMP+1}, v{T1}\nv_lshlrev_b32 v{TMP+1}, 4, v{TMP+1}')
    e(f'v_lshrrev_b32 v{TMP}, 1, v{TMP}\nv_lshl_add_u32 v{T3}, v{TMP}, 4, v{T3}\nv_and_or_b32 v{T3}, v{T0}, 1, v{T3}\nv_mul_u32_u24 v{T3}, 768, v{T3}\ns_mul_i32 s30, s4, {TILE}\nv_add3_u32 v{SH}, v{T3}, v{TMP+1}, s30')
    e(f'v_and_b32 v{TMP}, 1, v0\nv_lshlrev_b32 v{T3}, 1, v{TMP}\nv_lshl_or_b32 v{T3}, v{T2}, 2, v{T3}\nv_xor_b32 v{T3}, v{T3}, v{T1}\nv_lshlrev_b32 v{T3}, 4, v{T3}')
    e(f'v_lshl_add_u32 v{TMP}, v{TMP}, 2, v{T2}\nv_mul_u32_u24 v{TMP}, 768, v{TMP}\ns_add_u32 s30, s30, 24576\nv_add3_u32 v{SL}, v{T3}, v{TMP}, s30')
    for b in range(1, 4): e(f'v_xor_b32 v{SH+b}, {64*b}, v{SH}\nv_xor_b32 v{SL+b}, {64*b}, v{SL}')
    e(f's_lshl_b32 s30, s5, 4\nv_add_u32 v{T3}, s30, v{T0}')
    e(f'v_lshrrev_b32 v{TMP}, 1, v{T1}\nv_lshlrev_b32 v{TMP}, 9, v{TMP}\nv_lshl_add_u32 v{TMP}, v{T3}, 4, v{TMP}\nv_and_b32 v{TMP+1}, 1, v{T1}\nv_lshl_add_u32 v{TMP}, v{TMP+1}, 3, v{TMP}')
    e(f's_lshl_b32 s30, s4, 11\ns_add_u32 s30, s30, {PB}\nv_add_u32 v{PW}, s30, v{TMP}')
    e(f'v_lshlrev_b32 v{TMP}, 4, v{T3}\nv_lshl_add_u32 v{TMP}, v{T1}, 1, v{TMP}\ns_lshl_b32 s30, s4, 3\ns_add_u32 s30, s30, {PB+4096}\nv_add_u32 v{PW2}, s30, v{TMP}')
    e(f'v_lshlrev_b32 v1, 3, v0\nv_add_u32 v{PR2}, {PB+4096}, v{L16}\nv_lshlrev_b32 v{MXO}, 2, v{T3}\nv_add_u32 v{MXO}, {MXB}, v{MXO}\nv_mov_b32 v{TKA}, {TKW}')
    for i in range(4): e(f'v_mov_b32 v{NEGM+i}, {fx(-16.0)}')
    e(select([(44, lambda cu: (1 << cu[0]) | (1 << cu[1]) | (0xffffffff & ~((1 << (rd0 - 1)) - 1))), (46, lambda cu: cu[0]), (47, lambda cu: cu[1])]))
    e(f's_mov_b64 s[28:29], -1\ns_mov_b32 s45, s4\ns_mov_b32 s25, 0\ns_mov_b32 s33, {2*TILE}\ns_mov_b32 s49, 0')
    e(f's_mul_i32 s52, s5, 24576\ns_add_u32 s52, s52, {AF if not (c.iso or getattr(c, "cheat", 0)) else 0x1000000}'); soffs(e, 52, 6)
    e(grp)
    e(f's_and_b32 s48, s37, {c.nshard-1}\ns_lshl_b32 s51, s48, 7\ns_add_u32 s51, s51, {TKC}\ns_cmp_eq_u32 s3, 0\ns_cselect_b32 s58, {rd0-2+c.satom}, 64')
    if c.walk: e('s_waitcnt vmcnt(0)'); walk(e, 'Lw', 3, 4)
    e('s_setprio 2\ns_waitcnt lgkmcnt(0)\ns_barrier')
    e.mark('on_Lw')
    stamp(e, c, 1)
    early_load(e, T0, 5)
    for k in range(Ks):
        for x in stage_items(STG + 32 * k): e(x)
        src_adv(2 if c.pairs else 1 + k)
    e(f's_waitcnt vmcnt({8*Ks})')
    if not c.iso: early_wait(e, T0, (1,))
    stamp(e, c, 2)
    if c.pro == 2: e('s_branch L_fin')
    aload = frag_loads(AQ, 24, L16, 52)
    e(f's_mul_i32 s30, s3, 12288\ns_add_u32 m0, s30, {3*TILE}\ns_mul_i32 s43, s4, 12288\ns_add_u32 s43, s43, s52')
    for k in range(12):
        e(f'buffer_load_dwordx4 v{L16}, s[16:19], s43 offen offset:{1024*(k%4)} sc1 lds')
        if k % 4 == 3 and k < 11: e('s_add_u32 m0, m0, 4096\ns_add_u32 s43, s43, 4096')
    e(f's_mul_i32 s30, s5, 24576\ns_add_u32 s30, s30, {3*TILE}\nv_add_u32 v{T1}, s30, v{L16}\ns_setprio 0\ns_waitcnt vmcnt(0)\ns_barrier')
    e('s_cmp_lg_u32 s3, 0\ns_cbranch_scc1 L_nxg\ns_getreg_b32 s30, hwreg(HW_REG_XCC_ID, 0, 3)\ns_lshl_b32 s30, s30, 3\ns_lshl_b64 s[40:41], 1, s30')
    e(f'v_mov_b32 v{TMP}, s40\nv_mov_b32 v{TMP+1}, s41\ns_mov_b64 exec, 1\nbuffer_atomic_add_x2 {vr(TMP,2)}, off, s[16:19], s39\ns_mov_b64 exec, -1')
    e('L_nxg:')
    for k in range(24):
        e.dsop(f'ds_read_b128 {vr(AQ+4*k)}, v{T1} offset:{1024*k}', ('a', k))
        if k >= 10:
            kk = k - 10; e.dswait(('a', kk))
            e(f'v_max3_u32 v{T0}, v{AQ+4*kk}, v{AQ+4*kk+1}, v{T0 if kk else AQ}\nv_max3_u32 v{T0}, v{T0}, v{AQ+4*kk+2}, v{AQ+4*kk+3}')
    for kk in range(14, 24):
        e.dswait(('a', kk)); e(f'v_max3_u32 v{T0}, v{AQ+4*kk}, v{AQ+4*kk+1}, v{T0}\nv_max3_u32 v{T0}, v{T0}, v{AQ+4*kk+2}, v{AQ+4*kk+3}')
    e(f'v_cmp_eq_u32 vcc, -1, v{T0}\ns_cbranch_vccnz L_aretry\nL_aok:')
    stamp(e, c, 4)
    def sread(k):
        ks = k % 12; base, off = (SL, 0) if k < 12 else (SH, 6144 * (k // 12 - 1))
        e.dsop(f'ds_read_b128 {vr(FB+4*(k%NB))}, v{base+(ks&3)} offset:{off+256*(ks>>2)}', ('s', k))
    def exp_items(S, pg):
        it = [f'v_exp_f32 v{TMP+i}, v{S+i}' for i in range(4)]
        it += [f'v_add_f32 v{TMP+4}, v{TMP}, v{TMP+1}', f'v_add_f32 v{TMP+5}, v{TMP+2}, v{TMP+3}', f'v_cvt_pk_bf16_f32 v{PK}, v{TMP}, v{TMP+1}', f'v_cvt_pk_bf16_f32 v{PK+1}, v{TMP+2}, v{TMP+3}']
        it += [f'v_add_f32 v{TMP+4}, v{TMP+4}, v{TMP+5}', f'ds_write_b64 v{PW}, {vr(PK,2)} offset:{1024*pg}', f'v_cvt_pk_bf16_f32 v{PK+2}, v{TMP+4}, v{TMP+4}', f'ds_write_b16 v{PW2}, v{PK+2} offset:{512*pg}']
        return it
    put = lambda x: e.dsop(x, 'w') if x.startswith('ds_') else e(x)
    stamp(e, c, 3)
    if c.diag: e('s_memtime s[86:87]')
    e.c('---- round: logits of one tile for 16 queries, numerators to LDS | barrier | check, stream one tile')
    e('.p2align 3\nL_s:\ns_barrier')
    if c.diag and fine is None: e(f's_memrealtime s[{64+2*5}:{65+2*5}]')
    cyc(0)
    for k in range(NB): sread(k)
    e.dsop(f'ds_read_b32 v{TK}, v{TKA}', 'tk')
    edraw = c.edraw and c.satom and c.dyn and not c.iso
    if edraw: e('s_cmp_ge_u32 s25, s58\ns_cbranch_scc1 L_edraw\nL_edrawb:')
    fill = {
            9: ['s_add_u32 s45, s45, 2'], 11: [f's_cmp_ge_u32 s45, {NSLOT}\ns_cselect_b32 s32, {-3*TILE}, s33\ns_cselect_b32 s30, {NSLOT}, 0'], 12: ['s_sub_u32 s45, s45, s30']}
    for b in range(4): fill[13 + 2 * b] = [f'v_add_u32 v{SL+b}, s32, v{SL+b}']
    for i in range(4): fill[16 + 2 * i] = [f'v_mov_b32 v{S1+i}, v{SLO+1}']
    it = [f'v_add_f32 v{S0+i}, v{S0+i}, v{SLO}' for i in range(4)] + exp_items(S0, 0)
    for k, cntk in zip(range(27, 36), (1, 3, 2, 2, 2, 2, 2, 2, 0)):
        fill[k] = it[:cntk]; it = it[cntk:]
    assert not it
    for k in range(36):
        if k % c.wstep == 0: e.dswait(('s', min(k + c.wstep - 1, 35)))
        D, C, a = (SLO, vr(NEGM), 12 + k) if k < 12 else ((S0, 0, k - 12) if k < 24 else (S1, vr(S1), k - 24))
        e(f'v_mfma_f32_16x16x32_bf16 {vr(D)}, {vr(FB+4*(k%NB))}, {vr(AQ+4*a)}, {vr(D) if k % 12 else C}')
        if k == 17: cyc(2)
        if k + NB < 36: sread(k + NB)
        for x in fill.get(k, []): put(x)
    cyc(3)
    for b in range(4): e(f'v_add_u32 v{SH+b}, s32, v{SH+b}')
    e('s_nop 3')
    for x in exp_items(S1, 1): e(x)
    cyc(4)
    if c.edraw == 2: e(f'ds_read_b32 v{TA}, v{TKA}\ns_waitcnt lgkmcnt(1)'); e.ds = []
    else: e.dsall()
    e(f's_barrier\nds_read_b128 {vr(PFL)}, v{PR2}')
    if fine is None: stamp(e, c, 6)
    if c.diag and fine is None: e('s_memtime s[88:89]')
    X, MLR = AQ, AQ + 64
    SEL, D, VX, VOOB, VF, VFA, VH, VH8, VQ16, VM, U0, U1, VO = 192, 196, 212, 213, 214, 215, 216, 217, 218, 219, 220, 221, 222
    flagload = f's_mov_b32 exec_hi, 0\nbuffer_load_dword v{VF}, v{VFA}, s[16:19], s40 offen sc1\ns_mov_b32 exec_hi, -1'
    def t1_setup():
        e(f'v_lshlrev_b32 v{VFA}, 2, v0\ns_bfe_u32 s41, s37, 0x20002\ns_lshl_b32 s40, s36, 2\ns_add_u32 s40, s40, s41\ns_lshl_b32 s40, s40, 7\ns_add_u32 s40, s40, {FL}')
        e(f'v_lshrrev_b32 v{VH}, 5, v0\nv_and_b32 v{U0}, 31, v0\nv_lshlrev_b32 v{VQ16}, 4, v{U0}\ns_mov_b32 s43, {PS_}\nv_mad_u32_u24 v{VX}, v{VH}, s43, v{VQ16}\nv_lshlrev_b32 v{U0}, 3, v{U0}\nv_mad_u32_u24 v{VM}, v{VH}, s43, v{U0}')
        e(f's_lshl_b32 s41, s41, 8\ns_add_u32 s41, s41, s38\ns_add_u32 s41, s41, 49152')
        e(f's_mul_i32 s42, s37, 3\ns_add_u32 s42, s42, s3\ns_lshl_b32 s27, s42, 9\ns_add_u32 s27, s27, s38\nv_bfrev_b32 v{VOOB}, 1\nv_lshlrev_b32 v{VH8}, 3, v{VH}')
        e(f'v_and_b32 v{U0}, 1, v0\nv_lshlrev_b32 v{U0}, 4, v{U0}\ns_movk_i32 s30, 0x3f80\nv_lshlrev_b32 v{U0}, v{U0}, s30\nv_bfe_u32 v{U1}, v0, 1, 4')
        for d in range(4): e(f'v_cmp_eq_u32 vcc, {(d & 1) + 4 * (d >> 1)}, v{U1}\nv_mov_b64 {vr(D+4*d,2)}, 0\nv_mov_b64 {vr(D+4*d+2,2)}, 0\nv_cndmask_b32 v{SEL+d}, 0, v{U0}, vcc')
        e(f's_lshr_b32 s26, s42, 2\ns_mul_i32 s26, s26, 6\ns_add_u32 s26, s26, s36\ns_lshl_b32 s26, s26, 2\ns_and_b32 s30, s42, 3\ns_add_u32 s26, s26, s30\ns_lshl_b32 s26, s26, 8\ns_add_u32 s26, s26, {XU}')
        e(f'v_bfe_u32 v{VO}, v0, 4, 1\nv_mul_u32_u24 v{VO}, {147456-256}, v{VO}\nv_add_u32 v{VO}, v{VO}, v{VQ16}')
    e(f'ds_read_b32 v{TA}, v{TKA}\ns_waitcnt lgkmcnt(1)' if c.edraw == 2 else 's_waitcnt lgkmcnt(0)')
    check(PFL, TMP, 'L_s_slow')
    e('L_s_back:\ns_bitcmp1_b32 s44, s25\ns_cbranch_scc1 L_s_hook\nL_s_dma:')
    for x in dma_items(): e(x)
    src_adv(2)
    e(f's_waitcnt vmcnt(8)\nL_s_next:'); slot_adv()
    e(f's_cmp_ge_u32 s25, s58\ns_cbranch_scc1 L_s_post\nL_s_postb:'); cyc(5); cyc_save()
    e('s_add_u32 s25, s25, 1\ns_min_u32 s25, s25, 31\ns_branch L_s')
    e.c('---- member t sums blocks 3t..3t+2 over the 32 members (selection-matrix MFMA), wave 3 of member 0 sums l')
    e('L_s_last:')
    if c.diag: e('s_add_u32 s92, s25, 1\ns_lshl_b32 s92, s92, 1\ns_lshr_b32 s30, s46, 31\ns_sub_u32 s92, s92, s30')
    if c.iso or c.cut: e('s_branch L_fin')
    if c.barx is not None: e('s_barrier')
    if c.sprio: e(f's_setprio {c.sprio}')
    e('s_mov_b32 s44, -1\ns_cmp_eq_u32 s3, 3\ns_cbranch_scc1 L_t1l\ns_branch L_t1')
    mm = lambda r: f'v_mfma_f32_32x32x16_bf16 {vr(D,16)}, {vr(SEL)}, {vr(r)}, {vr(D,16)}'
    e(f'L_t1b:\ns_andn2_b32 s44, s44, s46\nv_lshrrev_b32 v{U1}, v{VH}, s46')
    for i in range(16):
        e(f'v_and_b32 v{U0}, {1 << (2*i)}, v{U1}\nv_cmp_ne_u32 vcc, 0, v{U0}\ns_add_u32 s30, s27, {2*PS_*i}\ns_nop 0\nv_cndmask_b32 v{U0}, v{VOOB}, v{VX}, vcc\nbuffer_load_dwordx4 {vr(X+4*i)}, v{U0}, s[16:19], s30 offen sc1')
    for i in range(16):
        e(f's_waitcnt vmcnt({15-i+(i > c.bsamp)})\n' + mm(X + 4 * i))
        if i == c.bsamp: e(flagload)
    e('s_cmp_eq_u32 s44, 0\ns_cbranch_scc1 L_t1done\ns_branch L_t1w')
    e('L_t1s:' + (f'\ns_sleep {c.t1sleep}' if c.t1sleep else '') + f'\nL_t1:\n{flagload}\ns_sub_u32 s61, s61, 1\ns_cmp_gt_i32 s61, 0\ns_cbranch_scc0 L_t1done')
    e(f'L_t1w:\ns_waitcnt vmcnt(0)\nv_cmp_ne_u32 vcc, -1, v{VF}\ns_and_b32 s46, vcc_lo, s44\ns_cbranch_scc0 L_t1s')
    stamp(e, c, 9)
    if c.diag: e('s_bcnt1_i32_b32 s94, s46')
    e(f's_bcnt1_i32_b32 s30, s46\ns_cmp_gt_u32 s30, {2*c.ndyn}\ns_cbranch_scc1 L_t1b\ns_andn2_b32 s44, s44, s46')
    for r in range(c.ndyn):
        e('s_ff1_i32_b32 s48, s46\ns_bitset0_b32 s46, s48\ns_ff1_i32_b32 s30, s46\ns_lshl_b32 s47, s30, 8\ns_or_b32 s48, s48, s47\ns_lshl_b64 s[56:57], 1, s30\ns_andn2_b32 s46, s46, s56')
        e(f'v_bfe_u32 v{U0}, s48, v{VH8}, 8\nv_cmp_gt_u32 vcc, 32, v{U0}\nv_mad_u32_u24 v{U0}, v{U0}, s43, v{VQ16}\ns_cmp_eq_u32 s46, 0\nv_cndmask_b32 v{U0}, v{VOOB}, v{U0}, vcc')
        e(f'buffer_load_dwordx4 {vr(X+4*r)}, v{U0}, s[16:19], s27 offen sc1')
        if r < c.ndyn - 1: e(f's_cbranch_scc1 L_t1m{r}')
    stubs = []
    if c.osamp:
        e(flagload + '\ns_waitcnt vmcnt(1)')
        for r in range(c.ndyn - 1, -1, -1):
            e(f'L_t1n{r}:\n' + mm(X + 4 * r))
            if r < c.ndyn - 1: stubs.append(f'L_t1m{r}:\n{flagload}\ns_waitcnt vmcnt(1)\ns_branch L_t1n{r}')
        e('s_cmp_lg_u32 s44, 0\ns_cbranch_scc1 L_t1w\nL_t1done:')
    else:
        for r in range(c.ndyn - 1, -1, -1): e(f'L_t1m{r}:\ns_waitcnt vmcnt(0)\n{mm(X+4*r)}')
        e('s_cmp_lg_u32 s44, 0\ns_cbranch_scc1 L_t1\nL_t1done:')
    stamp(e, c, 8)
    uni = f'v_readfirstlane_b32 s47, v{VF}\ns_nop 1\nv_cmp_ne_u32 vcc, s47, v{VF}\ns_cmp_eq_u32 s47, -2\ns_cselect_b32 s30, 1, 0\ns_or_b32 s30, s30, vcc_lo'
    e(f'{uni}\ns_cbranch_scc1 L_t1gen\ns_nop 2\nL_t1back:')
    for i in range(4): e(f'v_cvt_pk_bf16_f32 v{D+i}, v{D+2*i}, v{D+2*i+1}')
    for i in range(4): e(f'v_min_u32 v{D+i}, -2, v{D+i}')
    e(f's_mov_b32 exec_hi, 0\nbuffer_store_dwordx4 {vr(D)}, v{VO}, s[16:19], s26 offen sc1')
    stamp(e, c, 10)
    e('L_fin:')
    dump(e, c)
    e('L_end:\ns_endpgm')
    for x in stubs: e(x)
    mll = [f's_add_u32 s30, s41, {2*PS_*i}\nbuffer_load_dwordx2 {vr(MLR+2*i,2)}, v{VM}, s[16:19], s30 offen sc1' for i in range(16)]
    def weights(M, L):
        e(f'v_max_f32 v{M}, v{MLR}, v{MLR+2}')
        for i in range(2, 16, 2): e(f'v_max3_f32 v{M}, v{M}, v{MLR+2*i}, v{MLR+2*i+2}')
        e(f'v_mov_b32 v{L}, v{M}\ns_nop 1\nv_permlane32_swap_b32 v{M}, v{L}\nv_max_f32 v{M}, v{M}, v{L}')
        for i in range(16): e(f'v_sub_f32 v{MLR+2*i}, v{MLR+2*i}, v{M}')
        for i in range(16): e(f'v_exp_f32 v{MLR+2*i}, v{MLR+2*i}')
    e(f'L_t1l:\ns_cmp_lg_u32 s37, 0\ns_cbranch_scc1 L_fin')
    e(f'v_bfe_u32 v{T0}, v0, 4, 1\nv_mul_u32_u24 v{T0}, {768-128}, v{T0}\nv_add_u32 v{T0}, v{T0}, v1\ns_lshl_b32 s26, s36, 7\ns_add_u32 s26, s26, {XL}')
    e(f'L_t1lw:\n{flagload}\ns_waitcnt vmcnt(0)\nv_cmp_eq_u32 vcc, -1, v{VF}\ns_cmp_eq_u32 vcc_lo, 0\ns_cbranch_scc1 L_t1ld'); budget(e, 'L_t1lw')
    e('L_t1ld:')
    for x in mll: e(x)
    e(f'{uni}\ns_cbranch_scc1 L_t1lg\nv_mov_b32 v{U0}, s47\ns_waitcnt vmcnt(14)\nv_add_f32 v{U1}, v{MLR+1}, v{MLR+3}')
    for i in range(2, 16): e(f's_waitcnt vmcnt({15-i})\nv_add_f32 v{U1}, v{U1}, v{MLR+2*i+1}')
    e(f'L_t1lb:\nv_mov_b32 v{T1}, v{U1}\nv_min_u32 v{U0}, -2, v{U0}\ns_nop 0\nv_permlane32_swap_b32 v{U1}, v{T1}\nv_add_f32 v{U1}, v{U1}, v{T1}\nv_min_u32 v{U1}, -2, v{U1}')
    e(f's_mov_b32 exec_hi, 0\nbuffer_store_dwordx2 {vr(U0,2)}, v{T0}, s[16:19], s26 offen sc1')
    stamp(e, c, 10)
    e('s_branch L_fin')
    e.mark('off_Lw')
    e('L_t1lg:\ns_waitcnt vmcnt(0)')
    weights(U0, U1)
    e(f'v_mul_f32 v{U1}, v{MLR}, v{MLR+1}')
    for i in range(1, 16): e(f'v_fmac_f32 v{U1}, v{MLR+2*i}, v{MLR+2*i+1}')
    e('s_branch L_t1lb')
    e.c('---- rare: members ended on different maxima, weighted sum')
    e('L_t1gen:')
    for x in mll: e(x)
    for i in range(16): e(f's_add_u32 s30, s27, {2*PS_*i}\nbuffer_load_dwordx4 {vr(X+4*i)}, v{VX}, s[16:19], s30 offen sc1')
    e('s_waitcnt vmcnt(16)')
    weights(U0, U1)
    T = 32
    e('s_waitcnt vmcnt(0)')
    for i in range(16):
        for d in range(4): e(f'v_lshlrev_b32 v{T+2*d}, 16, v{X+4*i+d}\nv_and_b32 v{T+2*d+1}, 0xffff0000, v{X+4*i+d}')
        for d in range(4):
            if i == 0: e(f'v_pk_mul_f32 {vr(D+2*d,2)}, {vr(T+2*d,2)}, {vr(MLR,2)} op_sel_hi:[1,0]')
            else: e(f'v_pk_fma_f32 {vr(D+2*d,2)}, {vr(T+2*d,2)}, {vr(MLR+2*i,2)}, {vr(D+2*d,2)} op_sel_hi:[1,0,1]')
    e('s_nop 1')
    for k in range(8): e(f'v_permlane32_swap_b32 v{D+k}, v{T+k}')
    for k in range(8): e(f'v_add_f32 v{D+k}, v{D+k}, v{T+k}')
    e('s_branch L_t1back')
    e.mark('on_Lw')
    n1 = c.n1; npair = ((4608 - NS * ns) // c.nshard - n1) // 2; assert n1 % 2 == 0 and n1 <= NS // c.nshard and not c.edraw
    dyn = c.dyn and not c.iso
    sat = c.satom and dyn
    e(f'L_s_hook:\ns_cmp_lt_u32 s25, {rd0}\ns_cbranch_scc1 L_hd\ns_cmp_lg_u32 s49, 0\ns_cbranch_scc1 L_s_last')
    e(f'v_readfirstlane_b32 s27, v{TK}\ns_cmp_lt_i32 s27, 0\ns_cbranch_scc1 L_s_dry\ns_bitcmp1_b32 s27, 30\ns_cbranch_scc1 L_s_one')
    decode(1)
    e('L_hd:')
    if edraw: e.deferred.append('L_edraw:\ns_mov_b32 s50, 1\ns_atomic_add s50, s[16:17], s51 glc\ns_branch L_edrawb')
    sat0 = sat; sat = sat and not edraw
    if sat: e('s_cmp_lt_u32 s25, s58\ns_cbranch_scc1 L_h1\ns_mov_b32 s50, 1')
    if sat and c.alat: e('s_memrealtime s[78:79]\ns_waitcnt lgkmcnt(0)\ns_atomic_add s50, s[16:17], s51 glc\ns_waitcnt lgkmcnt(0)\ns_memrealtime s[90:91]')
    elif sat: e('s_atomic_add s50, s[16:17], s51 glc')
    sat = sat0
    e('L_h1:')
    for k in range(Ks):
        e(f's_cmp_lg_u32 s25, s{46+k}\ns_cbranch_scc1 ' + (f'L_hu{k}' if k < Ks - 1 else 'L_s_dma'))
        for x in unstage_items(STG + 32 * k, 24, TMP + 6): e(x)
        e(f's_waitcnt vmcnt(0) lgkmcnt(0)\ns_branch L_s_next\nL_hu{k}:')
    e(f'L_s_one:\ns_mov_b32 s46, -1\ns_movk_i32 s50, 0x7fff\nv_mov_b32 v{TA}, s50\ns_waitcnt vmcnt(0)\ns_branch L_s_next')
    e('L_s_dry:\ns_mov_b32 s49, 1\ns_mov_b32 s58, 64\ns_lshr_b32 s30, s46, 31\ns_and_b32 s30, s30, s4\ns_cbranch_scc0 L_s_dry2')
    for i in range(4): e(f'v_mov_b32 v{NEGM+i}, 0xff600000')
    e('L_s_dry2:')
    t1_setup()
    e('s_waitcnt vmcnt(0)\ns_branch L_s_next')
    e(f'L_s_post:\ns_cmp_eq_u32 s25, {rd0-2}\ns_cbranch_scc1 L_draw')
    if dyn: e(('s_waitcnt lgkmcnt(0)\ns_mov_b32 s30, s50' if sat else f'v_readfirstlane_b32 s30, v{TA}') + f'\ns_add_u32 s30, s30, 1\ns_mul_i32 s56, s30, {c.nshard}\ns_add_u32 s56, s56, s48\ns_add_u32 s57, s56, {NS*ns + npair*c.nshard + (1<<30)}\ns_cmp_lt_u32 s30, {npair+n1}\ns_cselect_b32 s57, s57, -1\ns_lshl1_add_u32 s56, s56, {NS*ns}\ns_cmp_lt_u32 s30, {npair}\ns_cselect_b32 s56, s56, s57')
    else: e(f's_sub_u32 s30, s25, {rd0-1}\ns_mul_i32 s56, s30, {NS}\ns_add_u32 s56, s56, s35\ns_lshl1_add_u32 s56, s56, {NS*ns}\ns_cmp_lt_u32 s25, 9\ns_cselect_b32 s56, s56, -1')
    e(f'v_mov_b32 v{TMP+6}, s56\nds_write_b32 v{TKA}, v{TMP+6}\ns_waitcnt lgkmcnt(0)\ns_cbranch_scc0 L_s_postb\nL_draw:')
    if dyn and not sat: e(f'v_mov_b32 v{TA}, 1\ns_mov_b64 exec, 1\nbuffer_atomic_add v{TA}, off, s[16:19], s51 sc0\ns_mov_b64 exec, -1')
    e('s_branch L_s_postb')
    flush_deferred(e)
    e.c('---- rare: A was not complete at the first look')
    e(f'L_aretry:\nv_min_u32 v{T1}, 47, v0\nv_lshlrev_b32 v{T1}, 9, v{T1}\nL_aw:\ns_sub_u32 s61, s61, 1\ns_cmp_gt_i32 s61, 0\ns_cbranch_scc0 L_aok')
    e(f'buffer_load_dword v{T0}, v{T1}, s[16:19], s52 offen sc1\ns_waitcnt vmcnt(0)\nv_cmp_eq_u32 vcc, -1, v{T0}\ns_cbranch_vccz L_aload\ns_sleep 4\ns_branch L_aw')
    e('L_aload:')
    for x, _, _ in aload: e(x)
    validate(e, aload, T0)
    e('s_cbranch_vccnz L_aretry\ns_branch L_aok')
    e.c('---- rare: move the reference max to the true max of the pair, redo its numerators')
    e('L_s_slow:'); first_look(PFL, TMP, 'L_s_back', 'sf')
    e(f'v_max3_f32 v{TMP}, v{S0}, v{S0+1}, v{S0+2}\nv_max3_f32 v{TMP}, v{TMP}, v{S0+3}, v{S1}\nv_max3_f32 v{TMP}, v{TMP}, v{S1+1}, v{S1+2}\nv_max_f32 v{TMP}, v{TMP}, v{S1+3}')
    xsum16_32(e, TMP, TMP + 1, 'v_max_f32')
    e(f's_lshl_b32 s30, s4, 7\nv_add_u32 v{TMP+3}, s30, v{MXO}')
    e(f'ds_write_b32 v{TMP+3}, v{TMP}\ns_waitcnt lgkmcnt(0)\ns_barrier')
    e(f'ds_read2_b32 {vr(TMP,2)}, v{MXO} offset0:0 offset1:32\ns_waitcnt lgkmcnt(0)\nv_max_f32 v{TMP}, v{TMP}, v{TMP+1}')
    quant(TMP)
    e(f'v_max_f32 v{TMP+1}, 0, v{TMP}\nv_cndmask_b32 v{TMP}, v{TMP+1}, v{TMP}, s[28:29]\ns_mov_b64 s[28:29], 0')
    for i in range(4): e(f'v_sub_f32 v{NEGM+i}, v{NEGM+i}, v{TMP}\nv_sub_f32 v{S0+i}, v{S0+i}, v{TMP}\nv_sub_f32 v{S1+i}, v{S1+i}, v{TMP}')
    for x in exp_items(S0, 0) + exp_items(S1, 1): e(x)
    e('s_waitcnt lgkmcnt(0)\ns_barrier\ns_branch L_s_back')

def code_touch(e, c):
    nl = c.code_bytes // 128 // 32; lb = e.label('L_pc')
    e(f's_getpc_b64 s[24:25]\n{lb}:\ns_sub_u32 s24, s24, {lb}-{KNAME}\ns_subb_u32 s25, s25, 0\ns_lshr_b32 s30, s6, 3\ns_mul_i32 s30, s30, {nl*128}')
    e(f'v_lshl_add_u32 v2, v0, 7, s30\ns_mov_b64 exec, {(1<<nl)-1}\nglobal_load_dword v55, v2, s[24:25]\ns_mov_b64 exec, -1')

def helper_extra(e, c):
    e.c('==== helper waves 6, 7: die count of the readers, code prefetch')
    e('L_extra:'); late_consts(e); e('s_waitcnt lgkmcnt(0)')
    if c.touch:
        e('s_cmp_lg_u32 s7, 7\ns_cbranch_scc1 L_x6'); code_touch(e, c); e('s_endpgm\nL_x6:')
    e('s_cmp_ge_u32 s2, 48\ns_cbranch_scc1 L_end\ns_cmp_lg_u32 s7, 6\ns_cbranch_scc1 L_end')
    e('s_getreg_b32 s30, hwreg(HW_REG_XCC_ID, 0, 4)\ns_cmp_ge_u32 s30, 8\ns_cbranch_scc1 L_end\ns_lshl_b32 s30, s30, 3\ns_lshl_b64 s[32:33], 1, s30')
    e(f's_and_b32 s30, s2, 1\ns_lshl_b32 s30, s30, 7\nv_mov_b32 v2, s32\nv_mov_b32 v3, s33\ns_mov_b64 exec, 1\nbuffer_atomic_add_x2 v[2:3], off, s[20:23], s30 offset:8\ns_endpgm')


DOC = """; DETR decoder block, one persistent launch: 256 workgroups x 8 waves, one per CU.
;
;
; Roles (by launch id): id % 4 != 0 streams (192 workgroups, six groups of 32 with equal id % 8);
; id % 4 == 0 helps (Q -> T -> A before, U -> h -> g -> out after, weight products meanwhile).
;
"""

def gen(c):
    e = E()
    nwg = 256
    head = f'; @launch grid=({nwg},1,1) block=(512,1,1) lds={LDS_BYTES}\n' + DOC + '.amdgcn_target "amdgcn-amd-amdhsa--gfx950"\n.text\n'
    kstart(e, KNAME)
    stamp(e, c, 0)
    e(f'v_lshrrev_b32 v1, 6, v0\nv_and_b32 v0, 63, v0\nv_readfirstlane_b32 s7, v1')
    for r, nm in ((8, 'feat_hi'), (98, 'q'), (12, 'feat_lo'), (16, 'ws'), (20, 'dbg')): e(f's_load_dwordx2 s[{r}:{r+1}], s[0:1], {KA[nm]}')
    e(f's_cmpk_ge_u32 s2, {nwg}\ns_cbranch_scc1 L_end')
    e('s_mov_b32 s6, s2\ns_and_b32 s3, s7, 3')
    e('s_lshr_b32 s2, s2, 2\ns_and_b32 s33, s6, 3\ns_cbranch_scc0 L_hent')
    e('s_mul_i32 s35, s2, 3\ns_add_u32 s35, s35, s33\ns_sub_u32 s35, s35, 1')
    e.c('S-waves first pull 1/192 of lat_hi, lat_lo, wq, Wk towards the memory-side cache, two helper waves 1/64 of wq into their L2')
    e(f's_bitcmp1_b32 {c.smask}, s7\ns_cbranch_scc0 L_strm\ns_mov_b32 s31, s7\ns_mov_b32 s30, s35\ns_mov_b32 s32, 12\ns_branch L_tch')
    e('L_hent:\ns_cmp_ge_u32 s2, 60\ns_cbranch_scc1 L_spare\ns_cmp_lt_u32 s7, 4\ns_cbranch_scc1 L_hq\ns_cmp_gt_u32 s7, 5\ns_cbranch_scc1 L_extra')
    e('s_mov_b32 s31, 2\ns_and_b32 s30, s2, 62\ns_add_u32 s30, s30, s3\ns_mov_b32 s32, 36')
    e('L_tch:\ns_lshl3_add_u32 s34, s31, 24\ns_load_dwordx2 s[96:97], s[0:1], s34')
    e('s_mul_i32 s30, s30, s32\nv_add_u32 v2, s30, v0\nv_mul_u32_u24 v3, 0xaaab, v2\nv_lshrrev_b32 v3, 18, v3')
    e('s_cmp_eq_u32 s31, 3\ns_cselect_b32 s30, 6, 0\nv_mad_u32_u24 v2, v3, s30, v2\nv_lshlrev_b32 v2, 7, v2')
    e('s_bfm_b64 exec, s32, 0\ns_waitcnt lgkmcnt(0)\nglobal_load_dword v55, v2, s[96:97]\ns_mov_b64 exec, -1\ns_cmp_lg_u32 s33, 0\ns_cbranch_scc1 L_strm\ns_endpgm')
    e('L_hq:\ns_lshr_b32 s30, s2, 1\ns_lshl2_add_u32 s30, s30, s7\ns_min_u32 s30, s30, 0x5f\ns_bitcmp1_b32 s2, 0\ns_cselect_b32 s31, 0x60, 0\ns_add_u32 s30, s30, s31\ns_lshl_b32 s30, s30, 7\nv_mov_b32 v3, s30')
    e('s_mov_b64 exec, 1\ns_waitcnt lgkmcnt(0)\nglobal_load_dword v255, v3, s[98:99]\ns_mov_b64 exec, -1')
    e('s_cmp_lt_u32 s2, 48\ns_cbranch_scc1 L_tail\ns_branch L_pf\nL_strm:')
    streamer(e, c)
    e.mark('off_Lw')
    role_spare(e, c); helper_extra(e, c); role_pf(e, c); role_tail(e, c)
    if c.walk:
        for nm in ('Lw', 'Lv'): e.place_pads(nm, 4, c.walk)
    e.l = [x for x in e.l if not x.strip().startswith(';@')]
    e.c('padding: the code prefetch reads up to here')
    e(f'.fill ({c.code_bytes} - (. - {KNAME})) / 4, 4, 0xbf800000\ns_endpgm\ns_endpgm')
    return head + e.text() + '.section .rodata,"a"\n' + kdesc(KNAME, 256, 100, 256)

if __name__ == '__main__':
    c = Cfg()
    for a in sys.argv[2:]:
        k, v = a.split('='); setattr(c, k, eval(v))
    if c.diag: c.code_bytes = 0x8000
    t = gen(c)
    if getattr(c, 'nomf', 0):
        a = t.index('L_p:'); b = t.index('L_s_last:')
        keep = [l for l in t[a:b].split('\n') if not ('v_mfma_f32_32x32' in l or 'tr_b16' in l or (c.nomf > 1 and 'v_mfma' in l))]
        t = t[:a] + '\n'.join(keep) + t[b:]
    open(sys.argv[1], 'w').write(t)
    print(hazard.check(t), 'hazards')
```

```python
from gen_v14_roles import *

class Cap:
    def __init__(s): s.g = []
    def __call__(s, t): s.g.append(t)
    def take(s, e, n):
        while s.g and n > 0:
            t = s.g.pop(0); e(t); n -= t.count('\n') + 1

def streamer(e, c):
    fine = c.fine
    def cyc(k):
        if fine is not None: e(f's_memtime s[{84+2*k}:{85+2*k}]')
    def cyc_save():
        if fine is None: return
        lb = e.label('L_fs')
        e(f's_cmp_lg_u32 s25, {fine}\ns_cbranch_scc1 {lb}\ns_waitcnt lgkmcnt(0)')
        for k in range(6): e(f's_mov_b32 s{66+2*k}, s{84+2*k}')
        e(f'{lb}:')
    NS = 192; rd0 = c.rd0; ns = 2 * rd0 + 4; nt = ' nt' if not c.hot else ''; ch = 1; Ks = Kp = 2
    cus = c.cu; assert all(v[0] < v[1] < rd0 and 0 < v[2] < rd0 for v in cus) and c.hookx < rd0 and c.nshard <= 8
    def select(pairs):
        t = 's_lshr_b32 s30, s6, 3\ns_and_b32 s30, s30, 3'
        for v, cu in enumerate(cus):
            if v: t += f'\ns_cmp_eq_u32 s30, {v}'
            for reg, fn in pairs: t += f'\ns_mov_b32 s{reg}, {fn(cu)}' if v == 0 else f'\ns_cselect_b32 s{reg}, {fn(cu)}, s{reg}'
        return t
    T0, T1, T2, T3 = 2, 3, 4, 5
    L16, LH2, SW = 6, 7, 10
    e(f's_mul_hi_u32 s30, s35, {-(-(1<<32)//24)}\ns_mul_i32 s30, s30, 24\ns_add_u32 s26, s35, s30\ns_lshl_b32 s26, s26, 1')
    e(f's_and_b32 s4, s3, 1\ns_lshr_b32 s5, s3, 1\ns_mul_i32 s42, s5, 48\ns_add_u32 s42, s42, s4\ns_add_u32 s26, s26, s42\ns_mulk_i32 s26, 6144\nv_lshlrev_b32 v{L16}, 4, v0')
    e(f's_mov_b32 s10, {SZ["feat_hi"]}\ns_mov_b32 s11, 0x20000')
    def common2():
        e(f's_lshl2_add_u32 s27, s35, s3\ns_mulk_i32 s27, 1536\nv_add_u32 v{LH2}, 4096, v{L16}')
        e(f's_mov_b32 s14, {SZ["feat_lo"]}\ns_mov_b32 s15, 0x20000\ns_add_u32 s2, s35, {NH}')
    jump_hi = NS * ch * 12288 + (NS * ch // 24) * 294912 - ch * 12288; jump_lo = (NS - 1) * ch * 6144
    def src_adv(k=1):
        if not c.hot: e(f's_add_u32 s26, s26, {k*(12288+jump_hi)}\ns_add_u32 s27, s27, {k*(6144+jump_lo)}')
    def stage_items(B):
        it = [f'buffer_load_dwordx4 {vr(B+4*j)}, v{L16 if j < 4 else LH2}, s[8:11], s26 offen offset:{1024*(j%4)}{nt}' for j in range(6)]
        it.append(f'buffer_load_dwordx4 {vr(B+24)}, v{L16}, s[12:15], s27 offen{nt}')
        it.append(f's_mov_b32 exec_hi, 0\nbuffer_load_dwordx4 {vr(B+28)}, v{L16}, s[12:15], s27 offen offset:1024{nt}\ns_mov_b32 exec_hi, -1')
        return it
    def setup_sw(e):
        e('s_lshl_b32 s41, s4, 1\ns_lshl_b32 s44, s5, 1\ns_mov_b32 s47, 0x78')
        for b in range(3):
            e(f'v_add_u32 v{T0}, {64*b}, v0\nv_mul_u32_u24 v{T1}, 1366, v{T0}\nv_lshrrev_b32 v{T1}, 16, v{T1}')
            e(f'v_mul_u32_u24 v{T2}, 48, v{T1}\nv_sub_u32 v{T0}, v{T0}, v{T2}\nv_lshlrev_b32 v8, 4, v{T2}')
            if b < 2: e(f'v_add_lshl_u32 v{T2}, v{T1}, s41, 2\nv_or_b32 v{T2}, s44, v{T2}\nv_xor_b32 v{T2}, v{T2}, v{T0}\nv_lshl_add_u32 v{SW+6+b}, v{T2}, 4, v8')
            e(f'v_and_or_b32 v{T3}, v{T1}, 1, s44\nv_lshlrev_b32 v{T3}, 2, v{T3}\nv_xor_b32 v{T0}, v{T0}, v{T3}\nv_and_b32 v{T1}, 2, v{T1}\nv_lshrrev_b32 v{T1}, v{T1}, s47')
            e(f'v_and_b32 v{T2}, 3, v{T1}\nv_xor_b32 v{T2}, v{T2}, v{T0}\nv_lshl_add_u32 v{SW+b}, v{T2}, 4, v8')
            e(f'v_bfe_u32 v{T2}, v{T1}, 4, 2\nv_xor_b32 v{T2}, v{T2}, v{T0}\nv_lshl_add_u32 v{T2}, v{T2}, 4, v8\nv_add_u32 v{SW+3+b}, 3072, v{T2}')
        e(f's_mul_i32 s24, s3, 6144\ns_mul_i32 s34, s3, -4608\ns_add_u32 s34, s34, {24576-5120}\ns_add_u32 s31, s24, {PB}')
    def unstage_items(B, slot, tmp):
        it = [f'v_add_u32 v{tmp+(j&1)}, s{slot if j < 6 else 43}, v{SW+j}\nds_write_b128 v{tmp+(j&1)}, {vr(B+4*j)}' for j in range(7)]
        it[6] = f's_add_u32 s43, s{slot}, s34\ns_add_u32 s43, s43, 5120\n' + it[6]
        it.append(f'v_add_u32 v{tmp+1}, s43, v{SW+7}\ns_mov_b32 exec_hi, 0\nds_write_b128 v{tmp+1}, {vr(B+28)}\ns_mov_b32 exec_hi, -1')
        return it
    def dma_items():
        it = []
        for j in range(6):
            it.append(('s_mov_b32 m0, s24' if j == 0 else 's_add_u32 m0, m0, 1024') + f'\ns_nop 0\nbuffer_load_dwordx4 v{SW+j}, s[8:11], s26 offen{nt} lds')
        it.append(f's_add_u32 m0, m0, s34\ns_nop 0\nbuffer_load_dwordx4 v{SW+6}, s[12:15], s27 offen{nt} lds')
        it.append(f's_add_u32 m0, m0, 1024\ns_mov_b32 exec_hi, 0\nbuffer_load_dwordx4 v{SW+7}, s[12:15], s27 offen{nt} lds\ns_mov_b32 exec_hi, -1')
        return it
    def slot_adv(): e(f's_add_u32 s24, s24, {2*TILE}\ns_cmp_ge_u32 s24, s31\ns_cselect_b32 s30, {PB}, 0\ns_sub_u32 s24, s24, s30')
    def decode(odd):
        if c.hot: e('s_mov_b32 s27, s35')
        elif odd: e('s_add_u32 s27, s27, 1')
        e(f's_mul_hi_u32 s30, s27, {-(-(1<<32)//24)}\ns_mul_i32 s30, s30, 24\ns_add_u32 s26, s27, s30\ns_lshl1_add_u32 s26, s26, s42\ns_mulk_i32 s26, 6144\ns_lshl2_add_u32 s27, s27, s3\ns_mulk_i32 s27, 1536')
    def check(PFL, t, slow):
        e(f'v_or3_b32 v{t}, v{PFL}, v{PFL+1}, v{PFL+2}\nv_or_b32 v{t}, v{t}, v{PFL+3}\nv_and_b32 v{t}, 0x40004000, v{t}\nv_cmp_ne_u32 vcc, 0, v{t}\ns_or_b64 vcc, vcc, s[28:29]\ns_cbranch_scc1 {slow}')
    def first_look(PFL, t, back, tag):
        e(f's_cmp_eq_u64 s[28:29], 0\ns_cbranch_scc1 L_{tag}_go\nv_cmp_ne_u32 s[56:57], 0, v{t}')
        e(f'v_pk_max_u16 v{t}, v{PFL}, v{PFL+1}\nv_pk_max_u16 v{t+1}, v{PFL+2}, v{PFL+3}\nv_pk_max_u16 v{t}, v{t}, v{t+1}\nv_lshlrev_b32 v{t+1}, 16, v{t}\nv_max_u32 v{t}, v{t}, v{t+1}')
        e(f'v_cmp_gt_u32 vcc, 0x2b800000, v{t}\ns_or_b64 vcc, vcc, s[56:57]\ns_cbranch_scc1 L_{tag}_go\ns_mov_b64 s[28:29], 0\ns_branch {back}\nL_{tag}_go:')
    def quant(r): e(f'v_add_f32 v{r}, 4.0, v{r}\nv_mul_f32 v{r}, {fx(1/16)}, v{r}\nv_ceil_f32 v{r}, v{r}\nv_mul_f32 v{r}, {fx(16.0)}, v{r}')
    grp = f's_bfe_u32 s36, s6, 0x10002\ns_mul_i32 s36, s36, 3\ns_and_b32 s30, s6, 3\ns_add_u32 s36, s36, s30\ns_sub_u32 s36, s36, 1\ns_lshr_b32 s37, s6, 3\ns_mul_i32 s38, s36, {32*PS_}\ns_add_u32 s38, s38, {PART}'
    grp += f'\ns_lshl_b32 s39, s36, 7\ns_add_u32 s39, s39, {TKC+1024}'
    nost = c.iso or c.cut in (1, 3, 4, 5, 6, 7)

    PH, PL, PR, MPV, LSUM, ONES, LA = 18, 24, 27, 28, 29, 30, 31
    TMP, VA, VL, PFL, PF, XG, ACC, STB = 32, 40, 88, 100, 104, 120, 128, 224
    A2 = [124, 125, 126, 127, 4, 5, 7, 9, 39]
    pa = lambda tt, i: PH + i if tt == 0 else A2[i]
    pstage = [VA, STB]
    e.c('==== streamer waves 4..7: prefetch (two tiles into registers, three into LDS) with the address set-up woven in')
    e('s_cmp_lt_u32 s7, 4\ns_cbranch_scc1 L_sw\ns_waitcnt lgkmcnt(0)')
    stamp(e, c, 1)
    if c.pro == 1: common2(); late_consts(e); e('s_branch L_fin')
    g = Cap(); setup_sw(g); nsw = len(g.g)
    late_consts(g)
    g(f'v_lshrrev_b32 v{T0}, 5, v0\nv_bfe_u32 v{T1}, v0, 2, 2')
    g(f'v_bfe_u32 v{T2}, v0, 4, 1\nv_and_b32 v{T3}, 1, v0\nv_lshl_or_b32 v{T2}, v{T2}, 1, v{T3}\nv_lshl_or_b32 v{T2}, v{T1}, 2, v{T2}')
    g(f'v_bfe_u32 v{T3}, v0, 1, 1\nv_lshlrev_b32 v{T3}, 3, v{T3}')
    Q0 = TMP
    g(f'v_lshl_add_u32 v{Q0+3}, v{T0}, 2, v{T1}\nv_mul_u32_u24 v{Q0+3}, 768, v{Q0+3}\nv_add_u32 v{Q0+3}, v{Q0+3}, v{T3}\nv_add_u32 v{Q0+3}, 24576, v{Q0+3}\nv_lshlrev_b32 v{Q0+7}, 1, v{T0}')
    g(f'v_lshrrev_b32 v{Q0+4}, 1, v{T1}\nv_lshlrev_b32 v{Q0+4}, 4, v{Q0+4}\nv_lshl_add_u32 v{Q0+4}, v{T0}, 2, v{Q0+4}\nv_and_or_b32 v{Q0+4}, v{T1}, 1, v{Q0+4}\nv_mul_u32_u24 v{Q0+4}, 768, v{Q0+4}\nv_add_u32 v{Q0+4}, v{Q0+4}, v{T3}')
    g(f'v_lshlrev_b32 v{Q0+5}, 2, v{T0}\ns_mov_b32 s30, 0x78\nv_lshrrev_b32 v{Q0+5}, v{Q0+5}, s30\nv_bfe_u32 v{Q0+6}, v{Q0+5}, 2, 2\nv_and_b32 v{Q0+5}, 3, v{Q0+5}')
    for t in range(3):
        g(f's_mul_i32 s30, s3, 12\ns_add_u32 s30, s30, {4*t}\nv_xor_b32 v{Q0}, s30, v{T2}\nv_xor_b32 v{Q0+1}, v{Q0}, v{Q0+7}\nv_lshl_add_u32 v{PL+t}, v{Q0+1}, 4, v{Q0+3}')
        g(f'v_xor_b32 v{Q0+1}, v{Q0}, v{Q0+5}\nv_lshl_add_u32 v{PH+2*t}, v{Q0+1}, 4, v{Q0+4}\nv_xor_b32 v{Q0+1}, v{Q0}, v{Q0+6}\nv_lshl_add_u32 v{Q0+1}, v{Q0+1}, 4, v{Q0+4}\nv_add_u32 v{PH+2*t+1}, 1536, v{Q0+1}')
    g(f'v_add_u32 v{PR}, {PB}, v{L16}\nv_lshlrev_b32 v1, 3, v0\nv_lshlrev_b32 v8, 7, v0'); late_addr(g, LA)
    for i in range(0, 96, 2): g(f'v_mov_b64 {vr(ACC+i,2)}, 0')
    g(f'v_mov_b32 v{MPV}, {fx(16.0)}\nv_mov_b32 v{LSUM}, 0\nv_mov_b32 v{ONES}, 0x3f803f80')
    g(select([(44, lambda cu: cu[2])]))
    g(f's_mov_b64 s[28:29], -1\ns_mov_b32 s45, 0\ns_mov_b32 s25, 0\ns_mov_b32 s33, {2*TILE}\ns_mov_b32 s49, 0\ns_mov_b32 s58, 2\nv_mov_b32 v{T0}, {TKW}')
    g(grp)
    g(f's_mul_i32 s52, s37, {PS_}\ns_add_u32 s52, s52, s38\ns_lshl_b32 s30, s3, 8\ns_add_u32 s48, s52, s30\ns_add_u32 s48, s48, 49152')
    g(f's_mul_i32 s30, s3, {PS_//4}\ns_add_u32 s50, s52, s30')
    g(f's_mul_i32 s30, s3, 6144\ns_add_u32 s52, s52, s30\ns_add_u32 s53, s52, 4096\ns_add_u32 s54, s52, 24576\ns_add_u32 s55, s52, {24576+4096}')
    g(f's_lshl_b32 s51, s36, 2\ns_add_u32 s51, s51, s3\ns_lshl_b32 s51, s51, 5\ns_add_u32 s51, s51, s37\ns_lshl_b32 s51, s51, 2\ns_add_u32 s51, s51, {FL}')
    total = len(g.g); cnt = 0
    for j in range(Kp + 3):
        if j == Kp:
            while total - len(g.g) < nsw: g.take(e, 1)
        for i, x in enumerate(stage_items(pstage[j]) if j < Kp else dma_items()):
            if j == 0 and i == 4: common2()
            if cnt == c.jp: e('s_barrier')
            e(x); cnt += 1
            if cnt >= 10: g.take(e, c.weave)
        if not c.pairs: src_adv(1 if j < Kp + 2 else 3)
        elif j < 3: src_adv(1)
        elif j == 3: e('s_lshl1_add_u32 s27, s35, 768'); decode(0)
        else: src_adv(2)
        if j >= Kp: e(f's_add_u32 s24, s24, {TILE if j < Kp + 2 else 2*TILE}')
    g.take(e, 9999)
    if c.jp == cnt: e('s_barrier')
    assert c.jp <= cnt
    stamp(e, c, 2)
    if c.pro == 2: e('s_waitcnt vmcnt(0)'); stamp(e, c, 3); e('s_branch L_fin')
    rP = [(f'ds_read_b128 {vr(PFL)}, v{PR} offset:4096', 'pfl')] + [(f'ds_read_b128 {vr(PF+4*i)}, v{PR} offset:{1024*i}', ('pf', i)) for i in range(4)]
    trH = lambda tt, t, pg: [f'ds_read_b64_tr_b16 {vr(VA+24*tt+8*t+4*pg+2*u,2)}, v{pa(tt,2*t+u)} offset:{6144*pg}' for u in range(2)]
    trL = lambda tt, t: [f'ds_read_b64_tr_b16 {vr(VL+4*t+2*tt,2)}, v{pa(tt,6+t)}']
    mL = lambda t: f'v_mfma_f32_32x32x16_bf16 {vr(ACC+48+16*t,16)}, {vr(VL+4*t)}, {vr(PFL)}, {vr(ACC+48+16*t,16)}'
    mH = lambda tt, t, pg: f'v_mfma_f32_32x32x16_bf16 {vr(ACC+16*t,16)}, {vr(VA+24*tt+8*t+4*pg)}, {vr(PF+8*tt+4*pg)}, {vr(ACC+16*t,16)}'
    sdelta = f's_cmp_ge_u32 s45, 3\ns_cselect_b32 s32, {-3*TILE}, s33\ns_cselect_b32 s30, -3, 2\ns_bitcmp1_b32 12, s45\ns_cselect_b32 s41, {-3*TILE}, s33\ns_add_u32 s45, s45, s30'
    lsum = '\n'.join(f'v_dot2c_f32_bf16 v{LSUM}, v{PFL+i}, v{ONES}' for i in range(4))
    def tr(xs):
        for x in xs:
            if len(e.ds) >= 14: e(f's_waitcnt lgkmcnt(8)'); e.ds = e.ds[-8:]
            e.dsop(x, 'tr')
    tcnt = lambda pos: c.tpos.count(pos) if c.local and not nost else 0
    touch1 = f's_bfm_b64 exec, {-(-98//len(c.tpos))}, 0\nbuffer_load_dword v38, v8, s[16:19], s50 offen{c.tfl}\ns_add_u32 s50, s50, {-(-98//len(c.tpos))*128}\ns_mov_b64 exec, -1'
    if c.tfull:
        per = -(-13 // len(c.tpos)); tc0 = tcnt; tcnt = lambda pos: tc0(pos) * per
        touch1 = f'buffer_load_dwordx4 {vr(STB)}, v{L16}, s[16:19], s50 offen{c.tfl}\ns_add_u32 s50, s50, 1024'
    xgload = f's_mov_b64 exec, 1\nbuffer_load_dwordx2 {vr(XG,2)}, off, s[16:19], s39 sc1\ns_mov_b64 exec, -1'
    e.mark('on_Lw')
    e.c('---- round 0: the first staged tile leaves the operand registers')
    for i in range(9): e(f'v_add_u32 v{A2[i]}, {TILE}, v{PH+i}')
    for k in range(tcnt(0)): e(touch1)
    if c.tlbw: e('s_mov_b64 exec, 1\nbuffer_load_dword v38, v8, s[16:19], s50 offen\ns_mov_b64 exec, -1')
    e(f's_sub_u32 s40, s24, {TILE}\ns_setprio 1\ns_barrier\ns_waitcnt vmcnt({8+tcnt(0)+c.tlbw})\ns_barrier')
    for x, y in zip(dma_items(), unstage_items(pstage[0], 40, TMP)): e(x); e(y)
    src_adv(2)
    if c.tl: e('v_mov_b32 v37, 0')
    e('s_mov_b64 vcc, 0\ns_waitcnt lgkmcnt(0)\ns_branch L_p_rd')
    steps = [(mL(t), None) for t in range(3)] + [(mH(tt, t, pg), ('pf', 2 * tt + pg) if t == 0 else None) for tt in range(2) for t in range(3) for pg in range(2)]
    nd = c.ndefer; assert nd <= 4
    e.c('---- round: stream one tile, transposed operand reads | barrier | check, P @ feat')
    e(f'.p2align 3\nL_p:\ns_waitcnt vmcnt(8)\ns_cmp_eq_u32 s58, 2\ns_cbranch_scc0 L_p_w\nL_p_wb:'); cyc(5); e('s_barrier'); cyc(0)
    e.deferred.append(f'L_p_w:\ns_waitcnt vmcnt({tcnt(1)})\ns_cmp_eq_u32 s58, 1\ns_cbranch_scc1 L_p_wb\ns_waitcnt vmcnt(0)\ns_branch L_p_wb')
    e(f'ds_read_b32 v{T1}, v{T0}\ns_mov_b64 vcc, 0')
    for m, _ in steps[15 - nd:]: e(m)
    e(f's_bitcmp1_b32 {(1 << c.hookx) | (0xffffffff & ~((1 << rd0) - 1))}, s25\ns_cbranch_scc1 L_p_x1\nL_p_go:')
    e('s_cmp_lg_u32 s25, s44\ns_cselect_b32 s58, 2, 0\ns_cbranch_scc0 L_p_cu\ns_mov_b64 vcc, -1')
    e.deferred.append('L_p_cu:\n' + (touch1 + '\n') * tcnt(4) + 's_branch L_p_rd')
    dm = dma_items()
    for x in dm[:c.nx[0]]: e(x)
    dm = dm[c.nx[0]:]
    if not dm: src_adv(2)
    e(f'L_p_rd:\ns_setprio {c.xprio}')
    e.ds = ['tk']
    for tt in range(2):
        for t in range(3): tr(trL(tt, t) + (trH(tt, t, 0) + trH(tt, t, 1) if tt == 0 or not c.late1 else []))
        if c.nx[1 + tt]:
            e(f's_cbranch_vccz L_nx{tt}')
            for x in dm[:c.nx[1 + tt]]: e(x)
            dm = dm[c.nx[1 + tt]:]
            if not dm: src_adv(2)
            e(f'L_nx{tt}:')
    assert not dm
    e(sdelta)
    if c.tl: e('s_memrealtime s[92:93]')
    cyc(1)
    e('s_setprio 1'); e.dsall(); e('s_barrier'); cyc(2)
    for x, tag in rP: e.dsop(x, tag)
    late = [(x, ('h1', t, pg)) for t in range(3) for pg in range(2) for x in trH(1, t, pg)] if c.late1 else []
    if c.tl: e('s_mov_b32 m0, s25\ns_nop 0\nv_writelane_b32 v37, s92, m0')
    e.dswait('pfl')
    check(PFL, TMP, 'L_p_slow')
    e('L_p_back:')
    e('s_cmp_eq_u32 s49, 2\ns_cbranch_scc1 L_p_last'); cyc(3)
    saved = list(e.ds)
    adds = [f'v_add_u32 v{pa(tt,i)}, s{32 if tt == 0 else 41}, v{pa(tt,i)}' for tt in range(2) for i in range(9)]
    un2 = unstage_items(pstage[1], 24, TMP)
    e(lsum)
    e('s_cmp_eq_u32 s25, s44\ns_cselect_b64 vcc, -1, 0')
    for i, (m, w) in enumerate(steps[:15 - nd]):
        if late and i == 9: e.dsall()
        if w and w in e.ds: e.dswait(w)
        e(m)
        for x, tag in late[2 * i:2 * i + 2]: e.dsop(x, tag)
        for _ in range(2):
            if adds and (len(adds) > 9 or i >= 6 or not late): e(adds.pop(0))
        if i % 2 == 1 and un2:
            lb = e.label('L_un'); e(f's_cbranch_vccnz {lb}\n{lb}_b:')
            e.deferred.append(f'{lb}:\ns_waitcnt lgkmcnt(8)\n{un2.pop(0)}\n{un2.pop(0)}\ns_branch {lb}_b')
    assert not adds and not un2
    slot_adv()
    cyc(4); cyc_save()
    e('s_add_u32 s25, s25, 1\ns_min_u32 s25, s25, 31\ns_branch L_p')
    e.c('---- late rounds: the tiles come from a shared pool (ticket posted by wave 0)')
    e(f'L_p_x1:\ns_cmp_eq_u32 s25, {c.hookx}\ns_cbranch_scc1 L_p_x0\ns_cmp_lg_u32 s49, 0\ns_cbranch_scc1 L_p_dry2\ns_waitcnt lgkmcnt(0)\nv_readfirstlane_b32 s27, v{T1}\ns_cmp_lt_i32 s27, 0\ns_cbranch_scc1 L_p_dry\ns_bitset0_b32 s27, 30')
    decode(0)
    e('s_branch L_p_go')
    e('L_p_dry:')
    for k in range(tcnt(1)): e(touch1)
    if not c.iso: late_wait(e, XG + 2, LA)
    e(f'L_xg:\nv_lshl_add_u64 {vr(XG,2)}, {vr(XG,2)}, 0, 1\nv_add_u32 v{TMP}, v{XG}, v{XG+1}\ns_nop 0\nv_readfirstlane_b32 s30, v{TMP}\ns_mul_i32 s30, s30, 0x01010101\ns_lshr_b32 s30, s30, 24\ns_cmp_ge_u32 s30, 32\ns_cbranch_scc0 L_xgr\nL_xgd:')
    e.deferred.append(f'L_xgr:\ns_sleep 8\n{xgload}\ns_waitcnt vmcnt(0)\ns_sub_u32 s61, s61, 1\ns_cmp_gt_i32 s61, 0\ns_cbranch_scc1 L_xg\ns_branch L_xgd')
    local_flag(e, XG, 32)
    if not c.local: e('s_mov_b32 s59, 0')
    e('s_mov_b32 s49, 1\ns_mov_b32 s58, 1\ns_mov_b64 vcc, 0\ns_branch L_p_rd')
    e('L_p_dry2:')
    for k in range(tcnt(2)): e(touch1)
    e('s_mov_b32 s49, 2\ns_branch L_p_rd')
    e('L_p_x0:'); late_load(e, XG + 2, LA); e(xgload); e('s_branch L_p_go')
    flush_deferred(e)
    e.c('---- last round: finish the sums, hand them to the group, raise the flag')
    e('L_p_last:'); e.ds = saved
    pstore = lambda s: f'buffer_store_dwordx4 {vr(ACC+8*s)}, v{L16}, s[16:19], s{52 + 2*(s//6) + (s%6)//4} offen offset:{1024*((s%6)%4)}'
    mlstore = f's_mov_b32 exec_hi, 0\nbuffer_store_dwordx2 {vr(MPV,2)}, v1, s[16:19], s48 offen%s\ns_mov_b32 exec_hi, -1'
    def cvt(s):
        b = ACC + 8 * s
        for i in range(4): e(f'v_cvt_pk_bf16_f32 v{b+i}, v{b+2*i}, v{b+2*i+1}')
        if not nost: e(pstore(s))
    last = [mL(t) for t in range(3)] + [mH(tt, t, pg) for t in range(3) for tt in range(2) for pg in range(2)]
    todo = {4: [6], 5: [7], 6: [8], 7: [9], 8: [10], 9: [11], 10: [0], 11: [1], 14: [2, 3]}
    for i, m in enumerate(last):
        if i == 3: e.dswait(('pf', 3))
        if i == 5 and late: e.dsall()
        e(m)
        if i < 4:
            for x, tag in late[3 * i:3 * i + 3]: e.dsop(x, tag)
        if i in (2, 3):
            for j in (2 * (i - 2), 2 * (i - 2) + 1): e(f'v_lshlrev_b32 v{TMP}, 16, v{PFL+j}\nv_and_b32 v{TMP+1}, 0xffff0000, v{PFL+j}\nv_add_f32 v{LSUM}, v{LSUM}, v{TMP}\nv_add_f32 v{LSUM}, v{LSUM}, v{TMP+1}')
        if i == 12: e(f'v_mov_b32 v{TMP}, v{LSUM}\nv_readfirstlane_b32 s57, v{MPV}\ns_nop 0\nv_permlane32_swap_b32 v{LSUM}, v{TMP}\nv_add_f32 v{LSUM}, v{LSUM}, v{TMP}\nv_cmp_neq_f32 vcc, s57, v{MPV}')
        if i == 13 and not nost: e(mlstore % '')
        for s in todo.get(i, []): cvt(s)
        if i == c.barx: e('s_barrier')
    e(f's_cmp_eq_u64 vcc, 0\ns_cselect_b32 s57, s57, -2\nv_mov_b32 v{TMP}, s57\ns_nop 0')
    cvt(4); cvt(5)
    if c.barx == 15: e('s_barrier')
    if fine is None: stamp(e, c, 6)
    if c.tl: e(f's_lshl_b32 s30, s35, 2\ns_add_u32 s30, s30, s3\ns_lshl_b32 s30, s30, 8\ns_add_u32 s30, s30, {DG+0x20000}\nv_lshlrev_b32 v125, 2, v0\nbuffer_store_dword v37, v125, s[16:19], s30 offen')
    e('s_cmp_eq_u32 s59, 0\ns_waitcnt vmcnt(0)\ns_cbranch_scc1 L_p_far')
    stamp(e, c, 7)
    if not nost: e(f's_mov_b64 exec, 1\nbuffer_store_dword v{TMP}, off, s[16:19], s51')
    e('s_branch L_fin')
    e('L_p_far:')
    if not nost:
        for s in range(12): e(pstore(s) + ' sc1')
        e(mlstore % ' sc1')
        e(f's_waitcnt vmcnt(0)\ns_mov_b64 exec, 1\nbuffer_store_dword v{TMP}, off, s[16:19], s51 sc1')
    e('s_branch L_fin')
    e.c('---- rare: the reference max moves, rescale the sums')
    e('L_p_slow:'); first_look(PFL, TMP, 'L_p_back', 'pf')
    e(f's_mov_b32 s30, {MXB}\nv_and_b32 v{TMP+2}, 31, v0\nv_lshl_add_u32 v{TMP+2}, v{TMP+2}, 2, s30\ns_waitcnt lgkmcnt(0)\ns_barrier')
    e(f'ds_read2_b32 {vr(TMP,2)}, v{TMP+2} offset0:0 offset1:32\ns_waitcnt lgkmcnt(0)\nv_max_f32 v{TMP}, v{TMP}, v{TMP+1}')
    quant(TMP)
    nf = e.label()
    e(f's_cmp_lg_u64 s[28:29], 0\ns_cbranch_scc1 {nf}')
    e(f'v_max_f32 v{TMP}, 0, v{TMP}\nv_exp_f32 v{TMP+2}, -v{TMP}\ns_nop 0\nv_mul_f32 v{LSUM}, v{LSUM}, v{TMP+2}')
    for i in range(0, 96, 2): e(f'v_pk_mul_f32 {vr(ACC+i,2)}, {vr(ACC+i,2)}, {vr(TMP+2,2)} op_sel_hi:[1,0]')
    e(f'{nf}:\ns_mov_b64 s[28:29], 0\nv_add_f32 v{MPV}, v{MPV}, v{TMP}\ns_barrier')
    for x, _ in rP: e(x)
    e('s_waitcnt lgkmcnt(0)\ns_branch L_p_back')

    SH, SL, PW, PW2, PR2, MXO, TKA, TK, TA = 18, 22, 26, 27, 28, 29, 30, 31, 9
    NEGM, SLO, S0, S1, PFL, PK, FB, NB, TMP, AQ, STG = 32, 36, 40, 44, 48, 52, 56, 8, 88, 96, 192
    e.mark('off_Lw')
    e.c('==== streamer waves 0..3: set-up, two staged tiles, A through LDS')
    e('L_sw:'); common2(); late_consts(e)
    if c.touch in (True, 's'):
        e('s_cmp_lg_u32 s7, 0\ns_cbranch_scc1 L_snt'); code_touch(e, c); e('L_snt:')
    if c.pro == 1: e('s_waitcnt lgkmcnt(0)\ns_branch L_fin')
    if c.pairs: e('s_lshl1_add_u32 s27, s35, 768'); decode(1)
    else: src_adv(5)
    setup_sw(e)
    e(f'v_and_b32 v{T0}, 15, v0\nv_lshrrev_b32 v{T1}, 4, v0')
    e(f'v_lshrrev_b32 v{T2}, 2, v{T0}\nv_lshlrev_b32 v{T3}, 1, v{T2}\nv_lshrrev_b32 v{TMP+1}, v{T3}, s47\nv_and_b32 v{TMP+1}, 3, v{TMP+1}')
    e(f'v_and_b32 v{TMP}, 3, v{T0}\nv_lshl_or_b32 v{TMP+1}, v{TMP}, 2, v{TMP+1}\nv_xor_b32 v{TMP+1}, v{TMP+1}, v{T1}\nv_lshlrev_b32 v{TMP+1}, 4, v{TMP+1}')
    e(f'v_lshrrev_b32 v{TMP}, 1, v{TMP}\nv_lshl_add_u32 v{T3}, v{TMP}, 4, v{T3}\nv_and_or_b32 v{T3}, v{T0}, 1, v{T3}\nv_mul_u32_u24 v{T3}, 768, v{T3}\ns_mul_i32 s30, s4, {TILE}\nv_add3_u32 v{SH}, v{T3}, v{TMP+1}, s30')
    e(f'v_and_b32 v{TMP}, 1, v0\nv_lshlrev_b32 v{T3}, 1, v{TMP}\nv_lshl_or_b32 v{T3}, v{T2}, 2, v{T3}\nv_xor_b32 v{T3}, v{T3}, v{T1}\nv_lshlrev_b32 v{T3}, 4, v{T3}')
    e(f'v_lshl_add_u32 v{TMP}, v{TMP}, 2, v{T2}\nv_mul_u32_u24 v{TMP}, 768, v{TMP}\ns_add_u32 s30, s30, 24576\nv_add3_u32 v{SL}, v{T3}, v{TMP}, s30')
    for b in range(1, 4): e(f'v_xor_b32 v{SH+b}, {64*b}, v{SH}\nv_xor_b32 v{SL+b}, {64*b}, v{SL}')
    e(f's_lshl_b32 s30, s5, 4\nv_add_u32 v{T3}, s30, v{T0}')
    e(f'v_lshrrev_b32 v{TMP}, 1, v{T1}\nv_lshlrev_b32 v{TMP}, 9, v{TMP}\nv_lshl_add_u32 v{TMP}, v{T3}, 4, v{TMP}\nv_and_b32 v{TMP+1}, 1, v{T1}\nv_lshl_add_u32 v{TMP}, v{TMP+1}, 3, v{TMP}')
    e(f's_lshl_b32 s30, s4, 11\ns_add_u32 s30, s30, {PB}\nv_add_u32 v{PW}, s30, v{TMP}')
    e(f'v_lshlrev_b32 v{TMP}, 4, v{T3}\nv_lshl_add_u32 v{TMP}, v{T1}, 1, v{TMP}\ns_lshl_b32 s30, s4, 3\ns_add_u32 s30, s30, {PB+4096}\nv_add_u32 v{PW2}, s30, v{TMP}')
    e(f'v_lshlrev_b32 v1, 3, v0\nv_add_u32 v{PR2}, {PB+4096}, v{L16}\nv_lshlrev_b32 v{MXO}, 2, v{T3}\nv_add_u32 v{MXO}, {MXB}, v{MXO}\nv_mov_b32 v{TKA}, {TKW}')
    for i in range(4): e(f'v_mov_b32 v{NEGM+i}, {fx(-16.0)}')
    e(select([(44, lambda cu: (1 << cu[0]) | (1 << cu[1]) | (0xffffffff & ~((1 << (rd0 - 1)) - 1))), (46, lambda cu: cu[0]), (47, lambda cu: cu[1])]))
    e(f's_mov_b64 s[28:29], -1\ns_mov_b32 s45, s4\ns_mov_b32 s25, 0\ns_mov_b32 s33, {2*TILE}\ns_mov_b32 s49, 0')
    e(f's_mul_i32 s52, s5, 24576\ns_add_u32 s52, s52, {AF if not (c.iso or getattr(c, "cheat", 0)) else 0x1000000}'); soffs(e, 52, 6)
    e(grp)
    e(f's_and_b32 s48, s37, {c.nshard-1}\ns_lshl_b32 s51, s48, 7\ns_add_u32 s51, s51, {TKC}\ns_cmp_eq_u32 s3, 0\ns_cselect_b32 s58, {rd0-2+c.satom}, 64')
    if c.walk: e('s_waitcnt vmcnt(0)'); walk(e, 'Lw', 3, 4)
    e('s_setprio 2\ns_waitcnt lgkmcnt(0)\ns_barrier')
    e.mark('on_Lw')
    stamp(e, c, 1)
    early_load(e, T0, 5)
    for k in range(Ks):
        for x in stage_items(STG + 32 * k): e(x)
        src_adv(2 if c.pairs else 1 + k)
    e(f's_waitcnt vmcnt({8*Ks})')
    if not c.iso: early_wait(e, T0, (1,))
    stamp(e, c, 2)
    if c.pro == 2: e('s_branch L_fin')
    aload = frag_loads(AQ, 24, L16, 52)
    e(f's_mul_i32 s30, s3, 12288\ns_add_u32 m0, s30, {3*TILE}\ns_mul_i32 s43, s4, 12288\ns_add_u32 s43, s43, s52')
    for k in range(12):
        e(f'buffer_load_dwordx4 v{L16}, s[16:19], s43 offen offset:{1024*(k%4)} sc1 lds')
        if k % 4 == 3 and k < 11: e('s_add_u32 m0, m0, 4096\ns_add_u32 s43, s43, 4096')
    e(f's_mul_i32 s30, s5, 24576\ns_add_u32 s30, s30, {3*TILE}\nv_add_u32 v{T1}, s30, v{L16}\ns_setprio 0\ns_waitcnt vmcnt(0)\ns_barrier')
    e('s_cmp_lg_u32 s3, 0\ns_cbranch_scc1 L_nxg\ns_getreg_b32 s30, hwreg(HW_REG_XCC_ID, 0, 3)\ns_lshl_b32 s30, s30, 3\ns_lshl_b64 s[40:41], 1, s30')
    e(f'v_mov_b32 v{TMP}, s40\nv_mov_b32 v{TMP+1}, s41\ns_mov_b64 exec, 1\nbuffer_atomic_add_x2 {vr(TMP,2)}, off, s[16:19], s39\ns_mov_b64 exec, -1')
    e('L_nxg:')
    for k in range(24):
        e.dsop(f'ds_read_b128 {vr(AQ+4*k)}, v{T1} offset:{1024*k}', ('a', k))
        if k >= 10:
            kk = k - 10; e.dswait(('a', kk))
            e(f'v_max3_u32 v{T0}, v{AQ+4*kk}, v{AQ+4*kk+1}, v{T0 if kk else AQ}\nv_max3_u32 v{T0}, v{T0}, v{AQ+4*kk+2}, v{AQ+4*kk+3}')
    for kk in range(14, 24):
        e.dswait(('a', kk)); e(f'v_max3_u32 v{T0}, v{AQ+4*kk}, v{AQ+4*kk+1}, v{T0}\nv_max3_u32 v{T0}, v{T0}, v{AQ+4*kk+2}, v{AQ+4*kk+3}')
    e(f'v_cmp_eq_u32 vcc, -1, v{T0}\ns_cbranch_vccnz L_aretry\nL_aok:')
    stamp(e, c, 4)
    def sread(k):
        ks = k % 12; base, off = (SL, 0) if k < 12 else (SH, 6144 * (k // 12 - 1))
        e.dsop(f'ds_read_b128 {vr(FB+4*(k%NB))}, v{base+(ks&3)} offset:{off+256*(ks>>2)}', ('s', k))
    def exp_items(S, pg):
        it = [f'v_exp_f32 v{TMP+i}, v{S+i}' for i in range(4)]
        it += [f'v_add_f32 v{TMP+4}, v{TMP}, v{TMP+1}', f'v_add_f32 v{TMP+5}, v{TMP+2}, v{TMP+3}', f'v_cvt_pk_bf16_f32 v{PK}, v{TMP}, v{TMP+1}', f'v_cvt_pk_bf16_f32 v{PK+1}, v{TMP+2}, v{TMP+3}']
        it += [f'v_add_f32 v{TMP+4}, v{TMP+4}, v{TMP+5}', f'ds_write_b64 v{PW}, {vr(PK,2)} offset:{1024*pg}', f'v_cvt_pk_bf16_f32 v{PK+2}, v{TMP+4}, v{TMP+4}', f'ds_write_b16 v{PW2}, v{PK+2} offset:{512*pg}']
        return it
    put = lambda x: e.dsop(x, 'w') if x.startswith('ds_') else e(x)
    stamp(e, c, 3)
    if c.diag: e('s_memtime s[86:87]')
    e.c('---- round: logits of one tile for 16 queries, numerators to LDS | barrier | check, stream one tile')
    e('.p2align 3\nL_s:\ns_barrier')
    if c.diag and fine is None: e(f's_memrealtime s[{64+2*5}:{65+2*5}]')
    cyc(0)
    for k in range(NB): sread(k)
    e.dsop(f'ds_read_b32 v{TK}, v{TKA}', 'tk')
    edraw = c.edraw and c.satom and c.dyn and not c.iso
    if edraw: e('s_cmp_ge_u32 s25, s58\ns_cbranch_scc1 L_edraw\nL_edrawb:')
    fill = {
            9: ['s_add_u32 s45, s45, 2'], 11: [f's_cmp_ge_u32 s45, {NSLOT}\ns_cselect_b32 s32, {-3*TILE}, s33\ns_cselect_b32 s30, {NSLOT}, 0'], 12: ['s_sub_u32 s45, s45, s30']}
    for b in range(4): fill[13 + 2 * b] = [f'v_add_u32 v{SL+b}, s32, v{SL+b}']
    for i in range(4): fill[16 + 2 * i] = [f'v_mov_b32 v{S1+i}, v{SLO+1}']
    it = [f'v_add_f32 v{S0+i}, v{S0+i}, v{SLO}' for i in range(4)] + exp_items(S0, 0)
    for k, cntk in zip(range(27, 36), (1, 3, 2, 2, 2, 2, 2, 2, 0)):
        fill[k] = it[:cntk]; it = it[cntk:]
    assert not it
    for k in range(36):
        if k % c.wstep == 0: e.dswait(('s', min(k + c.wstep - 1, 35)))
        D, C, a = (SLO, vr(NEGM), 12 + k) if k < 12 else ((S0, 0, k - 12) if k < 24 else (S1, vr(S1), k - 24))
        e(f'v_mfma_f32_16x16x32_bf16 {vr(D)}, {vr(FB+4*(k%NB))}, {vr(AQ+4*a)}, {vr(D) if k % 12 else C}')
        if k == 17: cyc(2)
        if k + NB < 36: sread(k + NB)
        for x in fill.get(k, []): put(x)
    cyc(3)
    for b in range(4): e(f'v_add_u32 v{SH+b}, s32, v{SH+b}')
    e('s_nop 3')
    for x in exp_items(S1, 1): e(x)
    cyc(4)
    if c.edraw == 2: e(f'ds_read_b32 v{TA}, v{TKA}\ns_waitcnt lgkmcnt(1)'); e.ds = []
    else: e.dsall()
    e(f's_barrier\nds_read_b128 {vr(PFL)}, v{PR2}')
    if fine is None: stamp(e, c, 6)
    if c.diag and fine is None: e('s_memtime s[88:89]')
    X, MLR = AQ, AQ + 64
    SEL, D, VX, VOOB, VF, VFA, VH, VH8, VQ16, VM, U0, U1, VO = 192, 196, 212, 213, 214, 215, 216, 217, 218, 219, 220, 221, 222
    flagload = f's_mov_b32 exec_hi, 0\nbuffer_load_dword v{VF}, v{VFA}, s[16:19], s40 offen sc1\ns_mov_b32 exec_hi, -1'
    def t1_setup():
        e(f'v_lshlrev_b32 v{VFA}, 2, v0\ns_bfe_u32 s41, s37, 0x20002\ns_lshl_b32 s40, s36, 2\ns_add_u32 s40, s40, s41\ns_lshl_b32 s40, s40, 7\ns_add_u32 s40, s40, {FL}')
        e(f'v_lshrrev_b32 v{VH}, 5, v0\nv_and_b32 v{U0}, 31, v0\nv_lshlrev_b32 v{VQ16}, 4, v{U0}\ns_mov_b32 s43, {PS_}\nv_mad_u32_u24 v{VX}, v{VH}, s43, v{VQ16}\nv_lshlrev_b32 v{U0}, 3, v{U0}\nv_mad_u32_u24 v{VM}, v{VH}, s43, v{U0}')
        e(f's_lshl_b32 s41, s41, 8\ns_add_u32 s41, s41, s38\ns_add_u32 s41, s41, 49152')
        e(f's_mul_i32 s42, s37, 3\ns_add_u32 s42, s42, s3\ns_lshl_b32 s27, s42, 9\ns_add_u32 s27, s27, s38\nv_bfrev_b32 v{VOOB}, 1\nv_lshlrev_b32 v{VH8}, 3, v{VH}')
        e(f'v_and_b32 v{U0}, 1, v0\nv_lshlrev_b32 v{U0}, 4, v{U0}\ns_movk_i32 s30, 0x3f80\nv_lshlrev_b32 v{U0}, v{U0}, s30\nv_bfe_u32 v{U1}, v0, 1, 4')
        for d in range(4): e(f'v_cmp_eq_u32 vcc, {(d & 1) + 4 * (d >> 1)}, v{U1}\nv_mov_b64 {vr(D+4*d,2)}, 0\nv_mov_b64 {vr(D+4*d+2,2)}, 0\nv_cndmask_b32 v{SEL+d}, 0, v{U0}, vcc')
        e(f's_lshr_b32 s26, s42, 2\ns_mul_i32 s26, s26, 6\ns_add_u32 s26, s26, s36\ns_lshl_b32 s26, s26, 2\ns_and_b32 s30, s42, 3\ns_add_u32 s26, s26, s30\ns_lshl_b32 s26, s26, 8\ns_add_u32 s26, s26, {XU}')
        e(f'v_bfe_u32 v{VO}, v0, 4, 1\nv_mul_u32_u24 v{VO}, {147456-256}, v{VO}\nv_add_u32 v{VO}, v{VO}, v{VQ16}')
    e(f'ds_read_b32 v{TA}, v{TKA}\ns_waitcnt lgkmcnt(1)' if c.edraw == 2 else 's_waitcnt lgkmcnt(0)')
    check(PFL, TMP, 'L_s_slow')
    e('L_s_back:\ns_bitcmp1_b32 s44, s25\ns_cbranch_scc1 L_s_hook\nL_s_dma:')
    for x in dma_items(): e(x)
    src_adv(2)
    e(f's_waitcnt vmcnt(8)\nL_s_next:'); slot_adv()
    e(f's_cmp_ge_u32 s25, s58\ns_cbranch_scc1 L_s_post\nL_s_postb:'); cyc(5); cyc_save()
    e('s_add_u32 s25, s25, 1\ns_min_u32 s25, s25, 31\ns_branch L_s')
    e.c('---- member t sums blocks 3t..3t+2 over the 32 members (selection-matrix MFMA), wave 3 of member 0 sums l')
    e('L_s_last:')
    if c.diag: e('s_add_u32 s92, s25, 1\ns_lshl_b32 s92, s92, 1\ns_lshr_b32 s30, s46, 31\ns_sub_u32 s92, s92, s30')
    if c.iso or c.cut: e('s_branch L_fin')
    if c.barx is not None: e('s_barrier')
    if c.sprio: e(f's_setprio {c.sprio}')
    e('s_mov_b32 s44, -1\ns_cmp_eq_u32 s3, 3\ns_cbranch_scc1 L_t1l\ns_branch L_t1')
    mm = lambda r: f'v_mfma_f32_32x32x16_bf16 {vr(D,16)}, {vr(SEL)}, {vr(r)}, {vr(D,16)}'
    e(f'L_t1b:\ns_andn2_b32 s44, s44, s46\nv_lshrrev_b32 v{U1}, v{VH}, s46')
    for i in range(16):
        e(f'v_and_b32 v{U0}, {1 << (2*i)}, v{U1}\nv_cmp_ne_u32 vcc, 0, v{U0}\ns_add_u32 s30, s27, {2*PS_*i}\ns_nop 0\nv_cndmask_b32 v{U0}, v{VOOB}, v{VX}, vcc\nbuffer_load_dwordx4 {vr(X+4*i)}, v{U0}, s[16:19], s30 offen sc1')
    for i in range(16):
        e(f's_waitcnt vmcnt({15-i+(i > c.bsamp)})\n' + mm(X + 4 * i))
        if i == c.bsamp: e(flagload)
    e('s_cmp_eq_u32 s44, 0\ns_cbranch_scc1 L_t1done\ns_branch L_t1w')
    e('L_t1s:' + (f'\ns_sleep {c.t1sleep}' if c.t1sleep else '') + f'\nL_t1:\n{flagload}\ns_sub_u32 s61, s61, 1\ns_cmp_gt_i32 s61, 0\ns_cbranch_scc0 L_t1done')
    e(f'L_t1w:\ns_waitcnt vmcnt(0)\nv_cmp_ne_u32 vcc, -1, v{VF}\ns_and_b32 s46, vcc_lo, s44\ns_cbranch_scc0 L_t1s')
    stamp(e, c, 9)
    if c.diag: e('s_bcnt1_i32_b32 s94, s46')
    e(f's_bcnt1_i32_b32 s30, s46\ns_cmp_gt_u32 s30, {2*c.ndyn}\ns_cbranch_scc1 L_t1b\ns_andn2_b32 s44, s44, s46')
    for r in range(c.ndyn):
        e('s_ff1_i32_b32 s48, s46\ns_bitset0_b32 s46, s48\ns_ff1_i32_b32 s30, s46\ns_lshl_b32 s47, s30, 8\ns_or_b32 s48, s48, s47\ns_lshl_b64 s[56:57], 1, s30\ns_andn2_b32 s46, s46, s56')
        e(f'v_bfe_u32 v{U0}, s48, v{VH8}, 8\nv_cmp_gt_u32 vcc, 32, v{U0}\nv_mad_u32_u24 v{U0}, v{U0}, s43, v{VQ16}\ns_cmp_eq_u32 s46, 0\nv_cndmask_b32 v{U0}, v{VOOB}, v{U0}, vcc')
        e(f'buffer_load_dwordx4 {vr(X+4*r)}, v{U0}, s[16:19], s27 offen sc1')
        if r < c.ndyn - 1: e(f's_cbranch_scc1 L_t1m{r}')
    stubs = []
    if c.osamp:
        e(flagload + '\ns_waitcnt vmcnt(1)')
        for r in range(c.ndyn - 1, -1, -1):
            e(f'L_t1n{r}:\n' + mm(X + 4 * r))
            if r < c.ndyn - 1: stubs.append(f'L_t1m{r}:\n{flagload}\ns_waitcnt vmcnt(1)\ns_branch L_t1n{r}')
        e('s_cmp_lg_u32 s44, 0\ns_cbranch_scc1 L_t1w\nL_t1done:')
    else:
        for r in range(c.ndyn - 1, -1, -1): e(f'L_t1m{r}:\ns_waitcnt vmcnt(0)\n{mm(X+4*r)}')
        e('s_cmp_lg_u32 s44, 0\ns_cbranch_scc1 L_t1\nL_t1done:')
    stamp(e, c, 8)
    uni = f'v_readfirstlane_b32 s47, v{VF}\ns_nop 1\nv_cmp_ne_u32 vcc, s47, v{VF}\ns_cmp_eq_u32 s47, -2\ns_cselect_b32 s30, 1, 0\ns_or_b32 s30, s30, vcc_lo'
    e(f'{uni}\ns_cbranch_scc1 L_t1gen\ns_nop 2\nL_t1back:')
    for i in range(4): e(f'v_cvt_pk_bf16_f32 v{D+i}, v{D+2*i}, v{D+2*i+1}')
    for i in range(4): e(f'v_min_u32 v{D+i}, -2, v{D+i}')
    e(f's_mov_b32 exec_hi, 0\nbuffer_store_dwordx4 {vr(D)}, v{VO}, s[16:19], s26 offen sc1')
    stamp(e, c, 10)
    e('L_fin:')
    dump(e, c)
    e('L_end:\ns_endpgm')
    for x in stubs: e(x)
    mll = [f's_add_u32 s30, s41, {2*PS_*i}\nbuffer_load_dwordx2 {vr(MLR+2*i,2)}, v{VM}, s[16:19], s30 offen sc1' for i in range(16)]
    def weights(M, L):
        e(f'v_max_f32 v{M}, v{MLR}, v{MLR+2}')
        for i in range(2, 16, 2): e(f'v_max3_f32 v{M}, v{M}, v{MLR+2*i}, v{MLR+2*i+2}')
        e(f'v_mov_b32 v{L}, v{M}\ns_nop 1\nv_permlane32_swap_b32 v{M}, v{L}\nv_max_f32 v{M}, v{M}, v{L}')
        for i in range(16): e(f'v_sub_f32 v{MLR+2*i}, v{MLR+2*i}, v{M}')
        for i in range(16): e(f'v_exp_f32 v{MLR+2*i}, v{MLR+2*i}')
    e(f'L_t1l:\ns_cmp_lg_u32 s37, 0\ns_cbranch_scc1 L_fin')
    e(f'v_bfe_u32 v{T0}, v0, 4, 1\nv_mul_u32_u24 v{T0}, {768-128}, v{T0}\nv_add_u32 v{T0}, v{T0}, v1\ns_lshl_b32 s26, s36, 7\ns_add_u32 s26, s26, {XL}')
    e(f'L_t1lw:\n{flagload}\ns_waitcnt vmcnt(0)\nv_cmp_eq_u32 vcc, -1, v{VF}\ns_cmp_eq_u32 vcc_lo, 0\ns_cbranch_scc1 L_t1ld'); budget(e, 'L_t1lw')
    e('L_t1ld:')
    for x in mll: e(x)
    e(f'{uni}\ns_cbranch_scc1 L_t1lg\nv_mov_b32 v{U0}, s47\ns_waitcnt vmcnt(14)\nv_add_f32 v{U1}, v{MLR+1}, v{MLR+3}')
    for i in range(2, 16): e(f's_waitcnt vmcnt({15-i})\nv_add_f32 v{U1}, v{U1}, v{MLR+2*i+1}')
    e(f'L_t1lb:\nv_mov_b32 v{T1}, v{U1}\nv_min_u32 v{U0}, -2, v{U0}\ns_nop 0\nv_permlane32_swap_b32 v{U1}, v{T1}\nv_add_f32 v{U1}, v{U1}, v{T1}\nv_min_u32 v{U1}, -2, v{U1}')
    e(f's_mov_b32 exec_hi, 0\nbuffer_store_dwordx2 {vr(U0,2)}, v{T0}, s[16:19], s26 offen sc1')
    stamp(e, c, 10)
    e('s_branch L_fin')
    e.mark('off_Lw')
    e('L_t1lg:\ns_waitcnt vmcnt(0)')
    weights(U0, U1)
    e(f'v_mul_f32 v{U1}, v{MLR}, v{MLR+1}')
    for i in range(1, 16): e(f'v_fmac_f32 v{U1}, v{MLR+2*i}, v{MLR+2*i+1}')
    e('s_branch L_t1lb')
    e.c('---- rare: members ended on different maxima, weighted sum')
    e('L_t1gen:')
    for x in mll: e(x)
    for i in range(16): e(f's_add_u32 s30, s27, {2*PS_*i}\nbuffer_load_dwordx4 {vr(X+4*i)}, v{VX}, s[16:19], s30 offen sc1')
    e('s_waitcnt vmcnt(16)')
    weights(U0, U1)
    T = 32
    e('s_waitcnt vmcnt(0)')
    for i in range(16):
        for d in range(4): e(f'v_lshlrev_b32 v{T+2*d}, 16, v{X+4*i+d}\nv_and_b32 v{T+2*d+1}, 0xffff0000, v{X+4*i+d}')
        for d in range(4):
            if i == 0: e(f'v_pk_mul_f32 {vr(D+2*d,2)}, {vr(T+2*d,2)}, {vr(MLR,2)} op_sel_hi:[1,0]')
            else: e(f'v_pk_fma_f32 {vr(D+2*d,2)}, {vr(T+2*d,2)}, {vr(MLR+2*i,2)}, {vr(D+2*d,2)} op_sel_hi:[1,0,1]')
    e('s_nop 1')
    for k in range(8): e(f'v_permlane32_swap_b32 v{D+k}, v{T+k}')
    for k in range(8): e(f'v_add_f32 v{D+k}, v{D+k}, v{T+k}')
    e('s_branch L_t1back')
    e.mark('on_Lw')
    n1 = c.n1; npair = ((4608 - NS * ns) // c.nshard - n1) // 2; assert n1 % 2 == 0 and n1 <= NS // c.nshard and not c.edraw
    dyn = c.dyn and not c.iso
    sat = c.satom and dyn
    e(f'L_s_hook:\ns_cmp_lt_u32 s25, {rd0}\ns_cbranch_scc1 L_hd\ns_cmp_lg_u32 s49, 0\ns_cbranch_scc1 L_s_last')
    e(f'v_readfirstlane_b32 s27, v{TK}\ns_cmp_lt_i32 s27, 0\ns_cbranch_scc1 L_s_dry\ns_bitcmp1_b32 s27, 30\ns_cbranch_scc1 L_s_one')
    decode(1)
    e('L_hd:')
    if edraw: e.deferred.append('L_edraw:\ns_mov_b32 s50, 1\ns_atomic_add s50, s[16:17], s51 glc\ns_branch L_edrawb')
    sat0 = sat; sat = sat and not edraw
    if sat: e('s_cmp_lt_u32 s25, s58\ns_cbranch_scc1 L_h1\ns_mov_b32 s50, 1')
    if sat and c.alat: e('s_memrealtime s[78:79]\ns_waitcnt lgkmcnt(0)\ns_atomic_add s50, s[16:17], s51 glc\ns_waitcnt lgkmcnt(0)\ns_memrealtime s[90:91]')
    elif sat: e('s_atomic_add s50, s[16:17], s51 glc')
    sat = sat0
    e('L_h1:')
    for k in range(Ks):
        e(f's_cmp_lg_u32 s25, s{46+k}\ns_cbranch_scc1 ' + (f'L_hu{k}' if k < Ks - 1 else 'L_s_dma'))
        for x in unstage_items(STG + 32 * k, 24, TMP + 6): e(x)
        e(f's_waitcnt vmcnt(0) lgkmcnt(0)\ns_branch L_s_next\nL_hu{k}:')
    e(f'L_s_one:\ns_mov_b32 s46, -1\ns_movk_i32 s50, 0x7fff\nv_mov_b32 v{TA}, s50\ns_waitcnt vmcnt(0)\ns_branch L_s_next')
    e('L_s_dry:\ns_mov_b32 s49, 1\ns_mov_b32 s58, 64\ns_lshr_b32 s30, s46, 31\ns_and_b32 s30, s30, s4\ns_cbranch_scc0 L_s_dry2')
    for i in range(4): e(f'v_mov_b32 v{NEGM+i}, 0xff600000')
    e('L_s_dry2:')
    t1_setup()
    e('s_waitcnt vmcnt(0)\ns_branch L_s_next')
    e(f'L_s_post:\ns_cmp_eq_u32 s25, {rd0-2}\ns_cbranch_scc1 L_draw')
    if dyn: e(('s_waitcnt lgkmcnt(0)\ns_mov_b32 s30, s50' if sat else f'v_readfirstlane_b32 s30, v{TA}') + f'\ns_add_u32 s30, s30, 1\ns_mul_i32 s56, s30, {c.nshard}\ns_add_u32 s56, s56, s48\ns_add_u32 s57, s56, {NS*ns + npair*c.nshard + (1<<30)}\ns_cmp_lt_u32 s30, {npair+n1}\ns_cselect_b32 s57, s57, -1\ns_lshl1_add_u32 s56, s56, {NS*ns}\ns_cmp_lt_u32 s30, {npair}\ns_cselect_b32 s56, s56, s57')
    else: e(f's_sub_u32 s30, s25, {rd0-1}\ns_mul_i32 s56, s30, {NS}\ns_add_u32 s56, s56, s35\ns_lshl1_add_u32 s56, s56, {NS*ns}\ns_cmp_lt_u32 s25, 9\ns_cselect_b32 s56, s56, -1')
    e(f'v_mov_b32 v{TMP+6}, s56\nds_write_b32 v{TKA}, v{TMP+6}\ns_waitcnt lgkmcnt(0)\ns_cbranch_scc0 L_s_postb\nL_draw:')
    if dyn and not sat: e(f'v_mov_b32 v{TA}, 1\ns_mov_b64 exec, 1\nbuffer_atomic_add v{TA}, off, s[16:19], s51 sc0\ns_mov_b64 exec, -1')
    e('s_branch L_s_postb')
    flush_deferred(e)
    e.c('---- rare: A was not complete at the first look')
    e(f'L_aretry:\nv_min_u32 v{T1}, 47, v0\nv_lshlrev_b32 v{T1}, 9, v{T1}\nL_aw:\ns_sub_u32 s61, s61, 1\ns_cmp_gt_i32 s61, 0\ns_cbranch_scc0 L_aok')
    e(f'buffer_load_dword v{T0}, v{T1}, s[16:19], s52 offen sc1\ns_waitcnt vmcnt(0)\nv_cmp_eq_u32 vcc, -1, v{T0}\ns_cbranch_vccz L_aload\ns_sleep 4\ns_branch L_aw')
    e('L_aload:')
    for x, _, _ in aload: e(x)
    validate(e, aload, T0)
    e('s_cbranch_vccnz L_aretry\ns_branch L_aok')
    e.c('---- rare: move the reference max to the true max of the pair, redo its numerators')
    e('L_s_slow:'); first_look(PFL, TMP, 'L_s_back', 'sf')
    e(f'v_max3_f32 v{TMP}, v{S0}, v{S0+1}, v{S0+2}\nv_max3_f32 v{TMP}, v{TMP}, v{S0+3}, v{S1}\nv_max3_f32 v{TMP}, v{TMP}, v{S1+1}, v{S1+2}\nv_max_f32 v{TMP}, v{TMP}, v{S1+3}')
    xsum16_32(e, TMP, TMP + 1, 'v_max_f32')
    e(f's_lshl_b32 s30, s4, 7\nv_add_u32 v{TMP+3}, s30, v{MXO}')
    e(f'ds_write_b32 v{TMP+3}, v{TMP}\ns_waitcnt lgkmcnt(0)\ns_barrier')
    e(f'ds_read2_b32 {vr(TMP,2)}, v{MXO} offset0:0 offset1:32\ns_waitcnt lgkmcnt(0)\nv_max_f32 v{TMP}, v{TMP}, v{TMP+1}')
    quant(TMP)
    e(f'v_max_f32 v{TMP+1}, 0, v{TMP}\nv_cndmask_b32 v{TMP}, v{TMP+1}, v{TMP}, s[28:29]\ns_mov_b64 s[28:29], 0')
    for i in range(4): e(f'v_sub_f32 v{NEGM+i}, v{NEGM+i}, v{TMP}\nv_sub_f32 v{S0+i}, v{S0+i}, v{TMP}\nv_sub_f32 v{S1+i}, v{S1+i}, v{TMP}')
    for x in exp_items(S0, 0) + exp_items(S1, 1): e(x)
    e('s_waitcnt lgkmcnt(0)\ns_barrier\ns_branch L_s_back')

def code_touch(e, c):
    nl = c.code_bytes // 128 // 32; lb = e.label('L_pc')
    e(f's_getpc_b64 s[24:25]\n{lb}:\ns_sub_u32 s24, s24, {lb}-{KNAME}\ns_subb_u32 s25, s25, 0\ns_lshr_b32 s30, s6, 3\ns_mul_i32 s30, s30, {nl*128}')
    e(f'v_lshl_add_u32 v2, v0, 7, s30\ns_mov_b64 exec, {(1<<nl)-1}\nglobal_load_dword v55, v2, s[24:25]\ns_mov_b64 exec, -1')

def helper_extra(e, c):
    e.c('==== helper waves 6, 7: die count of the readers, code prefetch')
    e('L_extra:'); late_consts(e); e('s_waitcnt lgkmcnt(0)')
    if c.touch in (True, 'h'):
        e('s_cmp_lg_u32 s7, 7\ns_cbranch_scc1 L_x6'); code_touch(e, c); e('s_endpgm\nL_x6:')
    e('s_cmp_ge_u32 s2, 48\ns_cbranch_scc1 L_end\ns_cmp_lg_u32 s7, 6\ns_cbranch_scc1 L_end')
    e('s_getreg_b32 s30, hwreg(HW_REG_XCC_ID, 0, 4)\ns_cmp_ge_u32 s30, 8\ns_cbranch_scc1 L_end\ns_lshl_b32 s30, s30, 3\ns_lshl_b64 s[32:33], 1, s30')
    e(f's_and_b32 s30, s2, 1\ns_lshl_b32 s30, s30, 7\nv_mov_b32 v2, s32\nv_mov_b32 v3, s33\ns_mov_b64 exec, 1\nbuffer_atomic_add_x2 v[2:3], off, s[20:23], s30 offset:8\ns_endpgm')


DOC = """; DETR decoder block, one persistent launch: 256 workgroups x 8 waves, one per CU.
;
;
; Roles (by launch id): id % 4 != 0 streams (192 workgroups, six groups of 32 with equal id % 8);
; id % 4 == 0 helps (Q -> T -> A before, U -> h -> g -> out after, weight products meanwhile).
;
"""

def gen(c):
    e = E()
    nwg = 256
    head = f'; @launch grid=({nwg},1,1) block=(512,1,1) lds={LDS_BYTES}\n' + DOC + '.amdgcn_target "amdgcn-amd-amdhsa--gfx950"\n.text\n'
    kstart(e, KNAME)
    stamp(e, c, 0)
    e(f'v_lshrrev_b32 v1, 6, v0\nv_and_b32 v0, 63, v0\nv_readfirstlane_b32 s7, v1')
    for r, nm in ((8, 'feat_hi'), (98, 'q'), (12, 'feat_lo'), (16, 'ws'), (20, 'dbg')): e(f's_load_dwordx2 s[{r}:{r+1}], s[0:1], {KA[nm]}')
    e(f's_cmpk_ge_u32 s2, {nwg}\ns_cbranch_scc1 L_end')
    e('s_mov_b32 s6, s2\ns_and_b32 s3, s7, 3')
    e('s_lshr_b32 s2, s2, 2\ns_and_b32 s33, s6, 3\ns_cbranch_scc0 L_hent')
    e('s_mul_i32 s35, s2, 3\ns_add_u32 s35, s35, s33\ns_sub_u32 s35, s35, 1')
    e.c('S-waves first pull 1/192 of lat_hi, lat_lo, wq, Wk towards the memory-side cache, two helper waves 1/64 of wq into their L2')
    e(f's_bitcmp1_b32 {c.smask}, s7\ns_cbranch_scc0 L_strm\ns_mov_b32 s31, s7\ns_mov_b32 s30, s35\ns_mov_b32 s32, 12\ns_branch L_tch')
    e('L_hent:\ns_cmp_ge_u32 s2, 60\ns_cbranch_scc1 L_spare\ns_cmp_lt_u32 s7, 4\ns_cbranch_scc1 L_hq\ns_cmp_gt_u32 s7, 5\ns_cbranch_scc1 L_extra')
    e('s_mov_b32 s31, 2\ns_and_b32 s30, s2, 62\ns_add_u32 s30, s30, s3\ns_mov_b32 s32, 36')
    e('L_tch:\ns_lshl3_add_u32 s34, s31, 24\ns_load_dwordx2 s[96:97], s[0:1], s34')
    e('s_mul_i32 s30, s30, s32\nv_add_u32 v2, s30, v0\nv_mul_u32_u24 v3, 0xaaab, v2\nv_lshrrev_b32 v3, 18, v3')
    e('s_cmp_eq_u32 s31, 3\ns_cselect_b32 s30, 6, 0\nv_mad_u32_u24 v2, v3, s30, v2\nv_lshlrev_b32 v2, 7, v2')
    e('s_bfm_b64 exec, s32, 0\ns_waitcnt lgkmcnt(0)\nglobal_load_dword v55, v2, s[96:97]\ns_mov_b64 exec, -1\ns_cmp_lg_u32 s33, 0\ns_cbranch_scc1 L_strm\ns_endpgm')
    e('L_hq:\ns_lshr_b32 s30, s2, 1\ns_lshl2_add_u32 s30, s30, s7\ns_min_u32 s30, s30, 0x5f\ns_bitcmp1_b32 s2, 0\ns_cselect_b32 s31, 0x60, 0\ns_add_u32 s30, s30, s31\ns_lshl_b32 s30, s30, 7\nv_mov_b32 v3, s30')
    e('s_mov_b64 exec, 1\ns_waitcnt lgkmcnt(0)\nglobal_load_dword v255, v3, s[98:99]\ns_mov_b64 exec, -1')
    e('s_cmp_lt_u32 s2, 48\ns_cbranch_scc1 L_tail\ns_branch L_pf')
    if c.xcearly:
        e.c('wave 6 of helpers 0..47 counts its die, early enough to be through before anyone looks')
        e('L_extra:\ns_lshl3_add_u32 s30, s2, s7\ns_bitcmp1_b32 s7, 0\ns_cselect_b32 s30, 0x1ff, s30\ns_cmpk_ge_u32 s30, 384\ns_cbranch_scc1 L_xend')
        e('s_getreg_b32 s30, hwreg(HW_REG_XCC_ID, 0, 3)\ns_lshl_b32 s30, s30, 3\ns_lshl_b64 s[32:33], 1, s30\ns_and_b32 s30, s2, 1\ns_lshl_b32 s30, s30, 7\nv_mov_b32 v4, s30\nv_mov_b32 v2, s32\nv_mov_b32 v3, s33')
        e('s_mov_b64 exec, 1\ns_waitcnt lgkmcnt(0)\nglobal_atomic_add_x2 v4, v[2:3], s[20:21] offset:8\nL_xend:\ns_endpgm')
    e('L_strm:')
    streamer(e, c)
    e.mark('off_Lw')
    role_spare(e, c)
    if not c.xcearly: helper_extra(e, c)
    role_pf(e, c); role_tail(e, c)
    if c.walk:
        for nm in ('Lw', 'Lv'): e.place_pads(nm, 4, c.walk)
    e.l = [x for x in e.l if not x.strip().startswith(';@')]
    e.c('padding: the code prefetch reads up to here')
    e(f'.fill ({c.code_bytes} - (. - {KNAME})) / 4, 4, 0xbf800000\ns_endpgm\ns_endpgm')
    return head + e.text() + '.section .rodata,"a"\n' + kdesc(KNAME, 256, 100, 256)

if __name__ == '__main__':
    c = Cfg()
    for a in sys.argv[2:]:
        k, v = a.split('='); setattr(c, k, eval(v))
    if c.diag: c.code_bytes = 0x8000
    t = gen(c)
    if getattr(c, 'nomf', 0):
        a = t.index('L_p:'); b = t.index('L_s_last:')
        keep = [l for l in t[a:b].split('\n') if not ('v_mfma_f32_32x32' in l or 'tr_b16' in l or (c.nomf > 1 and 'v_mfma' in l))]
        t = t[:a] + '\n'.join(keep) + t[b:]
    open(sys.argv[1], 'w').write(t)
    print(hazard.check(t), 'hazards')
```

```python
import sys, math
from common import *
import hazard
KNAME = 'standalone__detection_seg_detr_decoder__vision_kernel'
QF, TF, AF = 0x0, 0x6000, 0xC000
UF, HF, ST, GF = 0x18000, 0x24000, 0x2A000, 0x2C000
XU, XL, FL = 0x44000, 0x8C000, 0x8D000
TKC = 0x98000
WCF, YF, DG, PART = 0xA0000, 0x130000, 0x180000, 0x200000
PS_ = 49152 + 1024
LOG2E = 1.4426950408889634
TILE = 30720; NSLOT = 5; PB = TILE * NSLOT
MXB = PB + 5120; TKW = MXB + 256
LDS_BYTES = 159744
NH = 64
BUDGET = 2000000

class Cfg:
    diag = False; jp = 31; pf = True; touch = 's'; xcearly = True; pflat = True; latlate = False; sptouch = False; xone = False; rot = 0; oflag = ''; ewb = False; pwb = False
    cu = ((1, 4, 7), (2, 6, 4), (3, 7, 1), (0, 5, 2)); rd0 = 9; dyn = True; nshard = 4; satom = True; alat = False; edraw = 0; barx = 11; late1 = True; n1 = 24; tfl = ''; tlbw = 0; tfull = False; sprio = 0
    wstep = 2; xprio = 0; ndefer = 4; nx = (8, 0, 0)
    code_bytes = 0x7000; iso = False; pro = 0; hot = False; cut = 0; fine = None; tl = False; enc = None; walk = 100
    local = True; weave = 16; smask = 15; pnt = ''
    hookx = 5; t1sleep = 0; ndyn = 8; bsamp = 6; osamp = True; pairs = True; tpos = (1, 2)

def stamp(e, c, k):
    if c.diag: e(f's_memrealtime s[{64+2*k}:{65+2*k}]')
def dump(e, c):
    if not c.diag: return
    if c.enc:
        lo, hi, wmask, k = c.enc
        if k < 0:
            e('s_waitcnt lgkmcnt(0)\ns_not_b32 s30, s64\nv_mov_b32 v1, s30\ns_mov_b64 exec, 1\nbuffer_atomic_umax v1, off, s[20:23], 0 offset:120')
            e(f's_cmp_lt_u32 s2, {lo}\ns_cbranch_scc1 L_end\ns_cmp_ge_u32 s2, {hi}\ns_cbranch_scc1 L_end\ns_bitcmp1_b32 {wmask}, s7\ns_cbranch_scc0 L_end')
            e('L_enc0:\ns_memrealtime s[32:33]\ns_waitcnt lgkmcnt(0)\ns_sub_u32 s31, s32, s64\ns_cmp_lt_u32 s31, 5000\ns_cbranch_scc1 L_enc0')
            e('buffer_load_dword v1, off, s[20:23], 0 offset:120 sc1\ns_waitcnt vmcnt(0)\nv_readfirstlane_b32 s30, v1\ns_not_b32 s30, s30\ns_sub_u32 s30, s64, s30\ns_min_u32 s30, s30, 1000\ns_mul_i32 s30, s30, 20\ns_add_u32 s30, s30, 6000')
            e('L_enc:\ns_memrealtime s[32:33]\ns_waitcnt lgkmcnt(0)\ns_sub_u32 s31, s32, s64\ns_cmp_lt_u32 s31, s30\ns_cbranch_scc1 L_enc')
            return
        e(f's_waitcnt lgkmcnt(0)\ns_cmp_lt_u32 s2, {lo}\ns_cbranch_scc1 L_end\ns_cmp_ge_u32 s2, {hi}\ns_cbranch_scc1 L_end\ns_bitcmp1_b32 {wmask}, s7\ns_cbranch_scc0 L_end')
        e(f's_sub_u32 s30, s{64+2*k}, s64\ns_min_u32 s30, s30, 5000\ns_lshl_b32 s30, s30, 3\ns_add_u32 s30, s30, 4000')
        e('L_enc:\ns_memrealtime s[32:33]\ns_waitcnt lgkmcnt(0)\ns_sub_u32 s31, s32, s64\ns_cmp_lt_u32 s31, s30\ns_cbranch_scc1 L_enc')
        return
    e('s_waitcnt lgkmcnt(0)\ns_mov_b64 exec, 1')
    e(f's_lshl_b32 s60, s2, 3\ns_add_u32 s60, s60, s7\ns_lshl_b32 s60, s60, 6\ns_add_u32 s60, s60, {DG}\nv_mov_b32 v1, 0')
    for k in range(16): e(f'v_mov_b32 v2, s{64+2*k}\nbuffer_store_dword v2, v1, s[16:19], s60 offen offset:{4*k}')

def late_consts(e):
    e(f's_mov_b32 s18, {SZ["ws"]}\ns_mov_b32 s19, 0x20000\ns_mov_b32 s22, {SZ["dbg"]}\ns_mov_b32 s23, 0x20000\ns_mov_b32 s61, {BUDGET}')
def budget(e, lp): e(f's_sub_u32 s61, s61, 1\ns_cmp_gt_i32 s61, 0\ns_cbranch_scc1 {lp}')
def early_load(e, v, sqh):
    e(f's_lshl_b32 s60, s{sqh}, 7\ns_mov_b64 exec, 1\nbuffer_load_dwordx4 {vr(v)}, off, s[20:23], s60 sc1\ns_mov_b64 exec, -1')
def early_wait(e, v, words):
    lp = e.label('L_ew')
    e(f'{lp}:\nv_readfirstlane_b32 s30, v{v+words[0]}')
    if len(words) > 1: e(f'v_readfirstlane_b32 s31, v{v+words[1]}\ns_and_b32 s30, s30, s31')
    e(f's_cmp_lg_u32 s30, 0\ns_cbranch_scc0 {lp}_r\n{lp}_d:')
    e.deferred.append(f'{lp}_r:\ns_sleep 2\ns_mov_b64 exec, 1\nbuffer_load_dwordx4 {vr(v)}, off, s[20:23], s60 sc1\ns_mov_b64 exec, -1\ns_waitcnt vmcnt(0)\ns_sub_u32 s61, s61, 1\ns_cmp_gt_i32 s61, 0\ns_cbranch_scc1 {lp}\ns_branch {lp}_d')
def late_addr(e, va): e(f'v_and_b32 v{va}, 1, v0\nv_lshlrev_b32 v{va}, 7, v{va}')
def late_load(e, v, va): e(f's_mov_b64 exec, 3\nbuffer_load_dwordx2 {vr(v,2)}, v{va}, s[20:23], 0 offen offset:16 sc1\ns_mov_b64 exec, -1')
def late_wait(e, v, va):
    lp = e.label('L_lw')
    e(f'{lp}:\nv_and_b32 v{v}, v{v}, v{v+1}\nv_cmp_eq_u32 vcc, 0, v{v}\ns_and_b32 s30, vcc_lo, 3\ns_cbranch_scc1 {lp}_r\n{lp}_d:')
    e.deferred.append(f'{lp}_r:\ns_sleep 8\ns_mov_b64 exec, 3\nbuffer_load_dwordx2 {vr(v,2)}, v{va}, s[20:23], 0 offen offset:16 sc1\ns_mov_b64 exec, -1\ns_waitcnt vmcnt(0)\ns_sub_u32 s61, s61, 1\ns_cmp_gt_i32 s61, 0\ns_cbranch_scc1 {lp}\ns_branch {lp}_d')
def flag_set(e, base, sidx, t):
    sk = e.label('L_fs')
    e(f's_cmp_lg_u32 s3, 0\ns_cbranch_scc1 {sk}\ns_lshl_b32 s30, s{sidx}, 7\ns_add_u32 s30, s30, {base}\nv_mov_b32 v{t}, 1\ns_mov_b64 exec, 1\nbuffer_store_dword v{t}, off, s[16:19], s30 sc1\ns_mov_b64 exec, -1\n{sk}:')
def flag_wait0(e, base, n, t, late=False):
    sk = e.label('L_fw')
    e(f's_cmp_lg_u32 s3, 0\ns_cbranch_scc1 {sk}')
    if late: late_addr(e, 1); late_load(e, t, 1); e('s_waitcnt vmcnt(0)'); late_wait(e, t, 1)
    e(f'v_min_u32 v1, {n-1}, v0\nv_lshlrev_b32 v1, 7, v1\ns_mov_b32 s30, {base}\n{sk}_l:\nbuffer_load_dword v{t}, v1, s[16:19], s30 offen sc1\ns_waitcnt vmcnt(0)\nv_cmp_eq_u32 vcc, -1, v{t}\ns_cbranch_vccz {sk}\ns_sleep 8')
    budget(e, f'{sk}_l')
    e(f'{sk}:\ns_barrier')

def validate(e, loads, t, younger=0, after=None):
    first = True
    for i, (_, r, n) in enumerate(loads):
        e(f's_waitcnt vmcnt({len(loads)-1-i+younger})')
        if after: after(i)
        rs = list(range(r, r + n))
        if first:
            e(f'v_max_u32 v{t}, v{rs[0]}, v{rs[1]}'); rs = rs[2:]; first = False
        while rs:
            e(f'v_max3_u32 v{t}, v{t}, v{rs[0]}, v{rs[1]}'); rs = rs[2:]
    e(f'v_cmp_eq_u32 vcc, -1, v{t}')
def gather(e, loads, t, after=None, extra=()):
    lp = e.label('L_g')
    e(f'{lp}:')
    for x, _, _ in loads: e(x)
    for x in extra: e(x)
    e('s_sub_u32 s61, s61, 1\ns_cmp_gt_i32 s61, 0\ns_cselect_b64 s[62:63], -1, 0')
    validate(e, loads, t, len(extra), after)
    e(f's_and_b64 vcc, vcc, s[62:63]\ns_cbranch_scc1 {lp}')
def frag_loads(dst, n, voff, sreg0, flags=' sc1'):
    return [(f'buffer_load_dwordx4 {vr(dst+4*k)}, v{voff}, s[16:19], s{sreg0+k//4} offen offset:{1024*(k%4)}{flags}', dst + 4 * k, 4) for k in range(n)]
def soffs(e, s0, n):
    for k in range(1, n): e(f's_add_u32 s{s0+k}, s{s0}, {4096*k}')
def tile_off(e, vo, q, g, t):
    e(f'v_lshrrev_b32 v{vo}, 1, v{g}\nv_lshlrev_b32 v{vo}, 8, v{vo}\nv_lshl_add_u32 v{vo}, v{q}, 4, v{vo}')
def hstore(e, text, local):
    if not local: e(text + ' sc1'); return
    lb = e.label('L_hs')
    e(f's_cmp_lg_u32 s59, 0\ns_cbranch_scc0 {lb}\n{text}\n{lb}_b:')
    e.deferred.append(f'{lb}:\n{text} sc1\ns_branch {lb}_b')
def flush_deferred(e):
    for x in e.deferred: e(x)
    e.deferred = []
def pack_store(e, D, P, voff, soff, keep=None, local=False):
    e(f'v_cvt_pk_bf16_f32 v{P}, v{D}, v{D+1}\nv_cvt_pk_bf16_f32 v{P+1}, v{D+2}, v{D+3}\nv_min_u32 v{P}, -2, v{P}\nv_min_u32 v{P+1}, -2, v{P+1}')
    e(f'v_mov_b64 {vr(keep,2)}, {vr(P,2)}' if keep else 's_nop 0')
    e(f'v_permlane16_swap_b32 v{P}, v{P+2}\nv_permlane16_swap_b32 v{P+1}, v{P+3}')
    e('s_mov_b32 exec_lo, 0xffff\ns_mov_b32 exec_hi, 0xffff')
    hstore(e, f'buffer_store_dwordx4 {vr(P)}, v{voff}, s[16:19], s{soff} offen', local)
    e('s_mov_b64 exec, -1')
def local_flag(e, v, n=24):
    e(f'v_readfirstlane_b32 s56, v{v}\nv_readfirstlane_b32 s57, v{v+1}\ns_getreg_b32 s30, hwreg(HW_REG_XCC_ID, 0, 4)\ns_lshl_b32 s30, s30, 3')
    e(f's_lshr_b64 s[56:57], s[56:57], s30\ns_and_b32 s56, s56, 0xff\ns_cmp_eq_u32 s56, {n}\ns_cselect_b32 s59, 1, 0\ns_cmp_lt_u32 s30, 64\ns_cselect_b32 s59, s59, 0')

def rows_src(e, vo, stride, t0, t1, t2):
    e('s_lshl_b32 s30, s3, 1\ns_lshr_b32 s30, 0x78, s30\ns_and_b32 s30, s30, 3')
    e(f's_mul_i32 s31, s3, {4*stride}')
    for b in range(3):
        e(f'v_add_u32 v{t0}, {64*b}, v0\nv_mul_u32_u24 v{t1}, 1366, v{t0}\nv_lshrrev_b32 v{t1}, 16, v{t1}')
        e(f'v_mul_u32_u24 v{t2}, 48, v{t1}\nv_sub_u32 v{t0}, v{t0}, v{t2}\nv_lshl_or_b32 v{t2}, v{t1}, 2, s30\nv_xor_b32 v{t0}, v{t0}, v{t2}')
        e(f'v_mul_u32_u24 v{t1}, {stride}, v{t1}\nv_lshl_add_u32 v{t0}, v{t0}, 4, v{t1}\nv_add_u32 v{vo+b}, s31, v{t0}')
def rows_dma(e, vo, srd, soff, ldsbase, ntile, stride, fl=''):
    e(f's_mul_i32 s30, s3, 3072\ns_add_u32 m0, s30, {ldsbase}')
    lp = e.label('L_rd')
    if ntile > 1: e(f's_mov_b32 s31, {ntile}\n{lp}:')
    for b in range(3):
        e(f's_nop 0\nbuffer_load_dwordx4 v{vo+b}, {srd}, s{soff} offen{fl} lds\ns_add_u32 m0, m0, {1024 if b < 2 else 12288-2048}')
    if ntile > 1: e(f's_add_u32 s{soff}, s{soff}, {16*stride}\ns_sub_u32 s31, s31, 1\ns_cmp_lg_u32 s31, 0\ns_cbranch_scc1 {lp}')
def rows_rd(e, va, base, t0, t1, t2):
    e(f'v_and_b32 v{t0}, 15, v0\nv_lshrrev_b32 v{t1}, 2, v{t0}\nv_lshlrev_b32 v{t1}, 1, v{t1}\ns_mov_b32 s30, 0x78\nv_lshrrev_b32 v{t1}, v{t1}, s30\nv_and_b32 v{t1}, 3, v{t1}')
    e(f'v_and_b32 v{t2}, 3, v0\nv_lshl_or_b32 v{t1}, v{t2}, 2, v{t1}\nv_lshrrev_b32 v{t2}, 4, v0\nv_xor_b32 v{t1}, v{t1}, v{t2}')
    e(f'v_mul_u32_u24 v{t0}, 768, v{t0}\nv_lshl_add_u32 v{t0}, v{t1}, 4, v{t0}\nv_add_u32 v{va}, {base}, v{t0}')
    for b in range(1, 4): e(f'v_xor_b32 v{va+b}, {64*b}, v{va}')
def rowgemm(e, va, ntile, BF, AFR, D, P, voff, soff):
    lp = e.label('L_rg')
    e(f's_mov_b32 s31, {ntile}\n{lp}:')
    for ks in range(12): e(f'ds_read_b128 {vr(AFR+4*ks)}, v{va+(ks&3)} offset:{256*(ks>>2)}')
    for ks in range(12):
        e(f's_waitcnt lgkmcnt({11-ks})\nv_mfma_f32_16x16x32_bf16 {vr(D)}, {vr(AFR+4*ks)}, {vr(BF+4*ks)}, {vr(D) if ks else 0}')
    for b in range(4): e(f'v_add_u32 v{va+b}, 12288, v{va+b}')
    e('s_nop 3')
    pack_store(e, D, P, voff, soff)
    e(f's_add_u32 s{soff}, s{soff}, 512\ns_sub_u32 s31, s31, 1\ns_cmp_lg_u32 s31, 0\ns_cbranch_scc1 {lp}')
def slab128_src(e, vo, stride, t0, t1):
    e(f'v_lshrrev_b32 v{vo}, 3, v0\nv_mul_u32_u24 v{vo}, {stride}, v{vo}')
    e(f'v_bfe_u32 v{t0}, v0, 4, 1\ns_and_b32 s30, s3, 1\ns_lshl_b32 s30, s30, 1\nv_or_b32 v{t0}, s30, v{t0}\nv_lshlrev_b32 v{t0}, 1, v{t0}')
    e(f'v_and_b32 v{t1}, 7, v0\nv_xor_b32 v{t0}, v{t0}, v{t1}\nv_lshl_add_u32 v{vo}, v{t0}, 4, v{vo}')
def slab128_dma(e, vo, srd, sj, stride, ldsbase, n=12, srow=None):
    e(f's_lshl_b32 s34, s{sj}, 7\ns_mul_i32 s30, s3, {8*stride}\ns_add_u32 s34, s34, s30\ns_lshl_b32 s30, s3, 10\ns_add_u32 m0, s30, {ldsbase}')
    lp = e.label('L_sl')
    if srow: e(f's_add_u32 s34, s34, s{srow}')
    e(f's_mov_b32 s31, {n}\n{lp}:\nbuffer_load_dwordx4 v{vo}, {srd}, s34 offen lds')
    e(f's_add_u32 s34, s34, {32*stride}\ns_add_u32 m0, m0, 4096\ns_sub_u32 s31, s31, 1\ns_cmp_lg_u32 s31, 0\ns_cbranch_scc1 {lp}')
def slab128_rd(e, vo, t0, t1):
    e(f'v_bfe_u32 v{t0}, v0, 2, 2\nv_lshrrev_b32 v{t1}, 4, v0\nv_lshlrev_b32 v{vo}, 10, v{t1}\nv_lshl_add_u32 v{vo}, v{t0}, 7, v{vo}')
    e(f'v_lshrrev_b32 v{t0}, 1, v{t0}\nv_and_b32 v{t1}, 1, v{t1}\nv_lshl_or_b32 v{t0}, v{t1}, 1, v{t0}\nv_lshl_add_u32 v{vo}, v{t0}, 5, v{vo}')
    e(f'v_and_b32 v{t0}, 3, v0\nv_lshl_add_u32 v{vo}, v{t0}, 3, v{vo}')
def slab32_src(e, vout, t, stride):
    e(f'v_lshrrev_b32 v{vout}, 1, v0\nv_bfe_u32 v{t}, v0, 4, 1\nv_lshlrev_b32 v{t}, 2, v{t}\nv_xor_b32 v{vout}, v{vout}, v{t}')
    e(f'v_mul_u32_u24 v{vout}, {stride}, v{vout}\nv_and_b32 v{t}, 1, v0\nv_lshl_add_u32 v{vout}, v{t}, 4, v{vout}')
def slab32_rd(e, v0_, v1_, t):
    e(f'v_lshrrev_b32 v{t}, 4, v0\nv_lshlrev_b32 v{v0_}, 8, v{t}\nv_and_b32 v{t}, 1, v{t}\nv_lshl_add_u32 v{v0_}, v{t}, 7, v{v0_}')
    e(f'v_and_b32 v{t}, 15, v0\nv_lshl_add_u32 v{v0_}, v{t}, 3, v{v0_}\nv_xor_b32 v{v1_}, 128, v{v0_}')
def ln_finish(e, s1, s2):
    e(f'v_mul_f32 v{s1}, {fx(1/384)}, v{s1}\nv_mul_f32 v{s2}, {fx(1/384)}, v{s2}\nv_fma_f32 v{s2}, -v{s1}, v{s1}, v{s2}\nv_max_f32 v{s2}, 0, v{s2}\nv_add_f32 v{s2}, {fx(1e-5)}, v{s2}\nv_rsq_f32 v{s2}, v{s2}')
```
